```python
import torch

def _softmax(x, axis=-1):
    return torch.softmax(x, dim=axis)
def _gelu(x):
    return torch.nn.functional.gelu(x, approximate="tanh")
def _silu(x):
    return torch.nn.functional.silu(x)
def _sigmoid(x):
    return torch.sigmoid(x)
def _layernorm(x, axis=-1, eps=1e-5):
    m = x.mean(dim=axis, keepdim=True)
    v = x.var(dim=axis, keepdim=True, unbiased=False)
    return (x - m) / torch.sqrt(v + eps)
def _scatter_add(tgt, idx, src, axis=0):
    return tgt.clone().index_add_(axis, idx, src)
def _segment_sum(src, seg, n):
    out = torch.zeros((n,) + src.shape[1:], dtype=src.dtype)
    return out.index_add_(0, seg, src)
def _pad(x, pw):
    flat = tuple(v for pair in reversed(pw) for v in pair)
    return torch.nn.functional.pad(x, flat)

kernel_name = 'concat_heads__gqa_block_cached__gqa_block_cached__near_ridge'

def setup_inputs():

    _w = (lambda a: (lambda t: t.to(torch.bfloat16) if t.is_floating_point() else t)(torch.as_tensor(a)))
    def _A_setup():
        B, Sq, D = 8, 112, 448
        Hq, Hkv, Sk, Dh = 16, 8, 2048, 256
        assert Hq % Hkv == 0, (Hq, Hkv)
        return {
            "x": _w((lambda *s: torch.randn(*s, dtype=torch.bfloat16) * 0.8)(B, Sq, D)),
            "k_cache": _w((lambda *s: torch.randn(*s, dtype=torch.bfloat16) * 0.8)(B, Hkv, Sk, Dh)),
            "v_cache": _w((lambda *s: torch.randn(*s, dtype=torch.bfloat16) * 0.05)(B, Hkv, Sk, Dh)),
            "wq": _w((lambda *s: torch.randn(*s, dtype=torch.bfloat16) * 0.8)(D, Hq * Dh) * (D ** -0.5)),
            "wo": _w((lambda *s: torch.randn(*s, dtype=torch.bfloat16) * 0.05)(Hq * Dh, D) * ((Hq * Dh) ** -0.5)),
        }
    _A_in = _A_setup()

    def _B_setup():
        B, Sq, D = 8, 112, 448
        Hq, Hkv, Sk, Dh = 16, 8, 2048, 256
        assert Hq % Hkv == 0, (Hq, Hkv)
        return {
            "x": _w((lambda *s: torch.randn(*s, dtype=torch.bfloat16) * 0.8)(B, Sq, D)),
            "k_cache": _w((lambda *s: torch.randn(*s, dtype=torch.bfloat16) * 0.8)(B, Hkv, Sk, Dh)),
            "v_cache": _w((lambda *s: torch.randn(*s, dtype=torch.bfloat16) * 0.05)(B, Hkv, Sk, Dh)),
            "wq": _w((lambda *s: torch.randn(*s, dtype=torch.bfloat16) * 0.8)(D, Hq * Dh) * (D ** -0.5)),
            "wo": _w((lambda *s: torch.randn(*s, dtype=torch.bfloat16) * 0.05)(Hq * Dh, D) * ((Hq * Dh) ** -0.5)),
        }
    _B_in = _B_setup()

    return {
        "A_x": _A_in["x"],
        "A_k_cache": _A_in["k_cache"],
        "A_v_cache": _A_in["v_cache"],
        "A_wq": _A_in["wq"],
        "A_wo": _A_in["wo"],
        "B_x": _B_in["x"],
        "B_k_cache": _B_in["k_cache"],
        "B_v_cache": _B_in["v_cache"],
        "B_wq": _B_in["wq"],
        "B_wo": _B_in["wo"],
    }

def reference(A_x, A_k_cache, A_v_cache, A_wq, A_wo, B_x, B_k_cache, B_v_cache, B_wq, B_wo):
    def _A_ref(x, k_cache, v_cache, wq, wo):
        B, Sq, D = x.shape
        Hq, Dh = 16, 256
        Hkv = k_cache.shape[1]
        rep = Hq // Hkv
        q = (lambda x, *d: x.permute(*d))((x @ wq).reshape(B, Sq, Hq, Dh), 0, 2, 1, 3)
        k = (lambda x, n, axis: torch.repeat_interleave(x, n, dim=axis))(k_cache, rep, axis=1)
        v = (lambda x, n, axis: torch.repeat_interleave(x, n, dim=axis))(v_cache, rep, axis=1)
        scores = torch.einsum("bhqd,bhkd->bhqk", q, k) * (Dh ** -0.5)
        p = _softmax(scores, axis=-1)
        o = torch.einsum("bhqk,bhkd->bhqd", p, v)
        return (lambda x, *d: x.permute(*d))(o, 0, 2, 1, 3).reshape(B, Sq, Hq * Dh) @ wo

    def _B_ref(x, k_cache, v_cache, wq, wo):
        B, Sq, D = x.shape
        Hq, Dh = 16, 256
        Hkv = k_cache.shape[1]
        rep = Hq // Hkv
        q = (lambda x, *d: x.permute(*d))((x @ wq).reshape(B, Sq, Hq, Dh), 0, 2, 1, 3)
        k = (lambda x, n, axis: torch.repeat_interleave(x, n, dim=axis))(k_cache, rep, axis=1)
        v = (lambda x, n, axis: torch.repeat_interleave(x, n, dim=axis))(v_cache, rep, axis=1)
        scores = torch.einsum("bhqd,bhkd->bhqk", q, k) * (Dh ** -0.5)
        p = _softmax(scores, axis=-1)
        o = torch.einsum("bhqk,bhkd->bhqd", p, v)
        return (lambda x, *d: x.permute(*d))(o, 0, 2, 1, 3).reshape(B, Sq, Hq * Dh) @ wo

    a = _A_ref(A_x, A_k_cache, A_v_cache, A_wq, A_wo)
    b = _B_ref(B_x, B_k_cache, B_v_cache, B_wq, B_wo)
    return torch.concatenate([a, b], axis=-1)
```

```python
NAME = "concat_heads__gqa_block_cached__gqa_block_cached__near_ridge"
def kernel_head(label):
    return [f".globl {label}", ".p2align 8", f".type {label},@function", f"{label}:"]
def kd(label, vgpr=256, sgpr=102, accum=256):
    return [".p2align 6", f".amdhsa_kernel {label}", f"  .amdhsa_next_free_vgpr {vgpr}", f"  .amdhsa_next_free_sgpr {sgpr}",
            f"  .amdhsa_accum_offset {accum}", "  .amdhsa_group_segment_fixed_size 0", "  .amdhsa_kernarg_size 104",
            "  .amdhsa_user_sgpr_count 2", "  .amdhsa_user_sgpr_kernarg_segment_ptr 1", "  .amdhsa_system_sgpr_workgroup_id_x 1",
            ".end_amdhsa_kernel"]
```

```python
import sys
from asmlib import *

NB = 64
SLOT = 16640
PIECE = 1040
RING0 = 16640
def slot(i): return RING0 + i * SLOT
TSLOT = 0
FLG = 16384
XB = slot(2)
XSTRIDE = 912
MISC = 155648
ALPHA = MISC
RL = MISC + 2048
KRING = [6, 7, 1, 3]
VRING = [0, 2, 4, 5]
PART_HEAD = 114688

S_X, S_WQ, S_K, S_V, S_WO, S_PT = 8, 12, 16, 20, 24, 28
sWAVE, sW4, sROT, sWLDS, sKOFF, sVOFF, sCNT, sBLK, sC, sT = 32, 33, 34, 35, 36, 37, 38, 39, 40, 41
sA, sB2, sD, sE, sHH, sPOFF, sSTRIP = 42, 43, 44, 45, 46, 47, 48
sTS = 60

class Em:
    def __init__(self):
        self.L = []; self.lg = []; self.vm = []; self.nbar = 0
    def I(self, s): self.L.append("    " + s)
    def lab(self, s): self.L.append(s + ":")
    def lds(self, s, tag): self.I(s); self.lg.append(tag)
    def vmem(self, s, tag): self.I(s); self.vm.append(tag)
    def _need(self, q, tags):
        idx = [i for i, t in enumerate(q) if t in tags]
        return None if not idx else max(idx)
    def wl(self, *tags):
        i = self._need(self.lg, tags)
        if i is None: return
        n = len(self.lg) - i - 1
        n = min(n, 15)
        self.I(f"s_waitcnt lgkmcnt({n})"); self.lg = self.lg[len(self.lg) - n:] if n else []
    def wv(self, *tags):
        i = self._need(self.vm, tags)
        if i is None: return
        n = min(len(self.vm) - i - 1, 63)
        self.I(f"s_waitcnt vmcnt({n})"); self.vm = self.vm[len(self.vm) - n:] if n else []
    def wl0(self):
        self.I("s_waitcnt lgkmcnt(0)"); self.lg = []
    def bar(self): self.I("s_barrier"); self.nbar += 1

def vr(a, n): return f"v[{a}:{a+n-1}]"
def mfma(d, a, b, c=None):
    return f"v_mfma_f32_32x32x16_bf16 {vr(d,16)}, {vr(a,4)}, {vr(b,4)}, " + ("0" if c == 0 else vr(d, 16))

def spread(nslots, fillers, first=0, last=None):
    last = nslots - 1 if last is None else last
    out = [[] for _ in range(nslots)]
    n = last - first + 1
    for i, f in enumerate(fillers):
        out[first + (i * n) // len(fillers)].append(f)
    return out

def gen(diag=False, kvnt=True, stnt=False):
    NT_ = " nt" if kvnt else ""
    E = Em(); I = E.I
    def stamp(e, k):
        if diag: e.I(f"s_memtime s[{sTS+2*k}:{sTS+2*k+1}]")
    head = [l for l in open("cdna_kernels/" + NAME + ".s.ref").read().split("\n") if l.startswith(";") and "@launch" not in l and "Override" not in l and "grid=ceil" not in l]
    head += [f"; @launch kernel={NAME}_kernel grid=(256,1,1) block=(512,1,1) lds=163840",
             "; @launch kernel=reduce_kernel grid=(448,1,1) block=(256,1,1) lds=0",
             '.amdgcn_target "amdgcn-amd-amdhsa--gfx950"', ".text"]
    E.L += kernel_head(NAME + "_kernel")
    I("s_cmp_ge_u32 s2, 256"); I("s_cbranch_scc1 L_done")
    if diag: I("s_memrealtime s[56:57]"); stamp(E, 0)
    I("s_and_b32 s3, s2, 7"); I("s_lshr_b32 s4, s2, 3"); I(f"s_and_b32 s{sHH}, s4, 1"); I("s_lshr_b32 s5, s4, 1")
    I("s_and_b32 s7, s5, 7"); I("s_lshr_b32 s6, s5, 3"); I(f"s_mul_i32 s{sA}, s6, 40")
    I(f"s_add_u32 s50, s0, s{sA}"); I("s_addc_u32 s51, s1, 0")
    I(f"s_load_dwordx2 s[{S_X}:{S_X+1}], s[50:51], 0")
    I(f"s_load_dwordx2 s[{S_K}:{S_K+1}], s[50:51], 8")
    I(f"s_load_dwordx2 s[{S_V}:{S_V+1}], s[50:51], 16")
    I(f"s_load_dwordx2 s[{S_WQ}:{S_WQ+1}], s[50:51], 24")
    I(f"s_load_dwordx2 s[{S_WO}:{S_WO+1}], s[50:51], 32")
    I(f"s_load_dwordx2 s[{S_PT}:{S_PT+1}], s[0:1], 96")
    if diag: I("s_load_dwordx2 s[58:59], s[0:1], 96")
    I("v_lshrrev_b32 v1, 6, v0"); I("v_and_b32 v0, 63, v0")
    I(f"v_readfirstlane_b32 s{sWAVE}, v1")
    I(f"s_lshl_b32 s4, s3, 1"); I(f"s_add_u32 s4, s4, s{sHH}")
    I(f"s_cmp_eq_u32 s7, 7"); I(f"s_cselect_b32 s{sROT}, 0, s7")
    I(f"s_and_b32 s{sW4}, s{sWAVE}, 3")
    I(f"s_mul_i32 s{sWLDS}, s{sW4}, {4*PIECE}")
    I(f"s_mov_b32 s{sC}, 0x3db8aa3b")
    I(f"s_mov_b32 s{sT}, 0x41000000")
    I("s_waitcnt lgkmcnt(0)")
    def srd(r, off_sgpr, size):
        I(f"s_add_u32 s{r}, s{r}, s{off_sgpr}"); I(f"s_addc_u32 s{r+1}, s{r+1}, 0")
        if isinstance(size, int): I(f"s_mov_b32 s{r+2}, {size}")
        else: I(size)
        I(f"s_mov_b32 s{r+3}, 0x20000")
    I(f"s_mul_i32 s{sA}, s7, 100352"); srd(S_X, sA, 100352)
    I(f"s_lshl_b32 s{sA}, s4, 9"); srd(S_WQ, sA, f"s_sub_u32 s{S_WQ+2}, {448*8192}, s{sA}")
    I(f"s_lshl_b32 s{sA}, s7, 3"); I(f"s_add_u32 s{sA}, s{sA}, s3"); I(f"s_lshl_b32 s{sA}, s{sA}, 20")
    srd(S_K, sA, 1 << 20); srd(S_V, sA, 1 << 20)
    I(f"s_mul_i32 s{sA}, s4, {256*896}"); srd(S_WO, sA, 256 * 896)
    I(f"s_lshl_b32 s{sA}, s5, 4"); I(f"s_add_u32 s{sA}, s{sA}, s4"); I(f"s_mul_i32 s{sA}, s{sA}, {PART_HEAD}"); srd(S_PT, sA, PART_HEAD)
    I(f"s_cmp_ge_u32 s{sWAVE}, 4"); I("s_cbranch_scc1 L_owave")

    def tr_lane(e, dst, t1, perm=False):
        e.I(f"v_bfe_u32 v{dst}, v0, 2, 2"); e.I(f"v_mul_u32_u24 v{dst}, {4*PIECE}, v{dst}")
        e.I(f"v_lshrrev_b32 v{t1}, 5, v0"); e.I(f"v_mul_u32_u24 v{t1}, {PIECE}, v{t1}"); e.I(f"v_add_u32 v{dst}, v{dst}, v{t1}")
        e.I(f"v_bfe_u32 v{t1}, v0, 4, 1"); e.I(f"v_lshl_add_u32 v{dst}, v{t1}, 5, v{dst}")
        if not perm:
            e.I(f"v_and_b32 v{t1}, 3, v0"); e.I(f"v_lshl_add_u32 v{dst}, v{t1}, 3, v{dst}")
        else:
            e.I(f"v_and_b32 v{t1}, 1, v0"); e.I(f"v_lshl_add_u32 v{dst}, v{t1}, 4, v{dst}")
            e.I(f"v_bfe_u32 v{t1}, v0, 1, 1"); e.I(f"v_lshl_add_u32 v{dst}, v{t1}, 3, v{dst}")

    WOSLOT = {}
    def oproj(e, half, fills_at, BF, ACC, AF, PK, vTA, vST, vT):
        I = e.I
        I(f"v_lshlrev_b32 v{vT}, 4, v0")
        I(f"s_mov_b32 s{sA}, {slot(VRING[1])}"); I(f"s_cmp_eq_u32 s{sW4}, 0"); I(f"s_cselect_b32 s{sA}, {slot(VRING[0])}, s{sA}")
        I(f"s_cmp_eq_u32 s{sW4}, 2"); I(f"s_cselect_b32 s{sA}, {slot(VRING[2])}, s{sA}")
        I(f"s_cmp_eq_u32 s{sW4}, 3"); I(f"s_cselect_b32 s{sA}, {slot(VRING[3])}, s{sA}")
        I(f"v_add_u32 v{vT}, s{sA}, v{vT}")
        for ks in range(16):
            e.lds(f"ds_read_b128 {vr(BF+4*ks,4)}, v{vT} offset:{ks*1024}", ("B", ks))
        tr_lane(e, vTA, vT)
        if half: I(f"v_add_u32 v{vTA}, 64, v{vTA}")
        I(f"s_mul_i32 s{sA}, s{sW4}, {14*2048}"); I(f"s_add_u32 s{sA}, s{sA}, {half*2048}")
        I(f"v_lshlrev_b32 v{vST}, 4, v0"); I(f"v_add_u32 v{vST}, s{sA}, v{vST}")
        I(f"s_mov_b32 s{sSTRIP}, s{sROT}")
        I(f"s_cmp_eq_u32 s{sW4}, 3"); I("s_cselect_b32 s52, 0xffff, -1"); I("s_mov_b32 s53, s52")
        cur = [None]
        def setbase(b):
            d = b - (cur[0] or 0)
            if d: I(f"v_add_u32 v{vTA}, {d & 0xffffffff}, v{vTA}")
            cur[0] = b
        seq = [(j, ks) for j in range(7) for ks in range(16)]
        def rd(n):
            j, ks = seq[n]
            setbase(WOSLOT[2 * j + ks // 8])
            for u in range(2):
                e.lds(f"ds_read_b64_tr_b16 {vr(AF+4*(n%4)+2*u,2)}, v{vTA} offset:{2*u*PIECE + (ks%8)*128}", ("A", n))
        def store(j):
            a = ACC + 16 * (j % 2)
            ops = [f"v_cvt_pk_bf16_f32 v{PK+n}, v{a+2*n}, v{a+2*n+1}" for n in range(8)]
            return ops
        def store2(j):
            I(f"s_lshl_b32 s{sA}, s{sSTRIP}, 12")
            I("s_mov_b64 exec, s[52:53]")
            fl = " nt" if stnt else ""
            e.vmem(f"buffer_store_dwordx4 {vr(PK,4)}, v{vST}, s[{S_PT}:{S_PT+3}], s{sA} offen{fl}", ("ST", j))
            e.vmem(f"buffer_store_dwordx4 {vr(PK+4,4)}, v{vST}, s[{S_PT}:{S_PT+3}], s{sA} offen offset:1024{fl}", ("ST", j))
            I("s_mov_b64 exec, -1")
            I(f"s_add_u32 s{sSTRIP}, s{sSTRIP}, 1"); I(f"s_cmp_eq_u32 s{sSTRIP}, 7"); I(f"s_cselect_b32 s{sSTRIP}, 0, s{sSTRIP}")
        for n in range(4): rd(n)
        e.wl(("B", 15))
        fills_at(e, ("pre", 0))
        e.bar()
        fills_at(e, ("post", 0))
        for j in range(7):
            fil = spread(16, store(j - 1), 4, 9) if j else [[] for _ in range(16)]
            for ks in range(16):
                n = 16 * j + ks
                e.wl(("A", n))
                I(mfma(ACC + 16 * (j % 2), AF + 4 * (n % 4), BF + 4 * ks, 0 if ks == 0 else None))
                if n + 4 < len(seq): rd(n + 4)
                for f in fil[ks]: I(f)
                if j and ks == 10: store2(j - 1)
            if j < 6:
                fills_at(e, ("pre", j + 1))
                e.bar()
                fills_at(e, ("post", j + 1))
        I("s_nop 7"); I("s_nop 3")
        for f in store(6): I(f)
        store2(6)

    vKA, vPW, vM, vL, vT0, vT1, vT2, vAW = 1, 2, 3, 4, 5, 6, 7, 8
    Q0, XR, ACC, AFQ = 16, 80, 192, 64
    SA, SB, KF, PO = 144, 160, 208, 224
    S = E
    tr_lane(S, vKA, vT0, perm=True)
    I(f"v_and_b32 v{vT0}, 31, v0"); I(f"v_and_b32 v{vT1}, 15, v0")
    I(f"s_cmp_eq_u32 s{sW4}, 3"); I("s_cselect_b64 vcc, -1, 0")
    I(f"v_cndmask_b32 v{vT0}, v{vT0}, v{vT1}, vcc")
    I(f"s_lshl_b32 s{sA}, s{sW4}, 5"); I(f"v_add_u32 v{vT0}, s{sA}, v{vT0}")
    I(f"v_mul_u32_u24 v{vT0}, {XSTRIDE}, v{vT0}")
    I(f"v_lshrrev_b32 v{vT1}, 5, v0"); I(f"v_lshl_add_u32 v{vT0}, v{vT1}, 4, v{vT0}")
    I(f"v_add_u32 v{vT0}, {XB}, v{vT0}")
    S.bar()
    stamp(S, 1)
    I(f"s_lshl_b32 s{sA}, s{sROT}, 7")
    for i in range(7):
        I(f"v_add_u32 v{vT1}, s{sA}, v{vT0}")
        for ks in range(4):
            S.lds(f"ds_read_b128 {vr(XR+16*i+4*ks,4)}, v{vT1} offset:{ks*32}", ("X", i))
        if i < 6:
            I(f"s_add_u32 s{sA}, s{sA}, 128"); I(f"s_cmp_eq_u32 s{sA}, 896"); I(f"s_cselect_b32 s{sA}, 0, s{sA}")
    WQSLOT = [TSLOT, slot(0), slot(1)] + [slot(2 + i) for i in range(6)] + [None] * 5
    for q in range(9, 14): WQSLOT[q] = WQSLOT[q - 8]
    curk = [0]
    def kbase(b):
        d = b - curk[0]
        if d: I(f"v_add_u32 v{vKA}, {d & 0xffffffff}, v{vKA}")
        curk[0] = b
    seqq = [(q, ks, dt) for q in range(14) for ks in range(4) for dt in range(4)]
    def rdq(n):
        q, ks, dt = seqq[n]
        kbase(WQSLOT[q])
        for u in range(2):
            S.lds(f"ds_read_b64_tr_b16 {vr(AFQ+4*(n%4)+2*u,2)}, v{vKA} offset:{2*u*PIECE + ks*256 + dt*64}", ("A", n))
    for n in range(4): rdq(n)
    S.wl(("X", 6))
    S.bar()
    for q in range(14):
        P_, i = divmod(q, 7)
        for m in range(16):
            n = 16 * q + m
            _, ks, dt = seqq[n]
            S.wl(("A", n))
            I(mfma(ACC + 16 * dt, AFQ + 4 * (n % 4), XR + 16 * i + 4 * ks, 0 if (i == 0 and ks == 0) else None))
            if n + 4 < len(seqq): rdq(n + 4)
        if q == 2:
            I(f"v_lshlrev_b32 v{vT0}, 2, v0"); I(f"v_mov_b32 v{vT1}, 0")
            S.lds(f"ds_write_b32 v{vT0}, v{vT1} offset:{FLG}", ("F", 0))
        if i == 6:
            I("s_nop 7"); I("s_nop 1")
            for dt in range(4):
                for n2 in range(8):
                    I(f"v_cvt_pk_bf16_f32 v{Q0+32*P_+8*dt+n2}, v{ACC+16*dt+2*n2}, v{ACC+16*dt+2*n2+1}")
        if q < 13: S.bar()
    I(f"v_and_b32 v{vKA}, 3, v0"); I(f"v_lshlrev_b32 v{vKA}, 2, v{vKA}")
    I(f"v_bfe_u32 v{vT0}, v0, 3, 1"); I(f"v_lshl_add_u32 v{vKA}, v{vT0}, 1, v{vKA}")
    I(f"v_bfe_u32 v{vT0}, v0, 2, 1"); I(f"v_add_u32 v{vKA}, v{vKA}, v{vT0}")
    I(f"v_mul_u32_u24 v{vKA}, {PIECE}, v{vKA}")
    I(f"v_bfe_u32 v{vT0}, v0, 4, 1"); I(f"v_lshl_add_u32 v{vKA}, v{vT0}, 9, v{vKA}")
    I(f"v_lshrrev_b32 v{vT0}, 5, v0"); I(f"v_lshl_add_u32 v{vKA}, v{vT0}, 4, v{vKA}")
    curk[0] = 0
    I(f"v_and_b32 v{vPW}, 31, v0"); I(f"v_lshlrev_b32 v{vPW}, 4, v{vPW}")
    I(f"v_lshl_add_u32 v{vPW}, v{vT0}, 13, v{vPW}")
    I(f"s_lshl_b32 s{sA}, s{sW4}, 10"); I(f"v_add_u32 v{vPW}, s{sA}, v{vPW}")
    I(f"v_and_b32 v{vAW}, 31, v0"); I(f"v_lshlrev_b32 v{vAW}, 2, v{vAW}")
    I(f"s_lshl_b32 s{sA}, s{sW4}, 7"); I(f"s_add_u32 s{sA}, s{sA}, {MISC}"); I(f"v_add_u32 v{vAW}, s{sA}, v{vAW}")
    I(f"v_mov_b32 v{vM}, 0x7149f2ca"); I(f"v_mov_b32 v{vL}, 0")
    I(f"s_mov_b32 s{sBLK}, 0")
    S.wl0()
    S.bar()
    stamp(S, 2)
    def rdk(p, s):
        kbase(slot(KRING[p % 4]))
        S.lds(f"ds_read_b128 {vr(KF+4*(s%4),4)}, v{vKA} offset:{s*32}", ("K", p, s))
    rare_sites = []
    def softmax_ops(sp, par, site):
        ops = []
        ops.append(f"v_max3_f32 v{vT0}, v{sp}, v{sp+1}, v{sp+2}")
        ops.append(f"v_max3_f32 v{vT1}, v{sp+3}, v{sp+4}, v{sp+5}")
        ops.append(f"v_max3_f32 v{vT0}, v{vT0}, v{sp+6}, v{sp+7}")
        ops.append(f"v_max3_f32 v{vT1}, v{vT1}, v{sp+8}, v{sp+9}")
        ops.append(f"v_max3_f32 v{vT0}, v{vT0}, v{sp+10}, v{sp+11}")
        ops.append(f"v_max3_f32 v{vT1}, v{vT1}, v{sp+12}, v{sp+13}")
        ops.append(f"v_max3_f32 v{vT0}, v{vT0}, v{sp+14}, v{sp+15}")
        ops.append(f"v_max_f32 v{vT0}, v{vT0}, v{vT1}")
        def check():
            I(f"v_fma_f32 v{vT1}, v{vT0}, s{sC}, v{vM}")
            I(f"v_cmp_lt_f32 vcc, s{sT}, v{vT1}")
            I(f"s_add_u32 s{sBLK}, s{sBLK}, 1")
            I(f"s_cbranch_vccnz L_rare_s{site}")
            S.lab(f"L_back_s{site}")
            rare_sites.append((site, par))
        ops.append(check)
        for k in range(16):
            ops.append(f"v_fma_f32 v{sp+k}, v{sp+k}, s{sC}, v{vM}")
            if k >= 1: ops.append(f"v_exp_f32 v{sp+k-1}, v{sp+k-1}")
            if k >= 3: ops.append(f"v_add_f32 v{vL}, v{vL}, v{sp+k-3}")
            if k >= 4 and k % 2 == 0: ops.append(f"v_cvt_pk_bf16_f32 v{PO+(k-4)//2}, v{sp+k-4}, v{sp+k-3}")
        ops.append(f"v_exp_f32 v{sp+15}, v{sp+15}")
        ops.append(f"v_add_f32 v{vL}, v{vL}, v{sp+13}")
        ops.append(f"v_cvt_pk_bf16_f32 v{PO+6}, v{sp+12}, v{sp+13}")
        ops.append(f"v_add_f32 v{vL}, v{vL}, v{sp+14}")
        ops.append(lambda: S.lds(f"ds_write_b128 v{vPW}, {vr(PO,4)} offset:{par*4096}", ("P", 0)))
        ops.append(f"v_add_f32 v{vL}, v{vL}, v{sp+15}")
        ops.append(f"v_cvt_pk_bf16_f32 v{PO+7}, v{sp+14}, v{sp+15}")
        ops.append(lambda: S.lds(f"ds_write_b128 v{vPW}, {vr(PO+4,4)} offset:{par*4096+512}", ("P", 1)))
        return ops
    def emit_items(items):
        for f in items:
            if callable(f): f()
            else: I(f)
    def s_phase(p, site):
        cur, prev = (SA, SB) if p % 2 == 0 else (SB, SA)
        do_qk, do_sm = p < NB, p >= 1
        sm = softmax_ops(prev, (p - 1) % 2, site) if do_sm else []
        if do_qk:
            if p == 0:
                for s in range(4): rdk(0, s)
            fil = spread(16, sm, 2, 11) if sm else [[] for _ in range(16)]
            for s in range(16):
                S.wl(("K", p, s))
                I(mfma(cur, KF + 4 * (s % 4), Q0 + 4 * s, 0 if s == 0 else None))
                if s == 12 and do_sm: pass
                if s + 4 < 16: rdk(p, s + 4)
                elif p + 1 < NB: rdk(p + 1, s - 12)
                emit_items(fil[s])
            S.wl(("P", 0), ("P", 1))
            if not do_sm or p + 1 >= NB: I("s_nop 7"); I("s_nop 3")
        else:
            emit_items(sm)
            I(f"v_mov_b32 v{vT0}, v{vL}"); I("s_nop 1"); I(f"v_permlane32_swap_b32 v{vL}, v{vT0}")
            I(f"v_add_f32 v{vL}, v{vL}, v{vT0}"); I(f"v_rcp_f32 v{vL}, v{vL}"); I("s_nop 0")
            S.lds(f"ds_write_b32 v{vAW}, v{vL} offset:{RL-MISC}", ("P", 2))
            S.wl0()
        S.bar()
    LOOP0, LOOPN = 5, 61
    for p in range(0, LOOP0): s_phase(p, p)
    I(f"s_mov_b32 s{sCNT}, {(LOOPN-LOOP0)//4}")
    S.lab("L_sloop")
    st = (list(S.lg), curk[0], S.nbar)
    for p in range(LOOP0, LOOP0 + 4): s_phase(p, p)
    assert [(t[0], t[1] - 4, t[2]) for t in S.lg] == st[0] and curk[0] == st[1], (S.lg, st)
    I(f"s_sub_u32 s{sCNT}, s{sCNT}, 1"); I(f"s_cmp_lg_u32 s{sCNT}, 0"); I("s_cbranch_scc1 L_sloop")
    S.lg = [(t[0], LOOPN, t[2]) for t in S.lg]
    S.nbar = st[2] + (LOOPN - LOOP0)
    for p in range(LOOPN, NB + 1): s_phase(p, p)
    stamp(S, 3)
    S.bar()
    S.bar()
    stamp(S, 4)
    kfree = [slot(KRING[(NB - 4 + i) % 4]) for i in range(4)]
    wl = kfree + [TSLOT] + [slot(v) for v in VRING]
    for i in range(9): WOSLOT[i] = wl[i]
    for i in range(9, 14): WOSLOT[i] = WOSLOT[i - 9]
    oproj(S, 0, lambda e, st: None, BF=16, ACC=96, AF=80, PK=128, vTA=1, vST=2, vT=5)
    stamp(S, 5)
    nbarS = S.nbar
    if diag:
        I(f"s_cmp_lg_u32 s{sWAVE}, 0"); I("s_cbranch_scc1 L_done")
        I("s_waitcnt vmcnt(0)")
        stamp(S, 6); I("s_memrealtime s[54:55]")
        I("s_waitcnt lgkmcnt(0)")
        I("s_mov_b64 exec, 1")
        I(f"s_lshl_b32 s{sA}, s2, 6"); I(f"s_add_u32 s{sA}, s{sA}, {64<<20}"); I(f"v_mov_b32 v1, s{sA}")
        I("v_mov_b32 v4, s56"); I("v_mov_b32 v5, s54")
        I(f"s_sub_u32 s{sA}, s{sTS+2}, s{sTS}"); I(f"v_mov_b32 v6, s{sA}")
        I(f"s_sub_u32 s{sA}, s{sTS+4}, s{sTS}"); I(f"v_mov_b32 v7, s{sA}")
        for k in range(3, 7):
            I(f"s_sub_u32 s{sA}, s{sTS+2*k}, s{sTS}"); I(f"v_mov_b32 v{5+k}, s{sA}")
        I("global_store_dwordx4 v1, v[4:7], s[58:59]"); I("global_store_dwordx4 v1, v[8:11], s[58:59] offset:16")
    I("s_endpgm")
    for site, par in rare_sites:
        S.lab(f"L_rare_s{site}")
        I(f"v_mov_b32 v{vT1}, v{vT0}"); I("s_nop 1"); I(f"v_permlane32_swap_b32 v{vT0}, v{vT1}")
        I(f"v_max_f32 v{vT0}, v{vT0}, v{vT1}")
        I(f"v_mul_f32 v{vT0}, s{sC}, v{vT0}")
        I(f"v_min_f32 v{vT0}, v{vM}, -v{vT0}".replace("v_min_f32", "v_min_f32_e64"))
        I(f"v_sub_f32 v{vT1}, v{vT0}, v{vM}")
        I(f"v_exp_f32 v{vT1}, v{vT1}")
        I(f"v_mov_b32 v{vM}, v{vT0}")
        I(f"v_mul_f32 v{vL}, v{vL}, v{vT1}")
        I(f"ds_write_b32 v{vAW}, v{vT1} offset:{par*1024}")
        I(f"s_lshl_b32 s{sA}, s{sW4}, 4"); I(f"v_mov_b32 v{vT0}, s{sA}"); I(f"v_mov_b32 v{vT2}, s{sBLK}")
        I(f"ds_write_b32 v{vT0}, v{vT2} offset:{FLG + par*128}")
        I("s_waitcnt lgkmcnt(0)")
        I(f"s_branch L_back_s{site}")

    O = Em(); O.L = E.L; I = O.I
    O.lab("L_owave")
    vVA, vDM, vWX = 1, 2, 3
    PF, VF, OA = 4, 16, 32
    NTILE = 4
    vL0 = 40
    I(f"v_lshlrev_b32 v{vWX}, 4, v0")
    I(f"s_mul_i32 s{sA}, s{sW4}, 28"); I(f"s_mul_i32 s{sB2}, s{sHH}, 14")
    I("s_mov_b32 exec_hi, 0x00ffffff")
    for i in range(28):
        I(f"s_add_u32 s{sD}, s{sA}, s{sB2}")
        I(f"s_mul_i32 s{sE}, s{sD}, {XSTRIDE}"); I(f"s_add_u32 m0, s{sE}, {XB}")
        I(f"s_mul_i32 s{sD}, s{sD}, 896")
        O.vmem(f"buffer_load_dwordx4 v{vWX}, s[{S_X}:{S_X+3}], s{sD} offen lds", ("X",))
        if i < 27:
            I(f"s_add_u32 s{sB2}, s{sB2}, 1"); I(f"s_cmp_eq_u32 s{sB2}, 28"); I(f"s_cselect_b32 s{sB2}, 0, s{sB2}")
    I("s_mov_b64 exec, -1")
    I(f"v_lshrrev_b32 v{vWX}, 4, v0"); I(f"v_lshlrev_b32 v{vWX}, 17, v{vWX}")
    I(f"v_and_b32 v4, 15, v0"); I(f"v_lshl_add_u32 v{vWX}, v4, 4, v{vWX}")
    I(f"s_lshl_b32 s{sA}, s{sW4}, 13"); I(f"v_add_u32 v{vWX}, s{sA}, v{vWX}")
    I(f"s_lshl_b32 s{sPOFF}, s{sROT}, 19")
    def fill_wq(q):
        for i in range(4):
            u, hi = i >> 1, i & 1
            I(f"s_add_u32 s{sD}, s{sPOFF}, {(8*hi + 4*u)*8192 + (q//7)*256}")
            I(f"s_add_u32 m0, s{sWLDS}, {WQSLOT[q] + i*PIECE}")
            I("s_nop 0")
            O.vmem(f"buffer_load_dwordx4 v{vWX}, s[{S_WQ}:{S_WQ+3}], s{sD} offen lds", ("WQ", q))
        I(f"s_add_u32 s{sPOFF}, s{sPOFF}, {1<<19}"); I(f"s_cmp_eq_u32 s{sPOFF}, {7<<19}"); I(f"s_cselect_b32 s{sPOFF}, 0, s{sPOFF}")
    for q in range(3): fill_wq(q)
    I(f"v_and_b32 v{vDM}, 31, v0"); I(f"v_lshlrev_b32 v{vDM}, 4, v{vDM}")
    I(f"v_lshrrev_b32 v4, 5, v0"); I(f"v_lshl_add_u32 v{vDM}, v4, 13, v{vDM}")
    I(f"s_lshl_b32 s{sKOFF}, s{sW4}, 11"); I(f"s_mov_b32 s{sVOFF}, s{sKOFF}")
    tr_lane(O, vVA, 4)
    I(f"s_lshl_b32 s{sA}, s{sW4}, 7"); I(f"v_add_u32 v{vVA}, s{sA}, v{vVA}")
    def kv_piece(kind, j, i):
        ring, srd_, off = (KRING, S_K, sKOFF) if kind == "K" else (VRING, S_V, sVOFF)
        I(f"s_add_u32 m0, s{sWLDS}, {slot(ring[j % 4]) + i*(PIECE-512)}")
        if i == 3: pass
        I("s_nop 0")
        O.vmem(f"buffer_load_dwordx4 v{vDM}, s[{srd_}:{srd_+3}], s{off} offen offset:{i*512}{NT_} lds", (kind, j))
        if i == 3: I(f"s_add_u32 s{off}, s{off}, 16384")
    def fill_kv(kind, j):
        for i in range(4): kv_piece(kind, j, i)
    O.wv(("X",), ("WQ", 0))
    O.bar()
    for r in range(OA, OA + 16 * 2 * NTILE): I(f"v_mov_b32 v{r}, 0")
    O.wv(("WQ", 1))
    O.bar()
    for q in range(3, 9): fill_wq(q)
    later = [("WQ", q) for q in range(9, 14)] + [("K", 0), ("K", 1), ("V", 0), ("K", 2)]
    freed_after = {}
    for q in range(14): freed_after.setdefault(WQSLOT[q], q); freed_after[WQSLOT[q]] = q
    def dest(f):
        if f[0] == "WQ": return WQSLOT[f[1]]
        return slot((KRING if f[0] == "K" else VRING)[f[1] % 4])
    def ready_at(f):
        if f[0] == "WQ": return f[1] - 8
        return freed_after[dest(f)]
    pend = list(later)
    for q in range(14):
        if q < 13:
            if q + 2 <= 13: O.wv(("WQ", q + 2))
            O.bar()
            while pend and ready_at(pend[0]) <= q:
                f = pend.pop(0)
                fill_wq(f[1]) if f[0] == "WQ" else fill_kv(*f)
    assert not pend, pend
    I(f"v_lshrrev_b32 v{vWX}, 3, v0"); I(f"v_mul_u32_u24 v{vWX}, {16*896}, v{vWX}")
    I(f"v_and_b32 v4, 7, v0"); I(f"v_lshl_add_u32 v{vWX}, v4, 4, v{vWX}")
    I(f"s_mul_i32 s{sA}, s{sW4}, 896"); I(f"v_add_u32 v{vWX}, s{sA}, v{vWX}")
    I(f"s_lshl_b32 s{sPOFF}, s{sROT}, 7")
    def wo_piece(f, i):
        I(f"s_add_u32 s{sD}, s{sPOFF}, {((f%2)*128 + 4*i)*896}")
        I(f"s_add_u32 m0, s{sWLDS}, {WOSLOT[f] + i*PIECE}")
        I("s_nop 0")
        O.vmem(f"buffer_load_dwordx4 v{vWX}, s[{S_WO}:{S_WO+3}], s{sD} offen lds", ("WO", f))
        if i == 3 and f % 2 == 1:
            I(f"s_add_u32 s{sPOFF}, s{sPOFF}, 128"); I(f"s_cmp_eq_u32 s{sPOFF}, 896"); I(f"s_cselect_b32 s{sPOFF}, 0, s{sPOFF}")
    def fill_wo(f):
        for i in range(4): wo_piece(f, i)
    I(f"s_mov_b32 s{sBLK}, 0")
    O.wv(("K", 0), ("K", 1))
    O.bar()
    curv = [0]
    def vbase(b):
        d = b - curv[0]
        if d: I(f"v_add_u32 v{vVA}, {d & 0xffffffff}, v{vVA}")
        curv[0] = b
    def rdv(j, k):
        vbase(slot(VRING[j % 4]))
        for dt in range(2):
            for u in range(2):
                O.lds(f"ds_read_b64_tr_b16 {vr(VF+8*k+4*dt+2*u,2)}, v{vVA} offset:{2*u*PIECE + k*512 + dt*64}", ("V", j, k))
    rare_o = []
    def o_phase(p, site):
        j = p - 2
        pieces = []
        if p + 1 < NB: pieces += [(lambda i=i: kv_piece("V", p + 1, i)) for i in range(4)]
        if p + 3 < NB: pieces += [(lambda i=i: kv_piece("K", p + 3, i)) for i in range(4)]
        elif p + 3 - NB < 4: pieces += [(lambda i=i: wo_piece(p + 3 - NB, i)) for i in range(4)]
        if j < 0:
            for f in pieces: f()
            if p == 1: rdv(0, 0)
        else:
            par = j % 2
            fr = [(t, k) for k in range(2) for t in range(NTILE)]
            def rdp(n):
                t, k = fr[n]
                O.lds(f"ds_read_b128 {vr(PF+4*(n%3),4)}, v{vDM} offset:{par*4096 + t*1024 + k*512}", ("P", n))
            O.lds(f"ds_read_b32 v0, v{vDM} offset:{FLG + par*128}", ("F",))
            for n in range(3): rdp(n)
            rdv(j, 1)
            I(f"s_add_u32 s{sBLK}, s{sBLK}, 1")
            O.wl(("F",))
            I(f"v_cmp_eq_u32 vcc, s{sBLK}, v0"); I("s_nop 1")
            I(f"s_and_b32 s{sA}, vcc_lo, {(1<<NTILE)-1}")
            I(f"s_cbranch_scc1 L_rare_o{site}")
            O.lab(f"L_back_o{site}")
            rare_o.append((site, par))
            fil = spread(len(fr), pieces) if pieces else [[] for _ in fr]
            for n, (t, k) in enumerate(fr):
                O.wl(("P", n), ("V", j, k))
                for dt in range(2):
                    I(mfma(OA + 32 * t + 16 * dt, VF + 8 * k + 4 * dt, PF + 4 * (n % 3)))
                if n + 3 < len(fr): rdp(n + 3)
                if n == NTILE - 1 and j + 1 < NB: rdv(j + 1, 0)
                for f in fil[n]: f()
        if p <= NB:
            O.wv(("K", p + 2), ("V", p))
            O.bar()
    for p in range(0, LOOP0): o_phase(p, p)
    I(f"s_mov_b32 s{sCNT}, {(LOOPN-LOOP0)//4}")
    O.lab("L_oloop")
    st = (list(O.lg), list(O.vm), curv[0], O.nbar)
    for p in range(LOOP0, LOOP0 + 4): o_phase(p, p)
    sh = lambda q, d: [(t[0], t[1] + d) + tuple(t[2:]) for t in q]
    assert sh(O.lg, -4) == st[0] and sh(O.vm, -4) == st[1] and curv[0] == st[2], (O.lg, O.vm, st)
    I(f"s_sub_u32 s{sCNT}, s{sCNT}, 1"); I(f"s_cmp_lg_u32 s{sCNT}, 0"); I("s_cbranch_scc1 L_oloop")
    d = LOOPN - LOOP0 - 4
    O.lg = sh(O.lg, d); O.vm = sh(O.vm, d); O.nbar = st[3] + (LOOPN - LOOP0)
    for p in range(LOOPN, NB + 2): o_phase(p, p)
    I(f"v_and_b32 v0, 0x1ff, v{vDM}"); I("v_lshrrev_b32 v0, 2, v0"); I(f"v_add_u32 v0, {RL}, v0")
    for t in range(NTILE): O.lds(f"ds_read_b32 v{PF+t}, v0 offset:{t*128}", ("R", t))
    I(f"v_mbcnt_lo_u32_b32 v0, -1, 0"); I("v_mbcnt_hi_u32_b32 v0, -1, v0")
    I("s_nop 7"); I("s_nop 3")
    O.wl0()
    for t in range(NTILE):
        for r in range(32): I(f"v_mul_f32 v{OA+32*t+r}, v{PF+t}, v{OA+32*t+r}")
        for n in range(16): I(f"v_cvt_pk_bf16_f32 v{OA+32*t+n}, v{OA+32*t+2*n}, v{OA+32*t+2*n+1}")
    I(f"v_lshlrev_b32 v{vVA}, 4, v0"); I(f"s_lshl_b32 s{sA}, s{sW4}, 12"); I(f"v_add_u32 v{vVA}, s{sA}, v{vVA}")
    O.bar()
    fill_wo(4)
    cur = 0
    for t in range(NTILE):
        dlt = slot(VRING[t]) - cur; cur = slot(VRING[t])
        I(f"v_add_u32 v{vVA}, {dlt & 0xffffffff}, v{vVA}")
        for ks in range(4):
            O.lds(f"ds_write_b128 v{vVA}, {vr(OA+32*t+4*ks,4)} offset:{ks*1024}", ("W",))
    O.wv(("WO", 0), ("WO", 1), ("WO", 2))
    O.wl0()
    O.bar()
    def fills_at(e, st):
        when, j = st
        if when == "pre":
            need = [("WO", f) for f in range(min(14, 2 * j + 3 if j else 3))]
            if j: need = [("WO", f) for f in range(min(14, 2 * j + 3))]
            e.wv(*need)
        else:
            if j == 0:
                for f in range(5, 9): fill_wo(f)
            else:
                for f in (9 + 2 * (j - 1), 10 + 2 * (j - 1)):
                    if f < 14: fill_wo(f)
    oproj(O, 1, fills_at, BF=32, ACC=112, AF=96, PK=144, vTA=1, vST=2, vT=5)
    assert O.nbar == nbarS, (O.nbar, nbarS)
    O.lab("L_done"); I("s_endpgm")
    for site, par in rare_o:
        O.lab(f"L_rare_o{site}")
        I("s_nop 7"); I("s_nop 7")
        for t in range(NTILE):
            I(f"s_bitcmp1_b32 s{sA}, {t}"); I(f"s_cbranch_scc0 L_rare_o{site}_{t}")
            I(f"v_and_b32 v0, 0x1ff, v{vDM}"); I("v_lshrrev_b32 v0, 2, v0"); I(f"v_add_u32 v0, {ALPHA + par*1024 + t*128}, v0")
            I("ds_read_b32 v0, v0"); I("s_waitcnt lgkmcnt(0)")
            for r in range(32): I(f"v_mul_f32 v{OA+32*t+r}, v0, v{OA+32*t+r}")
            O.lab(f"L_rare_o{site}_{t}")
        I("s_nop 1")
        I(f"s_branch L_back_o{site}")

    R = Em(); R.L = E.L; I = R.I
    R.L += kernel_head("reduce_kernel")
    I("s_cmp_ge_u32 s2, 448"); I("s_cbranch_scc1 L_rdone")
    I("s_load_dwordx2 s[8:9], s[0:1], 96"); I("s_load_dwordx2 s[12:13], s[0:1], 80")
    I("v_lshrrev_b32 v1, 6, v0"); I("v_and_b32 v0, 63, v0"); I("v_readfirstlane_b32 s3, v1")
    I("s_lshl_b32 s4, s2, 2"); I("s_add_u32 s4, s4, s3")
    I(f"s_mov_b32 s5, {(2**32 + 111)//112}"); I("s_mul_hi_u32 s5, s4, s5")
    I("s_mul_i32 s6, s5, 112"); I("s_sub_u32 s6, s4, s6")
    I(f"s_mov_b32 s7, {(2**32 + 27)//28}"); I("s_mul_hi_u32 s7, s6, s7")
    I("s_mul_i32 s16, s7, 28"); I("s_sub_u32 s16, s6, s16")
    I(f"s_mul_i32 s17, s5, {16*PART_HEAD}"); I("s_lshl_b32 s18, s6, 10"); I("s_add_u32 s17, s17, s18")
    I("v_lshlrev_b32 v2, 4, v0")
    I("s_cmp_eq_u32 s7, 3"); I("s_cselect_b32 s20, 0xffff, -1"); I("s_mov_b32 s21, s20")
    I("s_waitcnt lgkmcnt(0)")
    I("s_add_u32 s8, s8, s17"); I("s_addc_u32 s9, s9, 0"); I(f"s_mov_b32 s10, {15*PART_HEAD + 1024}"); I("s_mov_b32 s11, 0x20000")
    I(f"s_mov_b32 s14, {8*112*896*2}"); I("s_mov_b32 s15, 0x20000")
    I("s_mov_b64 exec, s[20:21]")
    I("s_mov_b32 s19, 0")
    for h in range(16):
        I(f"buffer_load_dwordx4 {vr(8+4*h,4)}, v2, s[8:11], s19 offen")
        if h < 15: I(f"s_add_u32 s19, s19, {PART_HEAD}")
    I("s_and_b32 s22, s5, 7"); I("s_mul_i32 s22, s22, 112"); I("s_lshl_b32 s23, s7, 5"); I("s_add_u32 s22, s22, s23")
    I("v_and_b32 v3, 31, v0"); I("v_add_u32 v3, s22, v3"); I("v_mul_u32_u24 v3, 1792, v3")
    I("s_lshr_b32 s22, s5, 3"); I("s_mul_i32 s22, s22, 896"); I("s_lshl_b32 s23, s16, 5"); I("s_add_u32 s22, s22, s23")
    I("v_lshrrev_b32 v4, 5, v0"); I("v_lshl_add_u32 v3, v4, 3, v3"); I("v_add_u32 v3, s22, v3")
    for h in range(16):
        I(f"s_waitcnt vmcnt({15-h})")
        for d_ in range(4):
            src = 8 + 4 * h + d_
            if h == 0:
                I(f"v_lshlrev_b32 v{72+2*d_}, 16, v{src}"); I(f"v_and_b32 v{73+2*d_}, 0xffff0000, v{src}")
            else:
                I(f"v_lshlrev_b32 v5, 16, v{src}"); I(f"v_and_b32 v6, 0xffff0000, v{src}")
                I(f"v_add_f32 v{72+2*d_}, v{72+2*d_}, v5"); I(f"v_add_f32 v{73+2*d_}, v{73+2*d_}, v6")
    for d_ in range(4): I(f"v_cvt_pk_bf16_f32 v{8+d_}, v{72+2*d_}, v{73+2*d_}")
    I("buffer_store_dwordx2 v[8:9], v3, s[12:15], 0 offen")
    I("buffer_store_dwordx2 v[10:11], v3, s[12:15], 0 offen offset:16")
    R.lab("L_rdone"); I("s_endpgm")
    tail = ['.section .rodata,"a"'] + kd(NAME + "_kernel") + kd("reduce_kernel", vgpr=80, sgpr=32, accum=80)
    return "\n".join(head + E.L + tail) + "\n"

if __name__ == "__main__":
    kw = eval("dict(%s)" % (sys.argv[2] if len(sys.argv) > 2 else ""))
    open(sys.argv[1], "w").write(gen(**kw))
```

```python
import sys
from asmlib import *

NB = 64
SLOT = 16640
PIECE = 1040
RING0 = 16640
def slot(i): return RING0 + i * SLOT
TSLOT = 0
FLG = 16384
XB = slot(2)
XSTRIDE = 912
MISC = 155648
ALPHA = MISC
RL = MISC + 2048
KRING = [6, 7, 1, 3]
VRING = [0, 2, 4, 5]
PART_HEAD = 114688

S_X, S_WQ, S_K, S_V, S_WO, S_PT = 8, 12, 16, 20, 24, 28
sWAVE, sW4, sROT, sWLDS, sKOFF, sVOFF, sCNT, sBLK, sC, sT = 32, 33, 34, 35, 36, 37, 38, 39, 40, 41
sA, sB2, sD, sE, sHH, sPOFF, sSTRIP = 42, 43, 44, 45, 46, 47, 48
sTS = 60

class Em:
    def __init__(self):
        self.L = []; self.lg = []; self.vm = []; self.nbar = 0
    def I(self, s): self.L.append("    " + s)
    def lab(self, s): self.L.append(s + ":")
    def lds(self, s, tag): self.I(s); self.lg.append(tag)
    def vmem(self, s, tag): self.I(s); self.vm.append(tag)
    def _need(self, q, tags):
        idx = [i for i, t in enumerate(q) if t in tags]
        return None if not idx else max(idx)
    def wl(self, *tags):
        i = self._need(self.lg, tags)
        if i is None: return
        n = len(self.lg) - i - 1
        n = min(n, 15)
        self.I(f"s_waitcnt lgkmcnt({n})"); self.lg = self.lg[len(self.lg) - n:] if n else []
    def wv(self, *tags):
        i = self._need(self.vm, tags)
        if i is None: return
        n = min(len(self.vm) - i - 1, 63)
        self.I(f"s_waitcnt vmcnt({n})"); self.vm = self.vm[len(self.vm) - n:] if n else []
    def wl0(self):
        self.I("s_waitcnt lgkmcnt(0)"); self.lg = []
    def bar(self): self.I("s_barrier"); self.nbar += 1

def vr(a, n): return f"v[{a}:{a+n-1}]"
def mfma(d, a, b, c=None):
    return f"v_mfma_f32_32x32x16_bf16 {vr(d,16)}, {vr(a,4)}, {vr(b,4)}, " + ("0" if c == 0 else vr(d, 16))

def spread(nslots, fillers, first=0, last=None):
    last = nslots - 1 if last is None else last
    out = [[] for _ in range(nslots)]
    n = last - first + 1
    for i, f in enumerate(fillers):
        out[first + (i * n) // len(fillers)].append(f)
    return out

def gen(diag=False, kvnt=True, stnt=False):
    NT_ = " nt" if kvnt else ""
    E = Em(); I = E.I
    def stamp(e, k):
        if diag:
            e.I(f"s_memtime s[{sTS+4*k}:{sTS+4*k+1}]"); e.I(f"s_memrealtime s[{sTS+4*k+2}:{sTS+4*k+3}]")
    head = [l for l in open("cdna_kernels/" + NAME + ".s.ref").read().split("\n") if l.startswith(";") and "@launch" not in l and "Override" not in l and "grid=ceil" not in l]
    head += [f"; @launch kernel={NAME}_kernel grid=(256,1,1) block=(512,1,1) lds=163840",
             "; @launch kernel=reduce_kernel grid=(448,1,1) block=(256,1,1) lds=0",
             '.amdgcn_target "amdgcn-amd-amdhsa--gfx950"', ".text"]
    E.L += kernel_head(NAME + "_kernel")
    I("s_cmp_ge_u32 s2, 256"); I("s_cbranch_scc1 L_done")
    stamp(E, 0)
    I("s_and_b32 s3, s2, 7"); I("s_lshr_b32 s4, s2, 3"); I(f"s_and_b32 s{sHH}, s4, 1"); I("s_lshr_b32 s5, s4, 1")
    I("s_and_b32 s7, s5, 7"); I("s_lshr_b32 s6, s5, 3"); I(f"s_mul_i32 s{sA}, s6, 40")
    I(f"s_add_u32 s50, s0, s{sA}"); I("s_addc_u32 s51, s1, 0")
    I(f"s_load_dwordx2 s[{S_X}:{S_X+1}], s[50:51], 0")
    I(f"s_load_dwordx2 s[{S_K}:{S_K+1}], s[50:51], 8")
    I(f"s_load_dwordx2 s[{S_V}:{S_V+1}], s[50:51], 16")
    I(f"s_load_dwordx2 s[{S_WQ}:{S_WQ+1}], s[50:51], 24")
    I(f"s_load_dwordx2 s[{S_WO}:{S_WO+1}], s[50:51], 32")
    I(f"s_load_dwordx2 s[{S_PT}:{S_PT+1}], s[0:1], 96")
    if diag: I("s_load_dwordx2 s[58:59], s[0:1], 96")
    I("v_lshrrev_b32 v1, 6, v0"); I("v_and_b32 v0, 63, v0")
    I(f"v_readfirstlane_b32 s{sWAVE}, v1")
    I(f"s_lshl_b32 s4, s3, 1"); I(f"s_add_u32 s4, s4, s{sHH}")
    I(f"s_cmp_eq_u32 s7, 7"); I(f"s_cselect_b32 s{sROT}, 0, s7")
    I(f"s_and_b32 s{sW4}, s{sWAVE}, 3")
    I(f"s_mul_i32 s{sWLDS}, s{sW4}, {4*PIECE}")
    I(f"s_mov_b32 s{sC}, 0x3db8aa3b")
    I(f"s_mov_b32 s{sT}, 0x41000000")
    I("s_waitcnt lgkmcnt(0)")
    def srd(r, off_sgpr, size):
        I(f"s_add_u32 s{r}, s{r}, s{off_sgpr}"); I(f"s_addc_u32 s{r+1}, s{r+1}, 0")
        if isinstance(size, int): I(f"s_mov_b32 s{r+2}, {size}")
        else: I(size)
        I(f"s_mov_b32 s{r+3}, 0x20000")
    I(f"s_mul_i32 s{sA}, s7, 100352"); srd(S_X, sA, 100352)
    I(f"s_lshl_b32 s{sA}, s4, 9"); srd(S_WQ, sA, f"s_sub_u32 s{S_WQ+2}, {448*8192}, s{sA}")
    I(f"s_lshl_b32 s{sA}, s7, 3"); I(f"s_add_u32 s{sA}, s{sA}, s3"); I(f"s_lshl_b32 s{sA}, s{sA}, 20")
    srd(S_K, sA, 1 << 20); srd(S_V, sA, 1 << 20)
    I(f"s_mul_i32 s{sA}, s4, {256*896}"); srd(S_WO, sA, 256 * 896)
    I(f"s_lshl_b32 s{sA}, s5, 4"); I(f"s_add_u32 s{sA}, s{sA}, s4"); I(f"s_mul_i32 s{sA}, s{sA}, {PART_HEAD}"); srd(S_PT, sA, PART_HEAD)
    I(f"s_cmp_ge_u32 s{sWAVE}, 4"); I("s_cbranch_scc1 L_owave")

    def tr_lane(e, dst, t1, perm=False):
        e.I(f"v_bfe_u32 v{dst}, v0, 2, 2"); e.I(f"v_mul_u32_u24 v{dst}, {4*PIECE}, v{dst}")
        e.I(f"v_lshrrev_b32 v{t1}, 5, v0"); e.I(f"v_mul_u32_u24 v{t1}, {PIECE}, v{t1}"); e.I(f"v_add_u32 v{dst}, v{dst}, v{t1}")
        e.I(f"v_bfe_u32 v{t1}, v0, 4, 1"); e.I(f"v_lshl_add_u32 v{dst}, v{t1}, 5, v{dst}")
        if not perm:
            e.I(f"v_and_b32 v{t1}, 3, v0"); e.I(f"v_lshl_add_u32 v{dst}, v{t1}, 3, v{dst}")
        else:
            e.I(f"v_and_b32 v{t1}, 1, v0"); e.I(f"v_lshl_add_u32 v{dst}, v{t1}, 4, v{dst}")
            e.I(f"v_bfe_u32 v{t1}, v0, 1, 1"); e.I(f"v_lshl_add_u32 v{dst}, v{t1}, 3, v{dst}")

    WOSLOT = {}
    def oproj(e, half, fills_at, BF, ACC, AF, PK, vTA, vST, vT):
        I = e.I
        I(f"v_lshlrev_b32 v{vT}, 4, v0")
        I(f"s_mov_b32 s{sA}, {slot(VRING[1])}"); I(f"s_cmp_eq_u32 s{sW4}, 0"); I(f"s_cselect_b32 s{sA}, {slot(VRING[0])}, s{sA}")
        I(f"s_cmp_eq_u32 s{sW4}, 2"); I(f"s_cselect_b32 s{sA}, {slot(VRING[2])}, s{sA}")
        I(f"s_cmp_eq_u32 s{sW4}, 3"); I(f"s_cselect_b32 s{sA}, {slot(VRING[3])}, s{sA}")
        I(f"v_add_u32 v{vT}, s{sA}, v{vT}")
        for ks in range(16):
            e.lds(f"ds_read_b128 {vr(BF+4*ks,4)}, v{vT} offset:{ks*1024}", ("B", ks))
        tr_lane(e, vTA, vT)
        if half: I(f"v_add_u32 v{vTA}, 64, v{vTA}")
        I(f"s_mul_i32 s{sA}, s{sW4}, {14*2048}"); I(f"s_add_u32 s{sA}, s{sA}, {half*2048}")
        I(f"v_lshlrev_b32 v{vST}, 4, v0"); I(f"v_add_u32 v{vST}, s{sA}, v{vST}")
        I(f"s_mov_b32 s{sSTRIP}, s{sROT}")
        I(f"s_cmp_eq_u32 s{sW4}, 3"); I("s_cselect_b32 s52, 0xffff, -1"); I("s_mov_b32 s53, s52")
        cur = [None]
        def setbase(b):
            d = b - (cur[0] or 0)
            if d: I(f"v_add_u32 v{vTA}, {d & 0xffffffff}, v{vTA}")
            cur[0] = b
        seq = [(j, ks) for j in range(7) for ks in range(16)]
        def rd(n):
            j, ks = seq[n]
            setbase(WOSLOT[2 * j + ks // 8])
            for u in range(2):
                e.lds(f"ds_read_b64_tr_b16 {vr(AF+4*(n%4)+2*u,2)}, v{vTA} offset:{2*u*PIECE + (ks%8)*128}", ("A", n))
        def store(j):
            a = ACC + 16 * (j % 2)
            ops = [f"v_cvt_pk_bf16_f32 v{PK+n}, v{a+2*n}, v{a+2*n+1}" for n in range(8)]
            return ops
        def store2(j):
            I(f"s_lshl_b32 s{sA}, s{sSTRIP}, 12")
            I("s_mov_b64 exec, s[52:53]")
            fl = " nt" if stnt else ""
            e.vmem(f"buffer_store_dwordx4 {vr(PK,4)}, v{vST}, s[{S_PT}:{S_PT+3}], s{sA} offen{fl}", ("ST", j))
            e.vmem(f"buffer_store_dwordx4 {vr(PK+4,4)}, v{vST}, s[{S_PT}:{S_PT+3}], s{sA} offen offset:1024{fl}", ("ST", j))
            I("s_mov_b64 exec, -1")
            I(f"s_add_u32 s{sSTRIP}, s{sSTRIP}, 1"); I(f"s_cmp_eq_u32 s{sSTRIP}, 7"); I(f"s_cselect_b32 s{sSTRIP}, 0, s{sSTRIP}")
        for n in range(4): rd(n)
        e.wl(("B", 15))
        fills_at(e, ("pre", 0))
        e.bar()
        fills_at(e, ("post", 0))
        for j in range(7):
            fil = spread(16, store(j - 1), 4, 9) if j else [[] for _ in range(16)]
            for ks in range(16):
                n = 16 * j + ks
                e.wl(("A", n))
                I(mfma(ACC + 16 * (j % 2), AF + 4 * (n % 4), BF + 4 * ks, 0 if ks == 0 else None))
                if n + 4 < len(seq): rd(n + 4)
                for f in fil[ks]: I(f)
                if j and ks == 10: store2(j - 1)
            if j < 6:
                fills_at(e, ("pre", j + 1))
                e.bar()
                fills_at(e, ("post", j + 1))
        I("s_nop 7"); I("s_nop 3")
        for f in store(6): I(f)
        store2(6)

    vKA, vPW, vM, vL, vT0, vT1, vT2, vAW = 1, 2, 3, 4, 5, 6, 7, 8
    Q0, XR, ACC, AFQ = 16, 80, 192, 64
    SA, SB, KF, PO = 144, 160, 208, 224
    S = E
    tr_lane(S, vKA, vT0, perm=True)
    I(f"v_and_b32 v{vT0}, 31, v0"); I(f"v_and_b32 v{vT1}, 15, v0")
    I(f"s_cmp_eq_u32 s{sW4}, 3"); I("s_cselect_b64 vcc, -1, 0")
    I(f"v_cndmask_b32 v{vT0}, v{vT0}, v{vT1}, vcc")
    I(f"s_lshl_b32 s{sA}, s{sW4}, 5"); I(f"v_add_u32 v{vT0}, s{sA}, v{vT0}")
    I(f"v_mul_u32_u24 v{vT0}, {XSTRIDE}, v{vT0}")
    I(f"v_lshrrev_b32 v{vT1}, 5, v0"); I(f"v_lshl_add_u32 v{vT0}, v{vT1}, 4, v{vT0}")
    I(f"v_add_u32 v{vT0}, {XB}, v{vT0}")
    S.bar()
    stamp(S, 1)
    I(f"s_lshl_b32 s{sA}, s{sROT}, 7")
    for i in range(7):
        I(f"v_add_u32 v{vT1}, s{sA}, v{vT0}")
        for ks in range(4):
            S.lds(f"ds_read_b128 {vr(XR+16*i+4*ks,4)}, v{vT1} offset:{ks*32}", ("X", i))
        if i < 6:
            I(f"s_add_u32 s{sA}, s{sA}, 128"); I(f"s_cmp_eq_u32 s{sA}, 896"); I(f"s_cselect_b32 s{sA}, 0, s{sA}")
    WQSLOT = [TSLOT, slot(0), slot(1)] + [slot(2 + i) for i in range(6)] + [None] * 5
    for q in range(9, 14): WQSLOT[q] = WQSLOT[q - 8]
    curk = [0]
    def kbase(b):
        d = b - curk[0]
        if d: I(f"v_add_u32 v{vKA}, {d & 0xffffffff}, v{vKA}")
        curk[0] = b
    seqq = [(q, ks, dt) for q in range(14) for ks in range(4) for dt in range(4)]
    def rdq(n):
        q, ks, dt = seqq[n]
        kbase(WQSLOT[q])
        for u in range(2):
            S.lds(f"ds_read_b64_tr_b16 {vr(AFQ+4*(n%4)+2*u,2)}, v{vKA} offset:{2*u*PIECE + ks*256 + dt*64}", ("A", n))
    for n in range(4): rdq(n)
    S.wl(("X", 6))
    S.bar()
    for q in range(14):
        P_, i = divmod(q, 7)
        for m in range(16):
            n = 16 * q + m
            _, ks, dt = seqq[n]
            S.wl(("A", n))
            I(mfma(ACC + 16 * dt, AFQ + 4 * (n % 4), XR + 16 * i + 4 * ks, 0 if (i == 0 and ks == 0) else None))
            if n + 4 < len(seqq): rdq(n + 4)
        if q == 2:
            I(f"v_lshlrev_b32 v{vT0}, 2, v0"); I(f"v_mov_b32 v{vT1}, 0")
            S.lds(f"ds_write_b32 v{vT0}, v{vT1} offset:{FLG}", ("F", 0))
        if i == 6:
            I("s_nop 7"); I("s_nop 1")
            for dt in range(4):
                for n2 in range(8):
                    I(f"v_cvt_pk_bf16_f32 v{Q0+32*P_+8*dt+n2}, v{ACC+16*dt+2*n2}, v{ACC+16*dt+2*n2+1}")
        if q < 13: S.bar()
    I(f"v_and_b32 v{vKA}, 3, v0"); I(f"v_lshlrev_b32 v{vKA}, 2, v{vKA}")
    I(f"v_bfe_u32 v{vT0}, v0, 3, 1"); I(f"v_lshl_add_u32 v{vKA}, v{vT0}, 1, v{vKA}")
    I(f"v_bfe_u32 v{vT0}, v0, 2, 1"); I(f"v_add_u32 v{vKA}, v{vKA}, v{vT0}")
    I(f"v_mul_u32_u24 v{vKA}, {PIECE}, v{vKA}")
    I(f"v_bfe_u32 v{vT0}, v0, 4, 1"); I(f"v_lshl_add_u32 v{vKA}, v{vT0}, 9, v{vKA}")
    I(f"v_lshrrev_b32 v{vT0}, 5, v0"); I(f"v_lshl_add_u32 v{vKA}, v{vT0}, 4, v{vKA}")
    curk[0] = 0
    I(f"v_and_b32 v{vPW}, 31, v0"); I(f"v_lshlrev_b32 v{vPW}, 4, v{vPW}")
    I(f"v_lshl_add_u32 v{vPW}, v{vT0}, 13, v{vPW}")
    I(f"s_lshl_b32 s{sA}, s{sW4}, 10"); I(f"v_add_u32 v{vPW}, s{sA}, v{vPW}")
    I(f"v_and_b32 v{vAW}, 31, v0"); I(f"v_lshlrev_b32 v{vAW}, 2, v{vAW}")
    I(f"s_lshl_b32 s{sA}, s{sW4}, 7"); I(f"s_add_u32 s{sA}, s{sA}, {MISC}"); I(f"v_add_u32 v{vAW}, s{sA}, v{vAW}")
    I(f"v_mov_b32 v{vM}, 0x7149f2ca"); I(f"v_mov_b32 v{vL}, 0")
    I(f"s_mov_b32 s{sBLK}, 0")
    S.wl0()
    S.bar()
    stamp(S, 2)
    def rdk(p, s):
        kbase(slot(KRING[p % 4]))
        S.lds(f"ds_read_b128 {vr(KF+4*(s%4),4)}, v{vKA} offset:{s*32}", ("K", p, s))
    rare_sites = []
    def softmax_ops(sp, par, site):
        ops = []
        ops.append(f"v_max3_f32 v{vT0}, v{sp}, v{sp+1}, v{sp+2}")
        ops.append(f"v_max3_f32 v{vT1}, v{sp+3}, v{sp+4}, v{sp+5}")
        ops.append(f"v_max3_f32 v{vT0}, v{vT0}, v{sp+6}, v{sp+7}")
        ops.append(f"v_max3_f32 v{vT1}, v{vT1}, v{sp+8}, v{sp+9}")
        ops.append(f"v_max3_f32 v{vT0}, v{vT0}, v{sp+10}, v{sp+11}")
        ops.append(f"v_max3_f32 v{vT1}, v{vT1}, v{sp+12}, v{sp+13}")
        ops.append(f"v_max3_f32 v{vT0}, v{vT0}, v{sp+14}, v{sp+15}")
        ops.append(f"v_max_f32 v{vT0}, v{vT0}, v{vT1}")
        def check():
            I(f"v_fma_f32 v{vT1}, v{vT0}, s{sC}, v{vM}")
            I(f"v_cmp_lt_f32 vcc, s{sT}, v{vT1}")
            I(f"s_add_u32 s{sBLK}, s{sBLK}, 1")
            I(f"s_cbranch_vccnz L_rare_s{site}")
            S.lab(f"L_back_s{site}")
            rare_sites.append((site, par))
        ops.append(check)
        for k in range(16):
            ops.append(f"v_fma_f32 v{sp+k}, v{sp+k}, s{sC}, v{vM}")
            if k >= 1: ops.append(f"v_exp_f32 v{sp+k-1}, v{sp+k-1}")
            if k >= 3: ops.append(f"v_add_f32 v{vL}, v{vL}, v{sp+k-3}")
            if k >= 4 and k % 2 == 0: ops.append(f"v_cvt_pk_bf16_f32 v{PO+(k-4)//2}, v{sp+k-4}, v{sp+k-3}")
        ops.append(f"v_exp_f32 v{sp+15}, v{sp+15}")
        ops.append(f"v_add_f32 v{vL}, v{vL}, v{sp+13}")
        ops.append(f"v_cvt_pk_bf16_f32 v{PO+6}, v{sp+12}, v{sp+13}")
        ops.append(f"v_add_f32 v{vL}, v{vL}, v{sp+14}")
        ops.append(lambda: S.lds(f"ds_write_b128 v{vPW}, {vr(PO,4)} offset:{par*4096}", ("P", 0)))
        ops.append(f"v_add_f32 v{vL}, v{vL}, v{sp+15}")
        ops.append(f"v_cvt_pk_bf16_f32 v{PO+7}, v{sp+14}, v{sp+15}")
        ops.append(lambda: S.lds(f"ds_write_b128 v{vPW}, {vr(PO+4,4)} offset:{par*4096+512}", ("P", 1)))
        return ops
    def emit_items(items):
        for f in items:
            if callable(f): f()
            else: I(f)
    def s_phase(p, site):
        cur, prev = (SA, SB) if p % 2 == 0 else (SB, SA)
        do_qk, do_sm = p < NB, p >= 1
        sm = softmax_ops(prev, (p - 1) % 2, site) if do_sm else []
        if do_qk:
            if p == 0:
                for s in range(4): rdk(0, s)
            fil = spread(16, sm, 2, 11) if sm else [[] for _ in range(16)]
            for s in range(16):
                S.wl(("K", p, s))
                I(mfma(cur, KF + 4 * (s % 4), Q0 + 4 * s, 0 if s == 0 else None))
                if s == 12 and do_sm: pass
                if s + 4 < 16: rdk(p, s + 4)
                elif p + 1 < NB: rdk(p + 1, s - 12)
                emit_items(fil[s])
            S.wl(("P", 0), ("P", 1))
            if not do_sm or p + 1 >= NB: I("s_nop 7"); I("s_nop 3")
        else:
            emit_items(sm)
            I(f"v_mov_b32 v{vT0}, v{vL}"); I("s_nop 1"); I(f"v_permlane32_swap_b32 v{vL}, v{vT0}")
            I(f"v_add_f32 v{vL}, v{vL}, v{vT0}"); I(f"v_rcp_f32 v{vL}, v{vL}"); I("s_nop 0")
            S.lds(f"ds_write_b32 v{vAW}, v{vL} offset:{RL-MISC}", ("P", 2))
            S.wl0()
        S.bar()
    LOOP0, LOOPN = 5, 61
    for p in range(0, LOOP0): s_phase(p, p)
    stamp(S, 3)
    I(f"s_mov_b32 s{sCNT}, {(LOOPN-LOOP0)//4}")
    S.lab("L_sloop")
    st = (list(S.lg), curk[0], S.nbar)
    for p in range(LOOP0, LOOP0 + 4): s_phase(p, p)
    assert [(t[0], t[1] - 4, t[2]) for t in S.lg] == st[0] and curk[0] == st[1], (S.lg, st)
    I(f"s_sub_u32 s{sCNT}, s{sCNT}, 1"); I(f"s_cmp_lg_u32 s{sCNT}, 0"); I("s_cbranch_scc1 L_sloop")
    stamp(S, 4)
    S.lg = [(t[0], LOOPN, t[2]) for t in S.lg]
    S.nbar = st[2] + (LOOPN - LOOP0)
    for p in range(LOOPN, NB + 1): s_phase(p, p)
    stamp(S, 5)
    S.bar()
    S.bar()
    stamp(S, 6)
    kfree = [slot(KRING[(NB - 4 + i) % 4]) for i in range(4)]
    wl = kfree + [TSLOT] + [slot(v) for v in VRING]
    for i in range(9): WOSLOT[i] = wl[i]
    for i in range(9, 14): WOSLOT[i] = WOSLOT[i - 9]
    oproj(S, 0, lambda e, st: None, BF=16, ACC=96, AF=80, PK=128, vTA=1, vST=2, vT=5)
    stamp(S, 7)
    nbarS = S.nbar
    if diag:
        I(f"s_cmp_lg_u32 s{sWAVE}, 0"); I("s_cbranch_scc1 L_done")
        I("s_waitcnt vmcnt(0)")
        stamp(S, 8)
        I("s_waitcnt lgkmcnt(0)")
        I("s_mov_b64 exec, 1")
        I(f"s_lshl_b32 s{sA}, s2, 7"); I(f"s_add_u32 s{sA}, s{sA}, {64<<20}"); I(f"v_mov_b32 v1, s{sA}")
        for k in range(9):
            I(f"v_mov_b32 v4, s{sTS+4*k}"); I(f"v_mov_b32 v5, s{sTS+4*k+2}")
            I(f"global_store_dwordx2 v1, v[4:5], s[58:59] offset:{8*k}")
            I("s_nop 1")
    I("s_endpgm")
    for site, par in rare_sites:
        S.lab(f"L_rare_s{site}")
        I(f"v_mov_b32 v{vT1}, v{vT0}"); I("s_nop 1"); I(f"v_permlane32_swap_b32 v{vT0}, v{vT1}")
        I(f"v_max_f32 v{vT0}, v{vT0}, v{vT1}")
        I(f"v_mul_f32 v{vT0}, s{sC}, v{vT0}")
        I(f"v_min_f32 v{vT0}, v{vM}, -v{vT0}".replace("v_min_f32", "v_min_f32_e64"))
        I(f"v_sub_f32 v{vT1}, v{vT0}, v{vM}")
        I(f"v_exp_f32 v{vT1}, v{vT1}")
        I(f"v_mov_b32 v{vM}, v{vT0}")
        I(f"v_mul_f32 v{vL}, v{vL}, v{vT1}")
        I(f"ds_write_b32 v{vAW}, v{vT1} offset:{par*1024}")
        I(f"s_lshl_b32 s{sA}, s{sW4}, 4"); I(f"v_mov_b32 v{vT0}, s{sA}"); I(f"v_mov_b32 v{vT2}, s{sBLK}")
        I(f"ds_write_b32 v{vT0}, v{vT2} offset:{FLG + par*128}")
        I("s_waitcnt lgkmcnt(0)")
        I(f"s_branch L_back_s{site}")

    O = Em(); O.L = E.L; I = O.I
    O.lab("L_owave")
    vVA, vDM, vWX = 1, 2, 3
    PF, VF, OA = 4, 16, 32
    NTILE = 4
    vL0 = 40
    I(f"v_lshlrev_b32 v{vWX}, 4, v0")
    I(f"s_mul_i32 s{sA}, s{sW4}, 28"); I(f"s_mul_i32 s{sB2}, s{sHH}, 14")
    I("s_mov_b32 exec_hi, 0x00ffffff")
    for i in range(28):
        I(f"s_add_u32 s{sD}, s{sA}, s{sB2}")
        I(f"s_mul_i32 s{sE}, s{sD}, {XSTRIDE}"); I(f"s_add_u32 m0, s{sE}, {XB}")
        I(f"s_mul_i32 s{sD}, s{sD}, 896")
        O.vmem(f"buffer_load_dwordx4 v{vWX}, s[{S_X}:{S_X+3}], s{sD} offen lds", ("X",))
        if i < 27:
            I(f"s_add_u32 s{sB2}, s{sB2}, 1"); I(f"s_cmp_eq_u32 s{sB2}, 28"); I(f"s_cselect_b32 s{sB2}, 0, s{sB2}")
    I("s_mov_b64 exec, -1")
    I(f"v_lshrrev_b32 v{vWX}, 4, v0"); I(f"v_lshlrev_b32 v{vWX}, 17, v{vWX}")
    I(f"v_and_b32 v4, 15, v0"); I(f"v_lshl_add_u32 v{vWX}, v4, 4, v{vWX}")
    I(f"s_lshl_b32 s{sA}, s{sW4}, 13"); I(f"v_add_u32 v{vWX}, s{sA}, v{vWX}")
    I(f"s_lshl_b32 s{sPOFF}, s{sROT}, 19")
    def fill_wq(q):
        for i in range(4):
            u, hi = i >> 1, i & 1
            I(f"s_add_u32 s{sD}, s{sPOFF}, {(8*hi + 4*u)*8192 + (q//7)*256}")
            I(f"s_add_u32 m0, s{sWLDS}, {WQSLOT[q] + i*PIECE}")
            I("s_nop 0")
            O.vmem(f"buffer_load_dwordx4 v{vWX}, s[{S_WQ}:{S_WQ+3}], s{sD} offen lds", ("WQ", q))
        I(f"s_add_u32 s{sPOFF}, s{sPOFF}, {1<<19}"); I(f"s_cmp_eq_u32 s{sPOFF}, {7<<19}"); I(f"s_cselect_b32 s{sPOFF}, 0, s{sPOFF}")
    for q in range(3): fill_wq(q)
    I(f"v_and_b32 v{vDM}, 31, v0"); I(f"v_lshlrev_b32 v{vDM}, 4, v{vDM}")
    I(f"v_lshrrev_b32 v4, 5, v0"); I(f"v_lshl_add_u32 v{vDM}, v4, 13, v{vDM}")
    I(f"s_lshl_b32 s{sKOFF}, s{sW4}, 11"); I(f"s_mov_b32 s{sVOFF}, s{sKOFF}")
    tr_lane(O, vVA, 4)
    I(f"s_lshl_b32 s{sA}, s{sW4}, 7"); I(f"v_add_u32 v{vVA}, s{sA}, v{vVA}")
    def kv_piece(kind, j, i):
        ring, srd_, off = (KRING, S_K, sKOFF) if kind == "K" else (VRING, S_V, sVOFF)
        I(f"s_add_u32 m0, s{sWLDS}, {slot(ring[j % 4]) + i*(PIECE-512)}")
        if i == 3: pass
        I("s_nop 0")
        O.vmem(f"buffer_load_dwordx4 v{vDM}, s[{srd_}:{srd_+3}], s{off} offen offset:{i*512}{NT_} lds", (kind, j))
        if i == 3: I(f"s_add_u32 s{off}, s{off}, 16384")
    def fill_kv(kind, j):
        for i in range(4): kv_piece(kind, j, i)
    O.wv(("X",), ("WQ", 0))
    O.bar()
    for r in range(OA, OA + 16 * 2 * NTILE): I(f"v_mov_b32 v{r}, 0")
    O.wv(("WQ", 1))
    O.bar()
    for q in range(3, 9): fill_wq(q)
    later = [("WQ", q) for q in range(9, 14)] + [("K", 0), ("K", 1), ("V", 0), ("K", 2)]
    freed_after = {}
    for q in range(14): freed_after.setdefault(WQSLOT[q], q); freed_after[WQSLOT[q]] = q
    def dest(f):
        if f[0] == "WQ": return WQSLOT[f[1]]
        return slot((KRING if f[0] == "K" else VRING)[f[1] % 4])
    def ready_at(f):
        if f[0] == "WQ": return f[1] - 8
        return freed_after[dest(f)]
    pend = list(later)
    for q in range(14):
        if q < 13:
            if q + 2 <= 13: O.wv(("WQ", q + 2))
            O.bar()
            while pend and ready_at(pend[0]) <= q:
                f = pend.pop(0)
                fill_wq(f[1]) if f[0] == "WQ" else fill_kv(*f)
    assert not pend, pend
    I(f"v_lshrrev_b32 v{vWX}, 3, v0"); I(f"v_mul_u32_u24 v{vWX}, {16*896}, v{vWX}")
    I(f"v_and_b32 v4, 7, v0"); I(f"v_lshl_add_u32 v{vWX}, v4, 4, v{vWX}")
    I(f"s_mul_i32 s{sA}, s{sW4}, 896"); I(f"v_add_u32 v{vWX}, s{sA}, v{vWX}")
    I(f"s_lshl_b32 s{sPOFF}, s{sROT}, 7")
    def wo_piece(f, i):
        I(f"s_add_u32 s{sD}, s{sPOFF}, {((f%2)*128 + 4*i)*896}")
        I(f"s_add_u32 m0, s{sWLDS}, {WOSLOT[f] + i*PIECE}")
        I("s_nop 0")
        O.vmem(f"buffer_load_dwordx4 v{vWX}, s[{S_WO}:{S_WO+3}], s{sD} offen lds", ("WO", f))
        if i == 3 and f % 2 == 1:
            I(f"s_add_u32 s{sPOFF}, s{sPOFF}, 128"); I(f"s_cmp_eq_u32 s{sPOFF}, 896"); I(f"s_cselect_b32 s{sPOFF}, 0, s{sPOFF}")
    def fill_wo(f):
        for i in range(4): wo_piece(f, i)
    I(f"s_mov_b32 s{sBLK}, 0")
    O.wv(("K", 0), ("K", 1))
    O.bar()
    curv = [0]
    def vbase(b):
        d = b - curv[0]
        if d: I(f"v_add_u32 v{vVA}, {d & 0xffffffff}, v{vVA}")
        curv[0] = b
    def rdv(j, k):
        vbase(slot(VRING[j % 4]))
        for dt in range(2):
            for u in range(2):
                O.lds(f"ds_read_b64_tr_b16 {vr(VF+8*k+4*dt+2*u,2)}, v{vVA} offset:{2*u*PIECE + k*512 + dt*64}", ("V", j, k))
    rare_o = []
    def o_phase(p, site):
        j = p - 2
        pieces = []
        if p + 1 < NB: pieces += [(lambda i=i: kv_piece("V", p + 1, i)) for i in range(4)]
        if p + 3 < NB: pieces += [(lambda i=i: kv_piece("K", p + 3, i)) for i in range(4)]
        elif p + 3 - NB < 4: pieces += [(lambda i=i: wo_piece(p + 3 - NB, i)) for i in range(4)]
        if j < 0:
            for f in pieces: f()
            if p == 1: rdv(0, 0)
        else:
            par = j % 2
            fr = [(t, k) for k in range(2) for t in range(NTILE)]
            def rdp(n):
                t, k = fr[n]
                O.lds(f"ds_read_b128 {vr(PF+4*(n%3),4)}, v{vDM} offset:{par*4096 + t*1024 + k*512}", ("P", n))
            O.lds(f"ds_read_b32 v0, v{vDM} offset:{FLG + par*128}", ("F",))
            for n in range(3): rdp(n)
            rdv(j, 1)
            I(f"s_add_u32 s{sBLK}, s{sBLK}, 1")
            O.wl(("F",))
            I(f"v_cmp_eq_u32 vcc, s{sBLK}, v0"); I("s_nop 1")
            I(f"s_and_b32 s{sA}, vcc_lo, {(1<<NTILE)-1}")
            I(f"s_cbranch_scc1 L_rare_o{site}")
            O.lab(f"L_back_o{site}")
            rare_o.append((site, par))
            fil = spread(len(fr), pieces) if pieces else [[] for _ in fr]
            for n, (t, k) in enumerate(fr):
                O.wl(("P", n), ("V", j, k))
                for dt in range(2):
                    I(mfma(OA + 32 * t + 16 * dt, VF + 8 * k + 4 * dt, PF + 4 * (n % 3)))
                if n + 3 < len(fr): rdp(n + 3)
                if n == NTILE - 1 and j + 1 < NB: rdv(j + 1, 0)
                for f in fil[n]: f()
        if p <= NB:
            O.wv(("K", p + 2), ("V", p))
            O.bar()
    for p in range(0, LOOP0): o_phase(p, p)
    I(f"s_mov_b32 s{sCNT}, {(LOOPN-LOOP0)//4}")
    O.lab("L_oloop")
    st = (list(O.lg), list(O.vm), curv[0], O.nbar)
    for p in range(LOOP0, LOOP0 + 4): o_phase(p, p)
    sh = lambda q, d: [(t[0], t[1] + d) + tuple(t[2:]) for t in q]
    assert sh(O.lg, -4) == st[0] and sh(O.vm, -4) == st[1] and curv[0] == st[2], (O.lg, O.vm, st)
    I(f"s_sub_u32 s{sCNT}, s{sCNT}, 1"); I(f"s_cmp_lg_u32 s{sCNT}, 0"); I("s_cbranch_scc1 L_oloop")
    d = LOOPN - LOOP0 - 4
    O.lg = sh(O.lg, d); O.vm = sh(O.vm, d); O.nbar = st[3] + (LOOPN - LOOP0)
    for p in range(LOOPN, NB + 2): o_phase(p, p)
    I(f"v_and_b32 v0, 0x1ff, v{vDM}"); I("v_lshrrev_b32 v0, 2, v0"); I(f"v_add_u32 v0, {RL}, v0")
    for t in range(NTILE): O.lds(f"ds_read_b32 v{PF+t}, v0 offset:{t*128}", ("R", t))
    I(f"v_mbcnt_lo_u32_b32 v0, -1, 0"); I("v_mbcnt_hi_u32_b32 v0, -1, v0")
    I("s_nop 7"); I("s_nop 3")
    O.wl0()
    for t in range(NTILE):
        for r in range(32): I(f"v_mul_f32 v{OA+32*t+r}, v{PF+t}, v{OA+32*t+r}")
        for n in range(16): I(f"v_cvt_pk_bf16_f32 v{OA+32*t+n}, v{OA+32*t+2*n}, v{OA+32*t+2*n+1}")
    I(f"v_lshlrev_b32 v{vVA}, 4, v0"); I(f"s_lshl_b32 s{sA}, s{sW4}, 12"); I(f"v_add_u32 v{vVA}, s{sA}, v{vVA}")
    O.bar()
    fill_wo(4)
    cur = 0
    for t in range(NTILE):
        dlt = slot(VRING[t]) - cur; cur = slot(VRING[t])
        I(f"v_add_u32 v{vVA}, {dlt & 0xffffffff}, v{vVA}")
        for ks in range(4):
            O.lds(f"ds_write_b128 v{vVA}, {vr(OA+32*t+4*ks,4)} offset:{ks*1024}", ("W",))
    O.wv(("WO", 0), ("WO", 1), ("WO", 2))
    O.wl0()
    O.bar()
    def fills_at(e, st):
        when, j = st
        if when == "pre":
            need = [("WO", f) for f in range(min(14, 2 * j + 3 if j else 3))]
            if j: need = [("WO", f) for f in range(min(14, 2 * j + 3))]
            e.wv(*need)
        else:
            if j == 0:
                for f in range(5, 9): fill_wo(f)
            else:
                for f in (9 + 2 * (j - 1), 10 + 2 * (j - 1)):
                    if f < 14: fill_wo(f)
    oproj(O, 1, fills_at, BF=32, ACC=112, AF=96, PK=144, vTA=1, vST=2, vT=5)
    assert O.nbar == nbarS, (O.nbar, nbarS)
    O.lab("L_done"); I("s_endpgm")
    for site, par in rare_o:
        O.lab(f"L_rare_o{site}")
        I("s_nop 7"); I("s_nop 7")
        for t in range(NTILE):
            I(f"s_bitcmp1_b32 s{sA}, {t}"); I(f"s_cbranch_scc0 L_rare_o{site}_{t}")
            I(f"v_and_b32 v0, 0x1ff, v{vDM}"); I("v_lshrrev_b32 v0, 2, v0"); I(f"v_add_u32 v0, {ALPHA + par*1024 + t*128}, v0")
            I("ds_read_b32 v0, v0"); I("s_waitcnt lgkmcnt(0)")
            for r in range(32): I(f"v_mul_f32 v{OA+32*t+r}, v0, v{OA+32*t+r}")
            O.lab(f"L_rare_o{site}_{t}")
        I("s_nop 1")
        I(f"s_branch L_back_o{site}")

    R = Em(); R.L = E.L; I = R.I
    R.L += kernel_head("reduce_kernel")
    I("s_cmp_ge_u32 s2, 448"); I("s_cbranch_scc1 L_rdone")
    I("s_load_dwordx2 s[8:9], s[0:1], 96"); I("s_load_dwordx2 s[12:13], s[0:1], 80")
    I("v_lshrrev_b32 v1, 6, v0"); I("v_and_b32 v0, 63, v0"); I("v_readfirstlane_b32 s3, v1")
    I("s_lshl_b32 s4, s2, 2"); I("s_add_u32 s4, s4, s3")
    I(f"s_mov_b32 s5, {(2**32 + 111)//112}"); I("s_mul_hi_u32 s5, s4, s5")
    I("s_mul_i32 s6, s5, 112"); I("s_sub_u32 s6, s4, s6")
    I(f"s_mov_b32 s7, {(2**32 + 27)//28}"); I("s_mul_hi_u32 s7, s6, s7")
    I("s_mul_i32 s16, s7, 28"); I("s_sub_u32 s16, s6, s16")
    I(f"s_mul_i32 s17, s5, {16*PART_HEAD}"); I("s_lshl_b32 s18, s6, 10"); I("s_add_u32 s17, s17, s18")
    I("v_lshlrev_b32 v2, 4, v0")
    I("s_cmp_eq_u32 s7, 3"); I("s_cselect_b32 s20, 0xffff, -1"); I("s_mov_b32 s21, s20")
    I("s_waitcnt lgkmcnt(0)")
    I("s_add_u32 s8, s8, s17"); I("s_addc_u32 s9, s9, 0"); I(f"s_mov_b32 s10, {15*PART_HEAD + 1024}"); I("s_mov_b32 s11, 0x20000")
    I(f"s_mov_b32 s14, {8*112*896*2}"); I("s_mov_b32 s15, 0x20000")
    I("s_mov_b64 exec, s[20:21]")
    I("s_mov_b32 s19, 0")
    for h in range(16):
        I(f"buffer_load_dwordx4 {vr(8+4*h,4)}, v2, s[8:11], s19 offen")
        if h < 15: I(f"s_add_u32 s19, s19, {PART_HEAD}")
    I("s_and_b32 s22, s5, 7"); I("s_mul_i32 s22, s22, 112"); I("s_lshl_b32 s23, s7, 5"); I("s_add_u32 s22, s22, s23")
    I("v_and_b32 v3, 31, v0"); I("v_add_u32 v3, s22, v3"); I("v_mul_u32_u24 v3, 1792, v3")
    I("s_lshr_b32 s22, s5, 3"); I("s_mul_i32 s22, s22, 896"); I("s_lshl_b32 s23, s16, 5"); I("s_add_u32 s22, s22, s23")
    I("v_lshrrev_b32 v4, 5, v0"); I("v_lshl_add_u32 v3, v4, 3, v3"); I("v_add_u32 v3, s22, v3")
    for h in range(16):
        I(f"s_waitcnt vmcnt({15-h})")
        for d_ in range(4):
            src = 8 + 4 * h + d_
            if h == 0:
                I(f"v_lshlrev_b32 v{72+2*d_}, 16, v{src}"); I(f"v_and_b32 v{73+2*d_}, 0xffff0000, v{src}")
            else:
                I(f"v_lshlrev_b32 v5, 16, v{src}"); I(f"v_and_b32 v6, 0xffff0000, v{src}")
                I(f"v_add_f32 v{72+2*d_}, v{72+2*d_}, v5"); I(f"v_add_f32 v{73+2*d_}, v{73+2*d_}, v6")
    for d_ in range(4): I(f"v_cvt_pk_bf16_f32 v{8+d_}, v{72+2*d_}, v{73+2*d_}")
    I("buffer_store_dwordx2 v[8:9], v3, s[12:15], 0 offen")
    I("buffer_store_dwordx2 v[10:11], v3, s[12:15], 0 offen offset:16")
    R.lab("L_rdone"); I("s_endpgm")
    tail = ['.section .rodata,"a"'] + kd(NAME + "_kernel") + kd("reduce_kernel", vgpr=80, sgpr=32, accum=80)
    return "\n".join(head + E.L + tail) + "\n"

if __name__ == "__main__":
    kw = eval("dict(%s)" % (sys.argv[2] if len(sys.argv) > 2 else ""))
    open(sys.argv[1], "w").write(gen(**kw))
```

```python
import sys
from asmlib import *

NB = 64
PIECE = 1056
SLOT = 16 * PIECE
TSLOT = 0
def slot(i): return SLOT * (i + 1)
SPARE = slot(8)
FLG = SPARE + 8192
ALPHA = FLG + 256
RL = ALPHA + 1024
QSETS = [[slot(5), slot(6), slot(7)], [slot(2), slot(3), slot(4)], [TSLOT, slot(0), slot(1)]]
QBUF = [TSLOT, TSLOT + 8192, slot(0), slot(0) + 8192, slot(1), slot(1) + 8192, SPARE]
KRING = [2, 3, 5, 7]
VRING = [4, 6, 0, 1]
PART_HEAD = 114688

S_X, S_WQ, S_K, S_V, S_WO, S_PT = 8, 12, 16, 20, 24, 28
sWAVE, sW4, sROT, sWLDS, sKOFF, sVOFF, sCNT, sBLK, sC, sT = 32, 33, 34, 35, 36, 37, 38, 39, 40, 41
sA, sB2, sD, sE, sHH, sPOFF, sSTRIP, sXOFF, sXLDS = 42, 43, 44, 45, 46, 47, 48, 49, 52
sRET = 54
sTS = 60

class Em:
    def __init__(self, L=None):
        self.L = [] if L is None else L; self.lg = []; self.vm = []; self.nbar = 0
    def fork(self):
        e = Em(self.L); e.lg = list(self.lg); e.vm = list(self.vm); e.nbar = self.nbar; return e
    def I(self, s): self.L.append("    " + s)
    def lab(self, s): self.L.append(s + ":")
    def lds(self, s, tag): self.I(s); self.lg.append(tag)
    def vmem(self, s, tag): self.I(s); self.vm.append(tag)
    def _need(self, q, tags):
        idx = [i for i, t in enumerate(q) if t in tags]
        return None if not idx else max(idx)
    def wl(self, *tags):
        i = self._need(self.lg, tags)
        if i is None: return
        n = min(len(self.lg) - i - 1, 15)
        self.I(f"s_waitcnt lgkmcnt({n})"); self.lg = self.lg[len(self.lg) - n:] if n else []
    def wv(self, *tags):
        i = self._need(self.vm, tags)
        if i is None: return
        n = min(len(self.vm) - i - 1, 63)
        self.I(f"s_waitcnt vmcnt({n})"); self.vm = self.vm[len(self.vm) - n:] if n else []
    def wl0(self):
        if self.lg: self.I("s_waitcnt lgkmcnt(0)")
        self.lg = []
    def bar(self): self.I("s_barrier"); self.nbar += 1
    def items(self, its):
        for f in its:
            if callable(f): f()
            else: self.I(f)

class Base:
    def __init__(self, e, reg, cur=0): self.e, self.reg, self.cur = e, reg, cur
    def set(self, b):
        d = b - self.cur
        if d: self.e.I(f"v_add_u32 v{self.reg}, {d & 0xffffffff}, v{self.reg}")
        self.cur = b

def vr(a, n): return f"v[{a}:{a+n-1}]"
def mfma(d, a, b, c=None):
    return f"v_mfma_f32_16x16x32_bf16 {vr(d,4)}, {vr(a,4)}, {vr(b,4)}, " + ("0" if c == 0 else vr(d, 4))
def spread(nslots, fillers, first=0, last=None):
    last = nslots - 1 if last is None else last
    out = [[] for _ in range(nslots)]
    n = last - first + 1
    for i, f in enumerate(fillers): out[first + (i * n) // len(fillers)].append(f)
    return out

def gen(diag=False, kvnt=True, stnt=False, hot=False, nodma=False, prio="S", sfirst=4, slast=31, dmafirst=0, dmalast=3, k1only=False, pstamp=False, qpre=3):
    NT_ = " nt" if kvnt else ""
    E = Em(); I = E.I
    def stamp(e, k):
        if diag:
            e.I(f"s_memtime s[{sTS+4*k}:{sTS+4*k+1}]"); e.I(f"s_memrealtime s[{sTS+4*k+2}:{sTS+4*k+3}]")
    head = [l for l in open("cdna_kernels/" + NAME + ".s.ref").read().split("\n") if l.startswith(";") and "@launch" not in l and "Override" not in l and "grid=ceil" not in l]
    head += [f"; @launch kernel={NAME}_kernel grid=(256,1,1) block=(512,1,1) lds=163840"]
    if not k1only: head += ["; @launch kernel=reduce_kernel grid=(448,1,1) block=(256,1,1) lds=0"]
    head += ['.amdgcn_target "amdgcn-amd-amdhsa--gfx950"', ".text"]
    E.L += kernel_head(NAME + "_kernel")
    I("s_cmp_ge_u32 s2, 256"); I("s_cbranch_scc1 L_done")
    stamp(E, 0)
    I("s_and_b32 s3, s2, 7"); I("s_lshr_b32 s4, s2, 3"); I(f"s_and_b32 s{sHH}, s4, 1"); I("s_lshr_b32 s5, s4, 1")
    I("s_and_b32 s7, s5, 7"); I("s_lshr_b32 s6, s5, 3"); I(f"s_mul_i32 s{sA}, s6, 40")
    I(f"s_add_u32 s50, s0, s{sA}"); I("s_addc_u32 s51, s1, 0")
    I(f"s_load_dwordx2 s[{S_X}:{S_X+1}], s[50:51], 0")
    I(f"s_load_dwordx2 s[{S_WQ}:{S_WQ+1}], s[50:51], 24")
    I(f"s_load_dwordx2 s[{S_K}:{S_K+1}], s[50:51], 8")
    I(f"s_load_dwordx2 s[{S_V}:{S_V+1}], s[50:51], 16")
    I(f"s_load_dwordx2 s[{S_WO}:{S_WO+1}], s[50:51], 32")
    I(f"s_load_dwordx2 s[{S_PT}:{S_PT+1}], s[0:1], 96")
    if diag: I("s_load_dwordx2 s[58:59], s[0:1], 96")
    I("v_lshrrev_b32 v1, 6, v0"); I("v_and_b32 v0, 63, v0")
    I(f"v_readfirstlane_b32 s{sWAVE}, v1")
    I(f"s_lshl_b32 s4, s3, 1"); I(f"s_add_u32 s4, s4, s{sHH}")
    I(f"s_mul_i32 s{sA}, s{sHH}, 3"); I(f"s_add_u32 s{sROT}, s7, s{sA}")
    I(f"s_cmp_ge_u32 s{sROT}, 7"); I(f"s_cselect_b32 s{sA}, 7, 0"); I(f"s_sub_u32 s{sROT}, s{sROT}, s{sA}")
    I(f"s_and_b32 s{sW4}, s{sWAVE}, 3")
    I(f"s_mul_i32 s{sWLDS}, s{sW4}, {4*PIECE}")
    I(f"s_mov_b32 s{sC}, 0x3db8aa3b"); I(f"s_mov_b32 s{sT}, 0x41000000")
    vXD, vWD, vXA0, vXA1, vQA, t0, t1 = 1, 2, 3, 4, 5, 6, 7
    I(f"v_lshrrev_b32 v{vXD}, 3, v0"); I(f"v_mul_u32_u24 v{vXD}, 896, v{vXD}")
    I(f"v_lshrrev_b32 v{t0}, 4, v0"); I(f"v_lshlrev_b32 v{t0}, 1, v{t0}"); I(f"v_and_b32 v{t1}, 7, v0"); I(f"v_xor_b32 v{t0}, v{t0}, v{t1}")
    I(f"v_lshl_add_u32 v{vXD}, v{t0}, 4, v{vXD}")
    I(f"v_lshrrev_b32 v{t0}, 5, v0"); I(f"v_lshlrev_b32 v{vWD}, 15, v{t0}"); I(f"v_and_b32 v{t0}, 31, v0")
    I(f"v_lshl_add_u32 v{vWD}, v{t0}, 4, v{vWD}")
    I(f"s_lshl_b32 s{sPOFF}, s{sROT}, 19"); I(f"s_lshl_b32 s{sE}, s{sWAVE}, 16")
    I(f"s_lshl_b32 s{sXOFF}, s{sROT}, 7"); I(f"s_mul_i32 s{sB2}, s{sWAVE}, {16*896}")
    I(f"s_lshl_b32 s{sXLDS}, s{sWAVE}, 11")
    I(f"s_lshr_b32 s{sD}, s{sWAVE}, 2"); I(f"s_mul_i32 s{sD}, s{sD}, {SLOT}"); I(f"s_add_u32 s53, s{sD}, s{sWLDS}")
    I("s_waitcnt lgkmcnt(0)")
    if pstamp: stamp(E, 1)
    def srd(r, off_sgpr, size):
        I(f"s_add_u32 s{r}, s{r}, s{off_sgpr}"); I(f"s_addc_u32 s{r+1}, s{r+1}, 0")
        if isinstance(size, int): I(f"s_mov_b32 s{r+2}, {size}")
        else: I(size)
        I(f"s_mov_b32 s{r+3}, 0x20000")
    I(f"s_mul_i32 s{sA}, s7, 100352"); srd(S_X, sA, 100352)
    I(f"s_lshl_b32 s{sA}, s4, 9"); srd(S_WQ, sA, f"s_sub_u32 s{S_WQ+2}, {448*8192}, s{sA}")
    def qfill_ops(e, i):
        xs, wa, wb = QSETS[i % 3]
        assert wb == wa + SLOT
        ops = []
        for j in range(2):
            def f(j=j):
                e.I(f"s_add_u32 s{sD}, s{sXOFF}, s{sB2}")
                if j: e.I(f"s_add_u32 s{sD}, s{sD}, {8*896}")
                e.I(f"s_add_u32 m0, s{sXLDS}, {xs + j*1024}"); e.I("s_nop 0")
                e.vmem(f"buffer_load_dwordx4 v{vXD}, s[{S_X}:{S_X+3}], s{sD} offen lds", ("QF", i))
            ops.append(f)
        for j in range(4):
            def f(j=j):
                e.I(f"s_add_u32 s{sD}, s{sPOFF}, s{sE}")
                if j: e.I(f"s_add_u32 s{sD}, s{sD}, {j*8192}")
                e.I(f"s_add_u32 m0, s53, {wa + j*PIECE}"); e.I("s_nop 0")
                e.vmem(f"buffer_load_dwordx4 v{vWD}, s[{S_WQ}:{S_WQ+3}], s{sD} offen lds", ("QF", i))
                if j == 3:
                    e.I(f"s_add_u32 s{sPOFF}, s{sPOFF}, {1<<19}"); e.I(f"s_add_u32 s{sXOFF}, s{sXOFF}, 128")
                    e.I(f"s_cmp_eq_u32 s{sXOFF}, 896"); e.I(f"s_cselect_b32 s{sPOFF}, 0, s{sPOFF}"); e.I(f"s_cselect_b32 s{sXOFF}, 0, s{sXOFF}")
            ops.append(f)
        return ops
    for i in range(qpre): E.items(qfill_ops(E, i))
    if pstamp: stamp(E, 2)
    I(f"s_lshl_b32 s{sA}, s7, 3"); I(f"s_add_u32 s{sA}, s{sA}, s3"); I(f"s_lshl_b32 s{sA}, s{sA}, 20")
    srd(S_K, sA, 1 << 20); srd(S_V, sA, 1 << 20)
    I(f"s_mul_i32 s{sA}, s4, {256*896}"); srd(S_WO, sA, 256 * 896)
    I(f"s_lshl_b32 s{sA}, s5, 4"); I(f"s_add_u32 s{sA}, s{sA}, s4"); I(f"s_mul_i32 s{sA}, s{sA}, {PART_HEAD}"); srd(S_PT, sA, PART_HEAD)
    I(f"v_and_b32 v{t0}, 15, v0"); I(f"v_lshlrev_b32 v{vXA0}, 7, v{t0}")
    I(f"v_and_b32 v{t0}, 6, v0"); I(f"v_lshrrev_b32 v{t1}, 4, v0"); I(f"v_xor_b32 v{t0}, v{t0}, v{t1}")
    I(f"v_lshl_add_u32 v{vXA0}, v{t0}, 4, v{vXA0}"); I(f"v_xor_b32 v{vXA1}, 64, v{vXA0}")
    def tr_lane(e, dst, tmp, sh):
        e.I(f"v_lshrrev_b32 v{dst}, 2, v0"); e.I(f"v_mul_u32_u24 v{dst}, {PIECE}, v{dst}")
        e.I(f"v_and_b32 v{tmp}, 3, v0"); e.I(f"v_lshl_add_u32 v{dst}, v{tmp}, {sh}, v{dst}")
    tr_lane(E, vQA, t0, 4)
    I(f"s_lshl_b32 s{sA}, s{sWAVE}, 6"); I(f"v_add_u32 v{vQA}, s{sA}, v{vQA}")
    vDM = 8
    I(f"v_and_b32 v{vDM}, 31, v0"); I(f"v_lshlrev_b32 v{vDM}, 4, v{vDM}")
    I(f"v_lshrrev_b32 v{t0}, 5, v0"); I(f"v_lshl_add_u32 v{vDM}, v{t0}, 13, v{vDM}")
    I(f"s_lshl_b32 s{sKOFF}, s{sW4}, 11"); I(f"s_add_u32 s{sVOFF}, s{sKOFF}, {0 if hot else 16384}"); I(f"s_add_u32 s{sKOFF}, s{sKOFF}, {0 if hot else 32768}")
    I(f"v_lshlrev_b32 v{t0}, 2, v0"); I(f"v_add_u32 v{t0}, {FLG}, v{t0}"); I(f"v_mov_b32 v{t1}, 0")
    E.lds(f"ds_write_b32 v{t0}, v{t1}", ("F",))
    def kv_piece(e, kind, j, i):
        if nodma and j >= 4: return
        ring, srd_, off = (KRING, S_K, sKOFF) if kind == "K" else (VRING, S_V, sVOFF)
        e.I(f"s_add_u32 m0, s{sWLDS}, {slot(ring[j % 4]) + i*(PIECE-512)}")
        e.I("s_nop 0")
        e.vmem(f"buffer_load_dwordx4 v{vDM}, s[{srd_}:{srd_+3}], s{off} offen offset:{i*512}{NT_} lds", (kind, j))
        if i == 3 and not hot: e.I(f"s_add_u32 s{off}, s{off}, 16384")
    QA, QB_, QACC = 16, 32, 96
    bx0, bx1, bq = Base(E, vXA0), Base(E, vXA1), Base(E, vQA)
    for i in range(7):
        E.wv(("QF", i))
        if i == 0: E.wl0()
        if pstamp and i == 0: stamp(E, 3)
        E.bar()
        if i == 0 and not pstamp: stamp(E, 1)
        if pstamp and i < 4: stamp(E, 4 + i)
        xs, wa, wb = QSETS[i % 3]
        bx0.set(xs); bx1.set(xs); bq.set(wa)
        def rda(kk):
            for b in range(2):
                for u in range(2):
                    E.lds(f"ds_read_b64_tr_b16 {vr(QA+8*kk+4*b+2*u,2)}, v{vQA} offset:{kk*SLOT + u*512 + b*8}", ("A", kk))
        def rdb(kk, z):
            E.lds(f"ds_read_b128 {vr(QB_+28*kk+4*z,4)}, v{vXA1 if kk else vXA0} offset:{z*2048}", ("B", kk, z))
        rda(0)
        for z in range(4): rdb(0, z)
        fl = []
        if i >= 1 and i + 2 < 7: fl = qfill_ops(E, i + 2)
        if i == 0 and qpre < 3: fl = sum([qfill_ops(E, k) for k in range(qpre, 3)], [])
        fil = spread(14, fl, 0, 9) if fl else [[] for _ in range(14)]
        if i == 5:
            I(f"s_lshl_b32 s{sE}, s{sWAVE}, 10"); I(f"s_mul_i32 s{sB2}, s{sWAVE}, {2*PIECE}")
            def pre(kind, j, i):
                ring, srd_ = (KRING, S_K) if kind == "K" else (VRING, S_V)
                I(f"s_add_u32 s{sD}, s{sE}, {j*16384}")
                I(f"s_add_u32 m0, s{sB2}, {slot(ring[j]) + i*(PIECE-512)}"); I("s_nop 0")
                E.vmem(f"buffer_load_dwordx4 v{vDM}, s[{srd_}:{srd_+3}], s{sD} offen offset:{i*512}{NT_} lds", (kind, j))
            fl = [(lambda k=k, j=j, i_=i_: pre(k, j, i_)) for k, j in (("K", 0), ("K", 1), ("V", 0)) for i_ in range(2)]
            fil = spread(14, fl, 0, 9)
        order = [(kk, z) for kk in range(2) for z in range(7)]
        for n, (kk, z) in enumerate(order):
            E.wl(("A", kk), ("B", kk, z))
            for b in range(2):
                I(mfma(QACC + 8 * z + 4 * b, QA + 8 * kk + 4 * b, QB_ + 28 * kk + 4 * z, 0 if (i == 0 and kk == 0) else None))
            if n == 0: rda(1)
            if n + 4 < 14: rdb(*order[n + 4])
            E.items(fil[n])
    I("s_nop 7")
    I(f"v_lshlrev_b32 v{t0}, 4, v0"); I(f"s_lshl_b32 s{sA}, s{sWAVE}, 10"); I(f"v_add_u32 v{t0}, s{sA}, v{t0}")
    bw = Base(E, t0)
    for z in range(7):
        for n in range(4): I(f"v_cvt_pk_bf16_f32 v{QB_+4*z+n}, v{QACC+8*z+2*n}, v{QACC+8*z+2*n+1}")
        off = QBUF[z]
        if off > 60000: bw.set(off); off = 0
        E.lds(f"ds_write_b128 v{t0}, {vr(QB_+4*z,4)} offset:{off}", ("QW",))
    I(f"s_mov_b32 s{sBLK}, 0")
    I(f"s_cmp_ge_u32 s{sWAVE}, 4"); I("s_cbranch_scc1 L_owave")
    O = E.fork()

    kfree = [slot(KRING[(NB - 4 + i) % 4]) for i in range(4)]
    vs = [slot(VRING[(NB - 4 + i) % 4]) for i in range(4)]
    WOSLOT = kfree + [vs[0], vs[1], TSLOT, vs[2], vs[3]]
    WOSLOT += [WOSLOT[i] for i in range(5)]
    OBUF = [TSLOT, TSLOT + 8192, vs[2], vs[2] + 8192, vs[3], vs[3] + 8192, SPARE]
    def oproj(e, role, fills_at):
        I = e.I
        vTA, vST, vT, RLR, AF, PK, ACC, BF = 1, 2, 3, 4, 16, 32, 40, 72
        zs = [0, 1, 2, 3] if role == 0 else [4, 5, 6]
        nz = len(zs)
        I(f"v_lshlrev_b32 v{vT}, 4, v0")
        I(f"v_and_b32 v{vST}, 15, v0"); I(f"v_lshlrev_b32 v{vST}, 2, v{vST}"); I(f"v_add_u32 v{vST}, {RL}, v{vST}")
        for a, z in enumerate(zs): e.lds(f"ds_read_b32 v{RLR+a}, v{vST} offset:{z*64}", ("R",))
        tr_lane(e, vTA, vST, 3)
        I(f"s_lshl_b32 s{sA}, s{sW4}, 5"); I(f"v_add_u32 v{vTA}, s{sA}, v{vTA}")
        I(f"s_lshl_b32 s{sA}, s{sWAVE}, 11"); I(f"v_add_u32 v{vST}, s{sA}, v{vT}")
        I(f"s_mov_b32 s{sSTRIP}, s{sROT}")
        ba, bb = Base(e, vTA), Base(e, vT)
        seq = [(j, kp) for j in range(7) for kp in range(8)]
        def rd(n):
            j, kp = seq[n]
            ba.set(WOSLOT[2 * j + kp // 4])
            for u in range(2):
                e.lds(f"ds_read_b64_tr_b16 {vr(AF+4*(n%4)+2*u,2)}, v{vTA} offset:{(2*(kp%4)+u)*128}", ("A", n))
        def rdB(kp):
            for a, z in enumerate(zs):
                base = OBUF[z - (z - zs[0]) % 2] if False else OBUF[z]
                lo = min(OBUF[zz] for zz in zs)
                if base - bb.cur < 0 or base - bb.cur + kp * 1024 > 65535: bb.set(base)
                e.lds(f"ds_read_b128 {vr(BF+32*a+4*kp,4)}, v{vT} offset:{base - bb.cur + kp*1024}", ("B", kp, a))
        def fin(j):
            acc = ACC + 16 * (j % 2)
            ops = []
            for a in range(nz):
                ops += [f"v_mul_f32 v{acc+4*a+r}, v{RLR+a}, v{acc+4*a+r}" for r in range(4)]
                ops += [f"v_cvt_pk_bf16_f32 v{PK+2*a+n}, v{acc+4*a+2*n}, v{acc+4*a+2*n+1}" for n in range(2)]
            def st():
                fl = " nt" if stnt else ""
                I(f"s_lshl_b32 s{sA}, s{sSTRIP}, 14")
                I(f"s_add_u32 s{sSTRIP}, s{sSTRIP}, 1")
                e.vmem(f"buffer_store_dwordx4 {vr(PK,4)}, v{vST}, s[{S_PT}:{S_PT+3}], s{sA} offen{fl}", ("ST", j))
                if nz == 4: e.vmem(f"buffer_store_dwordx4 {vr(PK+4,4)}, v{vST}, s[{S_PT}:{S_PT+3}], s{sA} offen offset:1024{fl}", ("ST", j))
                else: e.vmem(f"buffer_store_dwordx2 {vr(PK+4,2)}, v{vST}, s[{S_PT}:{S_PT+3}], s{sA} offen offset:1024{fl}", ("ST", j))
                I(f"s_cmp_eq_u32 s{sSTRIP}, 7"); I(f"s_cselect_b32 s{sSTRIP}, 0, s{sSTRIP}")
            ops.append(st)
            return ops
        rd(0); rdB(0); rd(1); rdB(1); rd(2); rd(3)
        for j in range(7):
            fl = fin(j - 1) if j else []
            fil = spread(8 * nz, fl, 2 * nz, 8 * nz - 1) if fl else [[] for _ in range(8 * nz)]
            fl = fills_at(e, ("post", j))
            if fl:
                f2 = spread(8 * nz, fl, 0, min(8 * nz - 1, len(fl) - 1))
                fil = [a + b for a, b in zip(f2, fil)]
            for kp in range(8):
                n = 8 * j + kp
                for a in range(nz):
                    e.wl(("A", n), ("B", kp, a))
                    I(mfma(ACC + 16 * (j % 2) + 4 * a, AF + 4 * (n % 4), BF + 32 * a + 4 * kp, 0 if kp == 0 else None))
                    if a == nz - 1:
                        if j == 0 and kp + 2 < 8: rdB(kp + 2)
                        if n + 4 < len(seq): rd(n + 4)
                    e.items(fil[kp * nz + a])
            if j < 6:
                fills_at(e, ("pre", j + 1))
                e.bar()
        I("s_nop 7")
        e.wl(("R",))
        e.items(fin(6))

    LOOP0, LOOPN = 5, 61
    rare_s = []
    if pstamp:
        stamp0 = stamp
        stamp = lambda e, k: (stamp0(e, k) if k == 8 else None)
    def swave(S, NZ, tag):
        I = S.I
        vKA, vPW, vAW, vM, vL, vT0, vT1, vT2 = 1, 2, 3, 4, 6, 9, 11, 13
        Q0, SA, SB, KF, PO = 16, 80, 96, 112, 128
        I(f"v_lshlrev_b32 v{vPW}, 4, v0")
        if NZ == 2:
            I(f"s_mul_i32 s{sA}, s{sW4}, {SLOT}"); I(f"v_add_u32 v{vT0}, s{sA}, v{vPW}")
        else:
            I(f"v_add_u32 v{vT0}, {QBUF[6]}, v{vPW}")
        I(f"v_and_b32 v{vKA}, 15, v0"); I(f"v_mul_u32_u24 v{vKA}, {PIECE}, v{vKA}")
        I(f"v_lshrrev_b32 v{vT1}, 4, v0"); I(f"v_lshl_add_u32 v{vKA}, v{vT1}, 4, v{vKA}")
        I(f"s_lshl_b32 s{sA}, s{sW4}, 11"); I(f"v_add_u32 v{vPW}, s{sA}, v{vPW}")
        I(f"v_and_b32 v{vAW}, 15, v0"); I(f"v_lshlrev_b32 v{vAW}, 2, v{vAW}")
        I(f"s_lshl_b32 s{sA}, s{sW4}, 7"); I(f"s_add_u32 s{sA}, s{sA}, {ALPHA}"); I(f"v_add_u32 v{vAW}, s{sA}, v{vAW}")
        for a in range(NZ): I(f"v_mov_b32 v{vM+a}, 0x7149f2ca"); I(f"v_mov_b32 v{vL+a}, 0")
        if prio == "S": I("s_setprio 1")
        S.wl0(); S.wv(("K", 0), ("K", 1))
        S.bar()
        stamp(S, 2)
        bk = Base(S, vKA)
        def rdk(p, n):
            bk.set(slot(KRING[p % 4]))
            S.lds(f"ds_read_b128 {vr(KF+4*(n%4),4)}, v{vKA} offset:{(n%2)*512 + (n//2)*64}", ("K", p, n))
        def softmax_ops(sp, par, site):
            ops = []
            for a in range(NZ):
                b = sp + 8 * a
                ops.append(f"v_max3_f32 v{vT0+a}, v{b}, v{b+1}, v{b+2}")
                ops.append(f"v_max3_f32 v{vT1+a}, v{b+3}, v{b+4}, v{b+5}")
            for a in range(NZ):
                b = sp + 8 * a
                ops.append(f"v_max3_f32 v{vT0+a}, v{vT0+a}, v{b+6}, v{b+7}")
            for a in range(NZ): ops.append(f"v_max_f32 v{vT0+a}, v{vT0+a}, v{vT1+a}")
            for a in range(NZ): ops.append(f"v_fma_f32 v{vT1+a}, v{vT0+a}, s{sC}, v{vM+a}")
            if NZ == 2: ops.append(f"v_max_f32 v{vT1}, v{vT1}, v{vT1+1}")
            def check():
                I(f"v_cmp_lt_f32 vcc, s{sT}, v{vT1}")
                I(f"s_add_u32 s{sBLK}, s{sBLK}, 1")
                I(f"s_cbranch_vccnz L_stub_s{tag}_{site}")
                S.lab(f"L_back_s{tag}_{site}")
                rare_s.append((tag, site, par))
            ops.append(check)
            nv = 8 * NZ
            for k in range(nv + 4):
                if k < nv: ops.append(f"v_fma_f32 v{sp+k}, v{sp+k}, s{sC}, v{vM+k//8}")
                if 0 <= k - 1 < nv: ops.append(f"v_exp_f32 v{sp+k-1}, v{sp+k-1}")
                if 0 <= k - 3 < nv: ops.append(f"v_add_f32 v{vL+(k-3)//8}, v{vL+(k-3)//8}, v{sp+k-3}")
                if k >= 4 and k % 2 == 0 and k - 4 < nv:
                    c = (k - 4) // 2
                    ops.append(f"v_cvt_pk_bf16_f32 v{PO+c}, v{sp+k-4}, v{sp+k-3}")
                    if c % 4 == 3:
                        ops.append(lambda a=c // 4: S.lds(f"ds_write_b128 v{vPW}, {vr(PO+4*a,4)} offset:{par*7168 + a*1024}", ("P", a)))
            c = nv // 2 - 1
            if not any(isinstance(o, str) and o.startswith(f"v_cvt_pk_bf16_f32 v{PO+c},") for o in ops):
                raise AssertionError
            return ops
        def s_phase(p):
            cur, prev = (SA, SB) if p % 2 == 0 else (SB, SA)
            do_qk, do_sm = p < NB, p >= 1
            sm = softmax_ops(prev, (p - 1) % 2, p) if do_sm else []
            if do_qk:
                if p == 0:
                    for a in range(NZ):
                        for ks in range(2): S.lds(f"ds_read_b128 {vr(Q0+32*a+4*ks,4)}, v{vT0} offset:{a*8192 + ks*1024}", ("Q", a, ks))
                if p in (0, 2):
                    for n in range(4): rdk(p, n)
                if p == 0:
                    for ks in range(2, 8):
                        for a in range(NZ): S.lds(f"ds_read_b128 {vr(Q0+32*a+4*ks,4)}, v{vT0} offset:{a*8192 + ks*1024}", ("Q", a, ks))
                ng = 16 * NZ
                f0, f1 = (sfirst, slast) if NZ == 2 else (4, 15)
                fil = spread(ng, sm, f0, f1) if sm else [[] for _ in range(ng)]
                for n in range(16):
                    ks, y = n // 2, n % 2
                    for a in range(NZ):
                        S.wl(("K", p, n), ("Q", a, ks))
                        I(mfma(cur + 8 * a + 4 * y, KF + 4 * (n % 4), Q0 + 32 * a + 4 * ks, 0 if ks == 0 else None))
                        if a == NZ - 1:
                            if n + 4 < 16: rdk(p, n + 4)
                            elif p + 1 < NB and p != 1: rdk(p + 1, n - 12)
                        S.items(fil[n * NZ + a])
                S.wl(("P", 0), ("P", 1))
                if p == 0: S.wv(("V", 0))
                if p + 1 >= NB: I("s_nop 7")
            else:
                S.items(sm)
                for a in range(NZ):
                    I(f"v_mov_b32 v{vT0+a}, v{vL+a}")
                I("s_nop 1")
                for a in range(NZ): I(f"v_permlane16_swap_b32 v{vL+a}, v{vT0+a}")
                for a in range(NZ): I(f"v_add_f32 v{vL+a}, v{vL+a}, v{vT0+a}");
                for a in range(NZ): I(f"v_mov_b32 v{vT0+a}, v{vL+a}")
                I("s_nop 1")
                for a in range(NZ): I(f"v_permlane32_swap_b32 v{vL+a}, v{vT0+a}")
                for a in range(NZ): I(f"v_add_f32 v{vL+a}, v{vL+a}, v{vT0+a}")
                for a in range(NZ): I(f"v_rcp_f32 v{vL+a}, v{vL+a}")
                I("s_nop 0")
                for a in range(NZ): S.lds(f"ds_write_b32 v{vAW}, v{vL+a} offset:{RL-ALPHA + a*64}", ("P", 2))
                S.wl0()
            S.bar()
        for p in range(0, LOOP0): s_phase(p)
        stamp(S, 3)
        I(f"s_mov_b32 s{sCNT}, {(LOOPN-LOOP0)//4}")
        S.lab(f"L_sloop{tag}")
        st = (list(S.lg), bk.cur, S.nbar)
        for p in range(LOOP0, LOOP0 + 4): s_phase(p)
        assert [(t[0], t[1] - 4, t[2]) for t in S.lg] == st[0] and bk.cur == st[1], (S.lg, st)
        I(f"s_sub_u32 s{sCNT}, s{sCNT}, 1"); I(f"s_cmp_lg_u32 s{sCNT}, 0"); I(f"s_cbranch_scc1 L_sloop{tag}")
        stamp(S, 4)
        S.lg = [(t[0], LOOPN, t[2]) for t in S.lg]
        S.nbar = st[2] + (LOOPN - LOOP0)
        for p in range(LOOPN, NB + 1): s_phase(p)
        stamp(S, 5)
        sub = []
        for par in range(2):
            sub.append(f"L_rare_s{tag}_{par}:")
            for sw in ("v_permlane16_swap_b32", "v_permlane32_swap_b32"):
                for a in range(NZ): sub.append(f"v_mov_b32 v{vT1+a}, v{vT0+a}")
                sub.append("s_nop 1")
                for a in range(NZ): sub.append(f"{sw} v{vT0+a}, v{vT1+a}")
                for a in range(NZ): sub.append(f"v_max_f32 v{vT0+a}, v{vT0+a}, v{vT1+a}")
            for a in range(NZ):
                sub.append(f"v_mul_f32 v{vT0+a}, s{sC}, v{vT0+a}")
                sub.append(f"v_min_f32_e64 v{vT0+a}, v{vM+a}, -v{vT0+a}")
                sub.append(f"v_sub_f32 v{vT1+a}, v{vT0+a}, v{vM+a}")
                sub.append(f"v_exp_f32 v{vT1+a}, v{vT1+a}")
                sub.append(f"v_mov_b32 v{vM+a}, v{vT0+a}")
                sub.append(f"v_mul_f32 v{vL+a}, v{vL+a}, v{vT1+a}")
                sub.append(f"ds_write_b32 v{vAW}, v{vT1+a} offset:{par*448 + a*64}")
            sub.append(f"s_lshl_b32 s{sA}, s{sW4}, 3"); sub.append(f"s_add_u32 s{sA}, s{sA}, {FLG + par*128}")
            sub.append(f"v_mov_b32 v{vT0}, s{sA}"); sub.append(f"v_mov_b32 v{vT2}, s{sBLK}")
            for a in range(NZ): sub.append(f"ds_write_b32 v{vT0}, v{vT2} offset:{4*a}")
            sub.append("s_waitcnt lgkmcnt(0)")
            sub.append(f"s_setpc_b64 s[{sRET}:{sRET+1}]")
        return sub
    I(f"s_cmp_eq_u32 s{sWAVE}, 3"); I("s_cbranch_scc1 L_swave3")
    S3 = E.fork()
    subs = swave(E, 2, "a")
    I("s_branch L_sjoin")
    S3.lab("L_swave3")
    subs += swave(S3, 1, "b")
    assert S3.nbar == E.nbar
    E.lab("L_sjoin")
    S = E
    S.bar()
    S.bar()
    stamp(S, 6)
    oproj(S, 0, lambda e, st: [])
    stamp(S, 7)
    nbarS = S.nbar
    if diag:
        I(f"s_cmp_lg_u32 s{sWAVE}, 0"); I("s_cbranch_scc1 L_done")
        I("s_waitcnt vmcnt(0)")
        stamp(S, 8)
        I("s_waitcnt lgkmcnt(0)")
        I("s_mov_b64 exec, 1")
        I(f"s_lshl_b32 s{sA}, s2, 7"); I(f"s_add_u32 s{sA}, s{sA}, {64<<20}"); I(f"v_mov_b32 v1, s{sA}")
        for k in range(9):
            I(f"v_mov_b32 v4, s{sTS+4*k}"); I(f"v_mov_b32 v5, s{sTS+4*k+2}")
            I(f"global_store_dwordx2 v1, v[4:5], s[58:59] offset:{8*k}")
            I("s_nop 1")
    I("s_endpgm")

    I = O.I
    O.lab("L_owave")
    vVA, vPA, vWX, vFA, vF = 1, 2, 9, 4, 5
    PF, VF, OA = 16, 32, 64
    tr_lane(O, vVA, 6, 3)
    I(f"s_lshl_b32 s{sA}, s{sW4}, 7"); I(f"v_add_u32 v{vVA}, s{sA}, v{vVA}")
    I(f"v_lshlrev_b32 v{vPA}, 4, v0")
    I(f"v_and_b32 v{vFA}, 7, v0"); I(f"v_lshlrev_b32 v{vFA}, 2, v{vFA}"); I(f"v_add_u32 v{vFA}, {FLG}, v{vFA}")
    I(f"v_lshrrev_b32 v{vWX}, 3, v0"); I(f"v_mul_u32_u24 v{vWX}, {16*896}, v{vWX}")
    I(f"v_and_b32 v6, 7, v0"); I(f"v_lshl_add_u32 v{vWX}, v6, 4, v{vWX}")
    I(f"s_mul_i32 s{sA}, s{sW4}, {4*896}"); I(f"v_add_u32 v{vWX}, s{sA}, v{vWX}")
    I(f"s_lshl_b32 s{sPOFF}, s{sROT}, 7")
    def wo_piece(f, i):
        I(f"s_add_u32 s{sD}, s{sPOFF}, {((f%2)*128 + i)*896}")
        I(f"s_add_u32 m0, s{sWLDS}, {WOSLOT[f] + i*PIECE}")
        I("s_nop 0")
        O.vmem(f"buffer_load_dwordx4 v{vWX}, s[{S_WO}:{S_WO+3}], s{sD} offen lds", ("WO", f))
        if i == 3 and f % 2 == 1:
            I(f"s_add_u32 s{sPOFF}, s{sPOFF}, 128"); I(f"s_cmp_eq_u32 s{sPOFF}, 896"); I(f"s_cselect_b32 s{sPOFF}, 0, s{sPOFF}")
    O.wl0()
    for r in range(OA, OA + 112): I(f"v_mov_b32 v{r}, 0")
    if prio == "O": I("s_setprio 1")
    O.wv(("K", 0), ("K", 1))
    O.bar()
    bv = Base(O, vVA)
    def rdv(j):
        bv.set(slot(VRING[j % 4]))
        for sl in range(4):
            for y in range(2):
                O.lds(f"ds_read_b64_tr_b16 {vr(VF+16*(j%2)+4*sl+2*y,2)}, v{vVA} offset:{y*512 + sl*32}", ("V", j, sl))
    rare_o = []
    def o_phase(p):
        j = p - 2
        pieces = []
        def kv(kind, jj): return [(lambda i=i: kv_piece(O, kind, jj, i)) for i in range(4)]
        if p == 0: pieces += kv("K", 2)
        if p + 1 < NB: pieces += kv("V", p + 1)
        if p + 3 < NB: pieces += kv("K", p + 3)
        else:
            for f in {NB - 3: [0], NB - 2: [1], NB - 1: [2], NB: [3, 4], NB + 1: [5]}[p]:
                pieces += [(lambda i=i, f=f: wo_piece(f, i)) for i in range(4)]
        if j < 0:
            O.items(pieces)
            if p == 1: rdv(0)
        else:
            par = j % 2
            def rdp(z): O.lds(f"ds_read_b128 {vr(PF+4*(z%4),4)}, v{vPA} offset:{par*7168 + z*1024}", ("P", z))
            O.lds(f"ds_read_b32 v{vF}, v{vFA} offset:{par*128}", ("F",))
            for z in range(4): rdp(z)
            I(f"s_add_u32 s{sBLK}, s{sBLK}, 1")
            fil = spread(8, pieces, dmafirst, dmalast) if pieces else [[] for _ in range(8)]
            O.items(fil[0])
            O.wl(("F",))
            I(f"v_cmp_eq_u32 vcc, s{sBLK}, v{vF}"); I("s_nop 1")
            I(f"s_and_b32 s{sA}, vcc_lo, 0x7f")
            I(f"s_cbranch_scc1 L_stub_o{p}")
            O.lab(f"L_back_o{p}")
            rare_o.append((p, par))
            for z in range(7):
                for sl in range(4):
                    O.wl(("P", z), ("V", j, sl))
                    I(mfma(OA + 16 * z + 4 * sl, VF + 16 * (j % 2) + 4 * sl, PF + 4 * (z % 4)))
                if z + 4 < 7: rdp(z + 4)
                if z == 3 and j + 1 < NB: rdv(j + 1)
                O.items(fil[z + 1])
        if p <= NB:
            if p == 0: O.wv(("V", 0))
            else: O.wv(("K", p + 2), ("V", p), ("K", p + 1))
            O.bar()
    for p in range(0, LOOP0): o_phase(p)
    I(f"s_mov_b32 s{sCNT}, {(LOOPN-LOOP0)//4}")
    O.lab("L_oloop")
    st = (list(O.lg), list(O.vm), bv.cur, O.nbar)
    for p in range(LOOP0, LOOP0 + 4): o_phase(p)
    sh = lambda q, d: [(t[0], t[1] + d) + tuple(t[2:]) for t in q]
    assert sh(O.lg, -4) == st[0] and sh(O.vm, -4) == st[1] and bv.cur == st[2], (O.lg, O.vm, st)
    I(f"s_sub_u32 s{sCNT}, s{sCNT}, 1"); I(f"s_cmp_lg_u32 s{sCNT}, 0"); I("s_cbranch_scc1 L_oloop")
    d = LOOPN - LOOP0 - 4
    O.lg = sh(O.lg, d); O.vm = sh(O.vm, d); O.nbar = st[3] + (LOOPN - LOOP0)
    for p in range(LOOPN, NB + 2): o_phase(p)
    O.bar()
    I(f"s_lshl_b32 s{sA}, s{sW4}, 11"); I(f"v_add_u32 v{vPA}, s{sA}, v{vPA}")
    I("s_nop 4")
    bo = Base(O, vPA)
    for z in range(7):
        for n in range(8): I(f"v_cvt_pk_bf16_f32 v{OA+16*z+n}, v{OA+16*z+2*n}, v{OA+16*z+2*n+1}")
        if OBUF[z] > 60000: bo.set(OBUF[z])
        for k in range(2):
            O.lds(f"ds_write_b128 v{vPA}, {vr(OA+16*z+4*k,4)} offset:{OBUF[z]-bo.cur + k*1024}", ("W",))
    O.wv(("WO", 0), ("WO", 1), ("WO", 2))
    O.wl0()
    O.bar()
    def fills_at(e, st):
        when, j = st
        if when == "pre":
            e.wv(*[("WO", f) for f in range(min(14, 2 * j + 3))])
            return []
        fl = {1: [6, 7, 8, 9, 10], 2: [11, 12], 3: [13]}.get(j, [])
        return [(lambda f=f, i=i: wo_piece(f, i)) for f in fl for i in range(4)]
    oproj(O, 1, fills_at)
    assert O.nbar == nbarS, (O.nbar, nbarS)
    O.lab("L_done"); I("s_endpgm")
    for tag, site, par in rare_s:
        O.lab(f"L_stub_s{tag}_{site}"); I(f"s_call_b64 s[{sRET}:{sRET+1}], L_rare_s{tag}_{par}"); I(f"s_branch L_back_s{tag}_{site}")
    for l in subs: (O.lab(l[:-1]) if l.endswith(":") else I(l))
    for site, par in rare_o:
        O.lab(f"L_stub_o{site}"); I(f"s_call_b64 s[{sRET}:{sRET+1}], L_rare_o_{par}"); I(f"s_branch L_back_o{site}")
    for par in range(2):
        O.lab(f"L_rare_o_{par}")
        I("s_nop 7")
        I(f"v_and_b32 v6, 15, v0"); I(f"v_lshlrev_b32 v6, 2, v6"); I(f"v_add_u32 v6, {ALPHA + par*448}, v6")
        for z in range(7):
            I(f"s_bitcmp1_b32 s{sA}, {z}"); I(f"s_cbranch_scc0 L_rare_o_{par}_{z}")
            I(f"ds_read_b32 v{vF}, v6 offset:{z*64}"); I("s_waitcnt lgkmcnt(0)")
            for r in range(16): I(f"v_mul_f32 v{OA+16*z+r}, v{vF}, v{OA+16*z+r}")
            O.lab(f"L_rare_o_{par}_{z}")
        I("s_nop 1")
        I(f"s_setpc_b64 s[{sRET}:{sRET+1}]")

    R = Em(E.L); I = R.I
    R.L += kernel_head("reduce_kernel")
    I("s_cmp_ge_u32 s2, 448"); I("s_cbranch_scc1 L_rdone")
    I("s_load_dwordx2 s[8:9], s[0:1], 96"); I("s_load_dwordx2 s[12:13], s[0:1], 80")
    I("v_lshrrev_b32 v1, 6, v0"); I("v_and_b32 v0, 63, v0"); I("v_readfirstlane_b32 s3, v1")
    I("s_lshl_b32 s4, s2, 2"); I("s_add_u32 s4, s4, s3")
    I(f"s_mov_b32 s5, {(2**32 + 111)//112}"); I("s_mul_hi_u32 s5, s4, s5")
    I("s_mul_i32 s6, s5, 112"); I("s_sub_u32 s6, s4, s6")
    I(f"s_mul_i32 s17, s5, {16*PART_HEAD}"); I("s_lshl_b32 s18, s6, 10"); I("s_add_u32 s17, s17, s18")
    I("v_lshlrev_b32 v2, 4, v0")
    I("s_waitcnt lgkmcnt(0)")
    I("s_add_u32 s8, s8, s17"); I("s_addc_u32 s9, s9, 0"); I(f"s_mov_b32 s10, {15*PART_HEAD + 1024}"); I("s_mov_b32 s11, 0x20000")
    I(f"s_mov_b32 s14, {8*112*896*2}"); I("s_mov_b32 s15, 0x20000")
    I("s_mov_b32 s19, 0")
    for h in range(16):
        I(f"buffer_load_dwordx4 {vr(8+4*h,4)}, v2, s[8:11], s19 offen")
        if h < 15: I(f"s_add_u32 s19, s19, {PART_HEAD}")
    I("s_bfe_u32 s20, s6, 0x10003"); I("s_lshl_b32 s20, s20, 1"); I("s_and_b32 s21, s6, 1"); I("s_add_u32 s20, s20, s21")
    I("s_and_b32 s22, s5, 7"); I("s_mul_i32 s22, s22, 112"); I("s_lshl_b32 s23, s20, 5"); I("s_add_u32 s22, s22, s23")
    I("v_and_b32 v3, 15, v0"); I("v_add_u32 v3, s22, v3"); I("v_mul_u32_u24 v3, 1792, v3")
    I("s_lshr_b32 s22, s5, 3"); I("s_mul_i32 s22, s22, 896"); I("s_lshr_b32 s23, s6, 4"); I("s_lshl_b32 s23, s23, 7"); I("s_add_u32 s22, s22, s23")
    I("s_bfe_u32 s23, s6, 0x20001"); I("s_lshl_b32 s23, s23, 5"); I("s_add_u32 s22, s22, s23")
    I("v_lshrrev_b32 v4, 4, v0"); I("v_lshl_add_u32 v3, v4, 3, v3"); I("v_add_u32 v3, s22, v3")
    I(f"s_mov_b32 s24, {16*1792}")
    for h in range(16):
        I(f"s_waitcnt vmcnt({15-h})")
        for d_ in range(4):
            src = 8 + 4 * h + d_
            if h == 0:
                I(f"v_lshlrev_b32 v{72+2*d_}, 16, v{src}"); I(f"v_and_b32 v{73+2*d_}, 0xffff0000, v{src}")
            else:
                I(f"v_lshlrev_b32 v5, 16, v{src}"); I(f"v_and_b32 v6, 0xffff0000, v{src}")
                I(f"v_add_f32 v{72+2*d_}, v{72+2*d_}, v5"); I(f"v_add_f32 v{73+2*d_}, v{73+2*d_}, v6")
    for d_ in range(4): I(f"v_cvt_pk_bf16_f32 v{8+d_}, v{72+2*d_}, v{73+2*d_}")
    I("buffer_store_dwordx2 v[8:9], v3, s[12:15], 0 offen")
    I("s_cmp_eq_u32 s20, 3"); I("s_cbranch_scc1 L_rdone")
    I("buffer_store_dwordx2 v[10:11], v3, s[12:15], s24 offen")
    R.lab("L_rdone"); I("s_endpgm")
    tail = ['.section .rodata,"a"'] + kd(NAME + "_kernel") + kd("reduce_kernel", vgpr=80, sgpr=32, accum=80)
    return "\n".join(head + E.L + tail) + "\n"

if __name__ == "__main__":
    kw = eval("dict(%s)" % (sys.argv[2] if len(sys.argv) > 2 else ""))
    open(sys.argv[1], "w").write(gen(**kw))
```

```python
import sys
NAME = "concat_heads__gqa_block_cached__gqa_block_cached__near_ridge"
def gen(mode="d", nslot=9, nt=False, mfma=0, issuers=4, sc="", swap=False, lag=0, nt1=None, rot=0, same=False, vg=False, pf=0, pfnt=True, pfw=1, xr=0):
    L = []
    A = L.append
    A("; @launch grid=(256,1,1) block=(512,1,1) lds=163840")
    A('.amdgcn_target "amdgcn-amd-amdhsa--gfx950"')
    A(".text")
    A(f".globl {NAME}_kernel"); A(".p2align 8"); A(f".type {NAME}_kernel,@function"); A(f"{NAME}_kernel:")
    A("s_cmp_ge_u32 s2, 256"); A("s_cbranch_scc1 L_done")
    A("s_memrealtime s[40:41]")
    A("s_memtime s[44:45]")
    A("s_and_b32 s3, s2, 7")
    A("s_lshr_b32 s4, s2, 3")
    A("s_and_b32 s5, s4, 1")
    A("s_lshr_b32 s6, s4, 1")
    A("s_and_b32 s7, s6, 7")
    A("s_lshr_b32 s6, s6, 3")
    A("s_mul_i32 s8, s6, 40")
    A("s_add_u32 s10, s0, s8"); A("s_addc_u32 s11, s1, 0")
    A("s_load_dwordx4 s[12:15], s[10:11], 8")
    A("s_load_dwordx2 s[16:17], s[0:1], 96")
    A("s_lshl_b32 s8, s7, 3"); A("s_add_u32 s8, s8, s3"); A("s_lshl_b32 s9, s8, 20")
    if same:
        A("s_lshl_b32 s9, s3, 20"); A("s_load_dwordx4 s[12:15], s[0:1], 8")
    if mode == "b":
        A("s_lshl_b32 s18, s5, 19"); A("s_add_u32 s9, s9, s18")
    A("s_waitcnt lgkmcnt(0)")
    nbytes = (1 << 20) if mode == "d" else (1 << 19)
    A("s_add_u32 s20, s12, s9"); A("s_addc_u32 s21, s13, 0"); A(f"s_mov_b32 s22, {nbytes}"); A("s_mov_b32 s23, 0x20000")
    A("s_add_u32 s24, s14, s9"); A("s_addc_u32 s25, s15, 0"); A(f"s_mov_b32 s26, {nbytes}"); A("s_mov_b32 s27, 0x20000")
    if swap:
        A("s_cmp_eq_u32 s5, 0"); A("s_cbranch_scc1 L_noswap")
        A("s_mov_b32 s34, s20"); A("s_mov_b32 s35, s21"); A("s_mov_b32 s20, s24"); A("s_mov_b32 s21, s25"); A("s_mov_b32 s24, s34"); A("s_mov_b32 s25, s35")
        A("L_noswap:")
    if lag:
        A("s_cmp_eq_u32 s5, 0"); A("s_cbranch_scc1 L_nolag")
        A(f"s_mov_b32 s34, {lag}")
        A("L_lagl:"); A("s_sleep 8"); A("s_sub_u32 s34, s34, 1"); A("s_cmp_lg_u32 s34, 0"); A("s_cbranch_scc1 L_lagl")
        A("L_nolag:")
    A("v_lshrrev_b32 v1, 6, v0"); A("s_nop 0"); A("v_readfirstlane_b32 s28, v1")
    A("v_and_b32 v2, 63, v0"); A("v_lshlrev_b32 v2, 4, v2")
    per = 16 // issuers
    if issuers == 4:
        A("s_and_b32 s29, s28, 3")
    else:
        A("s_mov_b32 s29, s28")
    A(f"s_mul_i32 s29, s29, {per*1024}")
    A("v_add_u32 v2, s29, v2")
    for i in range(16): A(f"v_mov_b32 v{16+i}, 0")
    for i in range(8): A(f"v_mov_b32 v{8+i}, 0")
    nph = 64 if mode == "d" else 32
    flags = (" nt" if nt else "") + sc
    cnt = [0]
    if xr:
        A(f"s_mul_i32 s50, s5, {xr*16384}")
    def fill(srd, soff, sl):
        if xr:
            A(f"s_xor_b32 s51, {soff}, s50"); soff = "s51"
        A(f"s_add_u32 m0, {sl}, s29")
        A("s_nop 0")
        for j in range(per):
            if vg:
                r = 64 + 4 * (cnt[0] % 40); cnt[0] += 1
                A(f"buffer_load_dwordx4 v[{r}:{r+3}], v2, s[{srd}:{srd+3}], {soff} offen offset:{j*1024}{flags}")
                continue
            A(f"buffer_load_dwordx4 v2, s[{srd}:{srd+3}], {soff} offen offset:{j*1024}{flags} lds")
    A("s_mov_b32 s30, 0"); A("s_mov_b32 s31, 0"); A("s_mov_b32 s32, 0")
    if rot:
        if mode == "d":
            A("s_lshr_b32 s33, s4, 1"); A("s_lshl_b32 s33, s33, 3"); A("s_add_u32 s33, s33, s3")
        else:
            A("s_mov_b32 s33, s2")
        A(f"s_mul_i32 s31, s33, {rot}"); A(f"s_and_b32 s31, s31, {nph-1}"); A("s_lshl_b32 s31, s31, 14")
    def nextblk():
        A("s_add_u32 s31, s31, 16384")
        if rot: A(f"s_and_b32 s31, s31, {nbytes-1}")
    def adv():
        A("s_add_u32 s30, s30, 16384"); A(f"s_cmp_ge_u32 s30, {nslot*16384}"); A("s_cselect_b32 s30, 0, s30")
    pre = (nslot - 2) // 2
    extra = (nslot - 2) % 2
    if issuers == 4:
        A("s_cmp_lt_u32 s28, 4"); A("s_cbranch_scc1 L_comp")
    for i in range(pre):
        fill(20, "s31", "s30"); adv(); fill(24, "s31", "s30"); adv()
        nextblk()
    if extra:
        fill(20, "s31", "s30"); adv()
    A("L_loop:")
    A(f"s_waitcnt vmcnt({(nslot-4)*per})")
    A("s_barrier")
    if extra:
        fill(24, "s31", "s30"); adv(); nextblk(); fill(20, "s31", "s30"); adv()
    else:
        fill(20, "s31", "s30"); adv(); fill(24, "s31", "s30"); adv(); nextblk()
    for i in range(mfma):
        A("v_mfma_f32_32x32x16_bf16 v[16:31], v[8:11], v[12:15], v[16:31]")
    A("s_add_u32 s32, s32, 1"); A(f"s_cmp_lt_u32 s32, {nph - (pre if rot else 0)}"); A("s_cbranch_scc1 L_loop")
    A("s_waitcnt vmcnt(0)")
    A("s_branch L_end")
    if issuers == 4:
        A("L_comp:")
        if pf:
            A("s_cmp_eq_u32 s5, 0"); A("s_cselect_b32 s36, s20, s24"); A("s_cselect_b32 s37, s21, s25")
            A(f"s_mov_b32 s38, {nbytes}"); A("s_mov_b32 s39, 0x20000")
            A("v_and_b32 v3, 63, v0"); A("v_lshlrev_b32 v3, 7, v3")
            A("s_lshl_b32 s33, s28, 13"); A("v_add_u32 v3, s33, v3")
            A("s_cmp_ge_u32 s28, 2"); A("s_cbranch_scc1 L_comp2")
            pfl = " nt" if pfnt else ""
            ld = {1: "buffer_load_dword v40", 2: "buffer_load_dwordx2 v[40:41]", 4: "buffer_load_dwordx4 v[40:43]"}[pfw]
            A(f"s_mov_b32 s31, {pre*16384}")
            for i in range(pre, pf):
                A(f"{ld}, v3, s[36:39], s31 offen{pfl}"); A("s_add_u32 s31, s31, 16384")
            A("L_comp1:")
            A("s_barrier")
            A(f"{ld}, v3, s[36:39], s31 offen{pfl}"); A("s_add_u32 s31, s31, 16384")
            for i in range(mfma):
                A("v_mfma_f32_32x32x16_bf16 v[16:31], v[8:11], v[12:15], v[16:31]")
            A("s_add_u32 s32, s32, 1"); A(f"s_cmp_lt_u32 s32, {nph}"); A("s_cbranch_scc1 L_comp1")
            A("s_branch L_end")
            A("L_comp2:")
        A("s_barrier")
        for i in range(mfma):
            A("v_mfma_f32_32x32x16_bf16 v[16:31], v[8:11], v[12:15], v[16:31]")
        A("s_add_u32 s32, s32, 1"); A(f"s_cmp_lt_u32 s32, {nph - (pre if rot else 0)}"); A("s_cbranch_scc1 L_comp2" if pf else "s_cbranch_scc1 L_comp")
    A("L_end:")
    A("s_barrier")
    A("s_cmp_lg_u32 s28, 0"); A("s_cbranch_scc1 L_done")
    A("s_memrealtime s[42:43]")
    A("s_memtime s[46:47]")
    A("s_getreg_b32 s48, hwreg(HW_REG_XCC_ID)")
    A("s_waitcnt lgkmcnt(0)")
    A("v_mov_b32 v4, s40"); A("v_mov_b32 v5, s42"); A("s_sub_u32 s46, s46, s44"); A("v_mov_b32 v6, s46"); A("v_mov_b32 v7, s48")
    A("s_lshl_b32 s3, s2, 4"); A("v_mov_b32 v3, s3")
    A("s_mov_b64 exec, 1")
    A("global_store_dwordx4 v3, v[4:7], s[16:17]")
    A("s_waitcnt vmcnt(0)")
    A("L_done:"); A("s_endpgm")
    A('.section .rodata,"a"'); A(".p2align 6"); A(f".amdhsa_kernel {NAME}_kernel")
    A(".amdhsa_next_free_vgpr 256"); A(".amdhsa_next_free_sgpr 102"); A(".amdhsa_accum_offset 256")
    A(".amdhsa_group_segment_fixed_size 0"); A(".amdhsa_kernarg_size 104"); A(".amdhsa_user_sgpr_count 2")
    A(".amdhsa_user_sgpr_kernarg_segment_ptr 1"); A(".amdhsa_system_sgpr_workgroup_id_x 1"); A(".end_amdhsa_kernel")
    return "\n".join(L) + "\n"
if __name__ == "__main__":
    print(gen())
```

```python
import re, gen2, gen_stream
from asmlib import *
def mk(path, **kw):
    base = gen2.gen()
    pr = gen_stream.gen(**kw)
    body = pr[pr.index(f"{NAME}_kernel:\n") + len(f"{NAME}_kernel:\n"): pr.index('.section .rodata')]
    body = re.sub(r"\bL_", "LP_", body)
    a = body.index("s_cmp_lg_u32 s28, 0\ns_cbranch_scc1 LP_done"); b = body.index("LP_done:")
    body = body[:a] + body[b:]
    body = body.replace("s_memrealtime s[40:41]\n", "").replace("s_memtime s[44:45]\n", "")
    lines = base.split("\n")
    i = next(k for k, l in enumerate(lines) if l.startswith("; @launch"))
    lines.insert(i, "; @launch kernel=probe_kernel grid=(256,1,1) block=(512,1,1) lds=163840")
    txt = "\n".join(lines)
    j = txt.index('.section .rodata')
    txt = txt[:j] + "\n".join(kernel_head("probe_kernel")) + "\n" + body + txt[j:] + "\n".join(kd("probe_kernel")) + "\n"
    open(path, "w").write(txt)
mk("probe_nt.s", mode="b", nslot=8, nt=True)
mk("probe_no.s", mode="b", nslot=8, nt=False)
open("v2.s", "w").write(gen2.gen())
open("v2_nont.s", "w").write(gen2.gen(kvnt=False))
```

```python
import sys
from asmlib import *

NB = 64
PIECE = 1056
SLOT = 16 * PIECE
TSLOT = 0
def slot(i): return SLOT * (i + 1)
SPARE = slot(8)
FLG = SPARE + 8192
ALPHA = FLG + 256
RL = ALPHA + 1024
QSETS = [[slot(5), slot(6), slot(7)], [slot(2), slot(3), slot(4)], [TSLOT, slot(0), slot(1)]]
QBUF = [TSLOT, TSLOT + 8192, slot(0), slot(0) + 8192, slot(1), slot(1) + 8192, SPARE]
KRING = [2, 3, 5, 7]
VRING = [4, 6, 0, 1]
PART_HEAD = 114688

S_X, S_WQ, S_K, S_V, S_WO, S_PT = 8, 12, 16, 20, 24, 28
sWAVE, sW4, sROT, sWLDS, sKOFF, sVOFF, sCNT, sBLK, sC, sT = 32, 33, 34, 35, 36, 37, 38, 39, 40, 41
sA, sB2, sD, sE, sHH, sPOFF, sSTRIP, sXOFF, sXLDS = 42, 43, 44, 45, 46, 47, 48, 49, 52
sRET = 54
sTS = 60

class Em:
    def __init__(self, L=None):
        self.L = [] if L is None else L; self.lg = []; self.vm = []; self.nbar = 0
    def fork(self):
        e = Em(self.L); e.lg = list(self.lg); e.vm = list(self.vm); e.nbar = self.nbar; return e
    def I(self, s): self.L.append("    " + s)
    def lab(self, s): self.L.append(s + ":")
    def lds(self, s, tag): self.I(s); self.lg.append(tag)
    def vmem(self, s, tag): self.I(s); self.vm.append(tag)
    def _need(self, q, tags):
        idx = [i for i, t in enumerate(q) if t in tags]
        return None if not idx else max(idx)
    def wl(self, *tags):
        i = self._need(self.lg, tags)
        if i is None: return
        n = min(len(self.lg) - i - 1, 15)
        self.I(f"s_waitcnt lgkmcnt({n})"); self.lg = self.lg[len(self.lg) - n:] if n else []
    def wv(self, *tags):
        i = self._need(self.vm, tags)
        if i is None: return
        n = min(len(self.vm) - i - 1, 63)
        self.I(f"s_waitcnt vmcnt({n})"); self.vm = self.vm[len(self.vm) - n:] if n else []
    def wl0(self):
        if self.lg: self.I("s_waitcnt lgkmcnt(0)")
        self.lg = []
    def bar(self): self.I("s_barrier"); self.nbar += 1
    def items(self, its):
        for f in its:
            if callable(f): f()
            else: self.I(f)

class Base:
    def __init__(self, e, reg, cur=0): self.e, self.reg, self.cur = e, reg, cur
    def set(self, b):
        d = b - self.cur
        if d: self.e.I(f"v_add_u32 v{self.reg}, {d & 0xffffffff}, v{self.reg}")
        self.cur = b

def vr(a, n): return f"v[{a}:{a+n-1}]"
def mfma(d, a, b, c=None):
    return f"v_mfma_f32_16x16x32_bf16 {vr(d,4)}, {vr(a,4)}, {vr(b,4)}, " + ("0" if c == 0 else vr(d, 4))
def spread(nslots, fillers, first=0, last=None):
    last = nslots - 1 if last is None else last
    out = [[] for _ in range(nslots)]
    n = last - first + 1
    for i, f in enumerate(fillers): out[first + (i * n) // len(fillers)].append(f)
    return out

def gen(diag=False, kvnt=True, stnt=False, hot=False, nodma=False, prio="S", sfirst=3, slast=31, dmafirst=0, dmalast=3, k1only=False, pstamp=False, qpre=2, nosm=False, noO=False, noS=False, nobar=False):
    NT_ = " nt" if kvnt else ""
    E = Em(); I = E.I
    def stamp(e, k):
        if diag:
            e.I(f"s_memtime s[{sTS+4*k}:{sTS+4*k+1}]"); e.I(f"s_memrealtime s[{sTS+4*k+2}:{sTS+4*k+3}]")
    head = [l for l in open("ref.s.txt").read().split("\n") if l.startswith(";") and "@launch" not in l and "Override" not in l and "grid=ceil" not in l]
    head += [f"; @launch kernel={NAME}_kernel grid=(256,1,1) block=(512,1,1) lds=163840"]
    if not k1only: head += ["; @launch kernel=reduce_kernel grid=(448,1,1) block=(256,1,1) lds=0"]
    head += ['.amdgcn_target "amdgcn-amd-amdhsa--gfx950"', ".text"]
    E.L += kernel_head(NAME + "_kernel")
    I("s_cmp_ge_u32 s2, 256"); I("s_cbranch_scc1 L_done")
    stamp(E, 0)
    I("s_bfe_u32 s6, s2, 0x10002"); I("s_and_b32 s3, s2, 3"); I("s_lshl_b32 s3, s3, 1"); I("s_bfe_u32 s4, s2, 0x10004"); I("s_add_u32 s3, s3, s4")
    I(f"s_bfe_u32 s{sHH}, s2, 0x10003"); I("s_lshr_b32 s7, s2, 5")
    I("s_lshl_b32 s5, s6, 3"); I("s_add_u32 s5, s5, s7"); I(f"s_mul_i32 s{sA}, s6, 40")
    I(f"s_add_u32 s50, s0, s{sA}"); I("s_addc_u32 s51, s1, 0")
    I(f"s_load_dwordx2 s[{S_X}:{S_X+1}], s[50:51], 0")
    I(f"s_load_dwordx2 s[{S_WQ}:{S_WQ+1}], s[50:51], 24")
    I(f"s_load_dwordx2 s[{S_K}:{S_K+1}], s[50:51], 8")
    I(f"s_load_dwordx2 s[{S_V}:{S_V+1}], s[50:51], 16")
    I(f"s_load_dwordx2 s[{S_WO}:{S_WO+1}], s[50:51], 32")
    I(f"s_load_dwordx2 s[{S_PT}:{S_PT+1}], s[0:1], 96")
    if diag: I("s_load_dwordx2 s[58:59], s[0:1], 96")
    I("v_lshrrev_b32 v1, 6, v0"); I("v_and_b32 v0, 63, v0")
    I(f"v_readfirstlane_b32 s{sWAVE}, v1")
    I(f"s_lshl_b32 s4, s3, 1"); I(f"s_add_u32 s4, s4, s{sHH}")
    I(f"s_bfe_u32 s{sA}, s2, 0x20003"); I(f"s_lshl_b32 s{sA}, s{sA}, 1"); I(f"s_add_u32 s{sROT}, s7, s{sA}")
    I(f"s_cmp_ge_u32 s{sROT}, 7"); I(f"s_cselect_b32 s{sA}, 7, 0"); I(f"s_sub_u32 s{sROT}, s{sROT}, s{sA}")
    I(f"s_and_b32 s{sW4}, s{sWAVE}, 3")
    I(f"s_mul_i32 s{sWLDS}, s{sW4}, {4*PIECE}")
    I(f"s_mov_b32 s{sC}, 0x3db8aa3b"); I(f"s_mov_b32 s{sT}, 0x41000000")
    vXD, vWD, vXA0, vXA1, vQA, t0, t1 = 1, 2, 3, 4, 5, 6, 7
    I(f"v_lshrrev_b32 v{vXD}, 3, v0"); I(f"v_mul_u32_u24 v{vXD}, 896, v{vXD}")
    I(f"v_lshrrev_b32 v{t0}, 4, v0"); I(f"v_lshlrev_b32 v{t0}, 1, v{t0}"); I(f"v_and_b32 v{t1}, 7, v0"); I(f"v_xor_b32 v{t0}, v{t0}, v{t1}")
    I(f"v_lshl_add_u32 v{vXD}, v{t0}, 4, v{vXD}")
    I(f"v_lshrrev_b32 v{t0}, 5, v0"); I(f"v_lshlrev_b32 v{vWD}, 15, v{t0}"); I(f"v_and_b32 v{t0}, 31, v0")
    I(f"v_lshl_add_u32 v{vWD}, v{t0}, 4, v{vWD}")
    I(f"s_lshl_b32 s{sPOFF}, s{sROT}, 19"); I(f"s_lshl_b32 s{sE}, s{sWAVE}, 16")
    I(f"s_lshl_b32 s{sXOFF}, s{sROT}, 7"); I(f"s_mul_i32 s{sB2}, s{sWAVE}, {16*896}")
    I(f"s_lshl_b32 s{sXLDS}, s{sWAVE}, 11")
    I(f"s_lshr_b32 s{sD}, s{sWAVE}, 2"); I(f"s_mul_i32 s{sD}, s{sD}, {SLOT}"); I(f"s_add_u32 s53, s{sD}, s{sWLDS}")
    I("s_waitcnt lgkmcnt(0)")
    if pstamp: stamp(E, 1)
    def srd(r, off_sgpr, size):
        I(f"s_add_u32 s{r}, s{r}, s{off_sgpr}"); I(f"s_addc_u32 s{r+1}, s{r+1}, 0")
        if isinstance(size, int): I(f"s_mov_b32 s{r+2}, {size}")
        else: I(size)
        I(f"s_mov_b32 s{r+3}, 0x20000")
    I(f"s_mul_i32 s{sA}, s7, 100352"); srd(S_X, sA, 100352)
    I(f"s_lshl_b32 s{sA}, s4, 9"); srd(S_WQ, sA, f"s_sub_u32 s{S_WQ+2}, {448*8192}, s{sA}")
    def qfill_ops(e, i):
        xs, wa, wb = QSETS[i % 3]
        assert wb == wa + SLOT
        ops = []
        for j in range(2):
            def f(j=j):
                e.I(f"s_add_u32 s{sD}, s{sXOFF}, s{sB2}")
                if j: e.I(f"s_add_u32 s{sD}, s{sD}, {8*896}")
                e.I(f"s_add_u32 m0, s{sXLDS}, {xs + j*1024}"); e.I("s_nop 0")
                e.vmem(f"buffer_load_dwordx4 v{vXD}, s[{S_X}:{S_X+3}], s{sD} offen lds", ("QF", i))
            ops.append(f)
        for j in range(4):
            def f(j=j):
                e.I(f"s_add_u32 s{sD}, s{sPOFF}, s{sE}")
                if j: e.I(f"s_add_u32 s{sD}, s{sD}, {j*8192}")
                e.I(f"s_add_u32 m0, s53, {wa + j*PIECE}"); e.I("s_nop 0")
                e.vmem(f"buffer_load_dwordx4 v{vWD}, s[{S_WQ}:{S_WQ+3}], s{sD} offen lds", ("QF", i))
                if j == 3:
                    e.I(f"s_add_u32 s{sPOFF}, s{sPOFF}, {1<<19}"); e.I(f"s_add_u32 s{sXOFF}, s{sXOFF}, 128")
                    e.I(f"s_cmp_eq_u32 s{sXOFF}, 896"); e.I(f"s_cselect_b32 s{sPOFF}, 0, s{sPOFF}"); e.I(f"s_cselect_b32 s{sXOFF}, 0, s{sXOFF}")
            ops.append(f)
        return ops
    for i in range(qpre): E.items(qfill_ops(E, i))
    if pstamp: stamp(E, 2)
    I(f"s_lshl_b32 s{sA}, s7, 3"); I(f"s_add_u32 s{sA}, s{sA}, s3"); I(f"s_lshl_b32 s{sA}, s{sA}, 20")
    srd(S_K, sA, 1 << 20); srd(S_V, sA, 1 << 20)
    I(f"s_mul_i32 s{sA}, s4, {256*896}"); srd(S_WO, sA, 256 * 896)
    I(f"s_lshl_b32 s{sA}, s5, 4"); I(f"s_add_u32 s{sA}, s{sA}, s4"); I(f"s_mul_i32 s{sA}, s{sA}, {PART_HEAD}"); srd(S_PT, sA, PART_HEAD)
    I(f"v_and_b32 v{t0}, 15, v0"); I(f"v_lshlrev_b32 v{vXA0}, 7, v{t0}")
    I(f"v_and_b32 v{t0}, 6, v0"); I(f"v_lshrrev_b32 v{t1}, 4, v0"); I(f"v_xor_b32 v{t0}, v{t0}, v{t1}")
    I(f"v_lshl_add_u32 v{vXA0}, v{t0}, 4, v{vXA0}"); I(f"v_xor_b32 v{vXA1}, 64, v{vXA0}")
    def tr_lane(e, dst, tmp, sh):
        e.I(f"v_lshrrev_b32 v{dst}, 2, v0"); e.I(f"v_mul_u32_u24 v{dst}, {PIECE}, v{dst}")
        e.I(f"v_and_b32 v{tmp}, 3, v0"); e.I(f"v_lshl_add_u32 v{dst}, v{tmp}, {sh}, v{dst}")
    tr_lane(E, vQA, t0, 4)
    I(f"s_lshl_b32 s{sA}, s{sWAVE}, 6"); I(f"v_add_u32 v{vQA}, s{sA}, v{vQA}")
    vDM = 8
    I(f"v_and_b32 v{vDM}, 31, v0"); I(f"v_lshlrev_b32 v{vDM}, 4, v{vDM}")
    I(f"v_lshrrev_b32 v{t0}, 5, v0"); I(f"v_lshl_add_u32 v{vDM}, v{t0}, 13, v{vDM}")
    I(f"s_lshl_b32 s{sKOFF}, s{sW4}, 11"); I(f"s_add_u32 s{sVOFF}, s{sKOFF}, {0 if hot else 16384}"); I(f"s_add_u32 s{sKOFF}, s{sKOFF}, {0 if hot else 32768}")
    I(f"v_lshlrev_b32 v{t0}, 2, v0"); I(f"v_add_u32 v{t0}, {FLG}, v{t0}"); I(f"v_mov_b32 v{t1}, 0")
    E.lds(f"ds_write_b32 v{t0}, v{t1}", ("F",))
    def kv_piece(e, kind, j, i):
        if nodma and j >= 4: return
        ring, srd_, off = (KRING, S_K, sKOFF) if kind == "K" else (VRING, S_V, sVOFF)
        e.I(f"s_add_u32 m0, s{sWLDS}, {slot(ring[j % 4]) + i*(PIECE-512)}")
        e.I("s_nop 0")
        e.vmem(f"buffer_load_dwordx4 v{vDM}, s[{srd_}:{srd_+3}], s{off} offen offset:{i*512}{NT_} lds", (kind, j))
        if i == 3 and not hot: e.I(f"s_add_u32 s{off}, s{off}, 16384")
    QA, QB_, QACC = 16, 32, 96
    bx0, bx1, bq = Base(E, vXA0), Base(E, vXA1), Base(E, vQA)
    for i in range(7):
        E.wv(("QF", i))
        if i == 0: E.wl0()
        if pstamp and i == 0: stamp(E, 3)
        E.bar()
        if i == 0 and not pstamp: stamp(E, 1)
        if pstamp and i < 4: stamp(E, 4 + i)
        xs, wa, wb = QSETS[i % 3]
        bx0.set(xs); bx1.set(xs); bq.set(wa)
        def rda(kk):
            for b in range(2):
                for u in range(2):
                    E.lds(f"ds_read_b64_tr_b16 {vr(QA+8*kk+4*b+2*u,2)}, v{vQA} offset:{kk*SLOT + u*512 + b*8}", ("A", kk))
        def rdb(kk, z):
            E.lds(f"ds_read_b128 {vr(QB_+28*kk+4*z,4)}, v{vXA1 if kk else vXA0} offset:{z*2048}", ("B", kk, z))
        rda(0)
        for z in range(4): rdb(0, z)
        fl = []
        if i >= 1 and i + 2 < 7: fl = qfill_ops(E, i + 2)
        if i == 0 and qpre < 3: fl = sum([qfill_ops(E, k) for k in range(qpre, 3)], [])
        fil = spread(14, fl, 0, 9) if fl else [[] for _ in range(14)]
        if i == 5:
            I(f"s_lshl_b32 s{sE}, s{sWAVE}, 10"); I(f"s_mul_i32 s{sB2}, s{sWAVE}, {2*PIECE}")
            def pre(kind, j, i):
                ring, srd_ = (KRING, S_K) if kind == "K" else (VRING, S_V)
                I(f"s_add_u32 s{sD}, s{sE}, {j*16384}")
                I(f"s_add_u32 m0, s{sB2}, {slot(ring[j]) + i*(PIECE-512)}"); I("s_nop 0")
                E.vmem(f"buffer_load_dwordx4 v{vDM}, s[{srd_}:{srd_+3}], s{sD} offen offset:{i*512}{NT_} lds", (kind, j))
            fl = [(lambda k=k, j=j, i_=i_: pre(k, j, i_)) for k, j in (("K", 0), ("K", 1), ("V", 0)) for i_ in range(2)]
            fil = spread(14, fl, 0, 9)
        order = [(kk, z) for kk in range(2) for z in range(7)]
        for n, (kk, z) in enumerate(order):
            E.wl(("A", kk), ("B", kk, z))
            for b in range(2):
                I(mfma(QACC + 8 * z + 4 * b, QA + 8 * kk + 4 * b, QB_ + 28 * kk + 4 * z, 0 if (i == 0 and kk == 0) else None))
            if n == 0: rda(1)
            if n + 4 < 14: rdb(*order[n + 4])
            E.items(fil[n])
    I("s_nop 7")
    I(f"v_lshlrev_b32 v{t0}, 4, v0"); I(f"s_lshl_b32 s{sA}, s{sWAVE}, 10"); I(f"v_add_u32 v{t0}, s{sA}, v{t0}")
    bw = Base(E, t0)
    for z in range(7):
        for n in range(8): I(f"v_mul_f32 v{QACC+8*z+n}, s{sC}, v{QACC+8*z+n}")
        for n in range(4): I(f"v_cvt_pk_bf16_f32 v{QB_+4*z+n}, v{QACC+8*z+2*n}, v{QACC+8*z+2*n+1}")
        off = QBUF[z]
        if off > 60000: bw.set(off); off = 0
        E.lds(f"ds_write_b128 v{t0}, {vr(QB_+4*z,4)} offset:{off}", ("QW",))
    I(f"s_mov_b32 s{sBLK}, 0")
    I(f"s_cmp_ge_u32 s{sWAVE}, 4"); I("s_cbranch_scc1 L_owave")
    O = E.fork()

    kfree = [slot(KRING[(NB - 4 + i) % 4]) for i in range(4)]
    vs = [slot(VRING[(NB - 4 + i) % 4]) for i in range(4)]
    WOSLOT = kfree + [vs[0], vs[1], TSLOT, vs[2], vs[3]]
    WOSLOT += [WOSLOT[i] for i in range(5)]
    OBUF = [TSLOT, TSLOT + 8192, vs[2], vs[2] + 8192, vs[3], vs[3] + 8192, SPARE]
    def oproj(e, role, fills_at):
        I = e.I
        vTA, vST, vT, RLR, AF, PK, ACC, BF = 1, 2, 3, 4, 16, 32, 40, 72
        zs = [0, 1, 2, 3] if role == 0 else [4, 5, 6]
        nz = len(zs)
        I(f"v_lshlrev_b32 v{vT}, 4, v0")
        I(f"v_and_b32 v{vST}, 15, v0"); I(f"v_lshlrev_b32 v{vST}, 2, v{vST}"); I(f"v_add_u32 v{vST}, {RL}, v{vST}")
        for a, z in enumerate(zs): e.lds(f"ds_read_b32 v{RLR+a}, v{vST} offset:{z*64}", ("R",))
        tr_lane(e, vTA, vST, 3)
        I(f"s_lshl_b32 s{sA}, s{sW4}, 5"); I(f"v_add_u32 v{vTA}, s{sA}, v{vTA}")
        I(f"s_lshl_b32 s{sA}, s{sWAVE}, 11"); I(f"v_add_u32 v{vST}, s{sA}, v{vT}")
        I(f"s_mov_b32 s{sSTRIP}, s{sROT}")
        ba, bb = Base(e, vTA), Base(e, vT)
        seq = [(j, kp) for j in range(7) for kp in range(8)]
        def rd(n):
            j, kp = seq[n]
            ba.set(WOSLOT[2 * j + kp // 4])
            for u in range(2):
                e.lds(f"ds_read_b64_tr_b16 {vr(AF+4*(n%4)+2*u,2)}, v{vTA} offset:{(2*(kp%4)+u)*128}", ("A", n))
        def rdB(kp):
            for a, z in enumerate(zs):
                base = OBUF[z - (z - zs[0]) % 2] if False else OBUF[z]
                lo = min(OBUF[zz] for zz in zs)
                if base - bb.cur < 0 or base - bb.cur + kp * 1024 > 65535: bb.set(base)
                e.lds(f"ds_read_b128 {vr(BF+32*a+4*kp,4)}, v{vT} offset:{base - bb.cur + kp*1024}", ("B", kp, a))
        def fin(j):
            acc = ACC + 16 * (j % 2)
            ops = []
            for a in range(nz):
                ops += [f"v_mul_f32 v{acc+4*a+r}, v{RLR+a}, v{acc+4*a+r}" for r in range(4)]
                ops += [f"v_cvt_pk_bf16_f32 v{PK+2*a+n}, v{acc+4*a+2*n}, v{acc+4*a+2*n+1}" for n in range(2)]
            def st():
                fl = " nt" if stnt else ""
                I(f"s_lshl_b32 s{sA}, s{sSTRIP}, 14")
                I(f"s_add_u32 s{sSTRIP}, s{sSTRIP}, 1")
                e.vmem(f"buffer_store_dwordx4 {vr(PK,4)}, v{vST}, s[{S_PT}:{S_PT+3}], s{sA} offen{fl}", ("ST", j))
                if nz == 4: e.vmem(f"buffer_store_dwordx4 {vr(PK+4,4)}, v{vST}, s[{S_PT}:{S_PT+3}], s{sA} offen offset:1024{fl}", ("ST", j))
                else: e.vmem(f"buffer_store_dwordx2 {vr(PK+4,2)}, v{vST}, s[{S_PT}:{S_PT+3}], s{sA} offen offset:1024{fl}", ("ST", j))
                I(f"s_cmp_eq_u32 s{sSTRIP}, 7"); I(f"s_cselect_b32 s{sSTRIP}, 0, s{sSTRIP}")
            ops.append(st)
            return ops
        rd(0); rdB(0); rd(1); rdB(1); rd(2); rd(3)
        for j in range(7):
            fl = fin(j - 1) if j else []
            fil = spread(8 * nz, fl, 2 * nz, 8 * nz - 1) if fl else [[] for _ in range(8 * nz)]
            fl = fills_at(e, ("post", j))
            if fl:
                f2 = spread(8 * nz, fl, 0, min(8 * nz - 1, len(fl) - 1))
                fil = [a + b for a, b in zip(f2, fil)]
            for kp in range(8):
                n = 8 * j + kp
                for a in range(nz):
                    e.wl(("A", n), ("B", kp, a))
                    I(mfma(ACC + 16 * (j % 2) + 4 * a, AF + 4 * (n % 4), BF + 32 * a + 4 * kp, 0 if kp == 0 else None))
                    if a == nz - 1:
                        if j == 0 and kp + 2 < 8: rdB(kp + 2)
                        if n + 4 < len(seq): rd(n + 4)
                    e.items(fil[kp * nz + a])
            if j < 6:
                fills_at(e, ("pre", j + 1))
                e.bar()
        I("s_nop 7")
        e.wl(("R",))
        e.items(fin(6))

    LOOP0, LOOPN = 5, 61
    rare_s = []
    if pstamp:
        stamp0 = stamp
        stamp = lambda e, k: (stamp0(e, k) if k == 8 else None)
    def swave(S, NZ, tag):
        I = S.I
        vKA, vPW, vAW, vL, vT0, vT1, vT2 = 1, 2, 3, 6, 9, 11, 13
        Q0, SA, SB, KF, PO, EX, NM = 16, 80, 96, 112, 144, 152, 168
        NKF = 8
        I(f"v_lshlrev_b32 v{vPW}, 4, v0")
        if NZ == 2:
            I(f"s_mul_i32 s{sA}, s{sW4}, {SLOT}"); I(f"v_add_u32 v{vT0}, s{sA}, v{vPW}")
        else:
            I(f"v_add_u32 v{vT0}, {QBUF[6]}, v{vPW}")
        I(f"v_and_b32 v{vKA}, 15, v0"); I(f"v_mul_u32_u24 v{vKA}, {PIECE}, v{vKA}")
        I(f"v_lshrrev_b32 v{vT1}, 4, v0"); I(f"v_lshl_add_u32 v{vKA}, v{vT1}, 4, v{vKA}")
        I(f"s_lshl_b32 s{sA}, s{sW4}, 11"); I(f"v_add_u32 v{vPW}, s{sA}, v{vPW}")
        I(f"v_and_b32 v{vAW}, 15, v0"); I(f"v_lshlrev_b32 v{vAW}, 2, v{vAW}")
        I(f"s_lshl_b32 s{sA}, s{sW4}, 7"); I(f"s_add_u32 s{sA}, s{sA}, {ALPHA}"); I(f"v_add_u32 v{vAW}, s{sA}, v{vAW}")
        for a in range(NZ):
            I(f"v_mov_b32 v{vL+a}, 0")
            for r in range(4): I(f"v_mov_b32 v{NM+4*a+r}, 0")
        I(f"s_mov_b32 s{sT}, 0x40004000")
        if prio == "S": I("s_setprio 1")
        S.wl0(); S.wv(("K", 0), ("K", 1))
        S.bar()
        stamp(S, 2)
        bk = Base(S, vKA)
        def rdk(p, n):
            bk.set(slot(KRING[p % 4]))
            S.lds(f"ds_read_b128 {vr(KF+4*(n%NKF),4)}, v{vKA} offset:{(n%2)*512 + (n//2)*64}", ("K", p, n))
        nv = 8 * NZ
        def exp_cvt(sp):
            ops = []
            for k in range(nv + 3):
                if k < nv: ops.append(f"v_exp_f32 v{EX+k}, v{sp+k}")
                if k >= 3 and k % 2 == 1: ops.append(f"v_cvt_pk_bf16_f32 v{PO+(k-3)//2}, v{EX+k-3}, v{EX+k-2}")
            return ops
        def softmax_ops(p):
            sp = SB if p % 2 == 0 else SA
            par = (p - 1) % 2
            ops = exp_cvt(sp)
            ops.append(f"v_or3_b32 v{vT0}, v{PO}, v{PO+1}, v{PO+2}")
            if NZ == 2:
                ops.append(f"v_or3_b32 v{vT1}, v{PO+3}, v{PO+4}, v{PO+5}")
                ops.append(f"v_or3_b32 v{vT0}, v{vT0}, v{PO+6}, v{PO+7}")
                ops.append(f"v_or_b32 v{vT0}, v{vT0}, v{vT1}")
            else:
                ops.append(f"v_or_b32 v{vT0}, v{vT0}, v{PO+3}")
            ops.append(f"v_and_b32 v{vT0}, s{sT}, v{vT0}")
            kind = ("q" if p < NB else "n") + str(par)
            def check():
                I(f"s_add_u32 s{sBLK}, s{sBLK}, 1")
                if p == 1:
                    I(f"s_call_b64 s[{sRET}:{sRET+1}], L_rare_s{tag}_{kind}")
                else:
                    I(f"v_cmp_ne_u32 vcc, 0, v{vT0}")
                    I(f"s_cbranch_vccnz L_stub_s{tag}_{p}")
                    S.lab(f"L_back_s{tag}_{p}")
                    rare_s.append((tag, p, kind))
            ops.append(check)
            for a in range(NZ):
                ops.append(lambda a=a: S.lds(f"ds_write_b128 v{vPW}, {vr(PO+4*a,4)} offset:{par*7168 + a*1024}", ("P", a)))
            for k in range(nv): ops.append(f"v_add_f32 v{vL+(k%NZ)}, v{vL+(k%NZ)}, v{EX+8*(k%NZ)+k//NZ}")
            if nosm: return [o for o in ops if callable(o)][1:]
            return ops
        def s_phase(p):
            cur = SA if p % 2 == 0 else SB
            do_qk, do_sm = p < NB, p >= 1
            sm = softmax_ops(p) if do_sm else []
            if do_qk:
                if p == 0:
                    for a in range(NZ):
                        for ks in range(2): S.lds(f"ds_read_b128 {vr(Q0+32*a+4*ks,4)}, v{vT0} offset:{a*8192 + ks*1024}", ("Q", a, ks))
                if p in (0, 2):
                    for n in range(NKF - 2): rdk(p, n)
                if p == 0:
                    for ks in range(2, 8):
                        for a in range(NZ): S.lds(f"ds_read_b128 {vr(Q0+32*a+4*ks,4)}, v{vT0} offset:{a*8192 + ks*1024}", ("Q", a, ks))
                ng = 16 * NZ
                f0, f1 = (sfirst, slast) if NZ == 2 else (4, 15)
                fil = spread(ng, sm, f0, f1) if sm else [[] for _ in range(ng)]
                for n in range(16):
                    ks, y = n // 2, n % 2
                    for a in range(NZ):
                        if y == 0: S.wl(("K", p, n), ("K", p, n + 1), ("Q", a, ks))
                        if not noS:
                            if ks == 0: I(f"v_mfma_f32_16x16x32_bf16 {vr(cur+8*a+4*y,4)}, {vr(KF+4*(n%NKF),4)}, {vr(Q0+32*a,4)}, {vr(NM+4*a,4)}")
                            else: I(mfma(cur + 8 * a + 4 * y, KF + 4 * (n % NKF), Q0 + 32 * a + 4 * ks))
                        if a == NZ - 1:
                            m = n + NKF - 2
                            if m < 16: rdk(p, m)
                            elif p + 1 < NB and p != 1: rdk(p + 1, m - 16)
                        S.items(fil[n * NZ + a])
                S.wl(("P", 0), ("P", 1))
                if p == 0: S.wv(("V", 0))
                if p + 1 >= NB: I("s_nop 7")
            else:
                S.items(sm)
                for sw in ("v_permlane16_swap_b32", "v_permlane32_swap_b32"):
                    for a in range(NZ): I(f"v_mov_b32 v{vT0+a}, v{vL+a}")
                    I("s_nop 1")
                    for a in range(NZ): I(f"{sw} v{vL+a}, v{vT0+a}")
                    for a in range(NZ): I(f"v_add_f32 v{vL+a}, v{vL+a}, v{vT0+a}")
                for a in range(NZ): I(f"v_rcp_f32 v{vL+a}, v{vL+a}")
                I("s_nop 0")
                for a in range(NZ): S.lds(f"ds_write_b32 v{vAW}, v{vL+a} offset:{RL-ALPHA + a*64}", ("P", 2))
                S.wl0()
            S.bar()
        for p in range(0, LOOP0): s_phase(p)
        stamp(S, 3)
        I(f"s_mov_b32 s{sCNT}, {(LOOPN-LOOP0)//4}")
        S.lab(f"L_sloop{tag}")
        st = (list(S.lg), bk.cur, S.nbar)
        for p in range(LOOP0, LOOP0 + 4): s_phase(p)
        assert [(t[0], t[1] - 4, t[2]) for t in S.lg] == st[0] and bk.cur == st[1], (S.lg, st)
        I(f"s_sub_u32 s{sCNT}, s{sCNT}, 1"); I(f"s_cmp_lg_u32 s{sCNT}, 0"); I(f"s_cbranch_scc1 L_sloop{tag}")
        stamp(S, 4)
        S.lg = [(t[0], LOOPN, t[2]) for t in S.lg]
        S.nbar = st[2] + (LOOPN - LOOP0)
        for p in range(LOOPN, NB + 1): s_phase(p)
        stamp(S, 5)
        sub = []
        for kind in ("q0", "q1") + (("n1",) if NB % 2 == 0 else ("n0",)):
            par = int(kind[1])
            sp, cur = (SA, SB) if par == 0 else (SB, SA)
            sub.append(f"L_rare_s{tag}_{kind}:")
            for a in range(NZ):
                b = sp + 8 * a
                sub.append(f"v_max3_f32 v{vT0+a}, v{b}, v{b+1}, v{b+2}")
                sub.append(f"v_max3_f32 v{vT0+a}, v{vT0+a}, v{b+3}, v{b+4}")
                sub.append(f"v_max3_f32 v{vT0+a}, v{vT0+a}, v{b+5}, v{b+6}")
                sub.append(f"v_max_f32 v{vT0+a}, v{vT0+a}, v{b+7}")
            for sw in ("v_permlane16_swap_b32", "v_permlane32_swap_b32"):
                for a in range(NZ): sub.append(f"v_mov_b32 v{vT1+a}, v{vT0+a}")
                sub.append("s_nop 1")
                for a in range(NZ): sub.append(f"{sw} v{vT0+a}, v{vT1+a}")
                for a in range(NZ): sub.append(f"v_max_f32 v{vT0+a}, v{vT0+a}, v{vT1+a}")
            sub.append(f"s_cmp_eq_u32 s{sBLK}, 1"); sub.append(f"s_cselect_b32 s{sA}, 0x7f7fffff, 0")
            for a in range(NZ):
                sub.append(f"v_sub_f32 v{vT0+a}, 0xc0e00000, v{vT0+a}")
                sub.append(f"v_min_f32 v{vT0+a}, s{sA}, v{vT0+a}")
                sub.append(f"v_min_f32 v{vT1+a}, 0, v{vT0+a}")
                sub.append(f"v_exp_f32 v{vT1+a}, v{vT1+a}")
                for r in range(4): sub.append(f"v_add_f32 v{NM+4*a+r}, v{NM+4*a+r}, v{vT0+a}")
                for r in range(8): sub.append(f"v_add_f32 v{sp+8*a+r}, v{sp+8*a+r}, v{vT0+a}")
                if kind[0] == "q":
                    for r in range(8): sub.append(f"v_add_f32 v{cur+8*a+r}, v{cur+8*a+r}, v{vT0+a}")
                sub.append(f"v_mul_f32 v{vL+a}, v{vL+a}, v{vT1+a}")
                sub.append(f"ds_write_b32 v{vAW}, v{vT1+a} offset:{par*448 + a*64}")
            sub += exp_cvt(sp)
            sub.append(f"s_lshl_b32 s{sA}, s{sW4}, 3"); sub.append(f"s_add_u32 s{sA}, s{sA}, {FLG + par*128}")
            sub.append(f"v_mov_b32 v{vT0}, s{sA}"); sub.append(f"v_mov_b32 v{vT2}, s{sBLK}")
            for a in range(NZ): sub.append(f"ds_write_b32 v{vT0}, v{vT2} offset:{4*a}")
            sub.append("s_waitcnt lgkmcnt(0)")
            sub.append(f"s_setpc_b64 s[{sRET}:{sRET+1}]")
        return sub
    I(f"s_cmp_eq_u32 s{sWAVE}, 3"); I("s_cbranch_scc1 L_swave3")
    S3 = E.fork()
    subs = swave(E, 2, "a")
    I("s_branch L_sjoin")
    S3.lab("L_swave3")
    subs += swave(S3, 1, "b")
    assert S3.nbar == E.nbar
    E.lab("L_sjoin")
    S = E
    S.bar()
    S.bar()
    stamp(S, 6)
    oproj(S, 0, lambda e, st: [])
    stamp(S, 7)
    nbarS = S.nbar
    if diag:
        I(f"s_cmp_lg_u32 s{sWAVE}, 0"); I("s_cbranch_scc1 L_done")
        I("s_waitcnt vmcnt(0)")
        stamp(S, 8)
        I("s_waitcnt lgkmcnt(0)")
        I("s_mov_b64 exec, 1")
        I(f"s_lshl_b32 s{sA}, s2, 7"); I(f"s_add_u32 s{sA}, s{sA}, {64<<20}"); I(f"v_mov_b32 v1, s{sA}")
        for k in range(9):
            I(f"v_mov_b32 v4, s{sTS+4*k}"); I(f"v_mov_b32 v5, s{sTS+4*k+2}")
            I(f"global_store_dwordx2 v1, v[4:5], s[58:59] offset:{8*k}")
            I("s_nop 1")
    I("s_endpgm")

    I = O.I
    O.lab("L_owave")
    vVA, vPA, vWX, vFA, vF = 1, 2, 9, 4, 5
    PF, VF, OA = 16, 32, 64
    tr_lane(O, vVA, 6, 3)
    I(f"s_lshl_b32 s{sA}, s{sW4}, 7"); I(f"v_add_u32 v{vVA}, s{sA}, v{vVA}")
    I(f"v_lshlrev_b32 v{vPA}, 4, v0")
    I(f"v_and_b32 v{vFA}, 7, v0"); I(f"v_lshlrev_b32 v{vFA}, 2, v{vFA}"); I(f"v_add_u32 v{vFA}, {FLG}, v{vFA}")
    I(f"v_lshrrev_b32 v{vWX}, 3, v0"); I(f"v_mul_u32_u24 v{vWX}, {16*896}, v{vWX}")
    I(f"v_and_b32 v6, 7, v0"); I(f"v_lshl_add_u32 v{vWX}, v6, 4, v{vWX}")
    I(f"s_mul_i32 s{sA}, s{sW4}, {4*896}"); I(f"v_add_u32 v{vWX}, s{sA}, v{vWX}")
    I(f"s_lshl_b32 s{sPOFF}, s{sROT}, 7")
    def wo_piece(f, i):
        I(f"s_add_u32 s{sD}, s{sPOFF}, {((f%2)*128 + i)*896}")
        I(f"s_add_u32 m0, s{sWLDS}, {WOSLOT[f] + i*PIECE}")
        I("s_nop 0")
        O.vmem(f"buffer_load_dwordx4 v{vWX}, s[{S_WO}:{S_WO+3}], s{sD} offen lds", ("WO", f))
        if i == 3 and f % 2 == 1:
            I(f"s_add_u32 s{sPOFF}, s{sPOFF}, 128"); I(f"s_cmp_eq_u32 s{sPOFF}, 896"); I(f"s_cselect_b32 s{sPOFF}, 0, s{sPOFF}")
    O.wl0()
    for r in range(OA, OA + 112): I(f"v_mov_b32 v{r}, 0")
    if prio == "O": I("s_setprio 1")
    O.wv(("K", 0), ("K", 1))
    O.bar()
    bv = Base(O, vVA)
    def rdv(j):
        bv.set(slot(VRING[j % 4]))
        for sl in range(4):
            for y in range(2):
                O.lds(f"ds_read_b64_tr_b16 {vr(VF+16*(j%2)+4*sl+2*y,2)}, v{vVA} offset:{y*512 + sl*32}", ("V", j, sl))
    rare_o = []
    def o_phase(p):
        j = p - 2
        pieces = []
        def kv(kind, jj): return [(lambda i=i: kv_piece(O, kind, jj, i)) for i in range(4)]
        if p == 0: pieces += kv("K", 2)
        if p + 1 < NB: pieces += kv("V", p + 1)
        if p + 3 < NB: pieces += kv("K", p + 3)
        else:
            for f in {NB - 3: [0], NB - 2: [1], NB - 1: [2], NB: [3, 4], NB + 1: [5]}[p]:
                pieces += [(lambda i=i, f=f: wo_piece(f, i)) for i in range(4)]
        if j < 0:
            O.items(pieces)
            if p == 1: rdv(0)
        else:
            par = j % 2
            def rdp(z): O.lds(f"ds_read_b128 {vr(PF+4*(z%4),4)}, v{vPA} offset:{par*7168 + z*1024}", ("P", z))
            O.lds(f"ds_read_b32 v{vF}, v{vFA} offset:{par*128}", ("F",))
            for z in range(4): rdp(z)
            I(f"s_add_u32 s{sBLK}, s{sBLK}, 1")
            fil = spread(8, pieces, dmafirst, dmalast) if pieces else [[] for _ in range(8)]
            O.items(fil[0])
            O.wl(("F",))
            I(f"v_cmp_eq_u32 vcc, s{sBLK}, v{vF}"); I("s_nop 1")
            I(f"s_and_b32 s{sA}, vcc_lo, 0x7f")
            I(f"s_cbranch_scc1 L_stub_o{p}")
            O.lab(f"L_back_o{p}")
            rare_o.append((p, par))
            for z in range(7):
                for sl in range(4):
                    O.wl(("P", z), ("V", j, sl))
                    if not noO: I(mfma(OA + 16 * z + 4 * sl, VF + 16 * (j % 2) + 4 * sl, PF + 4 * (z % 4)))
                if z + 4 < 7: rdp(z + 4)
                if z == 3 and j + 1 < NB: rdv(j + 1)
                O.items(fil[z + 1])
        if p <= NB:
            if p == 0: O.wv(("V", 0))
            else: O.wv(("K", p + 2), ("V", p), ("K", p + 1))
            O.bar()
    for p in range(0, LOOP0): o_phase(p)
    I(f"s_mov_b32 s{sCNT}, {(LOOPN-LOOP0)//4}")
    O.lab("L_oloop")
    st = (list(O.lg), list(O.vm), bv.cur, O.nbar)
    for p in range(LOOP0, LOOP0 + 4): o_phase(p)
    sh = lambda q, d: [(t[0], t[1] + d) + tuple(t[2:]) for t in q]
    assert sh(O.lg, -4) == st[0] and sh(O.vm, -4) == st[1] and bv.cur == st[2], (O.lg, O.vm, st)
    I(f"s_sub_u32 s{sCNT}, s{sCNT}, 1"); I(f"s_cmp_lg_u32 s{sCNT}, 0"); I("s_cbranch_scc1 L_oloop")
    d = LOOPN - LOOP0 - 4
    O.lg = sh(O.lg, d); O.vm = sh(O.vm, d); O.nbar = st[3] + (LOOPN - LOOP0)
    for p in range(LOOPN, NB + 2): o_phase(p)
    O.bar()
    I(f"s_lshl_b32 s{sA}, s{sW4}, 11"); I(f"v_add_u32 v{vPA}, s{sA}, v{vPA}")
    I("s_nop 4")
    bo = Base(O, vPA)
    for z in range(7):
        for n in range(8): I(f"v_cvt_pk_bf16_f32 v{OA+16*z+n}, v{OA+16*z+2*n}, v{OA+16*z+2*n+1}")
        if OBUF[z] > 60000: bo.set(OBUF[z])
        for k in range(2):
            O.lds(f"ds_write_b128 v{vPA}, {vr(OA+16*z+4*k,4)} offset:{OBUF[z]-bo.cur + k*1024}", ("W",))
    O.wv(("WO", 0), ("WO", 1), ("WO", 2))
    O.wl0()
    O.bar()
    def fills_at(e, st):
        when, j = st
        if when == "pre":
            e.wv(*[("WO", f) for f in range(min(14, 2 * j + 3))])
            return []
        fl = {1: [6, 7, 8, 9, 10], 2: [11, 12], 3: [13]}.get(j, [])
        return [(lambda f=f, i=i: wo_piece(f, i)) for f in fl for i in range(4)]
    oproj(O, 1, fills_at)
    assert O.nbar == nbarS, (O.nbar, nbarS)
    O.lab("L_done"); I("s_endpgm")
    for tag, site, kind in rare_s:
        O.lab(f"L_stub_s{tag}_{site}"); I(f"s_call_b64 s[{sRET}:{sRET+1}], L_rare_s{tag}_{kind}"); I(f"s_branch L_back_s{tag}_{site}")
    for l in subs: (O.lab(l[:-1]) if l.endswith(":") else I(l))
    for site, par in rare_o:
        O.lab(f"L_stub_o{site}"); I(f"s_call_b64 s[{sRET}:{sRET+1}], L_rare_o_{par}"); I(f"s_branch L_back_o{site}")
    for par in range(2):
        O.lab(f"L_rare_o_{par}")
        I("s_nop 7")
        I(f"v_and_b32 v6, 15, v0"); I(f"v_lshlrev_b32 v6, 2, v6"); I(f"v_add_u32 v6, {ALPHA + par*448}, v6")
        for z in range(7):
            I(f"s_bitcmp1_b32 s{sA}, {z}"); I(f"s_cbranch_scc0 L_rare_o_{par}_{z}")
            I(f"ds_read_b32 v{vF}, v6 offset:{z*64}"); I("s_waitcnt lgkmcnt(0)")
            for r in range(16): I(f"v_mul_f32 v{OA+16*z+r}, v{vF}, v{OA+16*z+r}")
            O.lab(f"L_rare_o_{par}_{z}")
        I("s_nop 1")
        I(f"s_setpc_b64 s[{sRET}:{sRET+1}]")

    R = Em(E.L); I = R.I
    R.L += kernel_head("reduce_kernel")
    I("s_cmp_ge_u32 s2, 448"); I("s_cbranch_scc1 L_rdone")
    I("s_load_dwordx2 s[8:9], s[0:1], 96"); I("s_load_dwordx2 s[12:13], s[0:1], 80")
    I("v_lshrrev_b32 v1, 6, v0"); I("v_and_b32 v0, 63, v0"); I("v_readfirstlane_b32 s3, v1")
    I("s_lshl_b32 s4, s2, 2"); I("s_add_u32 s4, s4, s3")
    I(f"s_mov_b32 s5, {(2**32 + 111)//112}"); I("s_mul_hi_u32 s5, s4, s5")
    I("s_mul_i32 s6, s5, 112"); I("s_sub_u32 s6, s4, s6")
    I(f"s_mul_i32 s17, s5, {16*PART_HEAD}"); I("s_lshl_b32 s18, s6, 10"); I("s_add_u32 s17, s17, s18")
    I("v_lshlrev_b32 v2, 4, v0")
    I("s_waitcnt lgkmcnt(0)")
    I("s_add_u32 s8, s8, s17"); I("s_addc_u32 s9, s9, 0"); I(f"s_mov_b32 s10, {15*PART_HEAD + 1024}"); I("s_mov_b32 s11, 0x20000")
    I(f"s_mov_b32 s14, {8*112*896*2}"); I("s_mov_b32 s15, 0x20000")
    I("s_mov_b32 s19, 0")
    for h in range(16):
        I(f"buffer_load_dwordx4 {vr(8+4*h,4)}, v2, s[8:11], s19 offen")
        if h < 15: I(f"s_add_u32 s19, s19, {PART_HEAD}")
    I("s_bfe_u32 s20, s6, 0x10003"); I("s_lshl_b32 s20, s20, 1"); I("s_and_b32 s21, s6, 1"); I("s_add_u32 s20, s20, s21")
    I("s_and_b32 s22, s5, 7"); I("s_mul_i32 s22, s22, 112"); I("s_lshl_b32 s23, s20, 5"); I("s_add_u32 s22, s22, s23")
    I("v_and_b32 v3, 15, v0"); I("v_add_u32 v3, s22, v3"); I("v_mul_u32_u24 v3, 1792, v3")
    I("s_lshr_b32 s22, s5, 3"); I("s_mul_i32 s22, s22, 896"); I("s_lshr_b32 s23, s6, 4"); I("s_lshl_b32 s23, s23, 7"); I("s_add_u32 s22, s22, s23")
    I("s_bfe_u32 s23, s6, 0x20001"); I("s_lshl_b32 s23, s23, 5"); I("s_add_u32 s22, s22, s23")
    I("v_lshrrev_b32 v4, 4, v0"); I("v_lshl_add_u32 v3, v4, 3, v3"); I("v_add_u32 v3, s22, v3")
    I(f"s_mov_b32 s24, {16*1792}")
    for h in range(16):
        I(f"s_waitcnt vmcnt({15-h})")
        for d_ in range(4):
            src = 8 + 4 * h + d_
            if h == 0:
                I(f"v_lshlrev_b32 v{72+2*d_}, 16, v{src}"); I(f"v_and_b32 v{73+2*d_}, 0xffff0000, v{src}")
            else:
                I(f"v_lshlrev_b32 v5, 16, v{src}"); I(f"v_and_b32 v6, 0xffff0000, v{src}")
                I(f"v_add_f32 v{72+2*d_}, v{72+2*d_}, v5"); I(f"v_add_f32 v{73+2*d_}, v{73+2*d_}, v6")
    for d_ in range(4): I(f"v_cvt_pk_bf16_f32 v{8+d_}, v{72+2*d_}, v{73+2*d_}")
    I("buffer_store_dwordx2 v[8:9], v3, s[12:15], 0 offen")
    I("s_cmp_eq_u32 s20, 3"); I("s_cbranch_scc1 L_rdone")
    I("buffer_store_dwordx2 v[10:11], v3, s[12:15], s24 offen")
    R.lab("L_rdone"); I("s_endpgm")
    tail = ['.section .rodata,"a"'] + kd(NAME + "_kernel") + kd("reduce_kernel", vgpr=80, sgpr=32, accum=80)
    return "\n".join(head + E.L + tail) + "\n"

if __name__ == "__main__":
    kw = eval("dict(%s)" % (sys.argv[2] if len(sys.argv) > 2 else ""))
    open(sys.argv[1], "w").write(gen(**kw))
```

```python
import sys
from asmlib import *

NB = 64
PIECE = 1056
SLOT = 16 * PIECE
TSLOT = 0
def slot(i): return SLOT * (i + 1)
SPARE = slot(8)
FLG = SPARE + 8192
ALPHA = FLG + 256
RL = ALPHA + 1024
QSETS = [[slot(5), slot(6), slot(7)], [slot(2), slot(3), slot(4)], [TSLOT, slot(0), slot(1)]]
QBUF = [TSLOT, TSLOT + 8192, slot(0), slot(0) + 8192, slot(1), slot(1) + 8192, SPARE]
KRING = [2, 3, 5, 7]
VRING = [4, 6, 0, 1]
PART_HEAD = 114688

S_X, S_WQ, S_K, S_V, S_WO, S_PT = 8, 12, 16, 20, 24, 28
sWAVE, sW4, sROT, sWLDS, sKOFF, sVOFF, sCNT, sBLK, sC, sT = 32, 33, 34, 35, 36, 37, 38, 39, 40, 41
sA, sB2, sD, sE, sHH, sPOFF, sSTRIP, sXOFF, sXLDS = 42, 43, 44, 45, 46, 47, 48, 49, 52
sRET = 54
sTS = 60

class Em:
    def __init__(self, L=None):
        self.L = [] if L is None else L; self.lg = []; self.vm = []; self.nbar = 0
    def fork(self):
        e = Em(self.L); e.lg = list(self.lg); e.vm = list(self.vm); e.nbar = self.nbar; return e
    def I(self, s): self.L.append("    " + s)
    def lab(self, s): self.L.append(s + ":")
    def lds(self, s, tag): self.I(s); self.lg.append(tag)
    def vmem(self, s, tag): self.I(s); self.vm.append(tag)
    def _need(self, q, tags):
        idx = [i for i, t in enumerate(q) if t in tags]
        return None if not idx else max(idx)
    def wl(self, *tags):
        i = self._need(self.lg, tags)
        if i is None: return
        n = min(len(self.lg) - i - 1, 15)
        self.I(f"s_waitcnt lgkmcnt({n})"); self.lg = self.lg[len(self.lg) - n:] if n else []
    def wv(self, *tags):
        i = self._need(self.vm, tags)
        if i is None: return
        n = min(len(self.vm) - i - 1, 63)
        self.I(f"s_waitcnt vmcnt({n})"); self.vm = self.vm[len(self.vm) - n:] if n else []
    def wl0(self):
        if self.lg: self.I("s_waitcnt lgkmcnt(0)")
        self.lg = []
    def bar(self): self.I("s_barrier"); self.nbar += 1
    def items(self, its):
        for f in its:
            if callable(f): f()
            else: self.I(f)

class Base:
    def __init__(self, e, reg, cur=0): self.e, self.reg, self.cur = e, reg, cur
    def set(self, b):
        d = b - self.cur
        if d: self.e.I(f"v_add_u32 v{self.reg}, {d & 0xffffffff}, v{self.reg}")
        self.cur = b

def vr(a, n): return f"v[{a}:{a+n-1}]"
def mfma(d, a, b, c=None):
    return f"v_mfma_f32_16x16x32_bf16 {vr(d,4)}, {vr(a,4)}, {vr(b,4)}, " + ("0" if c == 0 else vr(d, 4))
def spread(nslots, fillers, first=0, last=None):
    last = nslots - 1 if last is None else last
    out = [[] for _ in range(nslots)]
    n = last - first + 1
    for i, f in enumerate(fillers): out[first + (i * n) // len(fillers)].append(f)
    return out

def gen(diag=False, kvnt=True, stnt=False, hot=False, nodma=False, prio="S", sfirst=3, slast=31, dmafirst=0, dmalast=3, k1only=False, pstamp=False, qpre=2, nosm=False, noO=False, noS=False, nobar=False, ipf=False, stfl=None, pad=0, lalign=0):
    NT_ = " nt" if kvnt else ""
    E = Em(); I = E.I
    def stamp(e, k):
        if diag:
            e.I(f"s_memtime s[{sTS+4*k}:{sTS+4*k+1}]"); e.I(f"s_memrealtime s[{sTS+4*k+2}:{sTS+4*k+3}]")
    head = [l for l in open("ref.s.txt").read().split("\n") if l.startswith(";") and "@launch" not in l and "Override" not in l and "grid=ceil" not in l]
    head += [f"; @launch kernel={NAME}_kernel grid=(256,1,1) block=(512,1,1) lds=163840"]
    if not k1only: head += ["; @launch kernel=reduce_kernel grid=(448,1,1) block=(256,1,1) lds=0"]
    head += ['.amdgcn_target "amdgcn-amd-amdhsa--gfx950"', ".text"]
    E.L += kernel_head(NAME + "_kernel")
    I("s_cmp_ge_u32 s2, 256"); I("s_cbranch_scc1 L_done")
    stamp(E, 0)
    I("s_bfe_u32 s6, s2, 0x10002"); I("s_and_b32 s3, s2, 3"); I("s_lshl_b32 s3, s3, 1"); I("s_bfe_u32 s4, s2, 0x10004"); I("s_add_u32 s3, s3, s4")
    I(f"s_bfe_u32 s{sHH}, s2, 0x10003"); I("s_lshr_b32 s7, s2, 5")
    I("s_lshl_b32 s5, s6, 3"); I("s_add_u32 s5, s5, s7"); I(f"s_mul_i32 s{sA}, s6, 40")
    I(f"s_add_u32 s50, s0, s{sA}"); I("s_addc_u32 s51, s1, 0")
    I(f"s_load_dwordx2 s[{S_X}:{S_X+1}], s[50:51], 0")
    I(f"s_load_dwordx2 s[{S_WQ}:{S_WQ+1}], s[50:51], 24")
    I(f"s_load_dwordx2 s[{S_K}:{S_K+1}], s[50:51], 8")
    I(f"s_load_dwordx2 s[{S_V}:{S_V+1}], s[50:51], 16")
    I(f"s_load_dwordx2 s[{S_WO}:{S_WO+1}], s[50:51], 32")
    I(f"s_load_dwordx2 s[{S_PT}:{S_PT+1}], s[0:1], 96")
    if diag: I("s_load_dwordx2 s[58:59], s[0:1], 96")
    I("v_lshrrev_b32 v1, 6, v0"); I("v_and_b32 v0, 63, v0")
    I(f"v_readfirstlane_b32 s{sWAVE}, v1")
    I(f"s_lshl_b32 s4, s3, 1"); I(f"s_add_u32 s4, s4, s{sHH}")
    I(f"s_bfe_u32 s{sA}, s2, 0x20003"); I(f"s_lshl_b32 s{sA}, s{sA}, 1"); I(f"s_add_u32 s{sROT}, s7, s{sA}")
    I(f"s_cmp_ge_u32 s{sROT}, 7"); I(f"s_cselect_b32 s{sA}, 7, 0"); I(f"s_sub_u32 s{sROT}, s{sROT}, s{sA}")
    I(f"s_and_b32 s{sW4}, s{sWAVE}, 3")
    I(f"s_mul_i32 s{sWLDS}, s{sW4}, {4*PIECE}")
    I(f"s_mov_b32 s{sC}, 0x3db8aa3b"); I(f"s_mov_b32 s{sT}, 0x41000000")
    vXD, vWD, vXA0, vXA1, vQA, t0, t1 = 1, 2, 3, 4, 5, 6, 7
    I(f"v_lshrrev_b32 v{vXD}, 3, v0"); I(f"v_mul_u32_u24 v{vXD}, 896, v{vXD}")
    I(f"v_lshrrev_b32 v{t0}, 4, v0"); I(f"v_lshlrev_b32 v{t0}, 1, v{t0}"); I(f"v_and_b32 v{t1}, 7, v0"); I(f"v_xor_b32 v{t0}, v{t0}, v{t1}")
    I(f"v_lshl_add_u32 v{vXD}, v{t0}, 4, v{vXD}")
    I(f"v_lshrrev_b32 v{t0}, 5, v0"); I(f"v_lshlrev_b32 v{vWD}, 15, v{t0}"); I(f"v_and_b32 v{t0}, 31, v0")
    I(f"v_lshl_add_u32 v{vWD}, v{t0}, 4, v{vWD}")
    I(f"s_lshl_b32 s{sPOFF}, s{sROT}, 19"); I(f"s_lshl_b32 s{sE}, s{sWAVE}, 16")
    I(f"s_lshl_b32 s{sXOFF}, s{sROT}, 7"); I(f"s_mul_i32 s{sB2}, s{sWAVE}, {16*896}")
    I(f"s_lshl_b32 s{sXLDS}, s{sWAVE}, 11")
    I(f"s_lshr_b32 s{sD}, s{sWAVE}, 2"); I(f"s_mul_i32 s{sD}, s{sD}, {SLOT}"); I(f"s_add_u32 s53, s{sD}, s{sWLDS}")
    I("s_waitcnt lgkmcnt(0)")
    if pstamp: stamp(E, 1)
    def srd(r, off_sgpr, size):
        I(f"s_add_u32 s{r}, s{r}, s{off_sgpr}"); I(f"s_addc_u32 s{r+1}, s{r+1}, 0")
        if isinstance(size, int): I(f"s_mov_b32 s{r+2}, {size}")
        else: I(size)
        I(f"s_mov_b32 s{r+3}, 0x20000")
    I(f"s_mul_i32 s{sA}, s7, 100352"); srd(S_X, sA, 100352)
    I(f"s_lshl_b32 s{sA}, s4, 9"); srd(S_WQ, sA, f"s_sub_u32 s{S_WQ+2}, {448*8192}, s{sA}")
    def qfill_ops(e, i):
        xs, wa, wb = QSETS[i % 3]
        assert wb == wa + SLOT
        ops = []
        for j in range(2):
            def f(j=j):
                e.I(f"s_add_u32 s{sD}, s{sXOFF}, s{sB2}")
                if j: e.I(f"s_add_u32 s{sD}, s{sD}, {8*896}")
                e.I(f"s_add_u32 m0, s{sXLDS}, {xs + j*1024}"); e.I("s_nop 0")
                e.vmem(f"buffer_load_dwordx4 v{vXD}, s[{S_X}:{S_X+3}], s{sD} offen lds", ("QF", i))
            ops.append(f)
        for j in range(4):
            def f(j=j):
                e.I(f"s_add_u32 s{sD}, s{sPOFF}, s{sE}")
                if j: e.I(f"s_add_u32 s{sD}, s{sD}, {j*8192}")
                e.I(f"s_add_u32 m0, s53, {wa + j*PIECE}"); e.I("s_nop 0")
                e.vmem(f"buffer_load_dwordx4 v{vWD}, s[{S_WQ}:{S_WQ+3}], s{sD} offen lds", ("QF", i))
                if j == 3:
                    e.I(f"s_add_u32 s{sPOFF}, s{sPOFF}, {1<<19}"); e.I(f"s_add_u32 s{sXOFF}, s{sXOFF}, 128")
                    e.I(f"s_cmp_eq_u32 s{sXOFF}, 896"); e.I(f"s_cselect_b32 s{sPOFF}, 0, s{sPOFF}"); e.I(f"s_cselect_b32 s{sXOFF}, 0, s{sXOFF}")
            ops.append(f)
        return ops
    for _ in range(pad): I("s_nop 0")
    if ipf:
        I("s_getpc_b64 s[56:57]")
        E.lab("L_pc")
        I(f"s_lshl_b32 s{sA}, s{sWAVE}, 13"); I(f"v_lshl_add_u32 v{t0}, v0, 7, s{sA}")
        I(f"s_min_u32 s{sA}, s{sA}, s{sA}")
        I(f"v_min_u32 v{t0}, L_code_end-L_pc-4, v{t0}")
        E.vmem(f"global_load_dword v15, v{t0}, s[56:57]", ("QF", -1))
    for i in range(qpre): E.items(qfill_ops(E, i))
    if pstamp: stamp(E, 2)
    I(f"s_lshl_b32 s{sA}, s7, 3"); I(f"s_add_u32 s{sA}, s{sA}, s3"); I(f"s_lshl_b32 s{sA}, s{sA}, 20")
    srd(S_K, sA, 1 << 20); srd(S_V, sA, 1 << 20)
    I(f"s_mul_i32 s{sA}, s4, {256*896}"); srd(S_WO, sA, 256 * 896)
    I(f"s_lshl_b32 s{sA}, s5, 4"); I(f"s_add_u32 s{sA}, s{sA}, s4"); I(f"s_mul_i32 s{sA}, s{sA}, {PART_HEAD}"); srd(S_PT, sA, PART_HEAD)
    I(f"v_and_b32 v{t0}, 15, v0"); I(f"v_lshlrev_b32 v{vXA0}, 7, v{t0}")
    I(f"v_and_b32 v{t0}, 6, v0"); I(f"v_lshrrev_b32 v{t1}, 4, v0"); I(f"v_xor_b32 v{t0}, v{t0}, v{t1}")
    I(f"v_lshl_add_u32 v{vXA0}, v{t0}, 4, v{vXA0}"); I(f"v_xor_b32 v{vXA1}, 64, v{vXA0}")
    def tr_lane(e, dst, tmp, sh):
        e.I(f"v_lshrrev_b32 v{dst}, 2, v0"); e.I(f"v_mul_u32_u24 v{dst}, {PIECE}, v{dst}")
        e.I(f"v_and_b32 v{tmp}, 3, v0"); e.I(f"v_lshl_add_u32 v{dst}, v{tmp}, {sh}, v{dst}")
    tr_lane(E, vQA, t0, 4)
    I(f"s_lshl_b32 s{sA}, s{sWAVE}, 6"); I(f"v_add_u32 v{vQA}, s{sA}, v{vQA}")
    vDM = 8
    I(f"v_and_b32 v{vDM}, 31, v0"); I(f"v_lshlrev_b32 v{vDM}, 4, v{vDM}")
    I(f"v_lshrrev_b32 v{t0}, 5, v0"); I(f"v_lshl_add_u32 v{vDM}, v{t0}, 13, v{vDM}")
    I(f"s_lshl_b32 s{sKOFF}, s{sW4}, 11"); I(f"s_add_u32 s{sVOFF}, s{sKOFF}, {0 if hot else 16384}"); I(f"s_add_u32 s{sKOFF}, s{sKOFF}, {0 if hot else 32768}")
    I(f"v_lshlrev_b32 v{t0}, 2, v0"); I(f"v_add_u32 v{t0}, {FLG}, v{t0}"); I(f"v_mov_b32 v{t1}, 0")
    E.lds(f"ds_write_b32 v{t0}, v{t1}", ("F",))
    def kv_piece(e, kind, j, i):
        if nodma and j >= 4: return
        ring, srd_, off = (KRING, S_K, sKOFF) if kind == "K" else (VRING, S_V, sVOFF)
        e.I(f"s_add_u32 m0, s{sWLDS}, {slot(ring[j % 4]) + i*(PIECE-512)}")
        e.I("s_nop 0")
        e.vmem(f"buffer_load_dwordx4 v{vDM}, s[{srd_}:{srd_+3}], s{off} offen offset:{i*512}{NT_} lds", (kind, j))
        if i == 3 and not hot: e.I(f"s_add_u32 s{off}, s{off}, 16384")
    QA, QB_, QACC = 16, 32, 96
    bx0, bx1, bq = Base(E, vXA0), Base(E, vXA1), Base(E, vQA)
    for i in range(7):
        E.wv(("QF", i))
        if i == 0: E.wl0()
        if pstamp and i == 0: stamp(E, 3)
        E.bar()
        if i == 0 and not pstamp: stamp(E, 1)
        if pstamp and i < 4: stamp(E, 4 + i)
        xs, wa, wb = QSETS[i % 3]
        bx0.set(xs); bx1.set(xs); bq.set(wa)
        def rda(kk):
            for b in range(2):
                for u in range(2):
                    E.lds(f"ds_read_b64_tr_b16 {vr(QA+8*kk+4*b+2*u,2)}, v{vQA} offset:{kk*SLOT + u*512 + b*8}", ("A", kk))
        def rdb(kk, z):
            E.lds(f"ds_read_b128 {vr(QB_+28*kk+4*z,4)}, v{vXA1 if kk else vXA0} offset:{z*2048}", ("B", kk, z))
        rda(0)
        for z in range(4): rdb(0, z)
        fl = []
        if i >= 1 and i + 2 < 7: fl = qfill_ops(E, i + 2)
        if i == 0 and qpre < 3: fl = sum([qfill_ops(E, k) for k in range(qpre, 3)], [])
        fil = spread(14, fl, 0, 9) if fl else [[] for _ in range(14)]
        if i == 5:
            I(f"s_lshl_b32 s{sE}, s{sWAVE}, 10"); I(f"s_mul_i32 s{sB2}, s{sWAVE}, {2*PIECE}")
            def pre(kind, j, i):
                ring, srd_ = (KRING, S_K) if kind == "K" else (VRING, S_V)
                I(f"s_add_u32 s{sD}, s{sE}, {j*16384}")
                I(f"s_add_u32 m0, s{sB2}, {slot(ring[j]) + i*(PIECE-512)}"); I("s_nop 0")
                E.vmem(f"buffer_load_dwordx4 v{vDM}, s[{srd_}:{srd_+3}], s{sD} offen offset:{i*512}{NT_} lds", (kind, j))
            fl = [(lambda k=k, j=j, i_=i_: pre(k, j, i_)) for k, j in (("K", 0), ("K", 1), ("V", 0)) for i_ in range(2)]
            fil = spread(14, fl, 0, 9)
        order = [(kk, z) for kk in range(2) for z in range(7)]
        for n, (kk, z) in enumerate(order):
            E.wl(("A", kk), ("B", kk, z))
            for b in range(2):
                I(mfma(QACC + 8 * z + 4 * b, QA + 8 * kk + 4 * b, QB_ + 28 * kk + 4 * z, 0 if (i == 0 and kk == 0) else None))
            if n == 0: rda(1)
            if n + 4 < 14: rdb(*order[n + 4])
            E.items(fil[n])
    I("s_nop 7")
    I(f"v_lshlrev_b32 v{t0}, 4, v0"); I(f"s_lshl_b32 s{sA}, s{sWAVE}, 10"); I(f"v_add_u32 v{t0}, s{sA}, v{t0}")
    bw = Base(E, t0)
    for z in range(7):
        for n in range(8): I(f"v_mul_f32 v{QACC+8*z+n}, s{sC}, v{QACC+8*z+n}")
        for n in range(4): I(f"v_cvt_pk_bf16_f32 v{QB_+4*z+n}, v{QACC+8*z+2*n}, v{QACC+8*z+2*n+1}")
        off = QBUF[z]
        if off > 60000: bw.set(off); off = 0
        E.lds(f"ds_write_b128 v{t0}, {vr(QB_+4*z,4)} offset:{off}", ("QW",))
    I(f"s_mov_b32 s{sBLK}, 0")
    I(f"s_cmp_ge_u32 s{sWAVE}, 4"); I("s_cbranch_scc1 L_owave")
    O = E.fork()

    kfree = [slot(KRING[(NB - 4 + i) % 4]) for i in range(4)]
    vs = [slot(VRING[(NB - 4 + i) % 4]) for i in range(4)]
    WOSLOT = kfree + [vs[0], vs[1], TSLOT, vs[2], vs[3]]
    WOSLOT += [WOSLOT[i] for i in range(5)]
    OBUF = [TSLOT, TSLOT + 8192, vs[2], vs[2] + 8192, vs[3], vs[3] + 8192, SPARE]
    def oproj(e, role, fills_at):
        I = e.I
        vTA, vST, vT, RLR, AF, PK, ACC, BF = 1, 2, 3, 4, 16, 32, 40, 72
        zs = [0, 1, 2, 3] if role == 0 else [4, 5, 6]
        nz = len(zs)
        I(f"v_lshlrev_b32 v{vT}, 4, v0")
        I(f"v_and_b32 v{vST}, 15, v0"); I(f"v_lshlrev_b32 v{vST}, 2, v{vST}"); I(f"v_add_u32 v{vST}, {RL}, v{vST}")
        for a, z in enumerate(zs): e.lds(f"ds_read_b32 v{RLR+a}, v{vST} offset:{z*64}", ("R",))
        tr_lane(e, vTA, vST, 3)
        I(f"s_lshl_b32 s{sA}, s{sW4}, 5"); I(f"v_add_u32 v{vTA}, s{sA}, v{vTA}")
        I(f"s_lshl_b32 s{sA}, s{sWAVE}, 11"); I(f"v_add_u32 v{vST}, s{sA}, v{vT}")
        I(f"s_mov_b32 s{sSTRIP}, s{sROT}")
        ba, bb = Base(e, vTA), Base(e, vT)
        seq = [(j, kp) for j in range(7) for kp in range(8)]
        def rd(n):
            j, kp = seq[n]
            ba.set(WOSLOT[2 * j + kp // 4])
            for u in range(2):
                e.lds(f"ds_read_b64_tr_b16 {vr(AF+4*(n%4)+2*u,2)}, v{vTA} offset:{(2*(kp%4)+u)*128}", ("A", n))
        def rdB(kp):
            for a, z in enumerate(zs):
                base = OBUF[z - (z - zs[0]) % 2] if False else OBUF[z]
                lo = min(OBUF[zz] for zz in zs)
                if base - bb.cur < 0 or base - bb.cur + kp * 1024 > 65535: bb.set(base)
                e.lds(f"ds_read_b128 {vr(BF+32*a+4*kp,4)}, v{vT} offset:{base - bb.cur + kp*1024}", ("B", kp, a))
        def fin(j):
            acc = ACC + 16 * (j % 2)
            ops = []
            for a in range(nz):
                ops += [f"v_mul_f32 v{acc+4*a+r}, v{RLR+a}, v{acc+4*a+r}" for r in range(4)]
                ops += [f"v_cvt_pk_bf16_f32 v{PK+2*a+n}, v{acc+4*a+2*n}, v{acc+4*a+2*n+1}" for n in range(2)]
            def st():
                fl = " nt" if stnt else ""
                if stfl: fl = " " + stfl
                I(f"s_lshl_b32 s{sA}, s{sSTRIP}, 14")
                I(f"s_add_u32 s{sSTRIP}, s{sSTRIP}, 1")
                e.vmem(f"buffer_store_dwordx4 {vr(PK,4)}, v{vST}, s[{S_PT}:{S_PT+3}], s{sA} offen{fl}", ("ST", j))
                if nz == 4: e.vmem(f"buffer_store_dwordx4 {vr(PK+4,4)}, v{vST}, s[{S_PT}:{S_PT+3}], s{sA} offen offset:1024{fl}", ("ST", j))
                else: e.vmem(f"buffer_store_dwordx2 {vr(PK+4,2)}, v{vST}, s[{S_PT}:{S_PT+3}], s{sA} offen offset:1024{fl}", ("ST", j))
                I(f"s_cmp_eq_u32 s{sSTRIP}, 7"); I(f"s_cselect_b32 s{sSTRIP}, 0, s{sSTRIP}")
            ops.append(st)
            return ops
        rd(0); rdB(0); rd(1); rdB(1); rd(2); rd(3)
        for j in range(7):
            fl = fin(j - 1) if j else []
            fil = spread(8 * nz, fl, 2 * nz, 8 * nz - 1) if fl else [[] for _ in range(8 * nz)]
            fl = fills_at(e, ("post", j))
            if fl:
                f2 = spread(8 * nz, fl, 0, min(8 * nz - 1, len(fl) - 1))
                fil = [a + b for a, b in zip(f2, fil)]
            for kp in range(8):
                n = 8 * j + kp
                for a in range(nz):
                    e.wl(("A", n), ("B", kp, a))
                    I(mfma(ACC + 16 * (j % 2) + 4 * a, AF + 4 * (n % 4), BF + 32 * a + 4 * kp, 0 if kp == 0 else None))
                    if a == nz - 1:
                        if j == 0 and kp + 2 < 8: rdB(kp + 2)
                        if n + 4 < len(seq): rd(n + 4)
                    e.items(fil[kp * nz + a])
            if j < 6:
                fills_at(e, ("pre", j + 1))
                e.bar()
        I("s_nop 7")
        e.wl(("R",))
        e.items(fin(6))

    LOOP0, LOOPN = 5, 61
    rare_s = []
    if pstamp:
        stamp0 = stamp
        stamp = lambda e, k: (stamp0(e, k) if k == 8 else None)
    def swave(S, NZ, tag):
        I = S.I
        vKA, vPW, vAW, vL, vT0, vT1, vT2 = 1, 2, 3, 6, 9, 11, 13
        Q0, SA, SB, KF, PO, EX, NM = 16, 80, 96, 112, 144, 152, 168
        NKF = 8
        I(f"v_lshlrev_b32 v{vPW}, 4, v0")
        if NZ == 2:
            I(f"s_mul_i32 s{sA}, s{sW4}, {SLOT}"); I(f"v_add_u32 v{vT0}, s{sA}, v{vPW}")
        else:
            I(f"v_add_u32 v{vT0}, {QBUF[6]}, v{vPW}")
        I(f"v_and_b32 v{vKA}, 15, v0"); I(f"v_mul_u32_u24 v{vKA}, {PIECE}, v{vKA}")
        I(f"v_lshrrev_b32 v{vT1}, 4, v0"); I(f"v_lshl_add_u32 v{vKA}, v{vT1}, 4, v{vKA}")
        I(f"s_lshl_b32 s{sA}, s{sW4}, 11"); I(f"v_add_u32 v{vPW}, s{sA}, v{vPW}")
        I(f"v_and_b32 v{vAW}, 15, v0"); I(f"v_lshlrev_b32 v{vAW}, 2, v{vAW}")
        I(f"s_lshl_b32 s{sA}, s{sW4}, 7"); I(f"s_add_u32 s{sA}, s{sA}, {ALPHA}"); I(f"v_add_u32 v{vAW}, s{sA}, v{vAW}")
        for a in range(NZ):
            I(f"v_mov_b32 v{vL+a}, 0")
            for r in range(4): I(f"v_mov_b32 v{NM+4*a+r}, 0")
        I(f"s_mov_b32 s{sT}, 0x40004000")
        if prio == "S": I("s_setprio 1")
        S.wl0(); S.wv(("K", 0), ("K", 1))
        S.bar()
        stamp(S, 2)
        bk = Base(S, vKA)
        def rdk(p, n):
            bk.set(slot(KRING[p % 4]))
            S.lds(f"ds_read_b128 {vr(KF+4*(n%NKF),4)}, v{vKA} offset:{(n%2)*512 + (n//2)*64}", ("K", p, n))
        nv = 8 * NZ
        def exp_cvt(sp):
            ops = []
            for k in range(nv + 3):
                if k < nv: ops.append(f"v_exp_f32 v{EX+k}, v{sp+k}")
                if k >= 3 and k % 2 == 1: ops.append(f"v_cvt_pk_bf16_f32 v{PO+(k-3)//2}, v{EX+k-3}, v{EX+k-2}")
            return ops
        def softmax_ops(p):
            sp = SB if p % 2 == 0 else SA
            par = (p - 1) % 2
            ops = exp_cvt(sp)
            ops.append(f"v_or3_b32 v{vT0}, v{PO}, v{PO+1}, v{PO+2}")
            if NZ == 2:
                ops.append(f"v_or3_b32 v{vT1}, v{PO+3}, v{PO+4}, v{PO+5}")
                ops.append(f"v_or3_b32 v{vT0}, v{vT0}, v{PO+6}, v{PO+7}")
                ops.append(f"v_or_b32 v{vT0}, v{vT0}, v{vT1}")
            else:
                ops.append(f"v_or_b32 v{vT0}, v{vT0}, v{PO+3}")
            ops.append(f"v_and_b32 v{vT0}, s{sT}, v{vT0}")
            kind = ("q" if p < NB else "n") + str(par)
            def check():
                I(f"s_add_u32 s{sBLK}, s{sBLK}, 1")
                if p == 1:
                    I(f"s_call_b64 s[{sRET}:{sRET+1}], L_rare_s{tag}_{kind}")
                else:
                    I(f"v_cmp_ne_u32 vcc, 0, v{vT0}")
                    I(f"s_cbranch_vccnz L_stub_s{tag}_{p}")
                    S.lab(f"L_back_s{tag}_{p}")
                    rare_s.append((tag, p, kind))
            ops.append(check)
            for a in range(NZ):
                ops.append(lambda a=a: S.lds(f"ds_write_b128 v{vPW}, {vr(PO+4*a,4)} offset:{par*7168 + a*1024}", ("P", a)))
            for k in range(nv): ops.append(f"v_add_f32 v{vL+(k%NZ)}, v{vL+(k%NZ)}, v{EX+8*(k%NZ)+k//NZ}")
            if nosm: return [o for o in ops if callable(o)][1:]
            return ops
        def s_phase(p):
            cur = SA if p % 2 == 0 else SB
            do_qk, do_sm = p < NB, p >= 1
            sm = softmax_ops(p) if do_sm else []
            if do_qk:
                if p == 0:
                    for a in range(NZ):
                        for ks in range(2): S.lds(f"ds_read_b128 {vr(Q0+32*a+4*ks,4)}, v{vT0} offset:{a*8192 + ks*1024}", ("Q", a, ks))
                if p in (0, 2):
                    for n in range(NKF - 2): rdk(p, n)
                if p == 0:
                    for ks in range(2, 8):
                        for a in range(NZ): S.lds(f"ds_read_b128 {vr(Q0+32*a+4*ks,4)}, v{vT0} offset:{a*8192 + ks*1024}", ("Q", a, ks))
                ng = 16 * NZ
                f0, f1 = (sfirst, slast) if NZ == 2 else (4, 15)
                fil = spread(ng, sm, f0, f1) if sm else [[] for _ in range(ng)]
                for n in range(16):
                    ks, y = n // 2, n % 2
                    for a in range(NZ):
                        if y == 0: S.wl(("K", p, n), ("K", p, n + 1), ("Q", a, ks))
                        if not noS:
                            if ks == 0: I(f"v_mfma_f32_16x16x32_bf16 {vr(cur+8*a+4*y,4)}, {vr(KF+4*(n%NKF),4)}, {vr(Q0+32*a,4)}, {vr(NM+4*a,4)}")
                            else: I(mfma(cur + 8 * a + 4 * y, KF + 4 * (n % NKF), Q0 + 32 * a + 4 * ks))
                        if a == NZ - 1:
                            m = n + NKF - 2
                            if m < 16: rdk(p, m)
                            elif p + 1 < NB and p != 1: rdk(p + 1, m - 16)
                        S.items(fil[n * NZ + a])
                S.wl(("P", 0), ("P", 1))
                if p == 0: S.wv(("V", 0))
                if p + 1 >= NB: I("s_nop 7")
            else:
                S.items(sm)
                for sw in ("v_permlane16_swap_b32", "v_permlane32_swap_b32"):
                    for a in range(NZ): I(f"v_mov_b32 v{vT0+a}, v{vL+a}")
                    I("s_nop 1")
                    for a in range(NZ): I(f"{sw} v{vL+a}, v{vT0+a}")
                    for a in range(NZ): I(f"v_add_f32 v{vL+a}, v{vL+a}, v{vT0+a}")
                for a in range(NZ): I(f"v_rcp_f32 v{vL+a}, v{vL+a}")
                I("s_nop 0")
                for a in range(NZ): S.lds(f"ds_write_b32 v{vAW}, v{vL+a} offset:{RL-ALPHA + a*64}", ("P", 2))
                S.wl0()
            S.bar()
        for p in range(0, LOOP0): s_phase(p)
        stamp(S, 3)
        I(f"s_mov_b32 s{sCNT}, {(LOOPN-LOOP0)//4}")
        if lalign: S.L.append(f".p2align {lalign}")
        S.lab(f"L_sloop{tag}")
        st = (list(S.lg), bk.cur, S.nbar)
        for p in range(LOOP0, LOOP0 + 4): s_phase(p)
        assert [(t[0], t[1] - 4, t[2]) for t in S.lg] == st[0] and bk.cur == st[1], (S.lg, st)
        I(f"s_sub_u32 s{sCNT}, s{sCNT}, 1"); I(f"s_cmp_lg_u32 s{sCNT}, 0"); I(f"s_cbranch_scc1 L_sloop{tag}")
        stamp(S, 4)
        S.lg = [(t[0], LOOPN, t[2]) for t in S.lg]
        S.nbar = st[2] + (LOOPN - LOOP0)
        for p in range(LOOPN, NB + 1): s_phase(p)
        stamp(S, 5)
        sub = []
        for kind in ("q0", "q1") + (("n1",) if NB % 2 == 0 else ("n0",)):
            par = int(kind[1])
            sp, cur = (SA, SB) if par == 0 else (SB, SA)
            sub.append(f"L_rare_s{tag}_{kind}:")
            for a in range(NZ):
                b = sp + 8 * a
                sub.append(f"v_max3_f32 v{vT0+a}, v{b}, v{b+1}, v{b+2}")
                sub.append(f"v_max3_f32 v{vT0+a}, v{vT0+a}, v{b+3}, v{b+4}")
                sub.append(f"v_max3_f32 v{vT0+a}, v{vT0+a}, v{b+5}, v{b+6}")
                sub.append(f"v_max_f32 v{vT0+a}, v{vT0+a}, v{b+7}")
            for sw in ("v_permlane16_swap_b32", "v_permlane32_swap_b32"):
                for a in range(NZ): sub.append(f"v_mov_b32 v{vT1+a}, v{vT0+a}")
                sub.append("s_nop 1")
                for a in range(NZ): sub.append(f"{sw} v{vT0+a}, v{vT1+a}")
                for a in range(NZ): sub.append(f"v_max_f32 v{vT0+a}, v{vT0+a}, v{vT1+a}")
            sub.append(f"s_cmp_eq_u32 s{sBLK}, 1"); sub.append(f"s_cselect_b32 s{sA}, 0x7f7fffff, 0")
            for a in range(NZ):
                sub.append(f"v_sub_f32 v{vT0+a}, 0xc0e00000, v{vT0+a}")
                sub.append(f"v_min_f32 v{vT0+a}, s{sA}, v{vT0+a}")
                sub.append(f"v_min_f32 v{vT1+a}, 0, v{vT0+a}")
                sub.append(f"v_exp_f32 v{vT1+a}, v{vT1+a}")
                for r in range(4): sub.append(f"v_add_f32 v{NM+4*a+r}, v{NM+4*a+r}, v{vT0+a}")
                for r in range(8): sub.append(f"v_add_f32 v{sp+8*a+r}, v{sp+8*a+r}, v{vT0+a}")
                if kind[0] == "q":
                    for r in range(8): sub.append(f"v_add_f32 v{cur+8*a+r}, v{cur+8*a+r}, v{vT0+a}")
                sub.append(f"v_mul_f32 v{vL+a}, v{vL+a}, v{vT1+a}")
                sub.append(f"ds_write_b32 v{vAW}, v{vT1+a} offset:{par*448 + a*64}")
            sub += exp_cvt(sp)
            sub.append(f"s_lshl_b32 s{sA}, s{sW4}, 3"); sub.append(f"s_add_u32 s{sA}, s{sA}, {FLG + par*128}")
            sub.append(f"v_mov_b32 v{vT0}, s{sA}"); sub.append(f"v_mov_b32 v{vT2}, s{sBLK}")
            for a in range(NZ): sub.append(f"ds_write_b32 v{vT0}, v{vT2} offset:{4*a}")
            sub.append("s_waitcnt lgkmcnt(0)")
            sub.append(f"s_setpc_b64 s[{sRET}:{sRET+1}]")
        return sub
    I(f"s_cmp_eq_u32 s{sWAVE}, 3"); I("s_cbranch_scc1 L_swave3")
    S3 = E.fork()
    subs = swave(E, 2, "a")
    I("s_branch L_sjoin")
    S3.lab("L_swave3")
    subs += swave(S3, 1, "b")
    assert S3.nbar == E.nbar
    E.lab("L_sjoin")
    S = E
    S.bar()
    S.bar()
    stamp(S, 6)
    oproj(S, 0, lambda e, st: [])
    stamp(S, 7)
    nbarS = S.nbar
    if diag:
        I(f"s_cmp_lg_u32 s{sWAVE}, 0"); I("s_cbranch_scc1 L_done")
        I("s_waitcnt vmcnt(0)")
        stamp(S, 8)
        I("s_waitcnt lgkmcnt(0)")
        I("s_mov_b64 exec, 1")
        I(f"s_lshl_b32 s{sA}, s2, 7"); I(f"s_add_u32 s{sA}, s{sA}, {64<<20}"); I(f"v_mov_b32 v1, s{sA}")
        for k in range(9):
            I(f"v_mov_b32 v4, s{sTS+4*k}"); I(f"v_mov_b32 v5, s{sTS+4*k+2}")
            I(f"global_store_dwordx2 v1, v[4:5], s[58:59] offset:{8*k}")
            I("s_nop 1")
    I("s_endpgm")

    I = O.I
    O.lab("L_owave")
    vVA, vPA, vWX, vFA, vF = 1, 2, 9, 4, 5
    PF, VF, OA = 16, 32, 64
    tr_lane(O, vVA, 6, 3)
    I(f"s_lshl_b32 s{sA}, s{sW4}, 7"); I(f"v_add_u32 v{vVA}, s{sA}, v{vVA}")
    I(f"v_lshlrev_b32 v{vPA}, 4, v0")
    I(f"v_and_b32 v{vFA}, 7, v0"); I(f"v_lshlrev_b32 v{vFA}, 2, v{vFA}"); I(f"v_add_u32 v{vFA}, {FLG}, v{vFA}")
    I(f"v_lshrrev_b32 v{vWX}, 3, v0"); I(f"v_mul_u32_u24 v{vWX}, {16*896}, v{vWX}")
    I(f"v_and_b32 v6, 7, v0"); I(f"v_lshl_add_u32 v{vWX}, v6, 4, v{vWX}")
    I(f"s_mul_i32 s{sA}, s{sW4}, {4*896}"); I(f"v_add_u32 v{vWX}, s{sA}, v{vWX}")
    I(f"s_lshl_b32 s{sPOFF}, s{sROT}, 7")
    def wo_piece(f, i):
        I(f"s_add_u32 s{sD}, s{sPOFF}, {((f%2)*128 + i)*896}")
        I(f"s_add_u32 m0, s{sWLDS}, {WOSLOT[f] + i*PIECE}")
        I("s_nop 0")
        O.vmem(f"buffer_load_dwordx4 v{vWX}, s[{S_WO}:{S_WO+3}], s{sD} offen lds", ("WO", f))
        if i == 3 and f % 2 == 1:
            I(f"s_add_u32 s{sPOFF}, s{sPOFF}, 128"); I(f"s_cmp_eq_u32 s{sPOFF}, 896"); I(f"s_cselect_b32 s{sPOFF}, 0, s{sPOFF}")
    O.wl0()
    for r in range(OA, OA + 112): I(f"v_mov_b32 v{r}, 0")
    if prio == "O": I("s_setprio 1")
    O.wv(("K", 0), ("K", 1))
    O.bar()
    bv = Base(O, vVA)
    def rdv(j):
        bv.set(slot(VRING[j % 4]))
        for sl in range(4):
            for y in range(2):
                O.lds(f"ds_read_b64_tr_b16 {vr(VF+16*(j%2)+4*sl+2*y,2)}, v{vVA} offset:{y*512 + sl*32}", ("V", j, sl))
    rare_o = []
    def o_phase(p):
        j = p - 2
        pieces = []
        def kv(kind, jj): return [(lambda i=i: kv_piece(O, kind, jj, i)) for i in range(4)]
        if p == 0: pieces += kv("K", 2)
        if p + 1 < NB: pieces += kv("V", p + 1)
        if p + 3 < NB: pieces += kv("K", p + 3)
        else:
            for f in {NB - 3: [0], NB - 2: [1], NB - 1: [2], NB: [3, 4], NB + 1: [5]}[p]:
                pieces += [(lambda i=i, f=f: wo_piece(f, i)) for i in range(4)]
        if j < 0:
            O.items(pieces)
            if p == 1: rdv(0)
        else:
            par = j % 2
            def rdp(z): O.lds(f"ds_read_b128 {vr(PF+4*(z%4),4)}, v{vPA} offset:{par*7168 + z*1024}", ("P", z))
            O.lds(f"ds_read_b32 v{vF}, v{vFA} offset:{par*128}", ("F",))
            for z in range(4): rdp(z)
            I(f"s_add_u32 s{sBLK}, s{sBLK}, 1")
            fil = spread(8, pieces, dmafirst, dmalast) if pieces else [[] for _ in range(8)]
            O.items(fil[0])
            O.wl(("F",))
            I(f"v_cmp_eq_u32 vcc, s{sBLK}, v{vF}"); I("s_nop 1")
            I(f"s_and_b32 s{sA}, vcc_lo, 0x7f")
            I(f"s_cbranch_scc1 L_stub_o{p}")
            O.lab(f"L_back_o{p}")
            rare_o.append((p, par))
            for z in range(7):
                for sl in range(4):
                    O.wl(("P", z), ("V", j, sl))
                    if not noO: I(mfma(OA + 16 * z + 4 * sl, VF + 16 * (j % 2) + 4 * sl, PF + 4 * (z % 4)))
                if z + 4 < 7: rdp(z + 4)
                if z == 3 and j + 1 < NB: rdv(j + 1)
                O.items(fil[z + 1])
        if p <= NB:
            if p == 0: O.wv(("V", 0))
            else: O.wv(("K", p + 2), ("V", p), ("K", p + 1))
            O.bar()
    for p in range(0, LOOP0): o_phase(p)
    I(f"s_mov_b32 s{sCNT}, {(LOOPN-LOOP0)//4}")
    if lalign: O.L.append(f".p2align {lalign}")
    O.lab("L_oloop")
    st = (list(O.lg), list(O.vm), bv.cur, O.nbar)
    for p in range(LOOP0, LOOP0 + 4): o_phase(p)
    sh = lambda q, d: [(t[0], t[1] + d) + tuple(t[2:]) for t in q]
    assert sh(O.lg, -4) == st[0] and sh(O.vm, -4) == st[1] and bv.cur == st[2], (O.lg, O.vm, st)
    I(f"s_sub_u32 s{sCNT}, s{sCNT}, 1"); I(f"s_cmp_lg_u32 s{sCNT}, 0"); I("s_cbranch_scc1 L_oloop")
    d = LOOPN - LOOP0 - 4
    O.lg = sh(O.lg, d); O.vm = sh(O.vm, d); O.nbar = st[3] + (LOOPN - LOOP0)
    for p in range(LOOPN, NB + 2): o_phase(p)
    O.bar()
    I(f"s_lshl_b32 s{sA}, s{sW4}, 11"); I(f"v_add_u32 v{vPA}, s{sA}, v{vPA}")
    I("s_nop 4")
    bo = Base(O, vPA)
    for z in range(7):
        for n in range(8): I(f"v_cvt_pk_bf16_f32 v{OA+16*z+n}, v{OA+16*z+2*n}, v{OA+16*z+2*n+1}")
        if OBUF[z] > 60000: bo.set(OBUF[z])
        for k in range(2):
            O.lds(f"ds_write_b128 v{vPA}, {vr(OA+16*z+4*k,4)} offset:{OBUF[z]-bo.cur + k*1024}", ("W",))
    O.wv(("WO", 0), ("WO", 1), ("WO", 2))
    O.wl0()
    O.bar()
    def fills_at(e, st):
        when, j = st
        if when == "pre":
            e.wv(*[("WO", f) for f in range(min(14, 2 * j + 3))])
            return []
        fl = {1: [6, 7, 8, 9, 10], 2: [11, 12], 3: [13]}.get(j, [])
        return [(lambda f=f, i=i: wo_piece(f, i)) for f in fl for i in range(4)]
    oproj(O, 1, fills_at)
    assert O.nbar == nbarS, (O.nbar, nbarS)
    O.lab("L_done"); I("s_endpgm")
    for tag, site, kind in rare_s:
        O.lab(f"L_stub_s{tag}_{site}"); I(f"s_call_b64 s[{sRET}:{sRET+1}], L_rare_s{tag}_{kind}"); I(f"s_branch L_back_s{tag}_{site}")
    for l in subs: (O.lab(l[:-1]) if l.endswith(":") else I(l))
    for site, par in rare_o:
        O.lab(f"L_stub_o{site}"); I(f"s_call_b64 s[{sRET}:{sRET+1}], L_rare_o_{par}"); I(f"s_branch L_back_o{site}")
    for par in range(2):
        O.lab(f"L_rare_o_{par}")
        I("s_nop 7")
        I(f"v_and_b32 v6, 15, v0"); I(f"v_lshlrev_b32 v6, 2, v6"); I(f"v_add_u32 v6, {ALPHA + par*448}, v6")
        for z in range(7):
            I(f"s_bitcmp1_b32 s{sA}, {z}"); I(f"s_cbranch_scc0 L_rare_o_{par}_{z}")
            I(f"ds_read_b32 v{vF}, v6 offset:{z*64}"); I("s_waitcnt lgkmcnt(0)")
            for r in range(16): I(f"v_mul_f32 v{OA+16*z+r}, v{vF}, v{OA+16*z+r}")
            O.lab(f"L_rare_o_{par}_{z}")
        I("s_nop 1")
        I(f"s_setpc_b64 s[{sRET}:{sRET+1}]")

    E.lab("L_code_end")
    R = Em(E.L); I = R.I
    R.L += kernel_head("reduce_kernel")
    I("s_cmp_ge_u32 s2, 448"); I("s_cbranch_scc1 L_rdone")
    I("s_load_dwordx2 s[8:9], s[0:1], 96"); I("s_load_dwordx2 s[12:13], s[0:1], 80")
    I("v_lshrrev_b32 v1, 6, v0"); I("v_and_b32 v0, 63, v0"); I("v_readfirstlane_b32 s3, v1")
    I("s_lshl_b32 s4, s2, 2"); I("s_add_u32 s4, s4, s3")
    I(f"s_mov_b32 s5, {(2**32 + 111)//112}"); I("s_mul_hi_u32 s5, s4, s5")
    I("s_mul_i32 s6, s5, 112"); I("s_sub_u32 s6, s4, s6")
    I(f"s_mul_i32 s17, s5, {16*PART_HEAD}"); I("s_lshl_b32 s18, s6, 10"); I("s_add_u32 s17, s17, s18")
    I("v_lshlrev_b32 v2, 4, v0")
    I("s_waitcnt lgkmcnt(0)")
    I("s_add_u32 s8, s8, s17"); I("s_addc_u32 s9, s9, 0"); I(f"s_mov_b32 s10, {15*PART_HEAD + 1024}"); I("s_mov_b32 s11, 0x20000")
    I(f"s_mov_b32 s14, {8*112*896*2}"); I("s_mov_b32 s15, 0x20000")
    I("s_mov_b32 s19, 0")
    for h in range(16):
        I(f"buffer_load_dwordx4 {vr(8+4*h,4)}, v2, s[8:11], s19 offen")
        if h < 15: I(f"s_add_u32 s19, s19, {PART_HEAD}")
    I("s_bfe_u32 s20, s6, 0x10003"); I("s_lshl_b32 s20, s20, 1"); I("s_and_b32 s21, s6, 1"); I("s_add_u32 s20, s20, s21")
    I("s_and_b32 s22, s5, 7"); I("s_mul_i32 s22, s22, 112"); I("s_lshl_b32 s23, s20, 5"); I("s_add_u32 s22, s22, s23")
    I("v_and_b32 v3, 15, v0"); I("v_add_u32 v3, s22, v3"); I("v_mul_u32_u24 v3, 1792, v3")
    I("s_lshr_b32 s22, s5, 3"); I("s_mul_i32 s22, s22, 896"); I("s_lshr_b32 s23, s6, 4"); I("s_lshl_b32 s23, s23, 7"); I("s_add_u32 s22, s22, s23")
    I("s_bfe_u32 s23, s6, 0x20001"); I("s_lshl_b32 s23, s23, 5"); I("s_add_u32 s22, s22, s23")
    I("v_lshrrev_b32 v4, 4, v0"); I("v_lshl_add_u32 v3, v4, 3, v3"); I("v_add_u32 v3, s22, v3")
    I(f"s_mov_b32 s24, {16*1792}")
    for h in range(16):
        I(f"s_waitcnt vmcnt({15-h})")
        for d_ in range(4):
            src = 8 + 4 * h + d_
            if h == 0:
                I(f"v_lshlrev_b32 v{72+2*d_}, 16, v{src}"); I(f"v_and_b32 v{73+2*d_}, 0xffff0000, v{src}")
            else:
                I(f"v_lshlrev_b32 v5, 16, v{src}"); I(f"v_and_b32 v6, 0xffff0000, v{src}")
                I(f"v_add_f32 v{72+2*d_}, v{72+2*d_}, v5"); I(f"v_add_f32 v{73+2*d_}, v{73+2*d_}, v6")
    for d_ in range(4): I(f"v_cvt_pk_bf16_f32 v{8+d_}, v{72+2*d_}, v{73+2*d_}")
    I("buffer_store_dwordx2 v[8:9], v3, s[12:15], 0 offen")
    I("s_cmp_eq_u32 s20, 3"); I("s_cbranch_scc1 L_rdone")
    I("buffer_store_dwordx2 v[10:11], v3, s[12:15], s24 offen")
    R.lab("L_rdone"); I("s_endpgm")
    tail = ['.section .rodata,"a"'] + kd(NAME + "_kernel") + kd("reduce_kernel", vgpr=80, sgpr=32, accum=80)
    return "\n".join(head + E.L + tail) + "\n"

if __name__ == "__main__":
    kw = eval("dict(%s)" % (sys.argv[2] if len(sys.argv) > 2 else ""))
    open(sys.argv[1], "w").write(gen(**kw))
```

```python
import sys
from asmlib import *

NB = 64
PIECE = 1056
SLOT = 16 * PIECE
TSLOT = 0
def slot(i): return SLOT * (i + 1)
SPARE = slot(8)
FLG = SPARE + 8192
ALPHA = FLG + 256
RL = ALPHA + 1024
QSETS = [[slot(5), slot(6), slot(7)], [slot(2), slot(3), slot(4)], [TSLOT, slot(0), slot(1)]]
QBUF = [TSLOT, TSLOT + 8192, slot(0), slot(0) + 8192, slot(1), slot(1) + 8192, SPARE]
KRING = [2, 3, 5, 7]
VRING = [4, 6, 0, 1]
PART_HEAD = 114688

S_X, S_WQ, S_K, S_V, S_WO, S_PT = 8, 12, 16, 20, 24, 28
sWAVE, sW4, sROT, sWLDS, sKOFF, sVOFF, sCNT, sBLK, sC, sT = 32, 33, 34, 35, 36, 37, 38, 39, 40, 41
sA, sB2, sD, sE, sHH, sPOFF, sSTRIP, sXOFF, sXLDS = 42, 43, 44, 45, 46, 47, 48, 49, 52
sRET = 54
sTS = 60

class Em:
    def __init__(self, L=None):
        self.L = [] if L is None else L; self.lg = []; self.vm = []; self.nbar = 0
    def fork(self):
        e = Em(self.L); e.lg = list(self.lg); e.vm = list(self.vm); e.nbar = self.nbar; return e
    def I(self, s): self.L.append("    " + s)
    def lab(self, s): self.L.append(s + ":")
    def lds(self, s, tag): self.I(s); self.lg.append(tag)
    def vmem(self, s, tag): self.I(s); self.vm.append(tag)
    def _need(self, q, tags):
        idx = [i for i, t in enumerate(q) if t in tags]
        return None if not idx else max(idx)
    def wl(self, *tags):
        i = self._need(self.lg, tags)
        if i is None: return
        n = min(len(self.lg) - i - 1, 15)
        self.I(f"s_waitcnt lgkmcnt({n})"); self.lg = self.lg[len(self.lg) - n:] if n else []
    def wv(self, *tags):
        i = self._need(self.vm, tags)
        if i is None: return
        n = min(len(self.vm) - i - 1, 63)
        self.I(f"s_waitcnt vmcnt({n})"); self.vm = self.vm[len(self.vm) - n:] if n else []
    def wl0(self):
        if self.lg: self.I("s_waitcnt lgkmcnt(0)")
        self.lg = []
    def bar(self): self.I("s_barrier"); self.nbar += 1
    def items(self, its):
        for f in its:
            if callable(f): f()
            else: self.I(f)

class Base:
    def __init__(self, e, reg, cur=0): self.e, self.reg, self.cur = e, reg, cur
    def set(self, b):
        d = b - self.cur
        if d: self.e.I(f"v_add_u32 v{self.reg}, {d & 0xffffffff}, v{self.reg}")
        self.cur = b

def vr(a, n): return f"v[{a}:{a+n-1}]"
def mfma(d, a, b, c=None):
    return f"v_mfma_f32_16x16x32_bf16 {vr(d,4)}, {vr(a,4)}, {vr(b,4)}, " + ("0" if c == 0 else vr(d, 4))
def spread(nslots, fillers, first=0, last=None):
    last = nslots - 1 if last is None else last
    out = [[] for _ in range(nslots)]
    n = last - first + 1
    for i, f in enumerate(fillers): out[first + (i * n) // len(fillers)].append(f)
    return out

def gen(diag=False, kvnt=True, stnt=False, hot=False, nodma=False, prio="S", sfirst=8, slast=28, dmafirst=0, dmalast=3, k1only=False, pstamp=False, qpre=2, nosm=False, noO=False, noS=False, nobar=False, ipf=False, stfl=None, pad=0, lalign=0, s3k=True, s3first=0, s3last=15, nkf=8, npf=4, vcheap=True):
    NT_ = " nt" if kvnt else ""
    E = Em(); I = E.I
    def stamp(e, k):
        if diag:
            e.I(f"s_memtime s[{sTS+4*k}:{sTS+4*k+1}]"); e.I(f"s_memrealtime s[{sTS+4*k+2}:{sTS+4*k+3}]")
    head = [l for l in open("ref.s.txt").read().split("\n") if l.startswith(";") and "@launch" not in l and "Override" not in l and "grid=ceil" not in l]
    head += [f"; @launch kernel={NAME}_kernel grid=(256,1,1) block=(512,1,1) lds=163840"]
    if not k1only: head += ["; @launch kernel=reduce_kernel grid=(448,1,1) block=(256,1,1) lds=0"]
    head += ['.amdgcn_target "amdgcn-amd-amdhsa--gfx950"', ".text"]
    E.L += kernel_head(NAME + "_kernel")
    I("s_cmp_ge_u32 s2, 256"); I("s_cbranch_scc1 L_done")
    stamp(E, 0)
    I("s_bfe_u32 s6, s2, 0x10002"); I("s_and_b32 s3, s2, 3"); I("s_lshl_b32 s3, s3, 1"); I("s_bfe_u32 s4, s2, 0x10004"); I("s_add_u32 s3, s3, s4")
    I(f"s_bfe_u32 s{sHH}, s2, 0x10003"); I("s_lshr_b32 s7, s2, 5")
    I("s_lshl_b32 s5, s6, 3"); I("s_add_u32 s5, s5, s7"); I(f"s_mul_i32 s{sA}, s6, 40")
    I(f"s_add_u32 s50, s0, s{sA}"); I("s_addc_u32 s51, s1, 0")
    I(f"s_load_dwordx2 s[{S_X}:{S_X+1}], s[50:51], 0")
    I(f"s_load_dwordx2 s[{S_WQ}:{S_WQ+1}], s[50:51], 24")
    I(f"s_load_dwordx2 s[{S_K}:{S_K+1}], s[50:51], 8")
    I(f"s_load_dwordx2 s[{S_V}:{S_V+1}], s[50:51], 16")
    I(f"s_load_dwordx2 s[{S_WO}:{S_WO+1}], s[50:51], 32")
    I(f"s_load_dwordx2 s[{S_PT}:{S_PT+1}], s[0:1], 96")
    if diag: I("s_load_dwordx2 s[58:59], s[0:1], 96")
    I("v_lshrrev_b32 v1, 6, v0"); I("v_and_b32 v0, 63, v0")
    I(f"v_readfirstlane_b32 s{sWAVE}, v1")
    I(f"s_lshl_b32 s4, s3, 1"); I(f"s_add_u32 s4, s4, s{sHH}")
    I(f"s_bfe_u32 s{sA}, s2, 0x20003"); I(f"s_lshl_b32 s{sA}, s{sA}, 1"); I(f"s_add_u32 s{sROT}, s7, s{sA}")
    I(f"s_cmp_ge_u32 s{sROT}, 7"); I(f"s_cselect_b32 s{sA}, 7, 0"); I(f"s_sub_u32 s{sROT}, s{sROT}, s{sA}")
    I(f"s_and_b32 s{sW4}, s{sWAVE}, 3")
    I(f"s_mul_i32 s{sWLDS}, s{sW4}, {4*PIECE}")
    I(f"s_mov_b32 s{sC}, 0x3db8aa3b"); I(f"s_mov_b32 s{sT}, 0x41000000")
    vXD, vWD, vXA0, vXA1, vQA, t0, t1 = 1, 2, 3, 4, 5, 6, 7
    I(f"v_lshrrev_b32 v{vXD}, 3, v0"); I(f"v_mul_u32_u24 v{vXD}, 896, v{vXD}")
    I(f"v_lshrrev_b32 v{t0}, 4, v0"); I(f"v_lshlrev_b32 v{t0}, 1, v{t0}"); I(f"v_and_b32 v{t1}, 7, v0"); I(f"v_xor_b32 v{t0}, v{t0}, v{t1}")
    I(f"v_lshl_add_u32 v{vXD}, v{t0}, 4, v{vXD}")
    I(f"v_lshrrev_b32 v{t0}, 5, v0"); I(f"v_lshlrev_b32 v{vWD}, 15, v{t0}"); I(f"v_and_b32 v{t0}, 31, v0")
    I(f"v_lshl_add_u32 v{vWD}, v{t0}, 4, v{vWD}")
    I(f"s_lshl_b32 s{sPOFF}, s{sROT}, 19"); I(f"s_lshl_b32 s{sE}, s{sWAVE}, 16")
    I(f"s_lshl_b32 s{sXOFF}, s{sROT}, 7"); I(f"s_mul_i32 s{sB2}, s{sWAVE}, {16*896}")
    I(f"s_lshl_b32 s{sXLDS}, s{sWAVE}, 11")
    I(f"s_lshr_b32 s{sD}, s{sWAVE}, 2"); I(f"s_mul_i32 s{sD}, s{sD}, {SLOT}"); I(f"s_add_u32 s53, s{sD}, s{sWLDS}")
    I("s_waitcnt lgkmcnt(0)")
    if pstamp: stamp(E, 1)
    def srd(r, off_sgpr, size):
        I(f"s_add_u32 s{r}, s{r}, s{off_sgpr}"); I(f"s_addc_u32 s{r+1}, s{r+1}, 0")
        if isinstance(size, int): I(f"s_mov_b32 s{r+2}, {size}")
        else: I(size)
        I(f"s_mov_b32 s{r+3}, 0x20000")
    I(f"s_mul_i32 s{sA}, s7, 100352"); srd(S_X, sA, 100352)
    I(f"s_lshl_b32 s{sA}, s4, 9"); srd(S_WQ, sA, f"s_sub_u32 s{S_WQ+2}, {448*8192}, s{sA}")
    def qfill_ops(e, i):
        xs, wa, wb = QSETS[i % 3]
        assert wb == wa + SLOT
        ops = []
        for j in range(2):
            def f(j=j):
                e.I(f"s_add_u32 s{sD}, s{sXOFF}, s{sB2}")
                if j: e.I(f"s_add_u32 s{sD}, s{sD}, {8*896}")
                e.I(f"s_add_u32 m0, s{sXLDS}, {xs + j*1024}"); e.I("s_nop 0")
                e.vmem(f"buffer_load_dwordx4 v{vXD}, s[{S_X}:{S_X+3}], s{sD} offen lds", ("QF", i))
            ops.append(f)
        for j in range(4):
            def f(j=j):
                e.I(f"s_add_u32 s{sD}, s{sPOFF}, s{sE}")
                if j: e.I(f"s_add_u32 s{sD}, s{sD}, {j*8192}")
                e.I(f"s_add_u32 m0, s53, {wa + j*PIECE}"); e.I("s_nop 0")
                e.vmem(f"buffer_load_dwordx4 v{vWD}, s[{S_WQ}:{S_WQ+3}], s{sD} offen lds", ("QF", i))
                if j == 3:
                    e.I(f"s_add_u32 s{sPOFF}, s{sPOFF}, {1<<19}"); e.I(f"s_add_u32 s{sXOFF}, s{sXOFF}, 128")
                    e.I(f"s_cmp_eq_u32 s{sXOFF}, 896"); e.I(f"s_cselect_b32 s{sPOFF}, 0, s{sPOFF}"); e.I(f"s_cselect_b32 s{sXOFF}, 0, s{sXOFF}")
            ops.append(f)
        return ops
    for _ in range(pad): I("s_nop 0")
    if ipf:
        I("s_getpc_b64 s[56:57]")
        E.lab("L_pc")
        I(f"s_lshl_b32 s{sA}, s{sWAVE}, 13"); I(f"v_lshl_add_u32 v{t0}, v0, 7, s{sA}")
        I(f"s_min_u32 s{sA}, s{sA}, s{sA}")
        I(f"v_min_u32 v{t0}, L_code_end-L_pc-4, v{t0}")
        E.vmem(f"global_load_dword v15, v{t0}, s[56:57]", ("QF", -1))
    for i in range(qpre): E.items(qfill_ops(E, i))
    if pstamp: stamp(E, 2)
    I(f"s_lshl_b32 s{sA}, s7, 3"); I(f"s_add_u32 s{sA}, s{sA}, s3"); I(f"s_lshl_b32 s{sA}, s{sA}, 20")
    srd(S_K, sA, 1 << 20); srd(S_V, sA, 1 << 20)
    I(f"s_mul_i32 s{sA}, s4, {256*896}"); srd(S_WO, sA, 256 * 896)
    I(f"s_lshl_b32 s{sA}, s5, 4"); I(f"s_add_u32 s{sA}, s{sA}, s4"); I(f"s_mul_i32 s{sA}, s{sA}, {PART_HEAD}"); srd(S_PT, sA, PART_HEAD)
    I(f"v_and_b32 v{t0}, 15, v0"); I(f"v_lshlrev_b32 v{vXA0}, 7, v{t0}")
    I(f"v_and_b32 v{t0}, 6, v0"); I(f"v_lshrrev_b32 v{t1}, 4, v0"); I(f"v_xor_b32 v{t0}, v{t0}, v{t1}")
    I(f"v_lshl_add_u32 v{vXA0}, v{t0}, 4, v{vXA0}"); I(f"v_xor_b32 v{vXA1}, 64, v{vXA0}")
    def tr_lane(e, dst, tmp, sh):
        e.I(f"v_lshrrev_b32 v{dst}, 2, v0"); e.I(f"v_mul_u32_u24 v{dst}, {PIECE}, v{dst}")
        e.I(f"v_and_b32 v{tmp}, 3, v0"); e.I(f"v_lshl_add_u32 v{dst}, v{tmp}, {sh}, v{dst}")
    tr_lane(E, vQA, t0, 4)
    I(f"s_lshl_b32 s{sA}, s{sWAVE}, 6"); I(f"v_add_u32 v{vQA}, s{sA}, v{vQA}")
    vDM = 8
    I(f"v_and_b32 v{vDM}, 31, v0"); I(f"v_lshlrev_b32 v{vDM}, 4, v{vDM}")
    I(f"v_lshrrev_b32 v{t0}, 5, v0"); I(f"v_lshl_add_u32 v{vDM}, v{t0}, 13, v{vDM}")
    I(f"s_lshl_b32 s{sKOFF}, s{sW4}, 11"); I(f"s_add_u32 s{sVOFF}, s{sKOFF}, {0 if hot else 16384}"); I(f"s_add_u32 s{sKOFF}, s{sKOFF}, {0 if hot else 32768}")
    I(f"v_lshlrev_b32 v{t0}, 2, v0"); I(f"v_add_u32 v{t0}, {FLG}, v{t0}"); I(f"v_mov_b32 v{t1}, 0")
    E.lds(f"ds_write_b32 v{t0}, v{t1}", ("F",))
    def kv_piece(e, kind, j, i):
        if nodma and j >= 4: return
        ring, srd_, off = (KRING, S_K, sKOFF) if kind == "K" else (VRING, S_V, sVOFF)
        e.I(f"s_add_u32 m0, s{sWLDS}, {slot(ring[j % 4]) + i*(PIECE-512)}")
        e.I("s_nop 0")
        e.vmem(f"buffer_load_dwordx4 v{vDM}, s[{srd_}:{srd_+3}], s{off} offen offset:{i*512}{NT_} lds", (kind, j))
        if i == 3 and not hot: e.I(f"s_add_u32 s{off}, s{off}, 16384")
    QA, QB_, QACC = 16, 32, 96
    bx0, bx1, bq = Base(E, vXA0), Base(E, vXA1), Base(E, vQA)
    for i in range(7):
        E.wv(("QF", i))
        if i == 0: E.wl0()
        if pstamp and i == 0: stamp(E, 3)
        E.bar()
        if i == 0 and not pstamp: stamp(E, 1)
        if pstamp and i < 4: stamp(E, 4 + i)
        xs, wa, wb = QSETS[i % 3]
        bx0.set(xs); bx1.set(xs); bq.set(wa)
        def rda(kk):
            for b in range(2):
                for u in range(2):
                    E.lds(f"ds_read_b64_tr_b16 {vr(QA+8*kk+4*b+2*u,2)}, v{vQA} offset:{kk*SLOT + u*512 + b*8}", ("A", kk))
        def rdb(kk, z):
            E.lds(f"ds_read_b128 {vr(QB_+28*kk+4*z,4)}, v{vXA1 if kk else vXA0} offset:{z*2048}", ("B", kk, z))
        rda(0)
        for z in range(4): rdb(0, z)
        fl = []
        if i >= 1 and i + 2 < 7: fl = qfill_ops(E, i + 2)
        if i == 0 and qpre < 3: fl = sum([qfill_ops(E, k) for k in range(qpre, 3)], [])
        fil = spread(14, fl, 0, 9) if fl else [[] for _ in range(14)]
        if i == 5:
            I(f"s_lshl_b32 s{sE}, s{sWAVE}, 10"); I(f"s_mul_i32 s{sB2}, s{sWAVE}, {2*PIECE}")
            def pre(kind, j, i):
                ring, srd_ = (KRING, S_K) if kind == "K" else (VRING, S_V)
                I(f"s_add_u32 s{sD}, s{sE}, {j*16384}")
                I(f"s_add_u32 m0, s{sB2}, {slot(ring[j]) + i*(PIECE-512)}"); I("s_nop 0")
                E.vmem(f"buffer_load_dwordx4 v{vDM}, s[{srd_}:{srd_+3}], s{sD} offen offset:{i*512}{NT_} lds", (kind, j))
            fl = [(lambda k=k, j=j, i_=i_: pre(k, j, i_)) for k, j in (("K", 0), ("K", 1), ("V", 0)) for i_ in range(2)]
            fil = spread(14, fl, 0, 9)
        order = [(kk, z) for kk in range(2) for z in range(7)]
        for n, (kk, z) in enumerate(order):
            E.wl(("A", kk), ("B", kk, z))
            for b in range(2):
                I(mfma(QACC + 8 * z + 4 * b, QA + 8 * kk + 4 * b, QB_ + 28 * kk + 4 * z, 0 if (i == 0 and kk == 0) else None))
            if n == 0: rda(1)
            if n + 4 < 14: rdb(*order[n + 4])
            E.items(fil[n])
    I("s_nop 7")
    I(f"v_lshlrev_b32 v{t0}, 4, v0"); I(f"s_lshl_b32 s{sA}, s{sWAVE}, 10"); I(f"v_add_u32 v{t0}, s{sA}, v{t0}")
    bw = Base(E, t0)
    for z in range(7):
        for n in range(8): I(f"v_mul_f32 v{QACC+8*z+n}, s{sC}, v{QACC+8*z+n}")
        for n in range(4): I(f"v_cvt_pk_bf16_f32 v{QB_+4*z+n}, v{QACC+8*z+2*n}, v{QACC+8*z+2*n+1}")
        off = QBUF[z]
        if off > 60000: bw.set(off); off = 0
        E.lds(f"ds_write_b128 v{t0}, {vr(QB_+4*z,4)} offset:{off}", ("QW",))
    I(f"s_mov_b32 s{sBLK}, 0")
    I(f"s_cmp_ge_u32 s{sWAVE}, 4"); I("s_cbranch_scc1 L_owave")
    O = E.fork()

    kfree = [slot(KRING[(NB - 4 + i) % 4]) for i in range(4)]
    vs = [slot(VRING[(NB - 4 + i) % 4]) for i in range(4)]
    WOSLOT = kfree + [vs[0], vs[1], TSLOT, vs[2], vs[3]]
    WOSLOT += [WOSLOT[i] for i in range(5)]
    OBUF = [TSLOT, TSLOT + 8192, vs[2], vs[2] + 8192, vs[3], vs[3] + 8192, SPARE]
    def oproj(e, role, fills_at):
        I = e.I
        vTA, vST, vT, RLR, AF, PK, ACC, BF = 1, 2, 3, 4, 16, 32, 40, 72
        zs = [0, 1, 2, 3] if role == 0 else [4, 5, 6]
        nz = len(zs)
        I(f"v_lshlrev_b32 v{vT}, 4, v0")
        I(f"v_and_b32 v{vST}, 15, v0"); I(f"v_lshlrev_b32 v{vST}, 2, v{vST}"); I(f"v_add_u32 v{vST}, {RL}, v{vST}")
        for a, z in enumerate(zs): e.lds(f"ds_read_b32 v{RLR+a}, v{vST} offset:{z*64}", ("R",))
        tr_lane(e, vTA, vST, 3)
        I(f"s_lshl_b32 s{sA}, s{sW4}, 5"); I(f"v_add_u32 v{vTA}, s{sA}, v{vTA}")
        I(f"s_lshl_b32 s{sA}, s{sWAVE}, 11"); I(f"v_add_u32 v{vST}, s{sA}, v{vT}")
        I(f"s_mov_b32 s{sSTRIP}, s{sROT}")
        ba, bb = Base(e, vTA), Base(e, vT)
        seq = [(j, kp) for j in range(7) for kp in range(8)]
        def rd(n):
            j, kp = seq[n]
            ba.set(WOSLOT[2 * j + kp // 4])
            for u in range(2):
                e.lds(f"ds_read_b64_tr_b16 {vr(AF+4*(n%4)+2*u,2)}, v{vTA} offset:{(2*(kp%4)+u)*128}", ("A", n))
        def rdB(kp):
            for a, z in enumerate(zs):
                base = OBUF[z - (z - zs[0]) % 2] if False else OBUF[z]
                lo = min(OBUF[zz] for zz in zs)
                if base - bb.cur < 0 or base - bb.cur + kp * 1024 > 65535: bb.set(base)
                e.lds(f"ds_read_b128 {vr(BF+32*a+4*kp,4)}, v{vT} offset:{base - bb.cur + kp*1024}", ("B", kp, a))
        def fin(j):
            acc = ACC + 16 * (j % 2)
            ops = []
            for a in range(nz):
                ops += [f"v_mul_f32 v{acc+4*a+r}, v{RLR+a}, v{acc+4*a+r}" for r in range(4)]
                ops += [f"v_cvt_pk_bf16_f32 v{PK+2*a+n}, v{acc+4*a+2*n}, v{acc+4*a+2*n+1}" for n in range(2)]
            def st():
                fl = " nt" if stnt else ""
                if stfl: fl = " " + stfl
                I(f"s_lshl_b32 s{sA}, s{sSTRIP}, 14")
                I(f"s_add_u32 s{sSTRIP}, s{sSTRIP}, 1")
                e.vmem(f"buffer_store_dwordx4 {vr(PK,4)}, v{vST}, s[{S_PT}:{S_PT+3}], s{sA} offen{fl}", ("ST", j))
                if nz == 4: e.vmem(f"buffer_store_dwordx4 {vr(PK+4,4)}, v{vST}, s[{S_PT}:{S_PT+3}], s{sA} offen offset:1024{fl}", ("ST", j))
                else: e.vmem(f"buffer_store_dwordx2 {vr(PK+4,2)}, v{vST}, s[{S_PT}:{S_PT+3}], s{sA} offen offset:1024{fl}", ("ST", j))
                I(f"s_cmp_eq_u32 s{sSTRIP}, 7"); I(f"s_cselect_b32 s{sSTRIP}, 0, s{sSTRIP}")
            ops.append(st)
            return ops
        rd(0); rdB(0); rd(1); rdB(1); rd(2); rd(3)
        for j in range(7):
            fl = fin(j - 1) if j else []
            fil = spread(8 * nz, fl, 2 * nz, 8 * nz - 1) if fl else [[] for _ in range(8 * nz)]
            fl = fills_at(e, ("post", j))
            if fl:
                f2 = spread(8 * nz, fl, 0, min(8 * nz - 1, len(fl) - 1))
                fil = [a + b for a, b in zip(f2, fil)]
            for kp in range(8):
                n = 8 * j + kp
                for a in range(nz):
                    e.wl(("A", n), ("B", kp, a))
                    I(mfma(ACC + 16 * (j % 2) + 4 * a, AF + 4 * (n % 4), BF + 32 * a + 4 * kp, 0 if kp == 0 else None))
                    if a == nz - 1:
                        if j == 0 and kp + 2 < 8: rdB(kp + 2)
                        if n + 4 < len(seq): rd(n + 4)
                    e.items(fil[kp * nz + a])
            if j < 6:
                fills_at(e, ("pre", j + 1))
                e.bar()
        I("s_nop 7")
        e.wl(("R",))
        e.items(fin(6))

    LOOP0, LOOPN = 5, 61
    rare_s = []
    if pstamp:
        stamp0 = stamp
        stamp = lambda e, k: (stamp0(e, k) if k == 8 else None)
    def swave(S, NZ, tag):
        I = S.I
        vKA, vPW, vAW, vL, vT0, vT1, vT2 = 1, 2, 3, 6, 9, 11, 13
        Q0, SA, SB, PO, EX, NM, KF = 16, 80, 96, 112, 120, 136, 144
        NKF = nkf
        I(f"v_lshlrev_b32 v{vPW}, 4, v0")
        if NZ == 2:
            I(f"s_mul_i32 s{sA}, s{sW4}, {SLOT}"); I(f"v_add_u32 v{vT0}, s{sA}, v{vPW}")
        else:
            I(f"v_add_u32 v{vT0}, {QBUF[6]}, v{vPW}")
        I(f"v_and_b32 v{vKA}, 15, v0"); I(f"v_mul_u32_u24 v{vKA}, {PIECE}, v{vKA}")
        I(f"v_lshrrev_b32 v{vT1}, 4, v0"); I(f"v_lshl_add_u32 v{vKA}, v{vT1}, 4, v{vKA}")
        I(f"s_lshl_b32 s{sA}, s{sW4}, 11"); I(f"v_add_u32 v{vPW}, s{sA}, v{vPW}")
        I(f"v_and_b32 v{vAW}, 15, v0"); I(f"v_lshlrev_b32 v{vAW}, 2, v{vAW}")
        I(f"s_lshl_b32 s{sA}, s{sW4}, 7"); I(f"s_add_u32 s{sA}, s{sA}, {ALPHA}"); I(f"v_add_u32 v{vAW}, s{sA}, v{vAW}")
        for a in range(NZ):
            I(f"v_mov_b32 v{vL+a}, 0")
            for r in range(4): I(f"v_mov_b32 v{NM+4*a+r}, 0")
        I(f"s_mov_b32 s{sT}, 0x40004000")
        if NZ == 1: I(f"s_mov_b32 s{sKOFF}, {0 if hot else 32768}")
        if prio == "S": I("s_setprio 1")
        S.wl0(); S.wv(("K", 0), ("K", 1))
        S.bar()
        stamp(S, 2)
        bk = Base(S, vKA)
        def rdk(p, n):
            bk.set(slot(KRING[p % 4]))
            S.lds(f"ds_read_b128 {vr(KF+4*(n%NKF),4)}, v{vKA} offset:{(n%2)*512 + (n//2)*64}", ("K", p, n))
        nv = 8 * NZ
        def exp_cvt(sp):
            ops = []
            for k in range(nv + 3):
                if k < nv: ops.append(f"v_exp_f32 v{EX+k}, v{sp+k}")
                if k >= 3 and k % 2 == 1: ops.append(f"v_cvt_pk_bf16_f32 v{PO+(k-3)//2}, v{EX+k-3}, v{EX+k-2}")
            return ops
        def softmax_ops(p):
            sp = SB if p % 2 == 0 else SA
            par = (p - 1) % 2
            ops = exp_cvt(sp)
            ops.append(f"v_or3_b32 v{vT0}, v{PO}, v{PO+1}, v{PO+2}")
            if NZ == 2:
                ops.append(f"v_or3_b32 v{vT1}, v{PO+3}, v{PO+4}, v{PO+5}")
                ops.append(f"v_or3_b32 v{vT0}, v{vT0}, v{PO+6}, v{PO+7}")
                ops.append(f"v_or_b32 v{vT0}, v{vT0}, v{vT1}")
            else:
                ops.append(f"v_or_b32 v{vT0}, v{vT0}, v{PO+3}")
            ops.append(f"v_and_b32 v{vT0}, s{sT}, v{vT0}")
            kind = ("q" if p < NB else "n") + str(par)
            def check():
                I(f"s_add_u32 s{sBLK}, s{sBLK}, 1")
                if p == 1:
                    I(f"s_call_b64 s[{sRET}:{sRET+1}], L_rare_s{tag}_{kind}")
                else:
                    I(f"v_cmp_ne_u32 vcc, 0, v{vT0}")
                    I(f"s_cbranch_vccnz L_stub_s{tag}_{p}")
                    S.lab(f"L_back_s{tag}_{p}")
                    rare_s.append((tag, p, kind))
            ops.append(check)
            for a in range(NZ):
                ops.append(lambda a=a: S.lds(f"ds_write_b128 v{vPW}, {vr(PO+4*a,4)} offset:{par*7168 + a*1024}", ("P", a)))
            for k in range(nv): ops.append(f"v_add_f32 v{vL+(k%NZ)}, v{vL+(k%NZ)}, v{EX+8*(k%NZ)+k//NZ}")
            if nosm: return [o for o in ops if callable(o)][1:]
            return ops
        def k_piece(j, k):
            if nodma and j >= 4: return
            if k == 8: I(f"s_add_u32 s{sKOFF}, s{sKOFF}, 4096")
            I(f"s_mov_b32 m0, {slot(KRING[j % 4]) + k*PIECE - (k%8)*512}")
            I("s_nop 0")
            S.vmem(f"buffer_load_dwordx4 v{vDM}, s[{S_K}:{S_K+3}], s{sKOFF} offen offset:{(k%8)*512}{NT_} lds", ("K", j))
            if k == 15: I(f"s_add_u32 s{sKOFF}, s{sKOFF}, {-4096 & 0xffffffff if hot else 12288}")
        loader = s3k and NZ == 1
        def s_phase(p):
            cur = SA if p % 2 == 0 else SB
            do_qk, do_sm = p < NB, p >= 1
            sm = softmax_ops(p) if do_sm else []
            kf = []
            if loader:
                for j in ([2, 3] if p == 0 else [p + 3]):
                    if j < NB: kf += [(lambda j=j, k=k: k_piece(j, k)) for k in range(16)]
            if do_qk:
                if p == 0:
                    for a in range(NZ):
                        for ks in range(2): S.lds(f"ds_read_b128 {vr(Q0+32*a+4*ks,4)}, v{vT0} offset:{a*8192 + ks*1024}", ("Q", a, ks))
                if p in (0, 2):
                    for n in range(NKF - 2): rdk(p, n)
                if p == 0:
                    for ks in range(2, 8):
                        for a in range(NZ): S.lds(f"ds_read_b128 {vr(Q0+32*a+4*ks,4)}, v{vT0} offset:{a*8192 + ks*1024}", ("Q", a, ks))
                ng = 16 * NZ
                f0, f1 = (sfirst, slast) if NZ == 2 else (4, 15)
                fil = spread(ng, sm, f0, f1) if sm else [[] for _ in range(ng)]
                if kf: fil = [a + b for a, b in zip(spread(ng, kf, s3first, s3last), fil)]
                for n in range(16):
                    ks, y = n // 2, n % 2
                    for a in range(NZ):
                        if y == 0: S.wl(("K", p, n), ("K", p, n + 1), ("Q", a, ks))
                        if not noS:
                            if ks == 0: I(f"v_mfma_f32_16x16x32_bf16 {vr(cur+8*a+4*y,4)}, {vr(KF+4*(n%NKF),4)}, {vr(Q0+32*a,4)}, {vr(NM+4*a,4)}")
                            else: I(mfma(cur + 8 * a + 4 * y, KF + 4 * (n % NKF), Q0 + 32 * a + 4 * ks))
                        if a == NZ - 1:
                            m = n + NKF - 2
                            if m < 16: rdk(p, m)
                            elif p + 1 < NB and p != 1: rdk(p + 1, m - 16)
                        S.items(fil[n * NZ + a])
                S.wl(("P", 0), ("P", 1))
                if p == 0: S.wv(("V", 0))
                if loader and p >= 1: S.wv(("K", p + 2), ("K", p + 1))
                if p + 1 >= NB: I("s_nop 7")
            else:
                S.items(sm)
                for sw in ("v_permlane16_swap_b32", "v_permlane32_swap_b32"):
                    for a in range(NZ): I(f"v_mov_b32 v{vT0+a}, v{vL+a}")
                    I("s_nop 1")
                    for a in range(NZ): I(f"{sw} v{vL+a}, v{vT0+a}")
                    for a in range(NZ): I(f"v_add_f32 v{vL+a}, v{vL+a}, v{vT0+a}")
                for a in range(NZ): I(f"v_rcp_f32 v{vL+a}, v{vL+a}")
                I("s_nop 0")
                for a in range(NZ): S.lds(f"ds_write_b32 v{vAW}, v{vL+a} offset:{RL-ALPHA + a*64}", ("P", 2))
                S.wl0()
            S.bar()
        for p in range(0, LOOP0): s_phase(p)
        stamp(S, 3)
        I(f"s_mov_b32 s{sCNT}, {(LOOPN-LOOP0)//4}")
        if lalign: S.L.append(f".p2align {lalign}")
        S.lab(f"L_sloop{tag}")
        st = (list(S.lg), bk.cur, S.nbar)
        stv = list(S.vm)
        for p in range(LOOP0, LOOP0 + 4): s_phase(p)
        assert [(t[0], t[1] - 4) for t in S.vm] == stv
        S.vm = [(t[0], t[1] + LOOPN - LOOP0 - 4) for t in S.vm]
        assert [(t[0], t[1] - 4, t[2]) for t in S.lg] == st[0] and bk.cur == st[1], (S.lg, st)
        I(f"s_sub_u32 s{sCNT}, s{sCNT}, 1"); I(f"s_cmp_lg_u32 s{sCNT}, 0"); I(f"s_cbranch_scc1 L_sloop{tag}")
        stamp(S, 4)
        S.lg = [(t[0], LOOPN, t[2]) for t in S.lg]
        S.nbar = st[2] + (LOOPN - LOOP0)
        for p in range(LOOPN, NB + 1): s_phase(p)
        stamp(S, 5)
        sub = []
        for kind in ("q0", "q1") + (("n1",) if NB % 2 == 0 else ("n0",)):
            par = int(kind[1])
            sp, cur = (SA, SB) if par == 0 else (SB, SA)
            sub.append(f"L_rare_s{tag}_{kind}:")
            for a in range(NZ):
                b = sp + 8 * a
                sub.append(f"v_max3_f32 v{vT0+a}, v{b}, v{b+1}, v{b+2}")
                sub.append(f"v_max3_f32 v{vT0+a}, v{vT0+a}, v{b+3}, v{b+4}")
                sub.append(f"v_max3_f32 v{vT0+a}, v{vT0+a}, v{b+5}, v{b+6}")
                sub.append(f"v_max_f32 v{vT0+a}, v{vT0+a}, v{b+7}")
            for sw in ("v_permlane16_swap_b32", "v_permlane32_swap_b32"):
                for a in range(NZ): sub.append(f"v_mov_b32 v{vT1+a}, v{vT0+a}")
                sub.append("s_nop 1")
                for a in range(NZ): sub.append(f"{sw} v{vT0+a}, v{vT1+a}")
                for a in range(NZ): sub.append(f"v_max_f32 v{vT0+a}, v{vT0+a}, v{vT1+a}")
            sub.append(f"s_cmp_eq_u32 s{sBLK}, 1"); sub.append(f"s_cselect_b32 s{sA}, 0x7f7fffff, 0")
            for a in range(NZ):
                sub.append(f"v_sub_f32 v{vT0+a}, 0xc0e00000, v{vT0+a}")
                sub.append(f"v_min_f32 v{vT0+a}, s{sA}, v{vT0+a}")
                sub.append(f"v_min_f32 v{vT1+a}, 0, v{vT0+a}")
                sub.append(f"v_exp_f32 v{vT1+a}, v{vT1+a}")
                for r in range(4): sub.append(f"v_add_f32 v{NM+4*a+r}, v{NM+4*a+r}, v{vT0+a}")
                for r in range(8): sub.append(f"v_add_f32 v{sp+8*a+r}, v{sp+8*a+r}, v{vT0+a}")
                if kind[0] == "q":
                    for r in range(8): sub.append(f"v_add_f32 v{cur+8*a+r}, v{cur+8*a+r}, v{vT0+a}")
                sub.append(f"v_mul_f32 v{vL+a}, v{vL+a}, v{vT1+a}")
                sub.append(f"ds_write_b32 v{vAW}, v{vT1+a} offset:{par*448 + a*64}")
            sub += exp_cvt(sp)
            sub.append(f"s_lshl_b32 s{sA}, s{sW4}, 3"); sub.append(f"s_add_u32 s{sA}, s{sA}, {FLG + par*128}")
            sub.append(f"v_mov_b32 v{vT0}, s{sA}"); sub.append(f"v_mov_b32 v{vT2}, s{sBLK}")
            for a in range(NZ): sub.append(f"ds_write_b32 v{vT0}, v{vT2} offset:{4*a}")
            sub.append("s_waitcnt lgkmcnt(0)")
            sub.append(f"s_setpc_b64 s[{sRET}:{sRET+1}]")
        return sub
    I(f"s_cmp_eq_u32 s{sWAVE}, 3"); I("s_cbranch_scc1 L_swave3")
    S3 = E.fork()
    subs = swave(E, 2, "a")
    I("s_branch L_sjoin")
    S3.lab("L_swave3")
    subs += swave(S3, 1, "b")
    assert S3.nbar == E.nbar
    E.lab("L_sjoin")
    S = E
    S.bar()
    S.bar()
    stamp(S, 6)
    oproj(S, 0, lambda e, st: [])
    stamp(S, 7)
    nbarS = S.nbar
    if diag:
        I(f"s_cmp_lg_u32 s{sWAVE}, 0"); I("s_cbranch_scc1 L_done")
        I("s_waitcnt vmcnt(0)")
        stamp(S, 8)
        I("s_waitcnt lgkmcnt(0)")
        I("s_mov_b64 exec, 1")
        I(f"s_lshl_b32 s{sA}, s2, 7"); I(f"s_add_u32 s{sA}, s{sA}, {64<<20}"); I(f"v_mov_b32 v1, s{sA}")
        for k in range(9):
            I(f"v_mov_b32 v4, s{sTS+4*k}"); I(f"v_mov_b32 v5, s{sTS+4*k+2}")
            I(f"global_store_dwordx2 v1, v[4:5], s[58:59] offset:{8*k}")
            I("s_nop 1")
    I("s_endpgm")

    I = O.I
    O.lab("L_owave")
    vVA, vPA, vWX, vFA, vF = 1, 2, 9, 4, 5
    PF, VF, OA = 176, 32, 64
    tr_lane(O, vVA, 6, 3)
    I(f"s_lshl_b32 s{sA}, s{sW4}, 7"); I(f"v_add_u32 v{vVA}, s{sA}, v{vVA}")
    I(f"v_lshlrev_b32 v{vPA}, 4, v0")
    I(f"v_and_b32 v{vFA}, 7, v0"); I(f"v_lshlrev_b32 v{vFA}, 2, v{vFA}"); I(f"v_add_u32 v{vFA}, {FLG}, v{vFA}")
    I(f"v_lshrrev_b32 v{vWX}, 3, v0"); I(f"v_mul_u32_u24 v{vWX}, {16*896}, v{vWX}")
    I(f"v_and_b32 v6, 7, v0"); I(f"v_lshl_add_u32 v{vWX}, v6, 4, v{vWX}")
    I(f"s_mul_i32 s{sA}, s{sW4}, {4*896}"); I(f"v_add_u32 v{vWX}, s{sA}, v{vWX}")
    I(f"s_lshl_b32 s{sPOFF}, s{sROT}, 7")
    def wo_piece(f, i):
        I(f"s_add_u32 s{sD}, s{sPOFF}, {((f%2)*128 + i)*896}")
        I(f"s_add_u32 m0, s{sWLDS}, {WOSLOT[f] + i*PIECE}")
        I("s_nop 0")
        O.vmem(f"buffer_load_dwordx4 v{vWX}, s[{S_WO}:{S_WO+3}], s{sD} offen lds", ("WO", f))
        if i == 3 and f % 2 == 1:
            I(f"s_add_u32 s{sPOFF}, s{sPOFF}, 128"); I(f"s_cmp_eq_u32 s{sPOFF}, 896"); I(f"s_cselect_b32 s{sPOFF}, 0, s{sPOFF}")
    O.wl0()
    for r in range(OA, OA + 112): I(f"v_mov_b32 v{r}, 0")
    if prio == "O": I("s_setprio 1")
    O.wv(("K", 0), ("K", 1))
    O.bar()
    bv = Base(O, vVA)
    def rdv(j):
        bv.set(slot(VRING[j % 4]))
        for sl in range(4):
            for y in range(2):
                O.lds(f"ds_read_b64_tr_b16 {vr(VF+16*(j%2)+4*sl+2*y,2)}, v{vVA} offset:{y*512 + sl*32}", ("V", j, sl))
    rare_o = []
    def o_phase(p):
        j = p - 2
        pieces = []
        def kv(kind, jj): return [(lambda i=i: kv_piece(O, kind, jj, i)) for i in range(4)]
        if p == 0 and not s3k: pieces += kv("K", 2)
        if p + 1 < NB: pieces += kv("V", p + 1)
        if p + 3 < NB:
            if not s3k: pieces += kv("K", p + 3)
        else:
            for f in {NB - 3: [0], NB - 2: [1], NB - 1: [2], NB: [3, 4], NB + 1: [5]}[p]:
                pieces += [(lambda i=i, f=f: wo_piece(f, i)) for i in range(4)]
        if j < 0:
            O.items(pieces)
            if p == 1: rdv(0)
        else:
            par = j % 2
            def rdp(z): O.lds(f"ds_read_b128 {vr(PF+4*(z%npf),4)}, v{vPA} offset:{par*7168 + z*1024}", ("P", z))
            O.lds(f"ds_read_b32 v{vF}, v{vFA} offset:{par*128}", ("F",))
            for z in range(npf): rdp(z)
            I(f"s_add_u32 s{sBLK}, s{sBLK}, 1")
            fil = spread(8, pieces, dmafirst, dmalast) if pieces else [[] for _ in range(8)]
            O.items(fil[0])
            O.wl(("F",))
            I(f"v_cmp_eq_u32 vcc, s{sBLK}, v{vF}")
            I(f"s_cbranch_vccnz L_stub_o{p}")
            O.lab(f"L_back_o{p}")
            rare_o.append((p, par))
            for z in range(7):
                for sl in range(4):
                    O.wl(("P", z), ("V", j, sl))
                    if not noO: I(mfma(OA + 16 * z + 4 * sl, VF + 16 * (j % 2) + 4 * sl, PF + 4 * (z % npf)))
                if z + npf < 7: rdp(z + npf)
                if z == 3 and j + 1 < NB: rdv(j + 1)
                O.items(fil[z + 1])
        if p <= NB:
            if p == 0: O.wv(("V", 0))
            else: O.wv(("K", p + 2), ("V", p), ("K", p + 1))
            O.bar()
    for p in range(0, LOOP0): o_phase(p)
    I(f"s_mov_b32 s{sCNT}, {(LOOPN-LOOP0)//4}")
    if lalign: O.L.append(f".p2align {lalign}")
    O.lab("L_oloop")
    st = (list(O.lg), list(O.vm), bv.cur, O.nbar)
    for p in range(LOOP0, LOOP0 + 4): o_phase(p)
    sh = lambda q, d: [(t[0], t[1] + d) + tuple(t[2:]) for t in q]
    assert sh(O.lg, -4) == st[0] and sh(O.vm, -4) == st[1] and bv.cur == st[2], (O.lg, O.vm, st)
    I(f"s_sub_u32 s{sCNT}, s{sCNT}, 1"); I(f"s_cmp_lg_u32 s{sCNT}, 0"); I("s_cbranch_scc1 L_oloop")
    d = LOOPN - LOOP0 - 4
    O.lg = sh(O.lg, d); O.vm = sh(O.vm, d); O.nbar = st[3] + (LOOPN - LOOP0)
    for p in range(LOOPN, NB + 2): o_phase(p)
    O.bar()
    I(f"s_lshl_b32 s{sA}, s{sW4}, 11"); I(f"v_add_u32 v{vPA}, s{sA}, v{vPA}")
    I("s_nop 4")
    bo = Base(O, vPA)
    for z in range(7):
        for n in range(8): I(f"v_cvt_pk_bf16_f32 v{OA+16*z+n}, v{OA+16*z+2*n}, v{OA+16*z+2*n+1}")
        if OBUF[z] > 60000: bo.set(OBUF[z])
        for k in range(2):
            O.lds(f"ds_write_b128 v{vPA}, {vr(OA+16*z+4*k,4)} offset:{OBUF[z]-bo.cur + k*1024}", ("W",))
    O.wv(("WO", 0), ("WO", 1), ("WO", 2))
    O.wl0()
    O.bar()
    def fills_at(e, st):
        when, j = st
        if when == "pre":
            e.wv(*[("WO", f) for f in range(min(14, 2 * j + 3))])
            return []
        fl = {1: [6, 7, 8, 9, 10], 2: [11, 12], 3: [13]}.get(j, [])
        return [(lambda f=f, i=i: wo_piece(f, i)) for f in fl for i in range(4)]
    oproj(O, 1, fills_at)
    assert O.nbar == nbarS, (O.nbar, nbarS)
    O.lab("L_done"); I("s_endpgm")
    for tag, site, kind in rare_s:
        O.lab(f"L_stub_s{tag}_{site}"); I(f"s_call_b64 s[{sRET}:{sRET+1}], L_rare_s{tag}_{kind}"); I(f"s_branch L_back_s{tag}_{site}")
    for l in subs: (O.lab(l[:-1]) if l.endswith(":") else I(l))
    for site, par in rare_o:
        O.lab(f"L_stub_o{site}"); I(f"s_call_b64 s[{sRET}:{sRET+1}], L_rare_o_{par}"); I(f"s_branch L_back_o{site}")
    for par in range(2):
        O.lab(f"L_rare_o_{par}")
        I("s_nop 7")
        I(f"s_mov_b32 s{sA}, vcc_lo")
        I(f"v_and_b32 v6, 15, v0"); I(f"v_lshlrev_b32 v6, 2, v6"); I(f"v_add_u32 v6, {ALPHA + par*448}, v6")
        for z in range(7):
            I(f"s_bitcmp1_b32 s{sA}, {z}"); I(f"s_cbranch_scc0 L_rare_o_{par}_{z}")
            I(f"ds_read_b32 v{vF}, v6 offset:{z*64}"); I("s_waitcnt lgkmcnt(0)")
            for r in range(16): I(f"v_mul_f32 v{OA+16*z+r}, v{vF}, v{OA+16*z+r}")
            O.lab(f"L_rare_o_{par}_{z}")
        I("s_nop 1")
        I(f"s_setpc_b64 s[{sRET}:{sRET+1}]")

    E.lab("L_code_end")
    R = Em(E.L); I = R.I
    R.L += kernel_head("reduce_kernel")
    I("s_cmp_ge_u32 s2, 448"); I("s_cbranch_scc1 L_rdone")
    I("s_load_dwordx2 s[8:9], s[0:1], 96"); I("s_load_dwordx2 s[12:13], s[0:1], 80")
    I("v_lshrrev_b32 v1, 6, v0"); I("v_and_b32 v0, 63, v0"); I("v_readfirstlane_b32 s3, v1")
    I("s_lshl_b32 s4, s2, 2"); I("s_add_u32 s4, s4, s3")
    I(f"s_mov_b32 s5, {(2**32 + 111)//112}"); I("s_mul_hi_u32 s5, s4, s5")
    I("s_mul_i32 s6, s5, 112"); I("s_sub_u32 s6, s4, s6")
    I(f"s_mul_i32 s17, s5, {16*PART_HEAD}"); I("s_lshl_b32 s18, s6, 10"); I("s_add_u32 s17, s17, s18")
    I("v_lshlrev_b32 v2, 4, v0")
    I("s_waitcnt lgkmcnt(0)")
    I("s_add_u32 s8, s8, s17"); I("s_addc_u32 s9, s9, 0"); I(f"s_mov_b32 s10, {15*PART_HEAD + 1024}"); I("s_mov_b32 s11, 0x20000")
    I(f"s_mov_b32 s14, {8*112*896*2}"); I("s_mov_b32 s15, 0x20000")
    I("s_mov_b32 s19, 0")
    for h in range(16):
        I(f"buffer_load_dwordx4 {vr(8+4*h,4)}, v2, s[8:11], s19 offen")
        if h < 15: I(f"s_add_u32 s19, s19, {PART_HEAD}")
    I("s_bfe_u32 s20, s6, 0x10003"); I("s_lshl_b32 s20, s20, 1"); I("s_and_b32 s21, s6, 1"); I("s_add_u32 s20, s20, s21")
    I("s_and_b32 s22, s5, 7"); I("s_mul_i32 s22, s22, 112"); I("s_lshl_b32 s23, s20, 5"); I("s_add_u32 s22, s22, s23")
    I("v_and_b32 v3, 15, v0"); I("v_add_u32 v3, s22, v3"); I("v_mul_u32_u24 v3, 1792, v3")
    I("s_lshr_b32 s22, s5, 3"); I("s_mul_i32 s22, s22, 896"); I("s_lshr_b32 s23, s6, 4"); I("s_lshl_b32 s23, s23, 7"); I("s_add_u32 s22, s22, s23")
    I("s_bfe_u32 s23, s6, 0x20001"); I("s_lshl_b32 s23, s23, 5"); I("s_add_u32 s22, s22, s23")
    I("v_lshrrev_b32 v4, 4, v0"); I("v_lshl_add_u32 v3, v4, 3, v3"); I("v_add_u32 v3, s22, v3")
    I(f"s_mov_b32 s24, {16*1792}")
    for h in range(16):
        I(f"s_waitcnt vmcnt({15-h})")
        for d_ in range(4):
            src = 8 + 4 * h + d_
            if h == 0:
                I(f"v_lshlrev_b32 v{72+2*d_}, 16, v{src}"); I(f"v_and_b32 v{73+2*d_}, 0xffff0000, v{src}")
            else:
                I(f"v_lshlrev_b32 v5, 16, v{src}"); I(f"v_and_b32 v6, 0xffff0000, v{src}")
                I(f"v_add_f32 v{72+2*d_}, v{72+2*d_}, v5"); I(f"v_add_f32 v{73+2*d_}, v{73+2*d_}, v6")
    for d_ in range(4): I(f"v_cvt_pk_bf16_f32 v{8+d_}, v{72+2*d_}, v{73+2*d_}")
    I("buffer_store_dwordx2 v[8:9], v3, s[12:15], 0 offen")
    I("s_cmp_eq_u32 s20, 3"); I("s_cbranch_scc1 L_rdone")
    I("buffer_store_dwordx2 v[10:11], v3, s[12:15], s24 offen")
    R.lab("L_rdone"); I("s_endpgm")
    tail = ['.section .rodata,"a"'] + kd(NAME + "_kernel") + kd("reduce_kernel", vgpr=80, sgpr=32, accum=80)
    return "\n".join(head + E.L + tail) + "\n"

if __name__ == "__main__":
    kw = eval("dict(%s)" % (sys.argv[2] if len(sys.argv) > 2 else ""))
    open(sys.argv[1], "w").write(gen(**kw))
```

```python
import sys
from asmlib import *

NB = 64
PIECE = 1056
SLOT = 16 * PIECE
TSLOT = 0
def slot(i): return SLOT * (i + 1)
SPARE = slot(8)
FLG = SPARE + 8192
ALPHA = FLG + 256
RL = ALPHA + 1024
QSETS = [[slot(5), slot(6), slot(7)], [slot(2), slot(3), slot(4)], [TSLOT, slot(0), slot(1)]]
QBUF = [TSLOT, TSLOT + 8192, slot(0), slot(0) + 8192, slot(1), slot(1) + 8192, SPARE]
KRING = [2, 3, 5, 7]
VRING = [4, 6, 0, 1]
PART_HEAD = 114688

S_X, S_WQ, S_K, S_V, S_WO, S_PT = 8, 12, 16, 20, 24, 28
sWAVE, sW4, sROT, sWLDS, sKOFF, sVOFF, sCNT, sBLK, sC, sT = 32, 33, 34, 35, 36, 37, 38, 39, 40, 41
sA, sB2, sD, sE, sHH, sPOFF, sSTRIP, sXOFF, sXLDS = 42, 43, 44, 45, 46, 47, 48, 49, 52
sRET = 54
sTS = 60

class Em:
    def __init__(self, L=None):
        self.L = [] if L is None else L; self.lg = []; self.vm = []; self.nbar = 0
    def fork(self):
        e = Em(self.L); e.lg = list(self.lg); e.vm = list(self.vm); e.nbar = self.nbar; return e
    def I(self, s): self.L.append("    " + s)
    def lab(self, s): self.L.append(s + ":")
    def lds(self, s, tag): self.I(s); self.lg.append(tag)
    def vmem(self, s, tag): self.I(s); self.vm.append(tag)
    def _need(self, q, tags):
        idx = [i for i, t in enumerate(q) if t in tags]
        return None if not idx else max(idx)
    def wl(self, *tags):
        i = self._need(self.lg, tags)
        if i is None: return
        n = min(len(self.lg) - i - 1, 15)
        self.I(f"s_waitcnt lgkmcnt({n})"); self.lg = self.lg[len(self.lg) - n:] if n else []
    def wv(self, *tags):
        i = self._need(self.vm, tags)
        if i is None: return
        n = min(len(self.vm) - i - 1, 63)
        self.I(f"s_waitcnt vmcnt({n})"); self.vm = self.vm[len(self.vm) - n:] if n else []
    def wl0(self):
        if self.lg: self.I("s_waitcnt lgkmcnt(0)")
        self.lg = []
    def bar(self): self.I("s_barrier"); self.nbar += 1
    def items(self, its):
        for f in its:
            if callable(f): f()
            else: self.I(f)

class Base:
    def __init__(self, e, reg, cur=0): self.e, self.reg, self.cur = e, reg, cur
    def set(self, b):
        d = b - self.cur
        if d: self.e.I(f"v_add_u32 v{self.reg}, {d & 0xffffffff}, v{self.reg}")
        self.cur = b

def vr(a, n): return f"v[{a}:{a+n-1}]"
def mfma(d, a, b, c=None):
    return f"v_mfma_f32_16x16x32_bf16 {vr(d,4)}, {vr(a,4)}, {vr(b,4)}, " + ("0" if c == 0 else vr(d, 4))
def spread(nslots, fillers, first=0, last=None):
    last = nslots - 1 if last is None else last
    out = [[] for _ in range(nslots)]
    n = last - first + 1
    for i, f in enumerate(fillers): out[first + (i * n) // len(fillers)].append(f)
    return out

def gen(diag=False, kvnt=True, stnt=False, hot=False, nodma=False, prio="S", sfirst=8, slast=28, dmafirst=0, dmalast=3, k1only=False, pstamp=False, qpre=2, nosm=False, noO=False, noS=False, nobar=False, ipf=False, stfl=None, pad=0, lalign=0, s3k=True, s3first=0, s3last=15, nkf=16, npf=7, nost=False, nowo=False, noqf=False, bal=True, qprio=1, balz=4, vz0=2, s3f=4, k2w=4):
    NT_ = " nt" if kvnt else ""
    E = Em(); I = E.I
    def stamp(e, k):
        if diag:
            e.I(f"s_memtime s[{sTS+4*k}:{sTS+4*k+1}]"); e.I(f"s_memrealtime s[{sTS+4*k+2}:{sTS+4*k+3}]")
    head = [l for l in open("ref.s.txt").read().split("\n") if l.startswith(";") and "@launch" not in l and "Override" not in l and "grid=ceil" not in l]
    head += [f"; @launch kernel={NAME}_kernel grid=(256,1,1) block=(512,1,1) lds=163840"]
    if not k1only: head += [f"; @launch kernel=reduce_kernel grid=({1792//k2w},1,1) block=({64*k2w},1,1) lds=0"]
    head += ['.amdgcn_target "amdgcn-amd-amdhsa--gfx950"', ".text"]
    E.L += kernel_head(NAME + "_kernel")
    I("s_cmp_ge_u32 s2, 256"); I("s_cbranch_scc1 L_done")
    stamp(E, 0)
    I("s_bfe_u32 s6, s2, 0x10002"); I("s_and_b32 s3, s2, 3"); I("s_lshl_b32 s3, s3, 1"); I("s_bfe_u32 s4, s2, 0x10004"); I("s_add_u32 s3, s3, s4")
    I(f"s_bfe_u32 s{sHH}, s2, 0x10003"); I("s_lshr_b32 s7, s2, 5")
    I("s_lshl_b32 s5, s6, 3"); I("s_add_u32 s5, s5, s7"); I(f"s_mul_i32 s{sA}, s6, 40")
    I(f"s_add_u32 s50, s0, s{sA}"); I("s_addc_u32 s51, s1, 0")
    I(f"s_load_dwordx2 s[{S_X}:{S_X+1}], s[50:51], 0")
    I(f"s_load_dwordx2 s[{S_WQ}:{S_WQ+1}], s[50:51], 24")
    I(f"s_load_dwordx2 s[{S_K}:{S_K+1}], s[50:51], 8")
    I(f"s_load_dwordx2 s[{S_V}:{S_V+1}], s[50:51], 16")
    I(f"s_load_dwordx2 s[{S_WO}:{S_WO+1}], s[50:51], 32")
    I(f"s_load_dwordx2 s[{S_PT}:{S_PT+1}], s[0:1], 96")
    if diag: I("s_load_dwordx2 s[58:59], s[0:1], 96")
    I("v_lshrrev_b32 v1, 6, v0"); I("v_and_b32 v0, 63, v0")
    I(f"v_readfirstlane_b32 s{sWAVE}, v1")
    I(f"s_lshl_b32 s4, s3, 1"); I(f"s_add_u32 s4, s4, s{sHH}")
    I(f"s_bfe_u32 s{sA}, s2, 0x20003"); I(f"s_lshl_b32 s{sA}, s{sA}, 1"); I(f"s_add_u32 s{sROT}, s7, s{sA}")
    I(f"s_cmp_ge_u32 s{sROT}, 7"); I(f"s_cselect_b32 s{sA}, 7, 0"); I(f"s_sub_u32 s{sROT}, s{sROT}, s{sA}")
    I(f"s_and_b32 s{sW4}, s{sWAVE}, 3")
    I(f"s_mul_i32 s{sWLDS}, s{sW4}, {4*PIECE}")
    I(f"s_mov_b32 s{sC}, 0x3db8aa3b"); I(f"s_mov_b32 s{sT}, 0x41000000")
    vXD, vWD, vXA0, vXA1, vQA, t0, t1 = 1, 2, 3, 4, 5, 6, 7
    I(f"v_lshrrev_b32 v{vXD}, 3, v0"); I(f"v_mul_u32_u24 v{vXD}, 896, v{vXD}")
    I(f"v_lshrrev_b32 v{t0}, 4, v0"); I(f"v_lshlrev_b32 v{t0}, 1, v{t0}"); I(f"v_and_b32 v{t1}, 7, v0"); I(f"v_xor_b32 v{t0}, v{t0}, v{t1}")
    I(f"v_lshl_add_u32 v{vXD}, v{t0}, 4, v{vXD}")
    I(f"v_lshrrev_b32 v{t0}, 5, v0"); I(f"v_lshlrev_b32 v{vWD}, 15, v{t0}"); I(f"v_and_b32 v{t0}, 31, v0")
    I(f"v_lshl_add_u32 v{vWD}, v{t0}, 4, v{vWD}")
    I(f"s_lshl_b32 s{sPOFF}, s{sROT}, 19"); I(f"s_lshl_b32 s{sE}, s{sWAVE}, 16")
    I(f"s_lshl_b32 s{sXOFF}, s{sROT}, 7"); I(f"s_mul_i32 s{sB2}, s{sWAVE}, {16*896}")
    I(f"s_lshl_b32 s{sXLDS}, s{sWAVE}, 11")
    I(f"s_lshr_b32 s{sD}, s{sWAVE}, 2"); I(f"s_mul_i32 s{sD}, s{sD}, {SLOT}"); I(f"s_add_u32 s53, s{sD}, s{sWLDS}")
    I("s_waitcnt lgkmcnt(0)")
    if pstamp: stamp(E, 1)
    def srd(r, off_sgpr, size):
        I(f"s_add_u32 s{r}, s{r}, s{off_sgpr}"); I(f"s_addc_u32 s{r+1}, s{r+1}, 0")
        if isinstance(size, int): I(f"s_mov_b32 s{r+2}, {size}")
        else: I(size)
        I(f"s_mov_b32 s{r+3}, 0x20000")
    I(f"s_mul_i32 s{sA}, s7, 100352"); srd(S_X, sA, 100352)
    I(f"s_lshl_b32 s{sA}, s4, 9"); srd(S_WQ, sA, f"s_sub_u32 s{S_WQ+2}, {448*8192}, s{sA}")
    def qfill_ops(e, i):
        if noqf and i >= 3: return []
        xs, wa, wb = QSETS[i % 3]
        assert wb == wa + SLOT
        ops = []
        for j in range(2):
            def f(j=j):
                e.I(f"s_add_u32 s{sD}, s{sXOFF}, s{sB2}")
                if j: e.I(f"s_add_u32 s{sD}, s{sD}, {8*896}")
                e.I(f"s_add_u32 m0, s{sXLDS}, {xs + j*1024}"); e.I("s_nop 0")
                e.vmem(f"buffer_load_dwordx4 v{vXD}, s[{S_X}:{S_X+3}], s{sD} offen lds", ("QF", i))
            ops.append(f)
        for j in range(4):
            def f(j=j):
                e.I(f"s_add_u32 s{sD}, s{sPOFF}, s{sE}")
                if j: e.I(f"s_add_u32 s{sD}, s{sD}, {j*8192}")
                e.I(f"s_add_u32 m0, s53, {wa + j*PIECE}"); e.I("s_nop 0")
                e.vmem(f"buffer_load_dwordx4 v{vWD}, s[{S_WQ}:{S_WQ+3}], s{sD} offen lds", ("QF", i))
                if j == 3:
                    e.I(f"s_add_u32 s{sPOFF}, s{sPOFF}, {1<<19}"); e.I(f"s_add_u32 s{sXOFF}, s{sXOFF}, 128")
                    e.I(f"s_cmp_eq_u32 s{sXOFF}, 896"); e.I(f"s_cselect_b32 s{sPOFF}, 0, s{sPOFF}"); e.I(f"s_cselect_b32 s{sXOFF}, 0, s{sXOFF}")
            ops.append(f)
        return ops
    for _ in range(pad): I("s_nop 0")
    if ipf:
        I("s_getpc_b64 s[56:57]")
        E.lab("L_pc")
        I(f"s_lshl_b32 s{sA}, s{sWAVE}, 13"); I(f"v_lshl_add_u32 v{t0}, v0, 7, s{sA}")
        I(f"s_min_u32 s{sA}, s{sA}, s{sA}")
        I(f"v_min_u32 v{t0}, L_code_end-L_pc-4, v{t0}")
        E.vmem(f"global_load_dword v15, v{t0}, s[56:57]", ("QF", -1))
    for i in range(qpre): E.items(qfill_ops(E, i))
    if pstamp: stamp(E, 2)
    I(f"s_lshl_b32 s{sA}, s7, 3"); I(f"s_add_u32 s{sA}, s{sA}, s3"); I(f"s_lshl_b32 s{sA}, s{sA}, 20")
    srd(S_K, sA, 1 << 20); srd(S_V, sA, 1 << 20)
    I(f"s_mul_i32 s{sA}, s4, {256*896}"); srd(S_WO, sA, 256 * 896)
    I(f"s_lshl_b32 s{sA}, s5, 4"); I(f"s_add_u32 s{sA}, s{sA}, s4"); I(f"s_mul_i32 s{sA}, s{sA}, {PART_HEAD}"); srd(S_PT, sA, PART_HEAD)
    I(f"v_and_b32 v{t0}, 15, v0"); I(f"v_lshlrev_b32 v{vXA0}, 7, v{t0}")
    I(f"v_and_b32 v{t0}, 6, v0"); I(f"v_lshrrev_b32 v{t1}, 4, v0"); I(f"v_xor_b32 v{t0}, v{t0}, v{t1}")
    I(f"v_lshl_add_u32 v{vXA0}, v{t0}, 4, v{vXA0}"); I(f"v_xor_b32 v{vXA1}, 64, v{vXA0}")
    def tr_lane(e, dst, tmp, sh):
        e.I(f"v_lshrrev_b32 v{dst}, 2, v0"); e.I(f"v_mul_u32_u24 v{dst}, {PIECE}, v{dst}")
        e.I(f"v_and_b32 v{tmp}, 3, v0"); e.I(f"v_lshl_add_u32 v{dst}, v{tmp}, {sh}, v{dst}")
    tr_lane(E, vQA, t0, 4)
    I(f"s_lshl_b32 s{sA}, s{sWAVE}, 6"); I(f"v_add_u32 v{vQA}, s{sA}, v{vQA}")
    vDM = 8
    I(f"v_and_b32 v{vDM}, 31, v0"); I(f"v_lshlrev_b32 v{vDM}, 4, v{vDM}")
    I(f"v_lshrrev_b32 v{t0}, 5, v0"); I(f"v_lshl_add_u32 v{vDM}, v{t0}, 13, v{vDM}")
    I(f"s_lshl_b32 s{sKOFF}, s{sW4}, 11"); I(f"s_add_u32 s{sVOFF}, s{sKOFF}, {0 if hot else 16384}"); I(f"s_add_u32 s{sKOFF}, s{sKOFF}, {0 if hot else 32768}")
    I(f"v_lshlrev_b32 v{t0}, 2, v0"); I(f"v_add_u32 v{t0}, {FLG}, v{t0}"); I(f"v_mov_b32 v{t1}, 0")
    E.lds(f"ds_write_b32 v{t0}, v{t1}", ("F",))
    def kv_piece(e, kind, j, i):
        if nodma and j >= 4: return
        ring, srd_, off = (KRING, S_K, sKOFF) if kind == "K" else (VRING, S_V, sVOFF)
        e.I(f"s_add_u32 m0, s{sWLDS}, {slot(ring[j % 4]) + i*(PIECE-512)}")
        e.I("s_nop 0")
        e.vmem(f"buffer_load_dwordx4 v{vDM}, s[{srd_}:{srd_+3}], s{off} offen offset:{i*512}{NT_} lds", (kind, j))
        if i == 3 and not hot: e.I(f"s_add_u32 s{off}, s{off}, 16384")
    QA, QB_, QACC, QP = 16, 32, 96, 152
    def qproj(E, lag):
        I = E.I
        bx0, bx1, bq = Base(E, vXA0), Base(E, vXA1), Base(E, vQA)
        def fin(z):
            ops = [f"v_mul_f32 v{QACC+8*z+n}, s{sC}, v{QACC+8*z+n}" for n in range(8)]
            ops += [f"v_cvt_pk_bf16_f32 v{QP+4*z+n}, v{QACC+8*z+2*n}, v{QACC+8*z+2*n+1}" for n in range(4)]
            def wr():
                off = QBUF[z]
                if off > 60000: I(f"v_add_u32 v{t0}, {off}, v{t0}"); off = 0
                E.lds(f"ds_write_b128 v{t0}, {vr(QP+4*z,4)} offset:{off}", ("QW",))
            return ops + [wr]
        def pair(i, kk, z):
            E.wl(("A", i, kk), ("B", i, kk, z))
            for b in range(2):
                I(mfma(QACC + 8 * z + 4 * b, QA + 8 * kk + 4 * b, QB_ + 28 * kk + 4 * z, 0 if (i == 0 and kk == 0) else None))
        def last_half(i):
            I(f"v_lshlrev_b32 v{t0}, 4, v0"); I(f"s_lshl_b32 s{sA}, s{sWAVE}, 10"); I(f"v_add_u32 v{t0}, s{sA}, v{t0}")
            for z in range(7):
                pair(i, 1, z)
                if z >= 3: E.items(fin(z - 3))
            E.items(fin(4)); E.items(fin(5)); E.items(fin(6))
        if qprio is not None and lag == qprio: I("s_setprio 1")
        for i in range(7):
            E.wv(("QF", i))
            if i == 0 or lag: E.wl0()
            E.bar()
            if i == 0 and not lag: stamp(E, 1)
            xs, wa, wb = QSETS[i % 3]
            bx0.set(xs); bx1.set(xs); bq.set(wa)
            def rda(kk):
                for b in range(2):
                    for u in range(2):
                        E.lds(f"ds_read_b64_tr_b16 {vr(QA+8*kk+4*b+2*u,2)}, v{vQA} offset:{kk*SLOT + u*512 + b*8}", ("A", i, kk))
            def rdb(kk, z):
                E.lds(f"ds_read_b128 {vr(QB_+28*kk+4*z,4)}, v{vXA1 if kk else vXA0} offset:{z*2048}", ("B", i, kk, z))
            fl = []
            if i >= 1 and i + 2 < 7: fl = qfill_ops(E, i + 2)
            if i == 0 and qpre < 3: fl = sum([qfill_ops(E, k) for k in range(qpre, 3)], [])
            if i == 5:
                I(f"s_lshl_b32 s{sE}, s{sWAVE}, 10"); I(f"s_mul_i32 s{sB2}, s{sWAVE}, {2*PIECE}")
                def pre(kind, j, i_):
                    ring, srd_ = (KRING, S_K) if kind == "K" else (VRING, S_V)
                    I(f"s_add_u32 s{sD}, s{sE}, {j*16384}")
                    I(f"s_add_u32 m0, s{sB2}, {slot(ring[j]) + i_*(PIECE-512)}"); I("s_nop 0")
                    E.vmem(f"buffer_load_dwordx4 v{vDM}, s[{srd_}:{srd_+3}], s{sD} offen offset:{i_*512}{NT_} lds", (kind, j))
                fl = [(lambda k=k, j=j, i_=i_: pre(k, j, i_)) for k, j in (("K", 0), ("K", 1), ("V", 0)) for i_ in range(2)]
            fil = spread(14, fl, 0, 9) if fl else [[] for _ in range(14)]
            if not lag:
                rda(0)
                for z in range(5): rdb(0, z)
                order = [(kk, z) for kk in range(2) for z in range(7)]
                for n, (kk, z) in enumerate(order):
                    if i == 6 and kk == 1: break
                    pair(i, kk, z)
                    if n == 0: rda(1)
                    if n + 5 < 14: rdb(*order[n + 5])
                    E.items(fil[n])
                if i == 6:
                    for z in range(5, 7): rdb(1, z)
                    last_half(6)
            else:
                n = 0
                if i > 0:
                    for z in range(7):
                        pair(i - 1, 1, z)
                        if z == 0: rda(0)
                        if z >= 1: rdb(0, z - 1)
                        E.items(fil[n]); n += 1
                    rdb(0, 6)
                else:
                    rda(0)
                    for z in range(7): rdb(0, z)
                rda(1)
                for z in range(7):
                    pair(i, 0, z)
                    rdb(1, z)
                    E.items(fil[n]); n += 1
                for k in range(n, 14): E.items(fil[k])
                if i == 6: last_half(6)
        if qprio is not None and lag == qprio: I("s_setprio 0")
        I(f"s_mov_b32 s{sBLK}, 0")
    I(f"s_cmp_ge_u32 s{sWAVE}, 4"); I("s_cbranch_scc1 L_owave")
    O = E.fork()
    qproj(E, 0)

    kfree = [slot(KRING[(NB - 4 + i) % 4]) for i in range(4)]
    vs = [slot(VRING[(NB - 4 + i) % 4]) for i in range(4)]
    WOSLOT = kfree + [vs[0], TSLOT, vs[1], vs[2], vs[3]]
    WOSLOT += [WOSLOT[i] for i in range(5)]
    OBUF = [vs[2], vs[2] + 8192, vs[3], vs[3] + 8192, vs[1], vs[1] + 8192, SPARE]
    def oproj(e, role, fills_at):
        I = e.I
        vTA, vST, vT, RLR, AF, PK, ACC, BF = 1, 2, 3, 4, 16, 32, 40, 72
        zs = [0, 1, 2, 3] if role == 0 else [4, 5, 6]
        nz = len(zs)
        I(f"v_lshlrev_b32 v{vT}, 4, v0")
        I(f"v_and_b32 v{vST}, 15, v0"); I(f"v_lshlrev_b32 v{vST}, 2, v{vST}"); I(f"v_add_u32 v{vST}, {RL}, v{vST}")
        for a, z in enumerate(zs): e.lds(f"ds_read_b32 v{RLR+a}, v{vST} offset:{z*64}", ("R",))
        tr_lane(e, vTA, vST, 3)
        I(f"s_lshl_b32 s{sA}, s{sW4}, 5"); I(f"v_add_u32 v{vTA}, s{sA}, v{vTA}")
        I(f"s_lshl_b32 s{sA}, s{sWAVE}, 11"); I(f"v_add_u32 v{vST}, s{sA}, v{vT}")
        if role: I(f"v_lshlrev_b32 v8, 3, v0"); I(f"v_add_u32 v8, s{sA}, v8")
        I(f"s_mov_b32 s{sSTRIP}, s{sROT}")
        ba, bb = Base(e, vTA), Base(e, vT)
        seq = [(j, kp) for j in range(7) for kp in range(8)]
        def rd(n):
            j, kp = seq[n]
            ba.set(WOSLOT[2 * j + kp // 4])
            for u in range(2):
                e.lds(f"ds_read_b64_tr_b16 {vr(AF+4*(n%4)+2*u,2)}, v{vTA} offset:{(2*(kp%4)+u)*128}", ("A", n))
        def rdB(kp):
            for a, z in enumerate(zs):
                base = OBUF[z - (z - zs[0]) % 2] if False else OBUF[z]
                lo = min(OBUF[zz] for zz in zs)
                if base - bb.cur < 0 or base - bb.cur + kp * 1024 > 65535: bb.set(base)
                e.lds(f"ds_read_b128 {vr(BF+32*a+4*kp,4)}, v{vT} offset:{base - bb.cur + kp*1024}", ("B", kp, a))
        def fin(j):
            acc = ACC + 16 * (j % 2)
            ops = []
            for a in range(nz):
                ops += [f"v_mul_f32 v{acc+4*a+r}, v{RLR+a}, v{acc+4*a+r}" for r in range(4)]
                ops += [f"v_cvt_pk_bf16_f32 v{PK+2*a+n}, v{acc+4*a+2*n}, v{acc+4*a+2*n+1}" for n in range(2)]
            def st():
                if nost: return
                fl = " nt" if stnt else ""
                if stfl: fl = " " + stfl
                I(f"s_lshl_b32 s{sA}, s{sSTRIP}, 14")
                I(f"s_add_u32 s{sSTRIP}, s{sSTRIP}, 1")
                e.vmem(f"buffer_store_dwordx4 {vr(PK,4)}, v{vST}, s[{S_PT}:{S_PT+3}], s{sA} offen{fl}", ("ST", j))
                if nz == 4: e.vmem(f"buffer_store_dwordx4 {vr(PK+4,4)}, v{vST}, s[{S_PT}:{S_PT+3}], s{sA} offen offset:1024{fl}", ("ST", j))
                else: e.vmem(f"buffer_store_dwordx2 {vr(PK+4,2)}, v8, s[{S_PT}:{S_PT+3}], s{sA} offen offset:1024{fl}", ("ST", j))
                I(f"s_cmp_eq_u32 s{sSTRIP}, 7"); I(f"s_cselect_b32 s{sSTRIP}, 0, s{sSTRIP}")
            ops.append(st)
            return ops
        rd(0); rdB(0); rd(1); rdB(1); rd(2); rd(3)
        for j in range(7):
            fl = fin(j - 1) if j else []
            fil = spread(8 * nz, fl, 2 * nz, 8 * nz - 1) if fl else [[] for _ in range(8 * nz)]
            fl = fills_at(e, ("post", j))
            if fl:
                f2 = spread(8 * nz, fl, 0, min(8 * nz - 1, len(fl) - 1))
                fil = [a + b for a, b in zip(f2, fil)]
            for kp in range(8):
                n = 8 * j + kp
                for a in range(nz):
                    e.wl(("A", n), ("B", kp, a))
                    I(mfma(ACC + 16 * (j % 2) + 4 * a, AF + 4 * (n % 4), BF + 32 * a + 4 * kp, 0 if kp == 0 else None))
                    if a == nz - 1:
                        if j == 0 and kp + 2 < 8: rdB(kp + 2)
                        if n + 4 < len(seq): rd(n + 4)
                    e.items(fil[kp * nz + a])
            if j < 6:
                fills_at(e, ("pre", j + 1))
                e.bar()
        I("s_nop 7")
        e.wl(("R",))
        e.items(fin(6))

    LOOP0, LOOPN = 5, 61
    rare_s = []
    if pstamp:
        stamp0 = stamp
        stamp = lambda e, k: (stamp0(e, k) if k == 8 else None)
    def swave(S, NZ, tag):
        I = S.I
        vKA, vPW, vAW, vL, vT0, vT1, vT2 = 1, 2, 3, 6, 9, 11, 13
        Q0, SA, SB, PO, EX, NM, KF = 16, 80, 96, 112, 120, 136, 144
        NKF = nkf
        I(f"v_lshlrev_b32 v{vPW}, 4, v0")
        if NZ == 2:
            I(f"s_mul_i32 s{sA}, s{sW4}, {SLOT}"); I(f"v_add_u32 v{vT0}, s{sA}, v{vPW}")
        else:
            I(f"v_add_u32 v{vT0}, {QBUF[6]}, v{vPW}")
        I(f"v_and_b32 v{vKA}, 15, v0"); I(f"v_mul_u32_u24 v{vKA}, {PIECE}, v{vKA}")
        I(f"v_lshrrev_b32 v{vT1}, 4, v0"); I(f"v_lshl_add_u32 v{vKA}, v{vT1}, 4, v{vKA}")
        I(f"s_lshl_b32 s{sA}, s{sW4}, 11"); I(f"v_add_u32 v{vPW}, s{sA}, v{vPW}")
        I(f"v_and_b32 v{vAW}, 15, v0"); I(f"v_lshlrev_b32 v{vAW}, 2, v{vAW}")
        I(f"s_lshl_b32 s{sA}, s{sW4}, 7"); I(f"s_add_u32 s{sA}, s{sA}, {ALPHA}"); I(f"v_add_u32 v{vAW}, s{sA}, v{vAW}")
        for a in range(NZ):
            I(f"v_mov_b32 v{vL+a}, 0")
            for r in range(4): I(f"v_mov_b32 v{NM+4*a+r}, 0")
        I(f"s_mov_b32 s{sT}, 0x40004000")
        if NZ == 1: I(f"s_mov_b32 s{sKOFF}, {0 if hot else 32768}")
        if prio == "S": I("s_setprio 1")
        S.wl0(); S.wv(("K", 0), ("K", 1))
        S.bar()
        stamp(S, 2)
        bk = Base(S, vKA)
        def rdk(p, n):
            bk.set(slot(KRING[p % 4]))
            S.lds(f"ds_read_b128 {vr(KF+4*(n%NKF),4)}, v{vKA} offset:{(n%2)*512 + (n//2)*64}", ("K", p, n))
        nv = 8 * NZ
        def exp_cvt(sp):
            ops = []
            for k in range(nv + 3):
                if k < nv: ops.append(f"v_exp_f32 v{EX+k}, v{sp+k}")
                if k >= 3 and k % 2 == 1: ops.append(f"v_cvt_pk_bf16_f32 v{PO+(k-3)//2}, v{EX+k-3}, v{EX+k-2}")
            return ops
        def rare_body(kind):
            sub = []
            par = int(kind[1])
            first = kind[0] == "f"
            sp, cur = (SA, SB) if par == 0 else (SB, SA)
            sub.append(f"L_rare_s{tag}_{kind}:")
            for a in range(NZ):
                b = sp + 8 * a
                sub.append(f"v_max3_f32 v{vT0+a}, v{b}, v{b+1}, v{b+2}")
                sub.append(f"v_max3_f32 v{vT0+a}, v{vT0+a}, v{b+3}, v{b+4}")
                sub.append(f"v_max3_f32 v{vT0+a}, v{vT0+a}, v{b+5}, v{b+6}")
                sub.append(f"v_max_f32 v{vT0+a}, v{vT0+a}, v{b+7}")
            for sw in ("v_permlane16_swap_b32", "v_permlane32_swap_b32"):
                for a in range(NZ): sub.append(f"v_mov_b32 v{vT1+a}, v{vT0+a}")
                sub.append("s_nop 1")
                for a in range(NZ): sub.append(f"{sw} v{vT0+a}, v{vT1+a}")
                for a in range(NZ): sub.append(f"v_max_f32 v{vT0+a}, v{vT0+a}, v{vT1+a}")
            for a in range(NZ):
                sub.append(f"v_sub_f32 v{vT0+a}, 0xc0e00000, v{vT0+a}")
                if not first:
                    sub.append(f"v_min_f32 v{vT0+a}, 0, v{vT0+a}")
                    sub.append(f"v_exp_f32 v{vT1+a}, v{vT0+a}")
                for r in range(4): sub.append(f"v_add_f32 v{NM+4*a+r}, v{NM+4*a+r}, v{vT0+a}")
                for r in range(8): sub.append(f"v_add_f32 v{sp+8*a+r}, v{sp+8*a+r}, v{vT0+a}")
                if kind[0] != "n":
                    for r in range(8): sub.append(f"v_add_f32 v{cur+8*a+r}, v{cur+8*a+r}, v{vT0+a}")
                if not first:
                    sub.append(f"v_mul_f32 v{vL+a}, v{vL+a}, v{vT1+a}")
                    sub.append(f"ds_write_b32 v{vAW}, v{vT1+a} offset:{par*448 + a*64}")
            sub += exp_cvt(sp)
            if not first:
                sub.append(f"s_lshl_b32 s{sA}, s{sW4}, 3"); sub.append(f"s_add_u32 s{sA}, s{sA}, {FLG + par*128}")
                sub.append(f"v_mov_b32 v{vT0}, s{sA}"); sub.append(f"v_mov_b32 v{vT2}, s{sBLK}")
                for a in range(NZ): sub.append(f"ds_write_b32 v{vT0}, v{vT2} offset:{4*a}")
            sub.append("s_waitcnt lgkmcnt(0)")
            sub.append(f"s_setpc_b64 s[{sRET}:{sRET+1}]")
            return sub
        def softmax_ops(p):
            sp = SB if p % 2 == 0 else SA
            par = (p - 1) % 2
            ops = exp_cvt(sp)
            ops.append(f"v_or3_b32 v{vT0}, v{PO}, v{PO+1}, v{PO+2}")
            nhead = None
            if NZ == 2:
                ops.append(f"v_or3_b32 v{vT1}, v{PO+3}, v{PO+4}, v{PO+5}")
                ops.append(f"v_or3_b32 v{vT0}, v{vT0}, v{PO+6}, v{PO+7}")
                ops.append(f"v_or_b32 v{vT0}, v{vT0}, v{vT1}")
            else:
                ops.append(f"v_or_b32 v{vT0}, v{vT0}, v{PO+3}")
            ops.append(f"v_and_b32 v{vT0}, s{sT}, v{vT0}")
            kind = ("q" if p < NB else "n") + str(par)
            def check():
                I(f"s_add_u32 s{sBLK}, s{sBLK}, 1")
                if p == 1:
                    for l in rare_body("f0")[1:-2]: I(l)
                else:
                    I(f"v_cmp_ne_u32 vcc, 0, v{vT0}")
                    I(f"s_cbranch_vccnz L_stub_s{tag}_{p}")
                    S.lab(f"L_back_s{tag}_{p}")
                    rare_s.append((tag, p, kind))
            if p == 1: ops = []
            ops.append(check)
            for a in range(NZ):
                ops.append(lambda a=a: S.lds(f"ds_write_b128 v{vPW}, {vr(PO+4*a,4)} offset:{par*7168 + a*1024}", ("P", a)))
            for k in range(nv): ops.append(f"v_add_f32 v{vL+(k%NZ)}, v{vL+(k%NZ)}, v{EX+8*(k%NZ)+k//NZ}")
            if nosm: return [o for o in ops if callable(o)][1:]
            return ops
        def k_piece(j, k):
            if nodma and j >= 4: return
            if k == 8: I(f"s_add_u32 s{sKOFF}, s{sKOFF}, 4096")
            I(f"s_mov_b32 m0, {slot(KRING[j % 4]) + k*PIECE - (k%8)*512}")
            I("s_nop 0")
            S.vmem(f"buffer_load_dwordx4 v{vDM}, s[{S_K}:{S_K+3}], s{sKOFF} offen offset:{(k%8)*512}{NT_} lds", ("K", j))
            if k == 15: I(f"s_add_u32 s{sKOFF}, s{sKOFF}, {-4096 & 0xffffffff if hot else 12288}")
        loader = s3k and NZ == 1
        def s_phase(p):
            cur = SA if p % 2 == 0 else SB
            do_qk, do_sm = p < NB, p >= 1
            sm = softmax_ops(p) if do_sm else []
            kf = []
            if loader:
                for j in ([2, 3] if p == 0 else [p + 3]):
                    if j < NB: kf += [(lambda j=j, k=k: k_piece(j, k)) for k in range(16)]
            if do_qk:
                if p == 0:
                    for a in range(NZ):
                        for ks in range(2): S.lds(f"ds_read_b128 {vr(Q0+32*a+4*ks,4)}, v{vT0} offset:{a*8192 + ks*1024}", ("Q", a, ks))
                if p in (0, 2):
                    for n in range(NKF - 2): rdk(p, n)
                if p == 0:
                    for ks in range(2, 8):
                        for a in range(NZ): S.lds(f"ds_read_b128 {vr(Q0+32*a+4*ks,4)}, v{vT0} offset:{a*8192 + ks*1024}", ("Q", a, ks))
                ng = 16 * NZ
                f0, f1 = (sfirst, slast) if NZ == 2 else (s3f, 15)
                fil = spread(ng, sm, f0, f1) if sm else [[] for _ in range(ng)]
                if kf: fil = [a + b for a, b in zip(spread(ng, kf, s3first, s3last), fil)]
                for n in range(16):
                    ks, y = n // 2, n % 2
                    for a in range(NZ):
                        if y == 0: S.wl(("K", p, n), ("K", p, n + 1), ("Q", a, ks))
                        if not noS:
                            if ks == 0: I(f"v_mfma_f32_16x16x32_bf16 {vr(cur+8*a+4*y,4)}, {vr(KF+4*(n%NKF),4)}, {vr(Q0+32*a,4)}, {vr(NM+4*a,4)}")
                            else: I(mfma(cur + 8 * a + 4 * y, KF + 4 * (n % NKF), Q0 + 32 * a + 4 * ks))
                        if a == NZ - 1:
                            m = n + NKF - 2
                            if m < 16: rdk(p, m)
                            elif p + 1 < NB and p != 1: rdk(p + 1, m - 16)
                        S.items(fil[n * NZ + a])
                S.wl(("P", 0), ("P", 1))
                if p == 0: S.wv(("V", 0))
                if loader and p >= 1: S.wv(("K", p + 2), ("K", p + 1))
                if p + 1 >= NB: I("s_nop 7")
            else:
                S.items(sm)
                for sw in ("v_permlane16_swap_b32", "v_permlane32_swap_b32"):
                    for a in range(NZ): I(f"v_mov_b32 v{vT0+a}, v{vL+a}")
                    I("s_nop 1")
                    for a in range(NZ): I(f"{sw} v{vL+a}, v{vT0+a}")
                    for a in range(NZ): I(f"v_add_f32 v{vL+a}, v{vL+a}, v{vT0+a}")
                for a in range(NZ): I(f"v_rcp_f32 v{vL+a}, v{vL+a}")
                I("s_nop 0")
                for a in range(NZ): S.lds(f"ds_write_b32 v{vAW}, v{vL+a} offset:{RL-ALPHA + a*64}", ("P", 2))
                S.wl0()
            S.bar()
        for p in range(0, LOOP0): s_phase(p)
        stamp(S, 3)
        I(f"s_mov_b32 s{sCNT}, {(LOOPN-LOOP0)//4}")
        if lalign: S.L.append(f".p2align {lalign}")
        S.lab(f"L_sloop{tag}")
        st = (list(S.lg), bk.cur, S.nbar)
        stv = list(S.vm)
        for p in range(LOOP0, LOOP0 + 4): s_phase(p)
        assert [(t[0], t[1] - 4) for t in S.vm] == stv
        S.vm = [(t[0], t[1] + LOOPN - LOOP0 - 4) for t in S.vm]
        assert [(t[0], t[1] - 4, t[2]) for t in S.lg] == st[0] and bk.cur == st[1], (S.lg, st)
        I(f"s_sub_u32 s{sCNT}, s{sCNT}, 1"); I(f"s_cmp_lg_u32 s{sCNT}, 0"); I(f"s_cbranch_scc1 L_sloop{tag}")
        stamp(S, 4)
        S.lg = [(t[0], LOOPN, t[2]) for t in S.lg]
        S.nbar = st[2] + (LOOPN - LOOP0)
        for p in range(LOOPN, NB + 1): s_phase(p)
        stamp(S, 5)
        sub = []
        for kind in ("q0", "q1") + (("n1",) if NB % 2 == 0 else ("n0",)): sub += rare_body(kind)
        return sub
    I(f"s_cmp_eq_u32 s{sWAVE}, 3"); I("s_cbranch_scc1 L_swave3")
    S3 = E.fork()
    subs = swave(E, 2, "a")
    I("s_branch L_sjoin")
    S3.lab("L_swave3")
    subs += swave(S3, 1, "b")
    assert S3.nbar == E.nbar
    E.lab("L_sjoin")
    S = E
    S.bar()
    stamp(S, 6)
    oproj(S, 0, lambda e, st: [])
    stamp(S, 7)
    nbarS = S.nbar
    if diag:
        I(f"s_cmp_lg_u32 s{sWAVE}, 0"); I("s_cbranch_scc1 L_done")
        I("s_waitcnt vmcnt(0)")
        stamp(S, 8)
        I("s_waitcnt lgkmcnt(0)")
        I("s_mov_b64 exec, 1")
        I(f"s_lshl_b32 s{sA}, s2, 7"); I(f"s_add_u32 s{sA}, s{sA}, {64<<20}"); I(f"v_mov_b32 v1, s{sA}")
        for k in range(9):
            I(f"v_mov_b32 v4, s{sTS+4*k}"); I(f"v_mov_b32 v5, s{sTS+4*k+2}")
            I(f"global_store_dwordx2 v1, v[4:5], s[58:59] offset:{8*k}")
            I("s_nop 1")
    I("s_endpgm")

    I = O.I
    O.lab("L_owave")
    qproj(O, 1)
    vVA, vPA, vWX, vFA, vF = 1, 2, 9, 4, 5
    VF, OA, OX, PF = 12, 68, 180, 228
    tr_lane(O, vVA, 6, 3)
    I(f"v_lshlrev_b32 v{vPA}, 4, v0")
    I(f"v_and_b32 v{vFA}, 7, v0"); I(f"v_lshlrev_b32 v{vFA}, 2, v{vFA}"); I(f"v_add_u32 v{vFA}, {FLG}, v{vFA}")
    I(f"v_lshrrev_b32 v{vWX}, 3, v0"); I(f"v_mul_u32_u24 v{vWX}, {16*896}, v{vWX}")
    I(f"v_and_b32 v6, 7, v0"); I(f"v_lshl_add_u32 v{vWX}, v6, 4, v{vWX}")
    I(f"s_mul_i32 s{sA}, s{sW4}, {4*896}"); I(f"v_add_u32 v{vWX}, s{sA}, v{vWX}")
    I(f"s_lshl_b32 s{sPOFF}, s{sROT}, 7")
    def wo_piece(f, i, O=None):
        O = O or Ocur[0]
        if nowo and f >= 6: return
        O.I(f"s_add_u32 s{sD}, s{sPOFF}, {((f%2)*128 + i)*896}")
        O.I(f"s_add_u32 m0, s{sWLDS}, {WOSLOT[f] + i*PIECE}")
        O.I("s_nop 0")
        O.vmem(f"buffer_load_dwordx4 v{vWX}, s[{S_WO}:{S_WO+3}], s{sD} offen lds", ("WO", f))
        if i == 3 and f % 2 == 1:
            O.I(f"s_add_u32 s{sPOFF}, s{sPOFF}, 128"); O.I(f"s_cmp_eq_u32 s{sPOFF}, 896"); O.I(f"s_cselect_b32 s{sPOFF}, 0, s{sPOFF}")
    Ocur = [O]
    O.wl0()
    for r in range(OA, OA + 112 + 48): I(f"v_mov_b32 v{r}, 0")
    if prio == "O": I("s_setprio 1")
    O.wv(("K", 0), ("K", 1))
    rare_o = []; osubs = []
    def owave(O, tag):
        I = O.I
        big = bal and tag == "b"
        nsl = 7 if big else 4
        voff = [384 + 32 * sl for sl in range(4)] + [128 * e + 96 for e in range(3)] if big else [32 * sl for sl in range(4)]
        def units(z):
            if not bal: return [0, 1, 2, 3]
            if big: return [0, 1, 2, 3] + ([4, 5, 6] if z >= balz else [])
            return [0, 1, 2] + ([3] if z < balz else [])
        acc = lambda z, sl: OA + 16 * z + 4 * sl if sl < 4 else OX + 12 * (z - 3) + 4 * (sl - 4)
        if not big: I(f"s_lshl_b32 s{sA}, s{sW4}, 7"); I(f"v_add_u32 v{vVA}, s{sA}, v{vVA}")
        O.bar()
        bv = Base(O, vVA)
        def rdv1(j, k):
            sl, y = k // 2, k % 2
            bv.set(slot(VRING[j % 4]))
            O.lds(f"ds_read_b64_tr_b16 {vr(VF+28*(j%2)+4*sl+2*y,2)}, v{vVA} offset:{y*512 + voff[sl]}", ("V", j, sl))
        def rdv(j):
            for k in range(2 * nsl): rdv1(j, k)
        bo, b2 = Base(O, 6), Base(O, 7)
        def pack(z):
            us = units(z)
            ops = [f"v_cvt_pk_bf16_f32 v{acc(z,sl&~1 if sl < 4 else sl)+2*(sl&1 if sl < 4 else 0)+n}, v{acc(z,sl)+2*n}, v{acc(z,sl)+2*n+1}" for sl in us for n in range(2)]
            def wr():
                if not (0 <= OBUF[z] - bo.cur < 57000):
                    bo.set(OBUF[z])
                    if big: b2.set(OBUF[z])
                O.lds(f"ds_write_b128 v6, {vr(acc(z,0),4)} offset:{OBUF[z]-bo.cur}", ("W",))
                if 3 in us: O.lds(f"ds_write_b128 v6, {vr(acc(z,2),4)} offset:{OBUF[z]-bo.cur + 1024}", ("W",))
                else: O.lds(f"ds_write_b64 v6, {vr(acc(z,2),2)} offset:{OBUF[z]-bo.cur + 1024}", ("W",))
                for sl in us:
                    if sl >= 4: O.lds(f"ds_write_b64 v7, {vr(acc(z,sl),2)} offset:{OBUF[z]-b2.cur + (2*(sl-4)+1)*1024 + 8}", ("W",))
            return ops + [wr]
        def o_phase(p):
            j = p - 2
            pieces = []
            def kv(kind, jj): return [(lambda i=i: kv_piece(O, kind, jj, i)) for i in range(4)]
            if p == 0 and not s3k: pieces += kv("K", 2)
            if p + 1 < NB: pieces += kv("V", p + 1)
            if p + 3 < NB:
                if not s3k: pieces += kv("K", p + 3)
            else:
                for f in {NB - 3: [0], NB - 2: [1], NB - 1: [2], NB: [3, 4], NB + 1: []}[p]:
                    pieces += [(lambda i=i, f=f: wo_piece(f, i, O)) for i in range(4)]
            if j < 0:
                O.items(pieces)
                if p == 1: rdv(0)
            else:
                par = j % 2
                def rdp(z): O.lds(f"ds_read_b128 {vr(PF+4*(z%npf),4)}, v{vPA} offset:{par*7168 + z*1024}", ("P", z))
                O.lds(f"ds_read_b32 v{vF}, v{vFA} offset:{par*128}", ("F",))
                for z in range(npf): rdp(z)
                I(f"s_add_u32 s{sBLK}, s{sBLK}, 1")
                fil = spread(8, pieces, dmafirst, dmalast) if pieces else [[] for _ in range(8)]
                O.items(fil[0])
                O.wl(("F",))
                I(f"v_cmp_eq_u32 vcc, s{sBLK}, v{vF}")
                I(f"s_cbranch_vccnz L_stub_o{tag}{p}")
                O.lab(f"L_back_o{tag}{p}")
                rare_o.append((tag, p, par))
                kv_ = 0
                if p == NB + 1:
                    I(f"s_lshl_b32 s{sA}, s{sW4}, 11"); I(f"v_add_u32 v6, s{sA}, v{vPA}"); I(f"v_mov_b32 v7, v{vPA}")
                for z in range(7):
                    if p == NB + 1 and z >= 2: O.items(pack(z - 2)) if z > 2 else None
                    for sl in units(z):
                        O.wl(("P", z), ("V", j, sl))
                        if not noO: I(mfma(acc(z, sl), VF + 28 * (j % 2) + 4 * sl, PF + 4 * (z % npf)))
                        if z >= vz0 and j + 1 < NB and kv_ < 2 * nsl: rdv1(j + 1, kv_); kv_ += 1
                    if p == NB + 1 and z == 2: O.items(pack(0))
                    if z + npf < 7: rdp(z + npf)
                    O.items(fil[z + 1])
            if p <= NB:
                if p == 0: O.wv(("V", 0))
                else: O.wv(("K", p + 2), ("V", p), ("K", p + 1))
                if p == NB: O.wl0()
                O.bar()
        for p in range(0, LOOP0): o_phase(p)
        I(f"s_mov_b32 s{sCNT}, {(LOOPN-LOOP0)//4}")
        O.lab(f"L_oloop{tag}")
        st = (list(O.lg), list(O.vm), bv.cur, O.nbar)
        for p in range(LOOP0, LOOP0 + 4): o_phase(p)
        sh = lambda q, d: [(t[0], t[1] + d) + tuple(t[2:]) for t in q]
        assert sh(O.lg, -4) == st[0] and sh(O.vm, -4) == st[1] and bv.cur == st[2], (O.lg, O.vm, st)
        I(f"s_sub_u32 s{sCNT}, s{sCNT}, 1"); I(f"s_cmp_lg_u32 s{sCNT}, 0"); I(f"s_cbranch_scc1 L_oloop{tag}")
        d = LOOPN - LOOP0 - 4
        O.lg = sh(O.lg, d); O.vm = sh(O.vm, d); O.nbar = st[3] + (LOOPN - LOOP0)
        for p in range(LOOPN, NB + 2): o_phase(p)
        for z in range(5, 7): O.items(pack(z))
        O.wv(("WO", 0), ("WO", 1), ("WO", 2))
        O.wl0()
        for par in range(2):
            osubs.append(f"L_rare_o{tag}_{par}:")
            osubs.append("s_nop 7"); osubs.append(f"s_mov_b32 s{sA}, vcc_lo")
            osubs.extend([f"v_and_b32 v6, 15, v0", f"v_lshlrev_b32 v6, 2, v6", f"v_add_u32 v6, {ALPHA + par*448}, v6"])
            for z in range(7):
                osubs.extend([f"s_bitcmp1_b32 s{sA}, {z}", f"s_cbranch_scc0 L_rare_o{tag}_{par}_{z}", f"ds_read_b32 v{vF}, v6 offset:{z*64}", "s_waitcnt lgkmcnt(0)"])
                for sl in units(z):
                    osubs.extend([f"v_mul_f32 v{acc(z,sl)+r}, v{vF}, v{acc(z,sl)+r}" for r in range(4)])
                osubs.append(f"L_rare_o{tag}_{par}_{z}:")
            osubs.append("s_nop 1"); osubs.append(f"s_setpc_b64 s[{sRET}:{sRET+1}]")
    if bal:
        I(f"s_cmp_eq_u32 s{sWAVE}, 7"); I("s_cbranch_scc1 L_owave7")
        O7 = O.fork()
        owave(O, "a")
        I("s_branch L_ojoin")
        O7.lab("L_owave7")
        owave(O7, "b")
        assert O7.nbar == O.nbar and O7.vm == O.vm and O7.lg == O.lg
        O.lab("L_ojoin")
    else:
        owave(O, "a")
    O.bar()
    def fills_at(e, st):
        when, j = st
        if when == "pre":
            e.wv(*[("WO", f) for f in range(min(14, 2 * j + 3))])
            return []
        fl = {0: [5], 1: [6, 7, 8, 9, 10], 2: [11, 12], 3: [13]}.get(j, [])
        return [(lambda f=f, i=i: wo_piece(f, i)) for f in fl for i in range(4)]
    oproj(O, 1, fills_at)
    assert O.nbar == nbarS, (O.nbar, nbarS)
    O.lab("L_done"); I("s_endpgm")
    for tag, site, kind in rare_s:
        O.lab(f"L_stub_s{tag}_{site}"); I(f"s_call_b64 s[{sRET}:{sRET+1}], L_rare_s{tag}_{kind}"); I(f"s_branch L_back_s{tag}_{site}")
    for l in subs: (O.lab(l[:-1]) if l.endswith(":") else I(l))
    for tag, site, par in rare_o:
        O.lab(f"L_stub_o{tag}{site}"); I(f"s_call_b64 s[{sRET}:{sRET+1}], L_rare_o{tag}_{par}"); I(f"s_branch L_back_o{tag}{site}")
    for l in osubs: (O.lab(l[:-1]) if l.endswith(":") else I(l))

    E.lab("L_code_end")
    R = Em(E.L); I = R.I
    R.L += kernel_head("reduce_kernel")
    I(f"s_cmp_ge_u32 s2, {1792//k2w}"); I("s_cbranch_scc1 L_rdone")
    I("s_load_dwordx2 s[8:9], s[0:1], 96"); I("s_load_dwordx2 s[12:13], s[0:1], 80")
    I("v_lshrrev_b32 v1, 6, v0"); I("v_and_b32 v0, 63, v0"); I("v_readfirstlane_b32 s3, v1")
    I(f"s_mul_i32 s4, s2, {k2w}"); I("s_add_u32 s4, s4, s3")
    I(f"s_mov_b32 s5, {(2**32 + 111)//112}"); I("s_mul_hi_u32 s5, s4, s5")
    I("s_mul_i32 s6, s5, 112"); I("s_sub_u32 s6, s4, s6")
    I(f"s_mul_i32 s17, s5, {16*PART_HEAD}"); I("s_lshl_b32 s18, s6, 10"); I("s_add_u32 s17, s17, s18")
    I("s_and_b32 s25, s6, 9"); I("s_cmp_eq_u32 s25, 9"); I("s_cselect_b32 s25, 3, 4")
    I("v_lshlrev_b32 v2, s25, v0")
    I("s_waitcnt lgkmcnt(0)")
    I("s_add_u32 s8, s8, s17"); I("s_addc_u32 s9, s9, 0"); I(f"s_mov_b32 s10, {15*PART_HEAD + 1024}"); I("s_mov_b32 s11, 0x20000")
    I(f"s_mov_b32 s14, {8*112*896*2}"); I("s_mov_b32 s15, 0x20000")
    I("s_mov_b32 s19, 0")
    for h in range(16):
        I(f"buffer_load_dwordx4 {vr(8+4*h,4)}, v2, s[8:11], s19 offen")
        if h < 15: I(f"s_add_u32 s19, s19, {PART_HEAD}")
    I("s_bfe_u32 s20, s6, 0x10003"); I("s_lshl_b32 s20, s20, 1"); I("s_and_b32 s21, s6, 1"); I("s_add_u32 s20, s20, s21")
    I("s_and_b32 s22, s5, 7"); I("s_mul_i32 s22, s22, 112"); I("s_lshl_b32 s23, s20, 5"); I("s_add_u32 s22, s22, s23")
    I("v_and_b32 v3, 15, v0"); I("v_add_u32 v3, s22, v3"); I("v_mul_u32_u24 v3, 1792, v3")
    I("s_lshr_b32 s22, s5, 3"); I("s_mul_i32 s22, s22, 896"); I("s_lshr_b32 s23, s6, 4"); I("s_lshl_b32 s23, s23, 7"); I("s_add_u32 s22, s22, s23")
    I("s_bfe_u32 s23, s6, 0x20001"); I("s_lshl_b32 s23, s23, 5"); I("s_add_u32 s22, s22, s23")
    I("v_lshrrev_b32 v4, 4, v0"); I("v_lshl_add_u32 v3, v4, 3, v3"); I("v_add_u32 v3, s22, v3")
    I(f"s_mov_b32 s24, {16*1792}")
    for h in range(16):
        I(f"s_waitcnt vmcnt({15-h})")
        for d_ in range(4):
            src = 8 + 4 * h + d_
            if h == 0:
                I(f"v_lshlrev_b32 v{72+2*d_}, 16, v{src}"); I(f"v_and_b32 v{73+2*d_}, 0xffff0000, v{src}")
            else:
                I(f"v_lshlrev_b32 v5, 16, v{src}"); I(f"v_and_b32 v6, 0xffff0000, v{src}")
                I(f"v_add_f32 v{72+2*d_}, v{72+2*d_}, v5"); I(f"v_add_f32 v{73+2*d_}, v{73+2*d_}, v6")
    for d_ in range(4): I(f"v_cvt_pk_bf16_f32 v{8+d_}, v{72+2*d_}, v{73+2*d_}")
    I("buffer_store_dwordx2 v[8:9], v3, s[12:15], 0 offen")
    I("s_cmp_eq_u32 s20, 3"); I("s_cbranch_scc1 L_rdone")
    I("buffer_store_dwordx2 v[10:11], v3, s[12:15], s24 offen")
    R.lab("L_rdone"); I("s_endpgm")
    tail = ['.section .rodata,"a"'] + kd(NAME + "_kernel") + kd("reduce_kernel", vgpr=80, sgpr=32, accum=80)
    return "\n".join(head + E.L + tail) + "\n"

if __name__ == "__main__":
    kw = eval("dict(%s)" % (sys.argv[2] if len(sys.argv) > 2 else ""))
    open(sys.argv[1], "w").write(gen(**kw))
```

```python
import sys
from asmlib import *

NB = 64
PIECE = 1056
SLOT = 16 * PIECE
TSLOT = 0
def slot(i): return SLOT * (i + 1)
SPARE = slot(8)
FLG = SPARE + 8192
ALPHA = FLG + 256
RL = ALPHA + 1024
QSETS = [[slot(5), slot(6), slot(7)], [slot(2), slot(3), slot(4)], [TSLOT, slot(0), slot(1)]]
QBUF = [TSLOT, TSLOT + 8192, slot(0), slot(0) + 8192, slot(1), slot(1) + 8192, SPARE]
KRING = [2, 3, 5, 7]
VRING = [4, 6, 0, 1]
PART_HEAD = 114688

S_X, S_WQ, S_K, S_V, S_WO, S_PT = 8, 12, 16, 20, 24, 28
sWAVE, sW4, sROT, sWLDS, sKOFF, sVOFF, sCNT, sBLK, sC, sT = 32, 33, 34, 35, 36, 37, 38, 39, 40, 41
sA, sB2, sD, sE, sHH, sPOFF, sSTRIP, sXOFF, sXLDS = 42, 43, 44, 45, 46, 47, 48, 49, 52
sRET = 54
sTS = 60

class Em:
    def __init__(self, L=None):
        self.L = [] if L is None else L; self.lg = []; self.vm = []; self.nbar = 0
    def fork(self):
        e = Em(self.L); e.lg = list(self.lg); e.vm = list(self.vm); e.nbar = self.nbar; return e
    def I(self, s): self.L.append("    " + s)
    def lab(self, s): self.L.append(s + ":")
    def lds(self, s, tag): self.I(s); self.lg.append(tag)
    def vmem(self, s, tag): self.I(s); self.vm.append(tag)
    def _need(self, q, tags):
        idx = [i for i, t in enumerate(q) if t in tags]
        return None if not idx else max(idx)
    def wl(self, *tags):
        i = self._need(self.lg, tags)
        if i is None: return
        n = min(len(self.lg) - i - 1, 15)
        self.I(f"s_waitcnt lgkmcnt({n})"); self.lg = self.lg[len(self.lg) - n:] if n else []
    def wv(self, *tags):
        i = self._need(self.vm, tags)
        if i is None: return
        n = min(len(self.vm) - i - 1, 63)
        self.I(f"s_waitcnt vmcnt({n})"); self.vm = self.vm[len(self.vm) - n:] if n else []
    def wl0(self):
        if self.lg: self.I("s_waitcnt lgkmcnt(0)")
        self.lg = []
    def bar(self): self.I("s_barrier"); self.nbar += 1
    def items(self, its):
        for f in its:
            if callable(f): f()
            else: self.I(f)

class Base:
    def __init__(self, e, reg, cur=0): self.e, self.reg, self.cur = e, reg, cur
    def set(self, b):
        d = b - self.cur
        if d: self.e.I(f"v_add_u32 v{self.reg}, {d & 0xffffffff}, v{self.reg}")
        self.cur = b

def vr(a, n): return f"v[{a}:{a+n-1}]"
def mfma(d, a, b, c=None):
    return f"v_mfma_f32_16x16x32_bf16 {vr(d,4)}, {vr(a,4)}, {vr(b,4)}, " + ("0" if c == 0 else vr(d, 4))
def spread(nslots, fillers, first=0, last=None):
    last = nslots - 1 if last is None else last
    out = [[] for _ in range(nslots)]
    n = last - first + 1
    for i, f in enumerate(fillers): out[first + (i * n) // len(fillers)].append(f)
    return out

def gen(diag=False, kvnt=True, stnt=False, hot=False, nodma=False, prio="S", sfirst=8, slast=28, dmafirst=0, dmalast=3, k1only=False, pstamp=False, qpre=2, nosm=False, noO=False, noS=False, nobar=False, ipf=False, stfl=None, pad=0, lalign=0, s3k=True, s3first=0, s3last=15, nkf=16, npf=7, nost=False, nowo=False, noqf=False, bal=True, qprio=1, balz=4, vz0=2, s3f=4, k2w=4, dbgwg=None):
    NT_ = " nt" if kvnt else ""
    E = Em(); I = E.I
    def stamp(e, k):
        if diag:
            e.I(f"s_memtime s[{sTS+4*k}:{sTS+4*k+1}]"); e.I(f"s_memrealtime s[{sTS+4*k+2}:{sTS+4*k+3}]")
    head = [l for l in open("ref.s.txt").read().split("\n") if l.startswith(";") and "@launch" not in l and "Override" not in l and "grid=ceil" not in l]
    head += [f"; @launch kernel={NAME}_kernel grid=(256,1,1) block=(512,1,1) lds=163840"]
    if not k1only: head += [f"; @launch kernel=reduce_kernel grid=({1792//k2w},1,1) block=({64*k2w},1,1) lds=0"]
    head += ['.amdgcn_target "amdgcn-amd-amdhsa--gfx950"', ".text"]
    E.L += kernel_head(NAME + "_kernel")
    I("s_cmp_ge_u32 s2, 256"); I("s_cbranch_scc1 L_done")
    stamp(E, 0)
    I("s_bfe_u32 s6, s2, 0x10002"); I("s_and_b32 s3, s2, 3"); I("s_lshl_b32 s3, s3, 1"); I("s_bfe_u32 s4, s2, 0x10004"); I("s_add_u32 s3, s3, s4")
    I(f"s_bfe_u32 s{sHH}, s2, 0x10003"); I("s_lshr_b32 s7, s2, 5")
    I("s_lshl_b32 s5, s6, 3"); I("s_add_u32 s5, s5, s7"); I(f"s_mul_i32 s{sA}, s6, 40")
    I(f"s_add_u32 s50, s0, s{sA}"); I("s_addc_u32 s51, s1, 0")
    I(f"s_load_dwordx2 s[{S_X}:{S_X+1}], s[50:51], 0")
    I(f"s_load_dwordx2 s[{S_WQ}:{S_WQ+1}], s[50:51], 24")
    I(f"s_load_dwordx2 s[{S_K}:{S_K+1}], s[50:51], 8")
    I(f"s_load_dwordx2 s[{S_V}:{S_V+1}], s[50:51], 16")
    I(f"s_load_dwordx2 s[{S_WO}:{S_WO+1}], s[50:51], 32")
    I(f"s_load_dwordx2 s[{S_PT}:{S_PT+1}], s[0:1], 96")
    if diag: I("s_load_dwordx2 s[58:59], s[0:1], 96")
    I("v_lshrrev_b32 v1, 6, v0"); I("v_and_b32 v0, 63, v0")
    I(f"v_readfirstlane_b32 s{sWAVE}, v1")
    I(f"s_lshl_b32 s4, s3, 1"); I(f"s_add_u32 s4, s4, s{sHH}")
    I(f"s_bfe_u32 s{sA}, s2, 0x20003"); I(f"s_lshl_b32 s{sA}, s{sA}, 1"); I(f"s_add_u32 s{sROT}, s7, s{sA}")
    I(f"s_cmp_ge_u32 s{sROT}, 7"); I(f"s_cselect_b32 s{sA}, 7, 0"); I(f"s_sub_u32 s{sROT}, s{sROT}, s{sA}")
    I(f"s_and_b32 s{sW4}, s{sWAVE}, 3")
    I(f"s_mul_i32 s{sWLDS}, s{sW4}, {4*PIECE}")
    I(f"s_mov_b32 s{sC}, 0x3db8aa3b"); I(f"s_mov_b32 s{sT}, 0x41000000")
    vXD, vWD, vXA0, vXA1, vQA, t0, t1 = 1, 2, 3, 4, 5, 6, 7
    I(f"v_lshrrev_b32 v{vXD}, 3, v0"); I(f"v_mul_u32_u24 v{vXD}, 896, v{vXD}")
    I(f"v_lshrrev_b32 v{t0}, 4, v0"); I(f"v_lshlrev_b32 v{t0}, 1, v{t0}"); I(f"v_and_b32 v{t1}, 7, v0"); I(f"v_xor_b32 v{t0}, v{t0}, v{t1}")
    I(f"v_lshl_add_u32 v{vXD}, v{t0}, 4, v{vXD}")
    I(f"v_lshrrev_b32 v{t0}, 5, v0"); I(f"v_lshlrev_b32 v{vWD}, 15, v{t0}"); I(f"v_and_b32 v{t0}, 31, v0")
    I(f"v_lshl_add_u32 v{vWD}, v{t0}, 4, v{vWD}")
    I(f"s_lshl_b32 s{sPOFF}, s{sROT}, 19"); I(f"s_lshl_b32 s{sE}, s{sWAVE}, 16")
    I(f"s_lshl_b32 s{sXOFF}, s{sROT}, 7"); I(f"s_mul_i32 s{sB2}, s{sWAVE}, {16*896}")
    I(f"s_lshl_b32 s{sXLDS}, s{sWAVE}, 11")
    I(f"s_lshr_b32 s{sD}, s{sWAVE}, 2"); I(f"s_mul_i32 s{sD}, s{sD}, {SLOT}"); I(f"s_add_u32 s53, s{sD}, s{sWLDS}")
    I("s_waitcnt lgkmcnt(0)")
    if pstamp: stamp(E, 1)
    def srd(r, off_sgpr, size):
        I(f"s_add_u32 s{r}, s{r}, s{off_sgpr}"); I(f"s_addc_u32 s{r+1}, s{r+1}, 0")
        if isinstance(size, int): I(f"s_mov_b32 s{r+2}, {size}")
        else: I(size)
        I(f"s_mov_b32 s{r+3}, 0x20000")
    I(f"s_mul_i32 s{sA}, s7, 100352"); srd(S_X, sA, 100352)
    I(f"s_lshl_b32 s{sA}, s4, 9"); srd(S_WQ, sA, f"s_sub_u32 s{S_WQ+2}, {448*8192}, s{sA}")
    def qfill_ops(e, i):
        if noqf and i >= 3: return []
        xs, wa, wb = QSETS[i % 3]
        assert wb == wa + SLOT
        ops = []
        for j in range(2):
            def f(j=j):
                e.I(f"s_add_u32 s{sD}, s{sXOFF}, s{sB2}")
                if j: e.I(f"s_add_u32 s{sD}, s{sD}, {8*896}")
                e.I(f"s_add_u32 m0, s{sXLDS}, {xs + j*1024}"); e.I("s_nop 0")
                e.vmem(f"buffer_load_dwordx4 v{vXD}, s[{S_X}:{S_X+3}], s{sD} offen lds", ("QF", i))
            ops.append(f)
        for j in range(4):
            def f(j=j):
                e.I(f"s_add_u32 s{sD}, s{sPOFF}, s{sE}")
                if j: e.I(f"s_add_u32 s{sD}, s{sD}, {j*8192}")
                e.I(f"s_add_u32 m0, s53, {wa + j*PIECE}"); e.I("s_nop 0")
                e.vmem(f"buffer_load_dwordx4 v{vWD}, s[{S_WQ}:{S_WQ+3}], s{sD} offen lds", ("QF", i))
                if j == 3:
                    e.I(f"s_add_u32 s{sPOFF}, s{sPOFF}, {1<<19}"); e.I(f"s_add_u32 s{sXOFF}, s{sXOFF}, 128")
                    e.I(f"s_cmp_eq_u32 s{sXOFF}, 896"); e.I(f"s_cselect_b32 s{sPOFF}, 0, s{sPOFF}"); e.I(f"s_cselect_b32 s{sXOFF}, 0, s{sXOFF}")
            ops.append(f)
        return ops
    for _ in range(pad): I("s_nop 0")
    if ipf:
        I("s_getpc_b64 s[56:57]")
        E.lab("L_pc")
        I(f"s_lshl_b32 s{sA}, s{sWAVE}, 13"); I(f"v_lshl_add_u32 v{t0}, v0, 7, s{sA}")
        I(f"s_min_u32 s{sA}, s{sA}, s{sA}")
        I(f"v_min_u32 v{t0}, L_code_end-L_pc-4, v{t0}")
        E.vmem(f"global_load_dword v15, v{t0}, s[56:57]", ("QF", -1))
    for i in range(qpre): E.items(qfill_ops(E, i))
    if pstamp: stamp(E, 2)
    I(f"s_lshl_b32 s{sA}, s7, 3"); I(f"s_add_u32 s{sA}, s{sA}, s3"); I(f"s_lshl_b32 s{sA}, s{sA}, 20")
    srd(S_K, sA, 1 << 20); srd(S_V, sA, 1 << 20)
    I(f"s_mul_i32 s{sA}, s4, {256*896}"); srd(S_WO, sA, 256 * 896)
    I(f"s_lshl_b32 s{sA}, s5, 4"); I(f"s_add_u32 s{sA}, s{sA}, s4"); I(f"s_mul_i32 s{sA}, s{sA}, {PART_HEAD}"); srd(S_PT, sA, PART_HEAD)
    I(f"v_and_b32 v{t0}, 15, v0"); I(f"v_lshlrev_b32 v{vXA0}, 7, v{t0}")
    I(f"v_and_b32 v{t0}, 6, v0"); I(f"v_lshrrev_b32 v{t1}, 4, v0"); I(f"v_xor_b32 v{t0}, v{t0}, v{t1}")
    I(f"v_lshl_add_u32 v{vXA0}, v{t0}, 4, v{vXA0}"); I(f"v_xor_b32 v{vXA1}, 64, v{vXA0}")
    def tr_lane(e, dst, tmp, sh):
        e.I(f"v_lshrrev_b32 v{dst}, 2, v0"); e.I(f"v_mul_u32_u24 v{dst}, {PIECE}, v{dst}")
        e.I(f"v_and_b32 v{tmp}, 3, v0"); e.I(f"v_lshl_add_u32 v{dst}, v{tmp}, {sh}, v{dst}")
    tr_lane(E, vQA, t0, 4)
    I(f"s_lshl_b32 s{sA}, s{sWAVE}, 6"); I(f"v_add_u32 v{vQA}, s{sA}, v{vQA}")
    vDM = 8
    I(f"v_and_b32 v{vDM}, 31, v0"); I(f"v_lshlrev_b32 v{vDM}, 4, v{vDM}")
    I(f"v_lshrrev_b32 v{t0}, 5, v0"); I(f"v_lshl_add_u32 v{vDM}, v{t0}, 13, v{vDM}")
    I(f"s_lshl_b32 s{sKOFF}, s{sW4}, 11"); I(f"s_add_u32 s{sVOFF}, s{sKOFF}, {0 if hot else 16384}"); I(f"s_add_u32 s{sKOFF}, s{sKOFF}, {0 if hot else 32768}")
    I(f"v_lshlrev_b32 v{t0}, 2, v0"); I(f"v_add_u32 v{t0}, {FLG}, v{t0}"); I(f"v_mov_b32 v{t1}, 0")
    E.lds(f"ds_write_b32 v{t0}, v{t1}", ("F",))
    def kv_piece(e, kind, j, i):
        if nodma and j >= 4: return
        ring, srd_, off = (KRING, S_K, sKOFF) if kind == "K" else (VRING, S_V, sVOFF)
        e.I(f"s_add_u32 m0, s{sWLDS}, {slot(ring[j % 4]) + i*(PIECE-512)}")
        e.I("s_nop 0")
        e.vmem(f"buffer_load_dwordx4 v{vDM}, s[{srd_}:{srd_+3}], s{off} offen offset:{i*512}{NT_} lds", (kind, j))
        if i == 3 and not hot: e.I(f"s_add_u32 s{off}, s{off}, 16384")
    QA, QB_, QACC, QP = 16, 32, 96, 152
    def qproj(E, lag):
        I = E.I
        bx0, bx1, bq = Base(E, vXA0), Base(E, vXA1), Base(E, vQA)
        def fin(z):
            ops = [f"v_mul_f32 v{QACC+8*z+n}, s{sC}, v{QACC+8*z+n}" for n in range(8)]
            ops += [f"v_cvt_pk_bf16_f32 v{QP+4*z+n}, v{QACC+8*z+2*n}, v{QACC+8*z+2*n+1}" for n in range(4)]
            def wr():
                off = QBUF[z]
                if off > 60000: I(f"v_add_u32 v{t0}, {off}, v{t0}"); off = 0
                E.lds(f"ds_write_b128 v{t0}, {vr(QP+4*z,4)} offset:{off}", ("QW",))
            return ops + [wr]
        def pair(i, kk, z):
            E.wl(("A", i, kk), ("B", i, kk, z))
            for b in range(2):
                I(mfma(QACC + 8 * z + 4 * b, QA + 8 * kk + 4 * b, QB_ + 28 * kk + 4 * z, 0 if (i == 0 and kk == 0) else None))
        def last_half(i):
            I(f"v_lshlrev_b32 v{t0}, 4, v0"); I(f"s_lshl_b32 s{sA}, s{sWAVE}, 10"); I(f"v_add_u32 v{t0}, s{sA}, v{t0}")
            for z in range(7):
                pair(i, 1, z)
                if z >= 3: E.items(fin(z - 3))
            E.items(fin(4)); E.items(fin(5)); E.items(fin(6))
        if qprio is not None and lag == qprio: I("s_setprio 1")
        for i in range(7):
            E.wv(("QF", i))
            if i == 0 or lag: E.wl0()
            E.bar()
            if i == 0 and not lag: stamp(E, 1)
            xs, wa, wb = QSETS[i % 3]
            bx0.set(xs); bx1.set(xs); bq.set(wa)
            def rda(kk):
                for b in range(2):
                    for u in range(2):
                        E.lds(f"ds_read_b64_tr_b16 {vr(QA+8*kk+4*b+2*u,2)}, v{vQA} offset:{kk*SLOT + u*512 + b*8}", ("A", i, kk))
            def rdb(kk, z):
                E.lds(f"ds_read_b128 {vr(QB_+28*kk+4*z,4)}, v{vXA1 if kk else vXA0} offset:{z*2048}", ("B", i, kk, z))
            fl = []
            if i >= 1 and i + 2 < 7: fl = qfill_ops(E, i + 2)
            if i == 0 and qpre < 3: fl = sum([qfill_ops(E, k) for k in range(qpre, 3)], [])
            if i == 5:
                I(f"s_lshl_b32 s{sE}, s{sWAVE}, 10"); I(f"s_mul_i32 s{sB2}, s{sWAVE}, {2*PIECE}")
                def pre(kind, j, i_):
                    ring, srd_ = (KRING, S_K) if kind == "K" else (VRING, S_V)
                    I(f"s_add_u32 s{sD}, s{sE}, {j*16384}")
                    I(f"s_add_u32 m0, s{sB2}, {slot(ring[j]) + i_*(PIECE-512)}"); I("s_nop 0")
                    E.vmem(f"buffer_load_dwordx4 v{vDM}, s[{srd_}:{srd_+3}], s{sD} offen offset:{i_*512}{NT_} lds", (kind, j))
                fl = [(lambda k=k, j=j, i_=i_: pre(k, j, i_)) for k, j in (("K", 0), ("K", 1), ("V", 0)) for i_ in range(2)]
            fil = spread(14, fl, 0, 9) if fl else [[] for _ in range(14)]
            if not lag:
                rda(0)
                for z in range(5): rdb(0, z)
                order = [(kk, z) for kk in range(2) for z in range(7)]
                for n, (kk, z) in enumerate(order):
                    if i == 6 and kk == 1: break
                    pair(i, kk, z)
                    if n == 0: rda(1)
                    if n + 5 < 14: rdb(*order[n + 5])
                    E.items(fil[n])
                if i == 6:
                    for z in range(5, 7): rdb(1, z)
                    last_half(6)
            else:
                n = 0
                if i > 0:
                    for z in range(7):
                        pair(i - 1, 1, z)
                        if z == 0: rda(0)
                        if z >= 1: rdb(0, z - 1)
                        E.items(fil[n]); n += 1
                    rdb(0, 6)
                else:
                    rda(0)
                    for z in range(7): rdb(0, z)
                rda(1)
                for z in range(7):
                    pair(i, 0, z)
                    rdb(1, z)
                    E.items(fil[n]); n += 1
                for k in range(n, 14): E.items(fil[k])
                if i == 6: last_half(6)
        if qprio is not None and lag == qprio: I("s_setprio 0")
        I(f"s_mov_b32 s{sBLK}, 0")
    I(f"s_cmp_ge_u32 s{sWAVE}, 4"); I("s_cbranch_scc1 L_owave")
    O = E.fork()
    qproj(E, 0)

    kfree = [slot(KRING[(NB - 4 + i) % 4]) for i in range(4)]
    vs = [slot(VRING[(NB - 4 + i) % 4]) for i in range(4)]
    WOSLOT = kfree + [vs[0], TSLOT, vs[1], vs[2], vs[3]]
    WOSLOT += [WOSLOT[i] for i in range(5)]
    OBUF = [vs[2], vs[2] + 8192, vs[3], vs[3] + 8192, vs[1], vs[1] + 8192, SPARE]
    def oproj(e, role, fills_at):
        I = e.I
        vTA, vST, vT, RLR, AF, PK, ACC, BF = 1, 2, 3, 4, 16, 32, 40, 72
        zs = [0, 1, 2, 3] if role == 0 else [4, 5, 6]
        nz = len(zs)
        I(f"v_lshlrev_b32 v{vT}, 4, v0")
        I(f"v_and_b32 v{vST}, 15, v0"); I(f"v_lshlrev_b32 v{vST}, 2, v{vST}"); I(f"v_add_u32 v{vST}, {RL}, v{vST}")
        for a, z in enumerate(zs): e.lds(f"ds_read_b32 v{RLR+a}, v{vST} offset:{z*64}", ("R",))
        tr_lane(e, vTA, vST, 3)
        I(f"s_lshl_b32 s{sA}, s{sW4}, 5"); I(f"v_add_u32 v{vTA}, s{sA}, v{vTA}")
        I(f"s_lshl_b32 s{sA}, s{sWAVE}, 11"); I(f"v_add_u32 v{vST}, s{sA}, v{vT}")
        if role: I(f"v_lshlrev_b32 v8, 3, v0"); I(f"v_add_u32 v8, s{sA}, v8")
        I(f"s_mov_b32 s{sSTRIP}, s{sROT}")
        ba, bb = Base(e, vTA), Base(e, vT)
        seq = [(j, kp) for j in range(7) for kp in range(8)]
        def rd(n):
            j, kp = seq[n]
            ba.set(WOSLOT[2 * j + kp // 4])
            for u in range(2):
                e.lds(f"ds_read_b64_tr_b16 {vr(AF+4*(n%4)+2*u,2)}, v{vTA} offset:{(2*(kp%4)+u)*128}", ("A", n))
        def rdB(kp):
            for a, z in enumerate(zs):
                base = OBUF[z - (z - zs[0]) % 2] if False else OBUF[z]
                lo = min(OBUF[zz] for zz in zs)
                if base - bb.cur < 0 or base - bb.cur + kp * 1024 > 65535: bb.set(base)
                e.lds(f"ds_read_b128 {vr(BF+32*a+4*kp,4)}, v{vT} offset:{base - bb.cur + kp*1024}", ("B", kp, a))
        def fin(j):
            acc = ACC + 16 * (j % 2)
            ops = []
            for a in range(nz):
                ops += [f"v_mul_f32 v{acc+4*a+r}, v{RLR+a}, v{acc+4*a+r}" for r in range(4)]
                ops += [f"v_cvt_pk_bf16_f32 v{PK+2*a+n}, v{acc+4*a+2*n}, v{acc+4*a+2*n+1}" for n in range(2)]
            def st():
                if nost: return
                fl = " nt" if stnt else ""
                if stfl: fl = " " + stfl
                I(f"s_lshl_b32 s{sA}, s{sSTRIP}, 14")
                I(f"s_add_u32 s{sSTRIP}, s{sSTRIP}, 1")
                e.vmem(f"buffer_store_dwordx4 {vr(PK,4)}, v{vST}, s[{S_PT}:{S_PT+3}], s{sA} offen{fl}", ("ST", j))
                if nz == 4: e.vmem(f"buffer_store_dwordx4 {vr(PK+4,4)}, v{vST}, s[{S_PT}:{S_PT+3}], s{sA} offen offset:1024{fl}", ("ST", j))
                else: e.vmem(f"buffer_store_dwordx2 {vr(PK+4,2)}, v8, s[{S_PT}:{S_PT+3}], s{sA} offen offset:1024{fl}", ("ST", j))
                I(f"s_cmp_eq_u32 s{sSTRIP}, 7"); I(f"s_cselect_b32 s{sSTRIP}, 0, s{sSTRIP}")
            ops.append(st)
            return ops
        rd(0); rdB(0); rd(1); rdB(1); rd(2); rd(3)
        for j in range(7):
            fl = fin(j - 1) if j else []
            fil = spread(8 * nz, fl, 2 * nz, 8 * nz - 1) if fl else [[] for _ in range(8 * nz)]
            fl = fills_at(e, ("post", j))
            if fl:
                f2 = spread(8 * nz, fl, 0, min(8 * nz - 1, len(fl) - 1))
                fil = [a + b for a, b in zip(f2, fil)]
            for kp in range(8):
                n = 8 * j + kp
                for a in range(nz):
                    e.wl(("A", n), ("B", kp, a))
                    I(mfma(ACC + 16 * (j % 2) + 4 * a, AF + 4 * (n % 4), BF + 32 * a + 4 * kp, 0 if kp == 0 else None))
                    if a == nz - 1:
                        if j == 0 and kp + 2 < 8: rdB(kp + 2)
                        if n + 4 < len(seq): rd(n + 4)
                    e.items(fil[kp * nz + a])
            if j < 6:
                fills_at(e, ("pre", j + 1))
                e.bar()
        I("s_nop 7")
        e.wl(("R",))
        e.items(fin(6))

    LOOP0, LOOPN = 5, 61
    rare_s = []
    if pstamp:
        stamp0 = stamp
        stamp = lambda e, k: (stamp0(e, k) if k == 8 else None)
    def swave(S, NZ, tag):
        I = S.I
        vKA, vPW, vAW, vL, vT0, vT1, vT2 = 1, 2, 3, 6, 9, 11, 13
        Q0, SA, SB, PO, EX, NM, KF = 16, 80, 96, 112, 120, 136, 144
        NKF = nkf
        I(f"v_lshlrev_b32 v{vPW}, 4, v0")
        if NZ == 2:
            I(f"s_mul_i32 s{sA}, s{sW4}, {SLOT}"); I(f"v_add_u32 v{vT0}, s{sA}, v{vPW}")
        else:
            I(f"v_add_u32 v{vT0}, {QBUF[6]}, v{vPW}")
        I(f"v_and_b32 v{vKA}, 15, v0"); I(f"v_mul_u32_u24 v{vKA}, {PIECE}, v{vKA}")
        I(f"v_lshrrev_b32 v{vT1}, 4, v0"); I(f"v_lshl_add_u32 v{vKA}, v{vT1}, 4, v{vKA}")
        I(f"s_lshl_b32 s{sA}, s{sW4}, 11"); I(f"v_add_u32 v{vPW}, s{sA}, v{vPW}")
        I(f"v_and_b32 v{vAW}, 15, v0"); I(f"v_lshlrev_b32 v{vAW}, 2, v{vAW}")
        I(f"s_lshl_b32 s{sA}, s{sW4}, 7"); I(f"s_add_u32 s{sA}, s{sA}, {ALPHA}"); I(f"v_add_u32 v{vAW}, s{sA}, v{vAW}")
        for a in range(NZ):
            I(f"v_mov_b32 v{vL+a}, 0")
            for r in range(4): I(f"v_mov_b32 v{NM+4*a+r}, 0")
        I(f"s_mov_b32 s{sT}, 0x40004000")
        if NZ == 1: I(f"s_mov_b32 s{sKOFF}, {0 if hot else 32768}")
        if prio == "S": I("s_setprio 1")
        S.wl0(); S.wv(("K", 0), ("K", 1))
        S.bar()
        stamp(S, 2)
        bk = Base(S, vKA)
        def rdk(p, n):
            bk.set(slot(KRING[p % 4]))
            S.lds(f"ds_read_b128 {vr(KF+4*(n%NKF),4)}, v{vKA} offset:{(n%2)*512 + (n//2)*64}", ("K", p, n))
        nv = 8 * NZ
        def exp_cvt(sp):
            ops = []
            for k in range(nv + 3):
                if k < nv: ops.append(f"v_exp_f32 v{EX+k}, v{sp+k}")
                if k >= 3 and k % 2 == 1: ops.append(f"v_cvt_pk_bf16_f32 v{PO+(k-3)//2}, v{EX+k-3}, v{EX+k-2}")
            return ops
        def rare_body(kind):
            sub = []
            par = int(kind[1])
            first = kind[0] == "f"
            sp, cur = (SA, SB) if par == 0 else (SB, SA)
            sub.append(f"L_rare_s{tag}_{kind}:")
            for a in range(NZ):
                b = sp + 8 * a
                sub.append(f"v_max3_f32 v{vT0+a}, v{b}, v{b+1}, v{b+2}")
                sub.append(f"v_max3_f32 v{vT0+a}, v{vT0+a}, v{b+3}, v{b+4}")
                sub.append(f"v_max3_f32 v{vT0+a}, v{vT0+a}, v{b+5}, v{b+6}")
                sub.append(f"v_max_f32 v{vT0+a}, v{vT0+a}, v{b+7}")
            for sw in ("v_permlane16_swap_b32", "v_permlane32_swap_b32"):
                for a in range(NZ): sub.append(f"v_mov_b32 v{vT1+a}, v{vT0+a}")
                sub.append("s_nop 1")
                for a in range(NZ): sub.append(f"{sw} v{vT0+a}, v{vT1+a}")
                for a in range(NZ): sub.append(f"v_max_f32 v{vT0+a}, v{vT0+a}, v{vT1+a}")
            for a in range(NZ):
                sub.append(f"v_sub_f32 v{vT0+a}, 0xc0e00000, v{vT0+a}")
                if not first:
                    sub.append(f"v_min_f32 v{vT0+a}, 0, v{vT0+a}")
                    sub.append(f"v_exp_f32 v{vT1+a}, v{vT0+a}")
                for r in range(4): sub.append(f"v_add_f32 v{NM+4*a+r}, v{NM+4*a+r}, v{vT0+a}")
                for r in range(8): sub.append(f"v_add_f32 v{sp+8*a+r}, v{sp+8*a+r}, v{vT0+a}")
                if kind[0] != "n":
                    for r in range(8): sub.append(f"v_add_f32 v{cur+8*a+r}, v{cur+8*a+r}, v{vT0+a}")
                if not first:
                    sub.append(f"v_mul_f32 v{vL+a}, v{vL+a}, v{vT1+a}")
                    sub.append(f"ds_write_b32 v{vAW}, v{vT1+a} offset:{par*448 + a*64}")
            sub += exp_cvt(sp)
            if not first:
                sub.append(f"s_lshl_b32 s{sA}, s{sW4}, 3"); sub.append(f"s_add_u32 s{sA}, s{sA}, {FLG + par*128}")
                sub.append(f"v_mov_b32 v{vT0}, s{sA}"); sub.append(f"v_mov_b32 v{vT2}, s{sBLK}")
                for a in range(NZ): sub.append(f"ds_write_b32 v{vT0}, v{vT2} offset:{4*a}")
            sub.append("s_waitcnt lgkmcnt(0)")
            sub.append(f"s_setpc_b64 s[{sRET}:{sRET+1}]")
            return sub
        def softmax_ops(p):
            sp = SB if p % 2 == 0 else SA
            par = (p - 1) % 2
            ops = exp_cvt(sp)
            ops.append(f"v_or3_b32 v{vT0}, v{PO}, v{PO+1}, v{PO+2}")
            nhead = None
            if NZ == 2:
                ops.append(f"v_or3_b32 v{vT1}, v{PO+3}, v{PO+4}, v{PO+5}")
                ops.append(f"v_or3_b32 v{vT0}, v{vT0}, v{PO+6}, v{PO+7}")
                ops.append(f"v_or_b32 v{vT0}, v{vT0}, v{vT1}")
            else:
                ops.append(f"v_or_b32 v{vT0}, v{vT0}, v{PO+3}")
            ops.append(f"v_and_b32 v{vT0}, s{sT}, v{vT0}")
            kind = ("q" if p < NB else "n") + str(par)
            def check():
                I(f"s_add_u32 s{sBLK}, s{sBLK}, 1")
                if p == 1:
                    for l in rare_body("f0")[1:-2]: I(l)
                else:
                    I(f"v_cmp_ne_u32 vcc, 0, v{vT0}")
                    I(f"s_cbranch_vccnz L_stub_s{tag}_{p}")
                    S.lab(f"L_back_s{tag}_{p}")
                    rare_s.append((tag, p, kind))
            if p == 1: ops = []
            ops.append(check)
            for a in range(NZ):
                ops.append(lambda a=a: S.lds(f"ds_write_b128 v{vPW}, {vr(PO+4*a,4)} offset:{par*7168 + a*1024}", ("P", a)))
            for k in range(nv): ops.append(f"v_add_f32 v{vL+(k%NZ)}, v{vL+(k%NZ)}, v{EX+8*(k%NZ)+k//NZ}")
            if nosm: return [o for o in ops if callable(o)][1:]
            return ops
        def k_piece(j, k):
            if nodma and j >= 4: return
            if k == 8: I(f"s_add_u32 s{sKOFF}, s{sKOFF}, 4096")
            I(f"s_mov_b32 m0, {slot(KRING[j % 4]) + k*PIECE - (k%8)*512}")
            I("s_nop 0")
            S.vmem(f"buffer_load_dwordx4 v{vDM}, s[{S_K}:{S_K+3}], s{sKOFF} offen offset:{(k%8)*512}{NT_} lds", ("K", j))
            if k == 15: I(f"s_add_u32 s{sKOFF}, s{sKOFF}, {-4096 & 0xffffffff if hot else 12288}")
        loader = s3k and NZ == 1
        def s_phase(p):
            cur = SA if p % 2 == 0 else SB
            do_qk, do_sm = p < NB, p >= 1
            sm = softmax_ops(p) if do_sm else []
            kf = []
            if loader:
                for j in ([2, 3] if p == 0 else [p + 3]):
                    if j < NB: kf += [(lambda j=j, k=k: k_piece(j, k)) for k in range(16)]
            if do_qk:
                if p == 0:
                    for a in range(NZ):
                        for ks in range(2): S.lds(f"ds_read_b128 {vr(Q0+32*a+4*ks,4)}, v{vT0} offset:{a*8192 + ks*1024}", ("Q", a, ks))
                if p in (0, 2):
                    for n in range(NKF - 2): rdk(p, n)
                if p == 0:
                    for ks in range(2, 8):
                        for a in range(NZ): S.lds(f"ds_read_b128 {vr(Q0+32*a+4*ks,4)}, v{vT0} offset:{a*8192 + ks*1024}", ("Q", a, ks))
                ng = 16 * NZ
                f0, f1 = (sfirst, slast) if NZ == 2 else (s3f, 15)
                fil = spread(ng, sm, f0, f1) if sm else [[] for _ in range(ng)]
                if kf: fil = [a + b for a, b in zip(spread(ng, kf, s3first, s3last), fil)]
                for n in range(16):
                    ks, y = n // 2, n % 2
                    for a in range(NZ):
                        if y == 0: S.wl(("K", p, n), ("K", p, n + 1), ("Q", a, ks))
                        if not noS:
                            if ks == 0: I(f"v_mfma_f32_16x16x32_bf16 {vr(cur+8*a+4*y,4)}, {vr(KF+4*(n%NKF),4)}, {vr(Q0+32*a,4)}, {vr(NM+4*a,4)}")
                            else: I(mfma(cur + 8 * a + 4 * y, KF + 4 * (n % NKF), Q0 + 32 * a + 4 * ks))
                        if a == NZ - 1:
                            m = n + NKF - 2
                            if m < 16: rdk(p, m)
                            elif p + 1 < NB and p != 1: rdk(p + 1, m - 16)
                        S.items(fil[n * NZ + a])
                S.wl(("P", 0), ("P", 1))
                if p == 0: S.wv(("V", 0))
                if loader and p >= 1: S.wv(("K", p + 2), ("K", p + 1))
                if p + 1 >= NB: I("s_nop 7")
            else:
                S.items(sm)
                for sw in ("v_permlane16_swap_b32", "v_permlane32_swap_b32"):
                    for a in range(NZ): I(f"v_mov_b32 v{vT0+a}, v{vL+a}")
                    I("s_nop 1")
                    for a in range(NZ): I(f"{sw} v{vL+a}, v{vT0+a}")
                    for a in range(NZ): I(f"v_add_f32 v{vL+a}, v{vL+a}, v{vT0+a}")
                for a in range(NZ): I(f"v_rcp_f32 v{vL+a}, v{vL+a}")
                I("s_nop 0")
                for a in range(NZ): S.lds(f"ds_write_b32 v{vAW}, v{vL+a} offset:{RL-ALPHA + a*64}", ("P", 2))
                S.wl0()
            S.bar()
        for p in range(0, LOOP0): s_phase(p)
        stamp(S, 3)
        I(f"s_mov_b32 s{sCNT}, {(LOOPN-LOOP0)//4}")
        if lalign: S.L.append(f".p2align {lalign}")
        S.lab(f"L_sloop{tag}")
        st = (list(S.lg), bk.cur, S.nbar)
        stv = list(S.vm)
        for p in range(LOOP0, LOOP0 + 4): s_phase(p)
        assert [(t[0], t[1] - 4) for t in S.vm] == stv
        S.vm = [(t[0], t[1] + LOOPN - LOOP0 - 4) for t in S.vm]
        assert [(t[0], t[1] - 4, t[2]) for t in S.lg] == st[0] and bk.cur == st[1], (S.lg, st)
        I(f"s_sub_u32 s{sCNT}, s{sCNT}, 1"); I(f"s_cmp_lg_u32 s{sCNT}, 0"); I(f"s_cbranch_scc1 L_sloop{tag}")
        stamp(S, 4)
        S.lg = [(t[0], LOOPN, t[2]) for t in S.lg]
        S.nbar = st[2] + (LOOPN - LOOP0)
        for p in range(LOOPN, NB + 1): s_phase(p)
        stamp(S, 5)
        sub = []
        for kind in ("q0", "q1") + (("n1",) if NB % 2 == 0 else ("n0",)): sub += rare_body(kind)
        return sub
    I(f"s_cmp_eq_u32 s{sWAVE}, 3"); I("s_cbranch_scc1 L_swave3")
    S3 = E.fork()
    subs = swave(E, 2, "a")
    I("s_branch L_sjoin")
    S3.lab("L_swave3")
    subs += swave(S3, 1, "b")
    assert S3.nbar == E.nbar
    E.lab("L_sjoin")
    S = E
    S.bar()
    stamp(S, 6)
    oproj(S, 0, lambda e, st: [])
    stamp(S, 7)
    nbarS = S.nbar
    if diag:
        I(f"s_cmp_lg_u32 s{sWAVE}, 0"); I("s_cbranch_scc1 L_done")
        I("s_waitcnt vmcnt(0)")
        stamp(S, 8)
        I("s_waitcnt lgkmcnt(0)")
        I("s_mov_b64 exec, 1")
        if dbgwg is not None:
            I(f"s_cmp_lg_u32 s2, {dbgwg}"); I("s_cbranch_scc1 L_done")
            I("s_load_dwordx2 s[58:59], s[0:1], 88"); I("s_waitcnt lgkmcnt(0)"); I("v_mov_b32 v1, 0")
            for k in range(8):
                I(f"s_sub_u32 s{sA}, s{sTS+4*k+4}, s{sTS+4*k}"); I(f"v_mov_b32 v4, s{sA}")
                I(f"s_sub_u32 s{sA}, s{sTS+4*k+6}, s{sTS+4*k+2}"); I(f"v_mov_b32 v5, s{sA}")
                I(f"global_store_dword v1, v4, s[58:59] offset:{4*k}"); I(f"global_store_dword v1, v5, s[58:59] offset:{32+4*k}")
            I("s_endpgm")
        I(f"s_lshl_b32 s{sA}, s2, 7"); I(f"s_add_u32 s{sA}, s{sA}, {64<<20}"); I(f"v_mov_b32 v1, s{sA}")
        for k in range(9):
            I(f"v_mov_b32 v4, s{sTS+4*k}"); I(f"v_mov_b32 v5, s{sTS+4*k+2}")
            I(f"global_store_dwordx2 v1, v[4:5], s[58:59] offset:{8*k}")
            I("s_nop 1")
    I("s_endpgm")

    I = O.I
    O.lab("L_owave")
    qproj(O, 1)
    vVA, vPA, vWX, vFA, vF = 1, 2, 9, 4, 5
    VF, OA, OX, PF = 12, 68, 180, 228
    tr_lane(O, vVA, 6, 3)
    I(f"v_lshlrev_b32 v{vPA}, 4, v0")
    I(f"v_and_b32 v{vFA}, 7, v0"); I(f"v_lshlrev_b32 v{vFA}, 2, v{vFA}"); I(f"v_add_u32 v{vFA}, {FLG}, v{vFA}")
    I(f"v_lshrrev_b32 v{vWX}, 3, v0"); I(f"v_mul_u32_u24 v{vWX}, {16*896}, v{vWX}")
    I(f"v_and_b32 v6, 7, v0"); I(f"v_lshl_add_u32 v{vWX}, v6, 4, v{vWX}")
    I(f"s_mul_i32 s{sA}, s{sW4}, {4*896}"); I(f"v_add_u32 v{vWX}, s{sA}, v{vWX}")
    I(f"s_lshl_b32 s{sPOFF}, s{sROT}, 7")
    def wo_piece(f, i, O=None):
        O = O or Ocur[0]
        if nowo and f >= 6: return
        O.I(f"s_add_u32 s{sD}, s{sPOFF}, {((f%2)*128 + i)*896}")
        O.I(f"s_add_u32 m0, s{sWLDS}, {WOSLOT[f] + i*PIECE}")
        O.I("s_nop 0")
        O.vmem(f"buffer_load_dwordx4 v{vWX}, s[{S_WO}:{S_WO+3}], s{sD} offen lds", ("WO", f))
        if i == 3 and f % 2 == 1:
            O.I(f"s_add_u32 s{sPOFF}, s{sPOFF}, 128"); O.I(f"s_cmp_eq_u32 s{sPOFF}, 896"); O.I(f"s_cselect_b32 s{sPOFF}, 0, s{sPOFF}")
    Ocur = [O]
    O.wl0()
    for r in range(OA, OA + 112 + 48): I(f"v_mov_b32 v{r}, 0")
    if prio == "O": I("s_setprio 1")
    O.wv(("K", 0), ("K", 1))
    rare_o = []; osubs = []
    def owave(O, tag):
        I = O.I
        big = bal and tag == "b"
        nsl = 7 if big else 4
        voff = [384 + 32 * sl for sl in range(4)] + [128 * e + 96 for e in range(3)] if big else [32 * sl for sl in range(4)]
        def units(z):
            if not bal: return [0, 1, 2, 3]
            if big: return [0, 1, 2, 3] + ([4, 5, 6] if z >= balz else [])
            return [0, 1, 2] + ([3] if z < balz else [])
        acc = lambda z, sl: OA + 16 * z + 4 * sl if sl < 4 else OX + 12 * (z - 3) + 4 * (sl - 4)
        if not big: I(f"s_lshl_b32 s{sA}, s{sW4}, 7"); I(f"v_add_u32 v{vVA}, s{sA}, v{vVA}")
        O.bar()
        bv = Base(O, vVA)
        def rdv1(j, k):
            sl, y = k // 2, k % 2
            bv.set(slot(VRING[j % 4]))
            O.lds(f"ds_read_b64_tr_b16 {vr(VF+28*(j%2)+4*sl+2*y,2)}, v{vVA} offset:{y*512 + voff[sl]}", ("V", j, sl))
        def rdv(j):
            for k in range(2 * nsl): rdv1(j, k)
        bo, b2 = Base(O, 6), Base(O, 7)
        def pack(z):
            us = units(z)
            ops = [f"v_cvt_pk_bf16_f32 v{acc(z,sl&~1 if sl < 4 else sl)+2*(sl&1 if sl < 4 else 0)+n}, v{acc(z,sl)+2*n}, v{acc(z,sl)+2*n+1}" for sl in us for n in range(2)]
            def wr():
                if not (0 <= OBUF[z] - bo.cur < 57000):
                    bo.set(OBUF[z])
                    if big: b2.set(OBUF[z])
                O.lds(f"ds_write_b128 v6, {vr(acc(z,0),4)} offset:{OBUF[z]-bo.cur}", ("W",))
                if 3 in us: O.lds(f"ds_write_b128 v6, {vr(acc(z,2),4)} offset:{OBUF[z]-bo.cur + 1024}", ("W",))
                else: O.lds(f"ds_write_b64 v6, {vr(acc(z,2),2)} offset:{OBUF[z]-bo.cur + 1024}", ("W",))
                for sl in us:
                    if sl >= 4: O.lds(f"ds_write_b64 v7, {vr(acc(z,sl),2)} offset:{OBUF[z]-b2.cur + (2*(sl-4)+1)*1024 + 8}", ("W",))
            return ops + [wr]
        def o_phase(p):
            j = p - 2
            pieces = []
            def kv(kind, jj): return [(lambda i=i: kv_piece(O, kind, jj, i)) for i in range(4)]
            if p == 0 and not s3k: pieces += kv("K", 2)
            if p + 1 < NB: pieces += kv("V", p + 1)
            if p + 3 < NB:
                if not s3k: pieces += kv("K", p + 3)
            else:
                for f in {NB - 3: [0], NB - 2: [1], NB - 1: [2], NB: [3, 4], NB + 1: []}[p]:
                    pieces += [(lambda i=i, f=f: wo_piece(f, i, O)) for i in range(4)]
            if j < 0:
                O.items(pieces)
                if p == 1: rdv(0)
            else:
                par = j % 2
                def rdp(z): O.lds(f"ds_read_b128 {vr(PF+4*(z%npf),4)}, v{vPA} offset:{par*7168 + z*1024}", ("P", z))
                O.lds(f"ds_read_b32 v{vF}, v{vFA} offset:{par*128}", ("F",))
                for z in range(npf): rdp(z)
                I(f"s_add_u32 s{sBLK}, s{sBLK}, 1")
                fil = spread(8, pieces, dmafirst, dmalast) if pieces else [[] for _ in range(8)]
                O.items(fil[0])
                O.wl(("F",))
                I(f"v_cmp_eq_u32 vcc, s{sBLK}, v{vF}")
                I(f"s_cbranch_vccnz L_stub_o{tag}{p}")
                O.lab(f"L_back_o{tag}{p}")
                rare_o.append((tag, p, par))
                kv_ = 0
                if p == NB + 1:
                    I(f"s_lshl_b32 s{sA}, s{sW4}, 11"); I(f"v_add_u32 v6, s{sA}, v{vPA}"); I(f"v_mov_b32 v7, v{vPA}")
                for z in range(7):
                    if p == NB + 1 and z >= 2: O.items(pack(z - 2)) if z > 2 else None
                    for sl in units(z):
                        O.wl(("P", z), ("V", j, sl))
                        if not noO: I(mfma(acc(z, sl), VF + 28 * (j % 2) + 4 * sl, PF + 4 * (z % npf)))
                        if z >= vz0 and j + 1 < NB and kv_ < 2 * nsl: rdv1(j + 1, kv_); kv_ += 1
                    if p == NB + 1 and z == 2: O.items(pack(0))
                    if z + npf < 7: rdp(z + npf)
                    O.items(fil[z + 1])
            if p <= NB:
                if p == 0: O.wv(("V", 0))
                else: O.wv(("K", p + 2), ("V", p), ("K", p + 1))
                if p == NB: O.wl0()
                O.bar()
        for p in range(0, LOOP0): o_phase(p)
        I(f"s_mov_b32 s{sCNT}, {(LOOPN-LOOP0)//4}")
        O.lab(f"L_oloop{tag}")
        st = (list(O.lg), list(O.vm), bv.cur, O.nbar)
        for p in range(LOOP0, LOOP0 + 4): o_phase(p)
        sh = lambda q, d: [(t[0], t[1] + d) + tuple(t[2:]) for t in q]
        assert sh(O.lg, -4) == st[0] and sh(O.vm, -4) == st[1] and bv.cur == st[2], (O.lg, O.vm, st)
        I(f"s_sub_u32 s{sCNT}, s{sCNT}, 1"); I(f"s_cmp_lg_u32 s{sCNT}, 0"); I(f"s_cbranch_scc1 L_oloop{tag}")
        d = LOOPN - LOOP0 - 4
        O.lg = sh(O.lg, d); O.vm = sh(O.vm, d); O.nbar = st[3] + (LOOPN - LOOP0)
        for p in range(LOOPN, NB + 2): o_phase(p)
        for z in range(5, 7): O.items(pack(z))
        O.wv(("WO", 0), ("WO", 1), ("WO", 2))
        O.wl0()
        for par in range(2):
            osubs.append(f"L_rare_o{tag}_{par}:")
            osubs.append("s_nop 7"); osubs.append(f"s_mov_b32 s{sA}, vcc_lo")
            osubs.extend([f"v_and_b32 v6, 15, v0", f"v_lshlrev_b32 v6, 2, v6", f"v_add_u32 v6, {ALPHA + par*448}, v6"])
            for z in range(7):
                osubs.extend([f"s_bitcmp1_b32 s{sA}, {z}", f"s_cbranch_scc0 L_rare_o{tag}_{par}_{z}", f"ds_read_b32 v{vF}, v6 offset:{z*64}", "s_waitcnt lgkmcnt(0)"])
                for sl in units(z):
                    osubs.extend([f"v_mul_f32 v{acc(z,sl)+r}, v{vF}, v{acc(z,sl)+r}" for r in range(4)])
                osubs.append(f"L_rare_o{tag}_{par}_{z}:")
            osubs.append("s_nop 1"); osubs.append(f"s_setpc_b64 s[{sRET}:{sRET+1}]")
    if bal:
        I(f"s_cmp_eq_u32 s{sWAVE}, 7"); I("s_cbranch_scc1 L_owave7")
        O7 = O.fork()
        owave(O, "a")
        I("s_branch L_ojoin")
        O7.lab("L_owave7")
        owave(O7, "b")
        assert O7.nbar == O.nbar and O7.vm == O.vm and O7.lg == O.lg
        O.lab("L_ojoin")
    else:
        owave(O, "a")
    O.bar()
    def fills_at(e, st):
        when, j = st
        if when == "pre":
            e.wv(*[("WO", f) for f in range(min(14, 2 * j + 3))])
            return []
        fl = {0: [5], 1: [6, 7, 8, 9, 10], 2: [11, 12], 3: [13]}.get(j, [])
        return [(lambda f=f, i=i: wo_piece(f, i)) for f in fl for i in range(4)]
    oproj(O, 1, fills_at)
    assert O.nbar == nbarS, (O.nbar, nbarS)
    O.lab("L_done"); I("s_endpgm")
    for tag, site, kind in rare_s:
        O.lab(f"L_stub_s{tag}_{site}"); I(f"s_call_b64 s[{sRET}:{sRET+1}], L_rare_s{tag}_{kind}"); I(f"s_branch L_back_s{tag}_{site}")
    for l in subs: (O.lab(l[:-1]) if l.endswith(":") else I(l))
    for tag, site, par in rare_o:
        O.lab(f"L_stub_o{tag}{site}"); I(f"s_call_b64 s[{sRET}:{sRET+1}], L_rare_o{tag}_{par}"); I(f"s_branch L_back_o{tag}{site}")
    for l in osubs: (O.lab(l[:-1]) if l.endswith(":") else I(l))

    E.lab("L_code_end")
    R = Em(E.L); I = R.I
    R.L += kernel_head("reduce_kernel")
    I(f"s_cmp_ge_u32 s2, {1792//k2w}"); I("s_cbranch_scc1 L_rdone")
    I("s_load_dwordx2 s[8:9], s[0:1], 96"); I("s_load_dwordx2 s[12:13], s[0:1], 80")
    I("v_lshrrev_b32 v1, 6, v0"); I("v_and_b32 v0, 63, v0"); I("v_readfirstlane_b32 s3, v1")
    I(f"s_mul_i32 s4, s2, {k2w}"); I("s_add_u32 s4, s4, s3")
    I(f"s_mov_b32 s5, {(2**32 + 111)//112}"); I("s_mul_hi_u32 s5, s4, s5")
    I("s_mul_i32 s6, s5, 112"); I("s_sub_u32 s6, s4, s6")
    I(f"s_mul_i32 s17, s5, {16*PART_HEAD}"); I("s_lshl_b32 s18, s6, 10"); I("s_add_u32 s17, s17, s18")
    I("s_and_b32 s25, s6, 9"); I("s_cmp_eq_u32 s25, 9"); I("s_cselect_b32 s25, 3, 4")
    I("v_lshlrev_b32 v2, s25, v0")
    I("s_waitcnt lgkmcnt(0)")
    I("s_add_u32 s8, s8, s17"); I("s_addc_u32 s9, s9, 0"); I(f"s_mov_b32 s10, {15*PART_HEAD + 1024}"); I("s_mov_b32 s11, 0x20000")
    I(f"s_mov_b32 s14, {8*112*896*2}"); I("s_mov_b32 s15, 0x20000")
    I("s_mov_b32 s19, 0")
    for h in range(16):
        I(f"buffer_load_dwordx4 {vr(8+4*h,4)}, v2, s[8:11], s19 offen")
        if h < 15: I(f"s_add_u32 s19, s19, {PART_HEAD}")
    I("s_bfe_u32 s20, s6, 0x10003"); I("s_lshl_b32 s20, s20, 1"); I("s_and_b32 s21, s6, 1"); I("s_add_u32 s20, s20, s21")
    I("s_and_b32 s22, s5, 7"); I("s_mul_i32 s22, s22, 112"); I("s_lshl_b32 s23, s20, 5"); I("s_add_u32 s22, s22, s23")
    I("v_and_b32 v3, 15, v0"); I("v_add_u32 v3, s22, v3"); I("v_mul_u32_u24 v3, 1792, v3")
    I("s_lshr_b32 s22, s5, 3"); I("s_mul_i32 s22, s22, 896"); I("s_lshr_b32 s23, s6, 4"); I("s_lshl_b32 s23, s23, 7"); I("s_add_u32 s22, s22, s23")
    I("s_bfe_u32 s23, s6, 0x20001"); I("s_lshl_b32 s23, s23, 5"); I("s_add_u32 s22, s22, s23")
    I("v_lshrrev_b32 v4, 4, v0"); I("v_lshl_add_u32 v3, v4, 3, v3"); I("v_add_u32 v3, s22, v3")
    I(f"s_mov_b32 s24, {16*1792}")
    for h in range(16):
        I(f"s_waitcnt vmcnt({15-h})")
        for d_ in range(4):
            src = 8 + 4 * h + d_
            if h == 0:
                I(f"v_lshlrev_b32 v{72+2*d_}, 16, v{src}"); I(f"v_and_b32 v{73+2*d_}, 0xffff0000, v{src}")
            else:
                I(f"v_lshlrev_b32 v5, 16, v{src}"); I(f"v_and_b32 v6, 0xffff0000, v{src}")
                I(f"v_add_f32 v{72+2*d_}, v{72+2*d_}, v5"); I(f"v_add_f32 v{73+2*d_}, v{73+2*d_}, v6")
    for d_ in range(4): I(f"v_cvt_pk_bf16_f32 v{8+d_}, v{72+2*d_}, v{73+2*d_}")
    I("buffer_store_dwordx2 v[8:9], v3, s[12:15], 0 offen")
    I("s_cmp_eq_u32 s20, 3"); I("s_cbranch_scc1 L_rdone")
    I("buffer_store_dwordx2 v[10:11], v3, s[12:15], s24 offen")
    R.lab("L_rdone"); I("s_endpgm")
    tail = ['.section .rodata,"a"'] + kd(NAME + "_kernel") + kd("reduce_kernel", vgpr=80, sgpr=32, accum=80)
    return "\n".join(head + E.L + tail) + "\n"

if __name__ == "__main__":
    kw = eval("dict(%s)" % (sys.argv[2] if len(sys.argv) > 2 else ""))
    open(sys.argv[1], "w").write(gen(**kw))
```

```python
import sys
from asmlib import *

NB = 64
PIECE = 1056
SLOT = 16 * PIECE
TSLOT = 0
def slot(i): return SLOT * (i + 1)
SPARE = slot(8)
FLG = SPARE + 8192
ALPHA = FLG + 256
RL = ALPHA + 1024
QSETS = [[slot(5), slot(6), slot(7)], [slot(2), slot(3), slot(4)], [TSLOT, slot(0), slot(1)]]
QBUF = [TSLOT, TSLOT + 8192, slot(0), slot(0) + 8192, slot(1), slot(1) + 8192, SPARE]
KRING = [2, 3, 5, 7]
VRING = [4, 6, 0, 1]
PART_HEAD = 114688

S_X, S_WQ, S_K, S_V, S_WO, S_PT = 8, 12, 16, 20, 24, 28
sWAVE, sW4, sROT, sWLDS, sKOFF, sVOFF, sCNT, sBLK, sC, sT = 32, 33, 34, 35, 36, 37, 38, 39, 40, 41
sA, sB2, sD, sE, sHH, sPOFF, sSTRIP, sXOFF, sXLDS = 42, 43, 44, 45, 46, 47, 48, 49, 52
sRET = 54
sTS = 60

class Em:
    def __init__(self, L=None):
        self.L = [] if L is None else L; self.lg = []; self.vm = []; self.nbar = 0
    def fork(self):
        e = Em(self.L); e.lg = list(self.lg); e.vm = list(self.vm); e.nbar = self.nbar; return e
    def I(self, s): self.L.append("    " + s)
    def lab(self, s): self.L.append(s + ":")
    def lds(self, s, tag): self.I(s); self.lg.append(tag)
    def vmem(self, s, tag): self.I(s); self.vm.append(tag)
    def _need(self, q, tags):
        idx = [i for i, t in enumerate(q) if t in tags]
        return None if not idx else max(idx)
    def wl(self, *tags):
        i = self._need(self.lg, tags)
        if i is None: return
        n = min(len(self.lg) - i - 1, 15)
        self.I(f"s_waitcnt lgkmcnt({n})"); self.lg = self.lg[len(self.lg) - n:] if n else []
    def wv(self, *tags):
        i = self._need(self.vm, tags)
        if i is None: return
        n = min(len(self.vm) - i - 1, 63)
        self.I(f"s_waitcnt vmcnt({n})"); self.vm = self.vm[len(self.vm) - n:] if n else []
    def wl0(self):
        if self.lg: self.I("s_waitcnt lgkmcnt(0)")
        self.lg = []
    def bar(self): self.I("s_barrier"); self.nbar += 1
    def items(self, its):
        for f in its:
            if callable(f): f()
            else: self.I(f)

class Base:
    def __init__(self, e, reg, cur=0): self.e, self.reg, self.cur = e, reg, cur
    def set(self, b):
        d = b - self.cur
        if d: self.e.I(f"v_add_u32 v{self.reg}, {d & 0xffffffff}, v{self.reg}")
        self.cur = b

def vr(a, n): return f"v[{a}:{a+n-1}]"
def mfma(d, a, b, c=None):
    return f"v_mfma_f32_16x16x32_bf16 {vr(d,4)}, {vr(a,4)}, {vr(b,4)}, " + ("0" if c == 0 else vr(d, 4))
def spread(nslots, fillers, first=0, last=None):
    last = nslots - 1 if last is None else last
    out = [[] for _ in range(nslots)]
    n = last - first + 1
    for i, f in enumerate(fillers): out[first + (i * n) // len(fillers)].append(f)
    return out

def gen(diag=False, kvnt=True, stnt=False, hot=False, nodma=False, prio="S", sfirst=8, slast=28, dmafirst=0, dmalast=3, k1only=False, pstamp=False, qpre=2, nosm=False, noO=False, noS=False, nobar=False, ipf=False, stfl=None, pad=0, lalign=0, s3k=True, s3first=0, s3last=15, nkf=16, npf=7, nost=False, nowo=False, noqf=False, bal=True, qprio=1, balz=4, vz0=2, s3f=4, k2w=4, dbgwg=None):
    NT_ = " nt" if kvnt else ""
    E = Em(); I = E.I
    def stamp(e, k):
        if diag:
            e.I(f"s_memtime s[{sTS+4*k}:{sTS+4*k+1}]"); e.I(f"s_memrealtime s[{sTS+4*k+2}:{sTS+4*k+3}]")
    head = [l for l in open("ref.s.txt").read().split("\n") if l.startswith(";") and "@launch" not in l and "Override" not in l and "grid=ceil" not in l]
    head += [f"; @launch kernel={NAME}_kernel grid=(256,1,1) block=(512,1,1) lds=163840"]
    if not k1only: head += [f"; @launch kernel=reduce_kernel grid=({1792//k2w},1,1) block=({64*k2w},1,1) lds=0"]
    head += ['.amdgcn_target "amdgcn-amd-amdhsa--gfx950"', ".text"]
    E.L += kernel_head(NAME + "_kernel")
    I("s_cmp_ge_u32 s2, 256"); I("s_cbranch_scc1 L_done")
    stamp(E, 0)
    I("s_bfe_u32 s6, s2, 0x10002"); I("s_and_b32 s3, s2, 3"); I("s_lshl_b32 s3, s3, 1"); I("s_bfe_u32 s4, s2, 0x10004"); I("s_add_u32 s3, s3, s4")
    I(f"s_bfe_u32 s{sHH}, s2, 0x10003"); I("s_lshr_b32 s7, s2, 5")
    I("s_lshl_b32 s5, s6, 3"); I("s_add_u32 s5, s5, s7"); I(f"s_mul_i32 s{sA}, s6, 40")
    I(f"s_add_u32 s50, s0, s{sA}"); I("s_addc_u32 s51, s1, 0")
    I(f"s_load_dwordx2 s[{S_X}:{S_X+1}], s[50:51], 0")
    I(f"s_load_dwordx2 s[{S_WQ}:{S_WQ+1}], s[50:51], 24")
    I(f"s_load_dwordx2 s[{S_K}:{S_K+1}], s[50:51], 8")
    I(f"s_load_dwordx2 s[{S_V}:{S_V+1}], s[50:51], 16")
    I(f"s_load_dwordx2 s[{S_WO}:{S_WO+1}], s[50:51], 32")
    I(f"s_load_dwordx2 s[{S_PT}:{S_PT+1}], s[0:1], 96")
    if diag: I("s_load_dwordx2 s[58:59], s[0:1], 96")
    I("v_lshrrev_b32 v1, 6, v0"); I("v_and_b32 v0, 63, v0")
    I(f"v_readfirstlane_b32 s{sWAVE}, v1")
    I(f"s_lshl_b32 s4, s3, 1"); I(f"s_add_u32 s4, s4, s{sHH}")
    I(f"s_bfe_u32 s{sA}, s2, 0x20003"); I(f"s_lshl_b32 s{sA}, s{sA}, 1"); I(f"s_add_u32 s{sROT}, s7, s{sA}")
    I(f"s_cmp_ge_u32 s{sROT}, 7"); I(f"s_cselect_b32 s{sA}, 7, 0"); I(f"s_sub_u32 s{sROT}, s{sROT}, s{sA}")
    I(f"s_and_b32 s{sW4}, s{sWAVE}, 3")
    I(f"s_mul_i32 s{sWLDS}, s{sW4}, {4*PIECE}")
    I(f"s_mov_b32 s{sC}, 0x3db8aa3b"); I(f"s_mov_b32 s{sT}, 0x41000000")
    vXD, vWD, vXA0, vXA1, vQA, t0, t1 = 1, 2, 3, 4, 5, 6, 7
    I(f"v_lshrrev_b32 v{vXD}, 3, v0"); I(f"v_mul_u32_u24 v{vXD}, 896, v{vXD}")
    I(f"v_lshrrev_b32 v{t0}, 4, v0"); I(f"v_lshlrev_b32 v{t0}, 1, v{t0}"); I(f"v_and_b32 v{t1}, 7, v0"); I(f"v_xor_b32 v{t0}, v{t0}, v{t1}")
    I(f"v_lshl_add_u32 v{vXD}, v{t0}, 4, v{vXD}")
    I(f"v_lshrrev_b32 v{t0}, 5, v0"); I(f"v_lshlrev_b32 v{vWD}, 15, v{t0}"); I(f"v_and_b32 v{t0}, 31, v0")
    I(f"v_lshl_add_u32 v{vWD}, v{t0}, 4, v{vWD}")
    I(f"s_lshl_b32 s{sPOFF}, s{sROT}, 19"); I(f"s_lshl_b32 s{sE}, s{sWAVE}, 16")
    I(f"s_lshl_b32 s{sXOFF}, s{sROT}, 7"); I(f"s_mul_i32 s{sB2}, s{sWAVE}, {16*896}")
    I(f"s_lshl_b32 s{sXLDS}, s{sWAVE}, 11")
    I(f"s_lshr_b32 s{sD}, s{sWAVE}, 2"); I(f"s_mul_i32 s{sD}, s{sD}, {SLOT}"); I(f"s_add_u32 s53, s{sD}, s{sWLDS}")
    I("s_waitcnt lgkmcnt(0)")
    if pstamp: stamp(E, 1)
    def srd(r, off_sgpr, size):
        I(f"s_add_u32 s{r}, s{r}, s{off_sgpr}"); I(f"s_addc_u32 s{r+1}, s{r+1}, 0")
        if isinstance(size, int): I(f"s_mov_b32 s{r+2}, {size}")
        else: I(size)
        I(f"s_mov_b32 s{r+3}, 0x20000")
    I(f"s_mul_i32 s{sA}, s7, 100352"); srd(S_X, sA, 100352)
    I(f"s_lshl_b32 s{sA}, s4, 9"); srd(S_WQ, sA, f"s_sub_u32 s{S_WQ+2}, {448*8192}, s{sA}")
    def qfill_ops(e, i):
        if noqf and i >= 3: return []
        xs, wa, wb = QSETS[i % 3]
        assert wb == wa + SLOT
        ops = []
        for j in range(2):
            def f(j=j):
                e.I(f"s_add_u32 s{sD}, s{sXOFF}, s{sB2}")
                if j: e.I(f"s_add_u32 s{sD}, s{sD}, {8*896}")
                e.I(f"s_add_u32 m0, s{sXLDS}, {xs + j*1024}"); e.I("s_nop 0")
                e.vmem(f"buffer_load_dwordx4 v{vXD}, s[{S_X}:{S_X+3}], s{sD} offen lds", ("QF", i))
            ops.append(f)
        for j in range(4):
            def f(j=j):
                e.I(f"s_add_u32 s{sD}, s{sPOFF}, s{sE}")
                if j: e.I(f"s_add_u32 s{sD}, s{sD}, {j*8192}")
                e.I(f"s_add_u32 m0, s53, {wa + j*PIECE}"); e.I("s_nop 0")
                e.vmem(f"buffer_load_dwordx4 v{vWD}, s[{S_WQ}:{S_WQ+3}], s{sD} offen lds", ("QF", i))
                if j == 3:
                    e.I(f"s_add_u32 s{sPOFF}, s{sPOFF}, {1<<19}"); e.I(f"s_add_u32 s{sXOFF}, s{sXOFF}, 128")
                    e.I(f"s_cmp_eq_u32 s{sXOFF}, 896"); e.I(f"s_cselect_b32 s{sPOFF}, 0, s{sPOFF}"); e.I(f"s_cselect_b32 s{sXOFF}, 0, s{sXOFF}")
            ops.append(f)
        return ops
    for _ in range(pad): I("s_nop 0")
    if ipf:
        I("s_getpc_b64 s[56:57]")
        E.lab("L_pc")
        I(f"s_lshl_b32 s{sA}, s{sWAVE}, 13"); I(f"v_lshl_add_u32 v{t0}, v0, 7, s{sA}")
        I(f"s_min_u32 s{sA}, s{sA}, s{sA}")
        I(f"v_min_u32 v{t0}, L_code_end-L_pc-4, v{t0}")
        E.vmem(f"global_load_dword v15, v{t0}, s[56:57]", ("QF", -1))
    for i in range(qpre): E.items(qfill_ops(E, i))
    if pstamp: stamp(E, 2)
    I(f"s_lshl_b32 s{sA}, s7, 3"); I(f"s_add_u32 s{sA}, s{sA}, s3"); I(f"s_lshl_b32 s{sA}, s{sA}, 20")
    srd(S_K, sA, 1 << 20); srd(S_V, sA, 1 << 20)
    I(f"s_mul_i32 s{sA}, s4, {256*896}"); srd(S_WO, sA, 256 * 896)
    I(f"s_lshl_b32 s{sA}, s5, 4"); I(f"s_add_u32 s{sA}, s{sA}, s4"); I(f"s_mul_i32 s{sA}, s{sA}, {PART_HEAD}"); srd(S_PT, sA, PART_HEAD)
    I(f"v_and_b32 v{t0}, 15, v0"); I(f"v_lshlrev_b32 v{vXA0}, 7, v{t0}")
    I(f"v_and_b32 v{t0}, 6, v0"); I(f"v_lshrrev_b32 v{t1}, 4, v0"); I(f"v_xor_b32 v{t0}, v{t0}, v{t1}")
    I(f"v_lshl_add_u32 v{vXA0}, v{t0}, 4, v{vXA0}"); I(f"v_xor_b32 v{vXA1}, 64, v{vXA0}")
    def tr_lane(e, dst, tmp, sh):
        e.I(f"v_lshrrev_b32 v{dst}, 2, v0"); e.I(f"v_mul_u32_u24 v{dst}, {PIECE}, v{dst}")
        e.I(f"v_and_b32 v{tmp}, 3, v0"); e.I(f"v_lshl_add_u32 v{dst}, v{tmp}, {sh}, v{dst}")
    tr_lane(E, vQA, t0, 4)
    I(f"s_lshl_b32 s{sA}, s{sWAVE}, 6"); I(f"v_add_u32 v{vQA}, s{sA}, v{vQA}")
    vDM = 8
    I(f"v_and_b32 v{vDM}, 31, v0"); I(f"v_lshlrev_b32 v{vDM}, 4, v{vDM}")
    I(f"v_lshrrev_b32 v{t0}, 5, v0"); I(f"v_lshl_add_u32 v{vDM}, v{t0}, 13, v{vDM}")
    I(f"s_lshl_b32 s{sKOFF}, s{sW4}, 11"); I(f"s_add_u32 s{sVOFF}, s{sKOFF}, {0 if hot else 16384}"); I(f"s_add_u32 s{sKOFF}, s{sKOFF}, {0 if hot else 32768}")
    I(f"v_lshlrev_b32 v{t0}, 2, v0"); I(f"v_add_u32 v{t0}, {FLG}, v{t0}"); I(f"v_mov_b32 v{t1}, 0")
    E.lds(f"ds_write_b32 v{t0}, v{t1}", ("F",))
    def kv_piece(e, kind, j, i):
        if nodma and j >= 4: return
        ring, srd_, off = (KRING, S_K, sKOFF) if kind == "K" else (VRING, S_V, sVOFF)
        e.I(f"s_add_u32 m0, s{sWLDS}, {slot(ring[j % 4]) + i*(PIECE-512)}")
        e.I("s_nop 0")
        e.vmem(f"buffer_load_dwordx4 v{vDM}, s[{srd_}:{srd_+3}], s{off} offen offset:{i*512}{NT_} lds", (kind, j))
        if i == 3 and not hot: e.I(f"s_add_u32 s{off}, s{off}, 16384")
    QA, QB_, QACC, QP = 16, 32, 96, 152
    def qproj(E, lag):
        I = E.I
        bx0, bx1, bq = Base(E, vXA0), Base(E, vXA1), Base(E, vQA)
        def fin(z):
            ops = [f"v_mul_f32 v{QACC+8*z+n}, s{sC}, v{QACC+8*z+n}" for n in range(8)]
            ops += [f"v_cvt_pk_bf16_f32 v{QP+4*z+n}, v{QACC+8*z+2*n}, v{QACC+8*z+2*n+1}" for n in range(4)]
            def wr():
                off = QBUF[z]
                if off > 60000: I(f"v_add_u32 v{t0}, {off}, v{t0}"); off = 0
                E.lds(f"ds_write_b128 v{t0}, {vr(QP+4*z,4)} offset:{off}", ("QW",))
            return ops + [wr]
        def pair(i, kk, z):
            E.wl(("A", i, kk), ("B", i, kk, z))
            for b in range(2):
                I(mfma(QACC + 8 * z + 4 * b, QA + 8 * kk + 4 * b, QB_ + 28 * kk + 4 * z, 0 if (i == 0 and kk == 0) else None))
        def last_half(i):
            I(f"v_lshlrev_b32 v{t0}, 4, v0"); I(f"s_lshl_b32 s{sA}, s{sWAVE}, 10"); I(f"v_add_u32 v{t0}, s{sA}, v{t0}")
            for z in range(7):
                pair(i, 1, z)
                if z >= 3: E.items(fin(z - 3))
            E.items(fin(4)); E.items(fin(5)); E.items(fin(6))
        if qprio is not None and lag == qprio: I("s_setprio 1")
        for i in range(7):
            E.wv(("QF", i))
            if i == 0 or lag: E.wl0()
            E.bar()
            if i == 0 and not lag: stamp(E, 1)
            xs, wa, wb = QSETS[i % 3]
            bx0.set(xs); bx1.set(xs); bq.set(wa)
            def rda(kk):
                for b in range(2):
                    for u in range(2):
                        E.lds(f"ds_read_b64_tr_b16 {vr(QA+8*kk+4*b+2*u,2)}, v{vQA} offset:{kk*SLOT + u*512 + b*8}", ("A", i, kk))
            def rdb(kk, z):
                E.lds(f"ds_read_b128 {vr(QB_+28*kk+4*z,4)}, v{vXA1 if kk else vXA0} offset:{z*2048}", ("B", i, kk, z))
            fl = []
            if i >= 1 and i + 2 < 7: fl = qfill_ops(E, i + 2)
            if i == 0 and qpre < 3: fl = sum([qfill_ops(E, k) for k in range(qpre, 3)], [])
            if i == 5:
                I(f"s_lshl_b32 s{sE}, s{sWAVE}, 10"); I(f"s_mul_i32 s{sB2}, s{sWAVE}, {2*PIECE}")
                def pre(kind, j, i_):
                    ring, srd_ = (KRING, S_K) if kind == "K" else (VRING, S_V)
                    I(f"s_add_u32 s{sD}, s{sE}, {j*16384}")
                    I(f"s_add_u32 m0, s{sB2}, {slot(ring[j]) + i_*(PIECE-512)}"); I("s_nop 0")
                    E.vmem(f"buffer_load_dwordx4 v{vDM}, s[{srd_}:{srd_+3}], s{sD} offen offset:{i_*512}{NT_} lds", (kind, j))
                fl = [(lambda k=k, j=j, i_=i_: pre(k, j, i_)) for k, j in (("K", 0), ("K", 1), ("V", 0)) for i_ in range(2)]
            fil = spread(14, fl, 0, 9) if fl else [[] for _ in range(14)]
            if not lag:
                rda(0)
                for z in range(5): rdb(0, z)
                order = [(kk, z) for kk in range(2) for z in range(7)]
                for n, (kk, z) in enumerate(order):
                    if i == 6 and kk == 1: break
                    pair(i, kk, z)
                    if n == 0: rda(1)
                    if n + 5 < 14: rdb(*order[n + 5])
                    E.items(fil[n])
                if i == 6:
                    for z in range(5, 7): rdb(1, z)
                    last_half(6)
            else:
                n = 0
                if i > 0:
                    for z in range(7):
                        pair(i - 1, 1, z)
                        if z == 0: rda(0)
                        if z >= 1: rdb(0, z - 1)
                        E.items(fil[n]); n += 1
                    rdb(0, 6)
                else:
                    rda(0)
                    for z in range(7): rdb(0, z)
                rda(1)
                for z in range(7):
                    pair(i, 0, z)
                    rdb(1, z)
                    E.items(fil[n]); n += 1
                for k in range(n, 14): E.items(fil[k])
                if i == 6: last_half(6)
        if qprio is not None and lag == qprio: I("s_setprio 0")
        I(f"s_mov_b32 s{sBLK}, 0")
    I(f"s_cmp_ge_u32 s{sWAVE}, 4"); I("s_cbranch_scc1 L_owave")
    O = E.fork()
    qproj(E, 0)

    kfree = [slot(KRING[(NB - 4 + i) % 4]) for i in range(4)]
    vs = [slot(VRING[(NB - 4 + i) % 4]) for i in range(4)]
    WOSLOT = kfree + [vs[0], TSLOT, vs[1], vs[2], vs[3]]
    WOSLOT += [WOSLOT[i] for i in range(5)]
    OBUF = [vs[2], vs[2] + 8192, vs[3], vs[3] + 8192, vs[1], vs[1] + 8192, SPARE]
    def oproj(e, role, fills_at):
        I = e.I
        vTA, vST, vT, RLR, AF, PK, ACC, BF = 1, 2, 3, 4, 16, 32, 40, 72
        zs = [0, 1, 2, 3] if role == 0 else [4, 5, 6]
        nz = len(zs)
        I(f"v_lshlrev_b32 v{vT}, 4, v0")
        I(f"v_and_b32 v{vST}, 15, v0"); I(f"v_lshlrev_b32 v{vST}, 2, v{vST}"); I(f"v_add_u32 v{vST}, {RL}, v{vST}")
        for a, z in enumerate(zs): e.lds(f"ds_read_b32 v{RLR+a}, v{vST} offset:{z*64}", ("R",))
        tr_lane(e, vTA, vST, 3)
        I(f"s_lshl_b32 s{sA}, s{sW4}, 5"); I(f"v_add_u32 v{vTA}, s{sA}, v{vTA}")
        I(f"s_lshl_b32 s{sA}, s{sWAVE}, 11"); I(f"v_add_u32 v{vST}, s{sA}, v{vT}")
        if role: I(f"v_lshlrev_b32 v8, 3, v0"); I(f"v_add_u32 v8, s{sA}, v8")
        I(f"s_mov_b32 s{sSTRIP}, s{sROT}")
        ba, bb = Base(e, vTA), Base(e, vT)
        seq = [(j, kp) for j in range(7) for kp in range(8)]
        def rd(n):
            j, kp = seq[n]
            ba.set(WOSLOT[2 * j + kp // 4])
            for u in range(2):
                e.lds(f"ds_read_b64_tr_b16 {vr(AF+4*(n%4)+2*u,2)}, v{vTA} offset:{(2*(kp%4)+u)*128}", ("A", n))
        def rdB(kp):
            for a, z in enumerate(zs):
                base = OBUF[z - (z - zs[0]) % 2] if False else OBUF[z]
                lo = min(OBUF[zz] for zz in zs)
                if base - bb.cur < 0 or base - bb.cur + kp * 1024 > 65535: bb.set(base)
                e.lds(f"ds_read_b128 {vr(BF+32*a+4*kp,4)}, v{vT} offset:{base - bb.cur + kp*1024}", ("B", kp, a))
        def fin(j):
            acc = ACC + 16 * (j % 2)
            ops = []
            for a in range(nz):
                ops += [f"v_mul_f32 v{acc+4*a+r}, v{RLR+a}, v{acc+4*a+r}" for r in range(4)]
                ops += [f"v_cvt_pk_bf16_f32 v{PK+2*a+n}, v{acc+4*a+2*n}, v{acc+4*a+2*n+1}" for n in range(2)]
            def st():
                if nost: return
                fl = " nt" if stnt else ""
                if stfl: fl = " " + stfl
                I(f"s_lshl_b32 s{sA}, s{sSTRIP}, 14")
                I(f"s_add_u32 s{sSTRIP}, s{sSTRIP}, 1")
                e.vmem(f"buffer_store_dwordx4 {vr(PK,4)}, v{vST}, s[{S_PT}:{S_PT+3}], s{sA} offen{fl}", ("ST", j))
                if nz == 4: e.vmem(f"buffer_store_dwordx4 {vr(PK+4,4)}, v{vST}, s[{S_PT}:{S_PT+3}], s{sA} offen offset:1024{fl}", ("ST", j))
                else: e.vmem(f"buffer_store_dwordx2 {vr(PK+4,2)}, v8, s[{S_PT}:{S_PT+3}], s{sA} offen offset:1024{fl}", ("ST", j))
                I(f"s_cmp_eq_u32 s{sSTRIP}, 7"); I(f"s_cselect_b32 s{sSTRIP}, 0, s{sSTRIP}")
            ops.append(st)
            return ops
        rd(0); rdB(0); rd(1); rdB(1); rd(2); rd(3)
        for j in range(7):
            fl = fin(j - 1) if j else []
            fil = spread(8 * nz, fl, 2 * nz, 8 * nz - 1) if fl else [[] for _ in range(8 * nz)]
            fl = fills_at(e, ("post", j))
            if fl:
                f2 = spread(8 * nz, fl, 0, min(8 * nz - 1, len(fl) - 1))
                fil = [a + b for a, b in zip(f2, fil)]
            for kp in range(8):
                n = 8 * j + kp
                for a in range(nz):
                    e.wl(("A", n), ("B", kp, a))
                    I(mfma(ACC + 16 * (j % 2) + 4 * a, AF + 4 * (n % 4), BF + 32 * a + 4 * kp, 0 if kp == 0 else None))
                    if a == nz - 1:
                        if j == 0 and kp + 2 < 8: rdB(kp + 2)
                        if n + 4 < len(seq): rd(n + 4)
                    e.items(fil[kp * nz + a])
            if j < 6:
                fills_at(e, ("pre", j + 1))
                e.bar()
        I("s_nop 7")
        e.wl(("R",))
        e.items(fin(6))

    LOOP0, LOOPN = 5, 61
    rare_s = []
    if pstamp:
        stamp0 = stamp
        stamp = lambda e, k: (stamp0(e, k) if k == 8 else None)
    def swave(S, NZ, tag):
        I = S.I
        vKA, vPW, vAW, vL, vT0, vT1, vT2 = 1, 2, 3, 6, 9, 11, 13
        Q0, SA, SB, PO, EX, NM, KF = 16, 80, 96, 112, 120, 136, 144
        NKF = nkf
        I(f"v_lshlrev_b32 v{vPW}, 4, v0")
        if NZ == 2:
            I(f"s_mul_i32 s{sA}, s{sW4}, {SLOT}"); I(f"v_add_u32 v{vT0}, s{sA}, v{vPW}")
        else:
            I(f"v_add_u32 v{vT0}, {QBUF[6]}, v{vPW}")
        I(f"v_and_b32 v{vKA}, 15, v0"); I(f"v_mul_u32_u24 v{vKA}, {PIECE}, v{vKA}")
        I(f"v_lshrrev_b32 v{vT1}, 4, v0"); I(f"v_lshl_add_u32 v{vKA}, v{vT1}, 4, v{vKA}")
        I(f"s_lshl_b32 s{sA}, s{sW4}, 11"); I(f"v_add_u32 v{vPW}, s{sA}, v{vPW}")
        I(f"v_and_b32 v{vAW}, 15, v0"); I(f"v_lshlrev_b32 v{vAW}, 2, v{vAW}")
        I(f"s_lshl_b32 s{sA}, s{sW4}, 7"); I(f"s_add_u32 s{sA}, s{sA}, {ALPHA}"); I(f"v_add_u32 v{vAW}, s{sA}, v{vAW}")
        for a in range(NZ):
            I(f"v_mov_b32 v{vL+a}, 0")
            for r in range(4): I(f"v_mov_b32 v{NM+4*a+r}, 0")
        I(f"s_mov_b32 s{sT}, 0x40004000")
        if NZ == 1: I(f"s_mov_b32 s{sKOFF}, {0 if hot else 32768}")
        if prio == "S": I("s_setprio 1")
        S.wl0(); S.wv(("K", 0), ("K", 1))
        S.bar()
        stamp(S, 2)
        bk = Base(S, vKA)
        def rdk(p, n):
            bk.set(slot(KRING[p % 4]))
            S.lds(f"ds_read_b128 {vr(KF+4*(n%NKF),4)}, v{vKA} offset:{(n%2)*512 + (n//2)*64}", ("K", p, n))
        nv = 8 * NZ
        def exp_cvt(sp):
            ops = []
            for k in range(nv + 3):
                if k < nv: ops.append(f"v_exp_f32 v{EX+k}, v{sp+k}")
                if k >= 3 and k % 2 == 1: ops.append(f"v_cvt_pk_bf16_f32 v{PO+(k-3)//2}, v{EX+k-3}, v{EX+k-2}")
            return ops
        def rare_body(kind):
            sub = []
            par = int(kind[1])
            first = kind[0] == "f"
            sp, cur = (SA, SB) if par == 0 else (SB, SA)
            sub.append(f"L_rare_s{tag}_{kind}:")
            for a in range(NZ):
                b = sp + 8 * a
                sub.append(f"v_max3_f32 v{vT0+a}, v{b}, v{b+1}, v{b+2}")
                sub.append(f"v_max3_f32 v{vT0+a}, v{vT0+a}, v{b+3}, v{b+4}")
                sub.append(f"v_max3_f32 v{vT0+a}, v{vT0+a}, v{b+5}, v{b+6}")
                sub.append(f"v_max_f32 v{vT0+a}, v{vT0+a}, v{b+7}")
            for sw in ("v_permlane16_swap_b32", "v_permlane32_swap_b32"):
                for a in range(NZ): sub.append(f"v_mov_b32 v{vT1+a}, v{vT0+a}")
                sub.append("s_nop 1")
                for a in range(NZ): sub.append(f"{sw} v{vT0+a}, v{vT1+a}")
                for a in range(NZ): sub.append(f"v_max_f32 v{vT0+a}, v{vT0+a}, v{vT1+a}")
            for a in range(NZ):
                sub.append(f"v_sub_f32 v{vT0+a}, 0xc0e00000, v{vT0+a}")
                if not first:
                    sub.append(f"v_min_f32 v{vT0+a}, 0, v{vT0+a}")
                    sub.append(f"v_exp_f32 v{vT1+a}, v{vT0+a}")
                for r in range(4): sub.append(f"v_add_f32 v{NM+4*a+r}, v{NM+4*a+r}, v{vT0+a}")
                for r in range(8): sub.append(f"v_add_f32 v{sp+8*a+r}, v{sp+8*a+r}, v{vT0+a}")
                if kind[0] != "n":
                    for r in range(8): sub.append(f"v_add_f32 v{cur+8*a+r}, v{cur+8*a+r}, v{vT0+a}")
                if not first:
                    sub.append(f"v_mul_f32 v{vL+a}, v{vL+a}, v{vT1+a}")
                    sub.append(f"ds_write_b32 v{vAW}, v{vT1+a} offset:{par*448 + a*64}")
            sub += exp_cvt(sp)
            if not first:
                sub.append(f"s_lshl_b32 s{sA}, s{sW4}, 3"); sub.append(f"s_add_u32 s{sA}, s{sA}, {FLG + par*128}")
                sub.append(f"v_mov_b32 v{vT0}, s{sA}"); sub.append(f"v_mov_b32 v{vT2}, s{sBLK}")
                for a in range(NZ): sub.append(f"ds_write_b32 v{vT0}, v{vT2} offset:{4*a}")
            sub.append("s_waitcnt lgkmcnt(0)")
            sub.append(f"s_setpc_b64 s[{sRET}:{sRET+1}]")
            return sub
        def softmax_ops(p):
            sp = SB if p % 2 == 0 else SA
            par = (p - 1) % 2
            ops = exp_cvt(sp)
            ops.append(f"v_or3_b32 v{vT0}, v{PO}, v{PO+1}, v{PO+2}")
            nhead = None
            if NZ == 2:
                ops.append(f"v_or3_b32 v{vT1}, v{PO+3}, v{PO+4}, v{PO+5}")
                ops.append(f"v_or3_b32 v{vT0}, v{vT0}, v{PO+6}, v{PO+7}")
                ops.append(f"v_or_b32 v{vT0}, v{vT0}, v{vT1}")
            else:
                ops.append(f"v_or_b32 v{vT0}, v{vT0}, v{PO+3}")
            ops.append(f"v_and_b32 v{vT0}, s{sT}, v{vT0}")
            kind = ("q" if p < NB else "n") + str(par)
            def check():
                I(f"s_add_u32 s{sBLK}, s{sBLK}, 1")
                if p == 1:
                    for l in rare_body("f0")[1:-2]: I(l)
                else:
                    I(f"v_cmp_ne_u32 vcc, 0, v{vT0}")
                    I(f"s_cbranch_vccnz L_stub_s{tag}_{p}")
                    S.lab(f"L_back_s{tag}_{p}")
                    rare_s.append((tag, p, kind))
            if p == 1: ops = []
            ops.append(check)
            for a in range(NZ):
                ops.append(lambda a=a: S.lds(f"ds_write_b128 v{vPW}, {vr(PO+4*a,4)} offset:{par*7168 + a*1024}", ("P", a)))
            for k in range(nv): ops.append(f"v_add_f32 v{vL+(k%NZ)}, v{vL+(k%NZ)}, v{EX+8*(k%NZ)+k//NZ}")
            if nosm: return [o for o in ops if callable(o)][1:]
            return ops
        def k_piece(j, k):
            if nodma and j >= 4: return
            if k == 8: I(f"s_add_u32 s{sKOFF}, s{sKOFF}, 4096")
            I(f"s_mov_b32 m0, {slot(KRING[j % 4]) + k*PIECE - (k%8)*512}")
            I("s_nop 0")
            S.vmem(f"buffer_load_dwordx4 v{vDM}, s[{S_K}:{S_K+3}], s{sKOFF} offen offset:{(k%8)*512}{NT_} lds", ("K", j))
            if k == 15: I(f"s_add_u32 s{sKOFF}, s{sKOFF}, {-4096 & 0xffffffff if hot else 12288}")
        loader = s3k and NZ == 1
        def s_phase(p):
            cur = SA if p % 2 == 0 else SB
            do_qk, do_sm = p < NB, p >= 1
            sm = softmax_ops(p) if do_sm else []
            kf = []
            if loader:
                for j in ([2, 3] if p == 0 else [p + 3]):
                    if j < NB: kf += [(lambda j=j, k=k: k_piece(j, k)) for k in range(16)]
            if do_qk:
                if p == 0:
                    for a in range(NZ):
                        for ks in range(2): S.lds(f"ds_read_b128 {vr(Q0+32*a+4*ks,4)}, v{vT0} offset:{a*8192 + ks*1024}", ("Q", a, ks))
                if p in (0, 2):
                    for n in range(NKF - 2): rdk(p, n)
                if p == 0:
                    for ks in range(2, 8):
                        for a in range(NZ): S.lds(f"ds_read_b128 {vr(Q0+32*a+4*ks,4)}, v{vT0} offset:{a*8192 + ks*1024}", ("Q", a, ks))
                ng = 16 * NZ
                f0, f1 = (sfirst, slast) if NZ == 2 else (s3f, 15)
                fil = spread(ng, sm, f0, f1) if sm else [[] for _ in range(ng)]
                if kf: fil = [a + b for a, b in zip(spread(ng, kf, s3first, s3last), fil)]
                for n in range(16):
                    ks, y = n // 2, n % 2
                    for a in range(NZ):
                        if y == 0: S.wl(("K", p, n), ("K", p, n + 1), ("Q", a, ks))
                        if not noS:
                            if ks == 0: I(f"v_mfma_f32_16x16x32_bf16 {vr(cur+8*a+4*y,4)}, {vr(KF+4*(n%NKF),4)}, {vr(Q0+32*a,4)}, {vr(NM+4*a,4)}")
                            else: I(mfma(cur + 8 * a + 4 * y, KF + 4 * (n % NKF), Q0 + 32 * a + 4 * ks))
                        if a == NZ - 1:
                            m = n + NKF - 2
                            if m < 16: rdk(p, m)
                            elif p + 1 < NB and p != 1: rdk(p + 1, m - 16)
                        S.items(fil[n * NZ + a])
                S.wl(("P", 0), ("P", 1))
                if p == 0: S.wv(("V", 0))
                if loader and p >= 1: S.wv(("K", p + 2), ("K", p + 1))
                if p + 1 >= NB: I("s_nop 7")
            else:
                S.items(sm)
                for sw in ("v_permlane16_swap_b32", "v_permlane32_swap_b32"):
                    for a in range(NZ): I(f"v_mov_b32 v{vT0+a}, v{vL+a}")
                    I("s_nop 1")
                    for a in range(NZ): I(f"{sw} v{vL+a}, v{vT0+a}")
                    for a in range(NZ): I(f"v_add_f32 v{vL+a}, v{vL+a}, v{vT0+a}")
                for a in range(NZ): I(f"v_rcp_f32 v{vL+a}, v{vL+a}")
                I("s_nop 0")
                for a in range(NZ): S.lds(f"ds_write_b32 v{vAW}, v{vL+a} offset:{RL-ALPHA + a*64}", ("P", 2))
                S.wl0()
            S.bar()
        for p in range(0, LOOP0): s_phase(p)
        stamp(S, 3)
        I(f"s_mov_b32 s{sCNT}, {(LOOPN-LOOP0)//4}")
        if lalign: S.L.append(f".p2align {lalign}")
        S.lab(f"L_sloop{tag}")
        st = (list(S.lg), bk.cur, S.nbar)
        stv = list(S.vm)
        for p in range(LOOP0, LOOP0 + 4): s_phase(p)
        assert [(t[0], t[1] - 4) for t in S.vm] == stv
        S.vm = [(t[0], t[1] + LOOPN - LOOP0 - 4) for t in S.vm]
        assert [(t[0], t[1] - 4, t[2]) for t in S.lg] == st[0] and bk.cur == st[1], (S.lg, st)
        I(f"s_sub_u32 s{sCNT}, s{sCNT}, 1"); I(f"s_cmp_lg_u32 s{sCNT}, 0"); I(f"s_cbranch_scc1 L_sloop{tag}")
        stamp(S, 4)
        S.lg = [(t[0], LOOPN, t[2]) for t in S.lg]
        S.nbar = st[2] + (LOOPN - LOOP0)
        for p in range(LOOPN, NB + 1): s_phase(p)
        stamp(S, 5)
        sub = []
        for kind in ("q0", "q1") + (("n1",) if NB % 2 == 0 else ("n0",)): sub += rare_body(kind)
        return sub
    I(f"s_cmp_eq_u32 s{sWAVE}, 3"); I("s_cbranch_scc1 L_swave3")
    S3 = E.fork()
    subs = swave(E, 2, "a")
    I("s_branch L_sjoin")
    S3.lab("L_swave3")
    subs += swave(S3, 1, "b")
    assert S3.nbar == E.nbar
    E.lab("L_sjoin")
    S = E
    S.bar()
    stamp(S, 6)
    oproj(S, 0, lambda e, st: [])
    stamp(S, 7)
    nbarS = S.nbar
    if diag:
        I(f"s_cmp_lg_u32 s{sWAVE}, 0"); I("s_cbranch_scc1 L_done")
        I("s_waitcnt vmcnt(0)")
        stamp(S, 8)
        I("s_waitcnt lgkmcnt(0)")
        I("s_mov_b64 exec, 1")
        if dbgwg is not None:
            I(f"s_cmp_lg_u32 s2, {dbgwg}"); I("s_cbranch_scc1 L_done")
            I(f"v_mov_b32 v1, {128<<20}")
            for k in range(8):
                I(f"s_sub_u32 s{sA}, s{sTS+4*k+4}, s{sTS+4*k}"); I(f"v_mov_b32 v4, s{sA}")
                I(f"s_sub_u32 s{sA}, s{sTS+4*k+6}, s{sTS+4*k+2}"); I(f"v_mov_b32 v5, s{sA}")
                I(f"global_store_dword v1, v4, s[58:59] offset:{4*k}"); I(f"global_store_dword v1, v5, s[58:59] offset:{32+4*k}")
            I("s_endpgm")
        I(f"s_lshl_b32 s{sA}, s2, 7"); I(f"s_add_u32 s{sA}, s{sA}, {64<<20}"); I(f"v_mov_b32 v1, s{sA}")
        for k in range(9):
            I(f"v_mov_b32 v4, s{sTS+4*k}"); I(f"v_mov_b32 v5, s{sTS+4*k+2}")
            I(f"global_store_dwordx2 v1, v[4:5], s[58:59] offset:{8*k}")
            I("s_nop 1")
    I("s_endpgm")

    I = O.I
    O.lab("L_owave")
    qproj(O, 1)
    vVA, vPA, vWX, vFA, vF = 1, 2, 9, 4, 5
    VF, OA, OX, PF = 12, 68, 180, 228
    tr_lane(O, vVA, 6, 3)
    I(f"v_lshlrev_b32 v{vPA}, 4, v0")
    I(f"v_and_b32 v{vFA}, 7, v0"); I(f"v_lshlrev_b32 v{vFA}, 2, v{vFA}"); I(f"v_add_u32 v{vFA}, {FLG}, v{vFA}")
    I(f"v_lshrrev_b32 v{vWX}, 3, v0"); I(f"v_mul_u32_u24 v{vWX}, {16*896}, v{vWX}")
    I(f"v_and_b32 v6, 7, v0"); I(f"v_lshl_add_u32 v{vWX}, v6, 4, v{vWX}")
    I(f"s_mul_i32 s{sA}, s{sW4}, {4*896}"); I(f"v_add_u32 v{vWX}, s{sA}, v{vWX}")
    I(f"s_lshl_b32 s{sPOFF}, s{sROT}, 7")
    def wo_piece(f, i, O=None):
        O = O or Ocur[0]
        if nowo and f >= 6: return
        O.I(f"s_add_u32 s{sD}, s{sPOFF}, {((f%2)*128 + i)*896}")
        O.I(f"s_add_u32 m0, s{sWLDS}, {WOSLOT[f] + i*PIECE}")
        O.I("s_nop 0")
        O.vmem(f"buffer_load_dwordx4 v{vWX}, s[{S_WO}:{S_WO+3}], s{sD} offen lds", ("WO", f))
        if i == 3 and f % 2 == 1:
            O.I(f"s_add_u32 s{sPOFF}, s{sPOFF}, 128"); O.I(f"s_cmp_eq_u32 s{sPOFF}, 896"); O.I(f"s_cselect_b32 s{sPOFF}, 0, s{sPOFF}")
    Ocur = [O]
    O.wl0()
    for r in range(OA, OA + 112 + 48): I(f"v_mov_b32 v{r}, 0")
    if prio == "O": I("s_setprio 1")
    O.wv(("K", 0), ("K", 1))
    rare_o = []; osubs = []
    def owave(O, tag):
        I = O.I
        big = bal and tag == "b"
        nsl = 7 if big else 4
        voff = [384 + 32 * sl for sl in range(4)] + [128 * e + 96 for e in range(3)] if big else [32 * sl for sl in range(4)]
        def units(z):
            if not bal: return [0, 1, 2, 3]
            if big: return [0, 1, 2, 3] + ([4, 5, 6] if z >= balz else [])
            return [0, 1, 2] + ([3] if z < balz else [])
        acc = lambda z, sl: OA + 16 * z + 4 * sl if sl < 4 else OX + 12 * (z - 3) + 4 * (sl - 4)
        if not big: I(f"s_lshl_b32 s{sA}, s{sW4}, 7"); I(f"v_add_u32 v{vVA}, s{sA}, v{vVA}")
        O.bar()
        bv = Base(O, vVA)
        def rdv1(j, k):
            sl, y = k // 2, k % 2
            bv.set(slot(VRING[j % 4]))
            O.lds(f"ds_read_b64_tr_b16 {vr(VF+28*(j%2)+4*sl+2*y,2)}, v{vVA} offset:{y*512 + voff[sl]}", ("V", j, sl))
        def rdv(j):
            for k in range(2 * nsl): rdv1(j, k)
        bo, b2 = Base(O, 6), Base(O, 7)
        def pack(z):
            us = units(z)
            ops = [f"v_cvt_pk_bf16_f32 v{acc(z,sl&~1 if sl < 4 else sl)+2*(sl&1 if sl < 4 else 0)+n}, v{acc(z,sl)+2*n}, v{acc(z,sl)+2*n+1}" for sl in us for n in range(2)]
            def wr():
                if not (0 <= OBUF[z] - bo.cur < 57000):
                    bo.set(OBUF[z])
                    if big: b2.set(OBUF[z])
                O.lds(f"ds_write_b128 v6, {vr(acc(z,0),4)} offset:{OBUF[z]-bo.cur}", ("W",))
                if 3 in us: O.lds(f"ds_write_b128 v6, {vr(acc(z,2),4)} offset:{OBUF[z]-bo.cur + 1024}", ("W",))
                else: O.lds(f"ds_write_b64 v6, {vr(acc(z,2),2)} offset:{OBUF[z]-bo.cur + 1024}", ("W",))
                for sl in us:
                    if sl >= 4: O.lds(f"ds_write_b64 v7, {vr(acc(z,sl),2)} offset:{OBUF[z]-b2.cur + (2*(sl-4)+1)*1024 + 8}", ("W",))
            return ops + [wr]
        def o_phase(p):
            j = p - 2
            pieces = []
            def kv(kind, jj): return [(lambda i=i: kv_piece(O, kind, jj, i)) for i in range(4)]
            if p == 0 and not s3k: pieces += kv("K", 2)
            if p + 1 < NB: pieces += kv("V", p + 1)
            if p + 3 < NB:
                if not s3k: pieces += kv("K", p + 3)
            else:
                for f in {NB - 3: [0], NB - 2: [1], NB - 1: [2], NB: [3, 4], NB + 1: []}[p]:
                    pieces += [(lambda i=i, f=f: wo_piece(f, i, O)) for i in range(4)]
            if j < 0:
                O.items(pieces)
                if p == 1: rdv(0)
            else:
                par = j % 2
                def rdp(z): O.lds(f"ds_read_b128 {vr(PF+4*(z%npf),4)}, v{vPA} offset:{par*7168 + z*1024}", ("P", z))
                O.lds(f"ds_read_b32 v{vF}, v{vFA} offset:{par*128}", ("F",))
                for z in range(npf): rdp(z)
                I(f"s_add_u32 s{sBLK}, s{sBLK}, 1")
                fil = spread(8, pieces, dmafirst, dmalast) if pieces else [[] for _ in range(8)]
                O.items(fil[0])
                O.wl(("F",))
                I(f"v_cmp_eq_u32 vcc, s{sBLK}, v{vF}")
                I(f"s_cbranch_vccnz L_stub_o{tag}{p}")
                O.lab(f"L_back_o{tag}{p}")
                rare_o.append((tag, p, par))
                kv_ = 0
                if p == NB + 1:
                    I(f"s_lshl_b32 s{sA}, s{sW4}, 11"); I(f"v_add_u32 v6, s{sA}, v{vPA}"); I(f"v_mov_b32 v7, v{vPA}")
                for z in range(7):
                    if p == NB + 1 and z >= 2: O.items(pack(z - 2)) if z > 2 else None
                    for sl in units(z):
                        O.wl(("P", z), ("V", j, sl))
                        if not noO: I(mfma(acc(z, sl), VF + 28 * (j % 2) + 4 * sl, PF + 4 * (z % npf)))
                        if z >= vz0 and j + 1 < NB and kv_ < 2 * nsl: rdv1(j + 1, kv_); kv_ += 1
                    if p == NB + 1 and z == 2: O.items(pack(0))
                    if z + npf < 7: rdp(z + npf)
                    O.items(fil[z + 1])
            if p <= NB:
                if p == 0: O.wv(("V", 0))
                else: O.wv(("K", p + 2), ("V", p), ("K", p + 1))
                if p == NB: O.wl0()
                O.bar()
        for p in range(0, LOOP0): o_phase(p)
        I(f"s_mov_b32 s{sCNT}, {(LOOPN-LOOP0)//4}")
        O.lab(f"L_oloop{tag}")
        st = (list(O.lg), list(O.vm), bv.cur, O.nbar)
        for p in range(LOOP0, LOOP0 + 4): o_phase(p)
        sh = lambda q, d: [(t[0], t[1] + d) + tuple(t[2:]) for t in q]
        assert sh(O.lg, -4) == st[0] and sh(O.vm, -4) == st[1] and bv.cur == st[2], (O.lg, O.vm, st)
        I(f"s_sub_u32 s{sCNT}, s{sCNT}, 1"); I(f"s_cmp_lg_u32 s{sCNT}, 0"); I(f"s_cbranch_scc1 L_oloop{tag}")
        d = LOOPN - LOOP0 - 4
        O.lg = sh(O.lg, d); O.vm = sh(O.vm, d); O.nbar = st[3] + (LOOPN - LOOP0)
        for p in range(LOOPN, NB + 2): o_phase(p)
        for z in range(5, 7): O.items(pack(z))
        O.wv(("WO", 0), ("WO", 1), ("WO", 2))
        O.wl0()
        for par in range(2):
            osubs.append(f"L_rare_o{tag}_{par}:")
            osubs.append("s_nop 7"); osubs.append(f"s_mov_b32 s{sA}, vcc_lo")
            osubs.extend([f"v_and_b32 v6, 15, v0", f"v_lshlrev_b32 v6, 2, v6", f"v_add_u32 v6, {ALPHA + par*448}, v6"])
            for z in range(7):
                osubs.extend([f"s_bitcmp1_b32 s{sA}, {z}", f"s_cbranch_scc0 L_rare_o{tag}_{par}_{z}", f"ds_read_b32 v{vF}, v6 offset:{z*64}", "s_waitcnt lgkmcnt(0)"])
                for sl in units(z):
                    osubs.extend([f"v_mul_f32 v{acc(z,sl)+r}, v{vF}, v{acc(z,sl)+r}" for r in range(4)])
                osubs.append(f"L_rare_o{tag}_{par}_{z}:")
            osubs.append("s_nop 1"); osubs.append(f"s_setpc_b64 s[{sRET}:{sRET+1}]")
    if bal:
        I(f"s_cmp_eq_u32 s{sWAVE}, 7"); I("s_cbranch_scc1 L_owave7")
        O7 = O.fork()
        owave(O, "a")
        I("s_branch L_ojoin")
        O7.lab("L_owave7")
        owave(O7, "b")
        assert O7.nbar == O.nbar and O7.vm == O.vm and O7.lg == O.lg
        O.lab("L_ojoin")
    else:
        owave(O, "a")
    O.bar()
    def fills_at(e, st):
        when, j = st
        if when == "pre":
            e.wv(*[("WO", f) for f in range(min(14, 2 * j + 3))])
            return []
        fl = {0: [5], 1: [6, 7, 8, 9, 10], 2: [11, 12], 3: [13]}.get(j, [])
        return [(lambda f=f, i=i: wo_piece(f, i)) for f in fl for i in range(4)]
    oproj(O, 1, fills_at)
    assert O.nbar == nbarS, (O.nbar, nbarS)
    O.lab("L_done"); I("s_endpgm")
    for tag, site, kind in rare_s:
        O.lab(f"L_stub_s{tag}_{site}"); I(f"s_call_b64 s[{sRET}:{sRET+1}], L_rare_s{tag}_{kind}"); I(f"s_branch L_back_s{tag}_{site}")
    for l in subs: (O.lab(l[:-1]) if l.endswith(":") else I(l))
    for tag, site, par in rare_o:
        O.lab(f"L_stub_o{tag}{site}"); I(f"s_call_b64 s[{sRET}:{sRET+1}], L_rare_o{tag}_{par}"); I(f"s_branch L_back_o{tag}{site}")
    for l in osubs: (O.lab(l[:-1]) if l.endswith(":") else I(l))

    E.lab("L_code_end")
    R = Em(E.L); I = R.I
    R.L += kernel_head("reduce_kernel")
    I(f"s_cmp_ge_u32 s2, {1792//k2w}"); I("s_cbranch_scc1 L_rdone")
    I("s_load_dwordx2 s[8:9], s[0:1], 96"); I("s_load_dwordx2 s[12:13], s[0:1], 80")
    if dbgwg is not None:
        I("s_cmp_lg_u32 s2, 0"); I("s_cbranch_scc1 L_rnodbg")
        I("s_load_dwordx4 s[24:27], s[0:1], 88"); I("s_waitcnt lgkmcnt(0)")
        I("v_and_b32 v2, 15, v0"); I("v_lshlrev_b32 v2, 2, v2"); I(f"v_add_u32 v3, {128<<20}, v2")
        I("global_load_dword v4, v3, s[26:27]"); I("s_waitcnt vmcnt(0)"); I("global_store_dword v2, v4, s[24:25]"); I("s_waitcnt vmcnt(0)")
        R.lab("L_rnodbg")
    I("v_lshrrev_b32 v1, 6, v0"); I("v_and_b32 v0, 63, v0"); I("v_readfirstlane_b32 s3, v1")
    I(f"s_mul_i32 s4, s2, {k2w}"); I("s_add_u32 s4, s4, s3")
    I(f"s_mov_b32 s5, {(2**32 + 111)//112}"); I("s_mul_hi_u32 s5, s4, s5")
    I("s_mul_i32 s6, s5, 112"); I("s_sub_u32 s6, s4, s6")
    I(f"s_mul_i32 s17, s5, {16*PART_HEAD}"); I("s_lshl_b32 s18, s6, 10"); I("s_add_u32 s17, s17, s18")
    I("s_and_b32 s25, s6, 9"); I("s_cmp_eq_u32 s25, 9"); I("s_cselect_b32 s25, 3, 4")
    I("v_lshlrev_b32 v2, s25, v0")
    I("s_waitcnt lgkmcnt(0)")
    I("s_add_u32 s8, s8, s17"); I("s_addc_u32 s9, s9, 0"); I(f"s_mov_b32 s10, {15*PART_HEAD + 1024}"); I("s_mov_b32 s11, 0x20000")
    I(f"s_mov_b32 s14, {8*112*896*2}"); I("s_mov_b32 s15, 0x20000")
    I("s_mov_b32 s19, 0")
    for h in range(16):
        I(f"buffer_load_dwordx4 {vr(8+4*h,4)}, v2, s[8:11], s19 offen")
        if h < 15: I(f"s_add_u32 s19, s19, {PART_HEAD}")
    I("s_bfe_u32 s20, s6, 0x10003"); I("s_lshl_b32 s20, s20, 1"); I("s_and_b32 s21, s6, 1"); I("s_add_u32 s20, s20, s21")
    I("s_and_b32 s22, s5, 7"); I("s_mul_i32 s22, s22, 112"); I("s_lshl_b32 s23, s20, 5"); I("s_add_u32 s22, s22, s23")
    I("v_and_b32 v3, 15, v0"); I("v_add_u32 v3, s22, v3"); I("v_mul_u32_u24 v3, 1792, v3")
    I("s_lshr_b32 s22, s5, 3"); I("s_mul_i32 s22, s22, 896"); I("s_lshr_b32 s23, s6, 4"); I("s_lshl_b32 s23, s23, 7"); I("s_add_u32 s22, s22, s23")
    I("s_bfe_u32 s23, s6, 0x20001"); I("s_lshl_b32 s23, s23, 5"); I("s_add_u32 s22, s22, s23")
    I("v_lshrrev_b32 v4, 4, v0"); I("v_lshl_add_u32 v3, v4, 3, v3"); I("v_add_u32 v3, s22, v3")
    I(f"s_mov_b32 s24, {16*1792}")
    for h in range(16):
        I(f"s_waitcnt vmcnt({15-h})")
        for d_ in range(4):
            src = 8 + 4 * h + d_
            if h == 0:
                I(f"v_lshlrev_b32 v{72+2*d_}, 16, v{src}"); I(f"v_and_b32 v{73+2*d_}, 0xffff0000, v{src}")
            else:
                I(f"v_lshlrev_b32 v5, 16, v{src}"); I(f"v_and_b32 v6, 0xffff0000, v{src}")
                I(f"v_add_f32 v{72+2*d_}, v{72+2*d_}, v5"); I(f"v_add_f32 v{73+2*d_}, v{73+2*d_}, v6")
    for d_ in range(4): I(f"v_cvt_pk_bf16_f32 v{8+d_}, v{72+2*d_}, v{73+2*d_}")
    I("buffer_store_dwordx2 v[8:9], v3, s[12:15], 0 offen")
    I("s_cmp_eq_u32 s20, 3"); I("s_cbranch_scc1 L_rdone")
    I("buffer_store_dwordx2 v[10:11], v3, s[12:15], s24 offen")
    R.lab("L_rdone"); I("s_endpgm")
    tail = ['.section .rodata,"a"'] + kd(NAME + "_kernel") + kd("reduce_kernel", vgpr=80, sgpr=32, accum=80)
    return "\n".join(head + E.L + tail) + "\n"

if __name__ == "__main__":
    kw = eval("dict(%s)" % (sys.argv[2] if len(sys.argv) > 2 else ""))
    open(sys.argv[1], "w").write(gen(**kw))
```

```python
import sys
from asmlib import *

NB = 64
PIECE = 1056
SLOT = 16 * PIECE
TSLOT = 0
def slot(i): return SLOT * (i + 1)
SPARE = slot(8)
FLG = SPARE + 8192
ALPHA = FLG + 256
RL = ALPHA + 1024
QSETS = [[slot(5), slot(6), slot(7)], [slot(2), slot(3), slot(4)], [TSLOT, slot(0), slot(1)]]
QBUF = [TSLOT, TSLOT + 8192, slot(0), slot(0) + 8192, slot(1), slot(1) + 8192, SPARE]
KRING = [2, 3, 5, 7]
VRING = [4, 6, 0, 1]
PART_HEAD = 114688
FOFF = 30 << 20

S_X, S_WQ, S_K, S_V, S_WO, S_PT = 8, 12, 16, 20, 24, 28
sWAVE, sW4, sROT, sWLDS, sKOFF, sVOFF, sCNT, sBLK, sC, sT = 32, 33, 34, 35, 36, 37, 38, 39, 40, 41
sA, sB2, sD, sE, sHH, sPOFF, sSTRIP, sXOFF, sXLDS = 42, 43, 44, 45, 46, 47, 48, 49, 52
sRET = 54
sDBG, sWS, sOUT, sPB, sHEAD = 56, 58, 50, 5, 4
sTS = 60

class Em:
    def __init__(self, L=None):
        self.L = [] if L is None else L; self.lg = []; self.vm = []; self.nbar = 0
    def fork(self):
        e = Em(self.L); e.lg = list(self.lg); e.vm = list(self.vm); e.nbar = self.nbar; return e
    def I(self, s): self.L.append("    " + s)
    def lab(self, s): self.L.append(s + ":")
    def lds(self, s, tag): self.I(s); self.lg.append(tag)
    def vmem(self, s, tag): self.I(s); self.vm.append(tag)
    def _need(self, q, tags):
        idx = [i for i, t in enumerate(q) if t in tags]
        return None if not idx else max(idx)
    def wl(self, *tags):
        i = self._need(self.lg, tags)
        if i is None: return
        n = min(len(self.lg) - i - 1, 15)
        self.I(f"s_waitcnt lgkmcnt({n})"); self.lg = self.lg[len(self.lg) - n:] if n else []
    def wv(self, *tags):
        i = self._need(self.vm, tags)
        if i is None: return
        n = min(len(self.vm) - i - 1, 63)
        self.I(f"s_waitcnt vmcnt({n})"); self.vm = self.vm[len(self.vm) - n:] if n else []
    def wl0(self):
        if self.lg: self.I("s_waitcnt lgkmcnt(0)")
        self.lg = []
    def wv0(self):
        if self.vm: self.I("s_waitcnt vmcnt(0)")
        self.vm = []
    def bar(self): self.I("s_barrier"); self.nbar += 1
    def items(self, its):
        for f in its:
            if callable(f): f()
            else: self.I(f)

class Base:
    def __init__(self, e, reg, cur=0): self.e, self.reg, self.cur = e, reg, cur
    def set(self, b):
        d = b - self.cur
        if d: self.e.I(f"v_add_u32 v{self.reg}, {d & 0xffffffff}, v{self.reg}")
        self.cur = b

def vr(a, n): return f"v[{a}:{a+n-1}]"
def mfma(d, a, b, c=None):
    return f"v_mfma_f32_16x16x32_bf16 {vr(d,4)}, {vr(a,4)}, {vr(b,4)}, " + ("0" if c == 0 else vr(d, 4))
def spread(nslots, fillers, first=0, last=None):
    last = nslots - 1 if last is None else last
    out = [[] for _ in range(nslots)]
    n = last - first + 1
    for i, f in enumerate(fillers): out[first + (i * n) // len(fillers)].append(f)
    return out

def gen(diag=False, kvnt=True, stnt=False, hot=False, nodma=False, prio="S", sfirst=8, slast=28, dmafirst=0, dmalast=3, k1only=False, pstamp=False, qpre=2, nosm=False, noO=False, noS=False, nobar=False, ipf=False, stfl='sc1', pad=0, lalign=0, s3k=True, s3first=0, s3last=15, nkf=16, npf=7, nost=False, nowo=False, noqf=False, bal=True, qprio=1, balz=4, vz0=2, s3f=4, k2w=4, dbgwg=None, qtrace=False, otrace=False, qwho=None, wosplit=True, fuse=True, slp=2):
    NT_ = " nt" if kvnt else ""
    E = Em(); I = E.I
    def stamp(e, k):
        if diag:
            e.I(f"s_memtime s[{sTS+4*k}:{sTS+4*k+1}]"); e.I(f"s_memrealtime s[{sTS+4*k+2}:{sTS+4*k+3}]")
    head = [l for l in open("ref.s.txt").read().split("\n") if l.startswith(";") and "@launch" not in l and "Override" not in l and "grid=ceil" not in l]
    if fuse: head += ["; @launch grid=(256,1,1) block=(512,1,1) lds=163840"]
    else: head += [f"; @launch kernel={NAME}_kernel grid=(256,1,1) block=(512,1,1) lds=163840"]
    if not k1only and not fuse: head += [f"; @launch kernel=reduce_kernel grid=({1792//k2w},1,1) block=({64*k2w},1,1) lds=0"]
    head += ['.amdgcn_target "amdgcn-amd-amdhsa--gfx950"', ".text"]
    E.L += kernel_head(NAME + "_kernel")
    I("s_cmp_ge_u32 s2, 256"); I("s_cbranch_scc1 L_done")
    stamp(E, 0)
    I("s_bfe_u32 s6, s2, 0x10002"); I("s_and_b32 s3, s2, 3"); I("s_lshl_b32 s3, s3, 1"); I("s_bfe_u32 s4, s2, 0x10004"); I("s_add_u32 s3, s3, s4")
    I(f"s_bfe_u32 s{sHH}, s2, 0x10003"); I("s_lshr_b32 s7, s2, 5")
    I("s_lshl_b32 s5, s6, 3"); I("s_add_u32 s5, s5, s7"); I(f"s_mul_i32 s{sA}, s6, 40")
    I(f"s_add_u32 s50, s0, s{sA}"); I("s_addc_u32 s51, s1, 0")
    I(f"s_load_dwordx2 s[{S_X}:{S_X+1}], s[50:51], 0")
    I(f"s_load_dwordx2 s[{S_WQ}:{S_WQ+1}], s[50:51], 24")
    I(f"s_load_dwordx2 s[{S_K}:{S_K+1}], s[50:51], 8")
    I(f"s_load_dwordx2 s[{S_V}:{S_V+1}], s[50:51], 16")
    I(f"s_load_dwordx2 s[{S_WO}:{S_WO+1}], s[50:51], 32")
    I(f"s_load_dwordx2 s[{S_PT}:{S_PT+1}], s[0:1], 96")
    I(f"s_load_dwordx4 s[{sDBG}:{sDBG+3}], s[0:1], 88")
    I("v_lshrrev_b32 v1, 6, v0"); I("v_and_b32 v0, 63, v0")
    I(f"v_readfirstlane_b32 s{sWAVE}, v1")
    I(f"s_lshl_b32 s4, s3, 1"); I(f"s_add_u32 s4, s4, s{sHH}")
    I(f"s_bfe_u32 s{sA}, s2, 0x20003"); I(f"s_lshl_b32 s{sA}, s{sA}, 1"); I(f"s_add_u32 s{sROT}, s7, s{sA}")
    I(f"s_cmp_ge_u32 s{sROT}, 7"); I(f"s_cselect_b32 s{sA}, 7, 0"); I(f"s_sub_u32 s{sROT}, s{sROT}, s{sA}")
    I(f"s_and_b32 s{sW4}, s{sWAVE}, 3")
    I(f"s_mul_i32 s{sWLDS}, s{sW4}, {4*PIECE}")
    I(f"s_mov_b32 s{sC}, 0x3db8aa3b"); I(f"s_mov_b32 s{sT}, 0x41000000")
    vXD, vWD, vXA0, vXA1, vQA, t0, t1 = 1, 2, 3, 4, 5, 6, 7
    I(f"v_lshrrev_b32 v{vXD}, 3, v0"); I(f"v_mul_u32_u24 v{vXD}, 896, v{vXD}")
    I(f"v_lshrrev_b32 v{t0}, 4, v0"); I(f"v_lshlrev_b32 v{t0}, 1, v{t0}"); I(f"v_and_b32 v{t1}, 7, v0"); I(f"v_xor_b32 v{t0}, v{t0}, v{t1}")
    I(f"v_lshl_add_u32 v{vXD}, v{t0}, 4, v{vXD}")
    I(f"v_lshrrev_b32 v{t0}, 5, v0"); I(f"v_lshlrev_b32 v{vWD}, 15, v{t0}"); I(f"v_and_b32 v{t0}, 31, v0")
    I(f"v_lshl_add_u32 v{vWD}, v{t0}, 4, v{vWD}")
    I(f"s_lshl_b32 s{sPOFF}, s{sROT}, 19"); I(f"s_lshl_b32 s{sE}, s{sWAVE}, 16")
    I(f"s_lshl_b32 s{sXOFF}, s{sROT}, 7"); I(f"s_mul_i32 s{sB2}, s{sWAVE}, {16*896}")
    I(f"s_lshl_b32 s{sXLDS}, s{sWAVE}, 11")
    I(f"s_lshr_b32 s{sD}, s{sWAVE}, 2"); I(f"s_mul_i32 s{sD}, s{sD}, {SLOT}"); I(f"s_add_u32 s53, s{sD}, s{sWLDS}")
    I("s_waitcnt lgkmcnt(0)")
    if pstamp: stamp(E, 1)
    def srd(r, off_sgpr, size):
        I(f"s_add_u32 s{r}, s{r}, s{off_sgpr}"); I(f"s_addc_u32 s{r+1}, s{r+1}, 0")
        if isinstance(size, int): I(f"s_mov_b32 s{r+2}, {size}")
        else: I(size)
        I(f"s_mov_b32 s{r+3}, 0x20000")
    I(f"s_mul_i32 s{sA}, s7, 100352"); srd(S_X, sA, 100352)
    I(f"s_lshl_b32 s{sA}, s4, 9"); srd(S_WQ, sA, f"s_sub_u32 s{S_WQ+2}, {448*8192}, s{sA}")
    def qfill_ops(e, i):
        if noqf and i >= 3: return []
        xs, wa, wb = QSETS[i % 3]
        assert wb == wa + SLOT
        ops = []
        for j in range(2):
            def f(j=j):
                e.I(f"s_add_u32 m0, s{sXLDS}, {xs + j*1024}")
                e.I(f"s_add_u32 s{sD}, s{sXOFF}, s{sB2}" if j == 0 else f"s_add_u32 s{sD}, s{sD}, {8*896}")
                e.vmem(f"buffer_load_dwordx4 v{vXD}, s[{S_X}:{S_X+3}], s{sD} offen lds", ("QF", i))
            ops.append(f)
        for j in range(4):
            def f(j=j):
                e.I(f"s_add_u32 m0, s53, {wa + j*PIECE}")
                e.I(f"s_add_u32 s{sD}, s{sPOFF}, s{sE}" if j == 0 else f"s_add_u32 s{sD}, s{sD}, 8192")
                e.vmem(f"buffer_load_dwordx4 v{vWD}, s[{S_WQ}:{S_WQ+3}], s{sD} offen lds", ("QF", i))
                if j == 3:
                    e.I(f"s_add_u32 s{sPOFF}, s{sPOFF}, {1<<19}"); e.I(f"s_add_u32 s{sXOFF}, s{sXOFF}, 128")
                    e.I(f"s_cmp_eq_u32 s{sXOFF}, 896"); e.I(f"s_cselect_b32 s{sPOFF}, 0, s{sPOFF}"); e.I(f"s_cselect_b32 s{sXOFF}, 0, s{sXOFF}")
            ops.append(f)
        return ops
    if fuse:
        I(f"s_cmp_lg_u32 s{sWAVE}, 3"); I("s_cbranch_scc1 L_noclr")
        I(f"s_lshl_b32 s{sA}, s5, 5"); I(f"s_add_u32 s{sA}, s{sA}, s4"); I(f"s_lshl_b32 s{sA}, s{sA}, 2"); I(f"s_add_u32 s{sA}, s{sA}, {FOFF}")
        I(f"v_mov_b32 v12, s{sA}"); I("v_mov_b32 v13, 0")
        I("s_mov_b64 exec, 1")
        I(f"global_store_dword v12, v13, s[{sWS}:{sWS+1}] sc1")
        I("s_mov_b64 exec, -1")
        E.lab("L_noclr")
    for _ in range(pad): I("s_nop 0")
    if ipf:
        I("s_getpc_b64 s[56:57]")
        E.lab("L_pc")
        I(f"s_lshl_b32 s{sA}, s{sWAVE}, 13"); I(f"v_lshl_add_u32 v{t0}, v0, 7, s{sA}")
        I(f"s_min_u32 s{sA}, s{sA}, s{sA}")
        I(f"v_min_u32 v{t0}, L_code_end-L_pc-4, v{t0}")
        E.vmem(f"global_load_dword v15, v{t0}, s[56:57]", ("QF", -1))
    for i in range(qpre): E.items(qfill_ops(E, i))
    if pstamp: stamp(E, 2)
    I(f"s_lshl_b32 s{sA}, s7, 3"); I(f"s_add_u32 s{sA}, s{sA}, s3"); I(f"s_lshl_b32 s{sA}, s{sA}, 20")
    srd(S_K, sA, 1 << 20); srd(S_V, sA, 1 << 20)
    I(f"s_mul_i32 s{sA}, s4, {256*896}"); srd(S_WO, sA, 256 * 896)
    I(f"s_lshl_b32 s{sA}, s5, 4"); I(f"s_add_u32 s{sA}, s{sA}, s4"); I(f"s_mul_i32 s{sA}, s{sA}, {PART_HEAD}"); srd(S_PT, sA, PART_HEAD)
    I(f"v_and_b32 v{t0}, 15, v0"); I(f"v_lshlrev_b32 v{vXA0}, 7, v{t0}")
    I(f"v_and_b32 v{t0}, 6, v0"); I(f"v_lshrrev_b32 v{t1}, 4, v0"); I(f"v_xor_b32 v{t0}, v{t0}, v{t1}")
    I(f"v_lshl_add_u32 v{vXA0}, v{t0}, 4, v{vXA0}"); I(f"v_xor_b32 v{vXA1}, 64, v{vXA0}")
    def tr_lane(e, dst, tmp, sh):
        e.I(f"v_lshrrev_b32 v{dst}, 2, v0"); e.I(f"v_mul_u32_u24 v{dst}, {PIECE}, v{dst}")
        e.I(f"v_and_b32 v{tmp}, 3, v0"); e.I(f"v_lshl_add_u32 v{dst}, v{tmp}, {sh}, v{dst}")
    tr_lane(E, vQA, t0, 4)
    I(f"s_lshl_b32 s{sA}, s{sWAVE}, 6"); I(f"v_add_u32 v{vQA}, s{sA}, v{vQA}")
    vDM = 8
    I(f"v_and_b32 v{vDM}, 31, v0"); I(f"v_lshlrev_b32 v{vDM}, 4, v{vDM}")
    I(f"v_lshrrev_b32 v{t0}, 5, v0"); I(f"v_lshl_add_u32 v{vDM}, v{t0}, 13, v{vDM}")
    I(f"s_lshl_b32 s{sKOFF}, s{sW4}, 11"); I(f"s_add_u32 s{sVOFF}, s{sKOFF}, {0 if hot else 16384}"); I(f"s_add_u32 s{sKOFF}, s{sKOFF}, {0 if hot else 32768}")
    I(f"v_lshlrev_b32 v{t0}, 2, v0"); I(f"v_add_u32 v{t0}, {FLG}, v{t0}"); I(f"v_mov_b32 v{t1}, 0")
    E.lds(f"ds_write_b32 v{t0}, v{t1}", ("F",))
    def kv_piece(e, kind, j, i):
        if nodma and j >= 4: return
        ring, srd_, off = (KRING, S_K, sKOFF) if kind == "K" else (VRING, S_V, sVOFF)
        e.I(f"s_add_u32 m0, s{sWLDS}, {slot(ring[j % 4]) + i*(PIECE-512)}")
        e.I("s_nop 0")
        e.vmem(f"buffer_load_dwordx4 v{vDM}, s[{srd_}:{srd_+3}], s{off} offen offset:{i*512}{NT_} lds", (kind, j))
        if i == 3 and not hot: e.I(f"s_add_u32 s{off}, s{off}, 16384")
    QA, QB_, QACC, QP = 16, 32, 96, 152
    def qproj(E, lag):
        I = E.I
        bx0, bx1, bq = Base(E, vXA0), Base(E, vXA1), Base(E, vQA)
        def fin(z):
            ops = [f"v_pk_mul_f32 {vr(QACC+8*z+2*n,2)}, {vr(QACC+8*z+2*n,2)}, s[{sC}:{sC+1}] op_sel_hi:[1,0]" for n in range(4)]
            ops += [f"v_cvt_pk_bf16_f32 v{QP+4*z+n}, v{QACC+8*z+2*n}, v{QACC+8*z+2*n+1}" for n in range(4)]
            def wr():
                off = QBUF[z]
                if off > 60000: I(f"v_add_u32 v{t0}, {off}, v{t0}"); off = 0
                E.lds(f"ds_write_b128 v{t0}, {vr(QP+4*z,4)} offset:{off}", ("QW",))
            return ops + [wr]
        def pair(i, kk, z):
            E.wl(("A", i, kk), ("B", i, kk, z))
            for b in range(2):
                I(mfma(QACC + 8 * z + 4 * b, QA + 8 * kk + 4 * b, QB_ + 28 * kk + 4 * z, 0 if (i == 0 and kk == 0) else None))
        def last_half(i):
            I(f"v_lshlrev_b32 v{t0}, 4, v0"); I(f"s_lshl_b32 s{sA}, s{sWAVE}, 10"); I(f"v_add_u32 v{t0}, s{sA}, v{t0}")
            for z in range(7):
                pair(i, 1, z)
                if z >= 3: E.items(fin(z - 3))
            E.items(fin(4)); E.items(fin(5)); E.items(fin(6))
        if qprio is not None and lag == qprio: I("s_setprio 1")
        for i in range(7):
            E.wv(("QF", i))
            if i == 0 or lag: E.wl0()
            E.bar()
            if i == 0 and not lag and not otrace: stamp(E, 1)
            if qtrace and not lag and i >= 1: stamp(E, 1 + i)
            if fuse and i == 1 and not lag:
                I(f"s_cmp_lg_u32 s{sWAVE}, 3"); I("s_cbranch_scc1 L_noclr2")
                I(f"s_lshr_b32 s{sD}, s2, 5"); I(f"s_lshl_b32 s{sD}, s{sD}, 5"); I(f"v_mov_b32 v12, s{sD}")
                I(f"s_and_b32 s{sA}, s2, 31"); I(f"s_lshl_b32 s{sA}, 1, s{sA}"); I(f"v_mov_b32 v13, s{sA}")
                I("s_mov_b64 exec, 1")
                I(f"global_atomic_or v12, v13, s[{sDBG}:{sDBG+1}] sc1")
                I("s_mov_b64 exec, -1")
                E.lab("L_noclr2")
            xs, wa, wb = QSETS[i % 3]
            bx0.set(xs); bx1.set(xs); bq.set(wa)
            def rda(kk):
                for b in range(2):
                    for u in range(2):
                        E.lds(f"ds_read_b64_tr_b16 {vr(QA+8*kk+4*b+2*u,2)}, v{vQA} offset:{kk*SLOT + u*512 + b*8}", ("A", i, kk))
            def rdb(kk, z):
                E.lds(f"ds_read_b128 {vr(QB_+28*kk+4*z,4)}, v{vXA1 if kk else vXA0} offset:{z*2048}", ("B", i, kk, z))
            fl = []
            if i >= 1 and i + 2 < 7: fl = qfill_ops(E, i + 2)
            if i == 0 and qpre < 3: fl = sum([qfill_ops(E, k) for k in range(qpre, 3)], [])
            if i == 5:
                I(f"s_lshl_b32 s{sE}, s{sWAVE}, 10"); I(f"s_mul_i32 s{sB2}, s{sWAVE}, {2*PIECE}")
                def pre(kind, j, i_):
                    ring, srd_ = (KRING, S_K) if kind == "K" else (VRING, S_V)
                    I(f"s_add_u32 m0, s{sB2}, {slot(ring[j]) + i_*(PIECE-512)}")
                    I(f"s_add_u32 s{sD}, s{sE}, {j*16384}")
                    E.vmem(f"buffer_load_dwordx4 v{vDM}, s[{srd_}:{srd_+3}], s{sD} offen offset:{i_*512}{NT_} lds", (kind, j))
                fl = [(lambda k=k, j=j, i_=i_: pre(k, j, i_)) for k, j in (("K", 0), ("K", 1), ("V", 0)) for i_ in range(2)]
            fil = spread(14, fl, 0, 9) if fl else [[] for _ in range(14)]
            if not lag:
                rda(0)
                for z in range(5): rdb(0, z)
                order = [(kk, z) for kk in range(2) for z in range(7)]
                for n, (kk, z) in enumerate(order):
                    if i == 6 and kk == 1: break
                    pair(i, kk, z)
                    if n == 0: rda(1)
                    if n + 5 < 14: rdb(*order[n + 5])
                    E.items(fil[n])
                if i == 6:
                    for z in range(5, 7): rdb(1, z)
                    last_half(6)
            else:
                n = 0
                if i > 0:
                    for z in range(7):
                        pair(i - 1, 1, z)
                        if z == 0: rda(0)
                        if z >= 1: rdb(0, z - 1)
                        E.items(fil[n]); n += 1
                    rdb(0, 6)
                else:
                    rda(0)
                    for z in range(7): rdb(0, z)
                rda(1)
                for z in range(7):
                    pair(i, 0, z)
                    rdb(1, z)
                    E.items(fil[n]); n += 1
                for k in range(n, 14): E.items(fil[k])
                if i == 6: last_half(6)
        if qprio is not None and lag == qprio: I("s_setprio 0")
        I(f"s_mov_b32 s{sBLK}, 0")
    I(f"s_cmp_ge_u32 s{sWAVE}, 4"); I("s_cbranch_scc1 L_owave")
    O = E.fork()
    qproj(E, 0)

    kfree = [slot(KRING[(NB - 4 + i) % 4]) for i in range(4)]
    vs = [slot(VRING[(NB - 4 + i) % 4]) for i in range(4)]
    WOSLOT = kfree + [vs[0], TSLOT, vs[1], vs[2], vs[3]]
    WOSLOT += [WOSLOT[i] for i in range(5)]
    OBUF = [vs[2], vs[2] + 8192, vs[3], vs[3] + 8192, vs[1], vs[1] + 8192, SPARE]
    def oproj(e, role, fills_at):
        I = e.I
        vTA, vST, vT, RLR, AF, PK, ACC, BF = 1, 2, 3, 4, 16, 32, 40, 72
        zs = [0, 1, 2, 3] if role == 0 else [4, 5, 6]
        nz = len(zs)
        I(f"v_lshlrev_b32 v{vT}, 4, v0")
        I(f"v_and_b32 v{vST}, 15, v0"); I(f"v_lshlrev_b32 v{vST}, 2, v{vST}"); I(f"v_add_u32 v{vST}, {RL}, v{vST}")
        for a, z in enumerate(zs): e.lds(f"ds_read_b32 v{RLR+a}, v{vST} offset:{z*64}", ("R",))
        tr_lane(e, vTA, vST, 3)
        I(f"s_lshl_b32 s{sA}, s{sW4}, 5"); I(f"v_add_u32 v{vTA}, s{sA}, v{vTA}")
        I(f"s_lshl_b32 s{sA}, s{sWAVE}, 11"); I(f"v_add_u32 v{vST}, s{sA}, v{vT}")
        if role: I(f"v_lshlrev_b32 v8, 3, v0"); I(f"v_add_u32 v8, s{sA}, v8")
        I(f"s_mov_b32 s{sSTRIP}, s{sROT}")
        ba, bb = Base(e, vTA), Base(e, vT)
        seq = [(j, kp) for j in range(7) for kp in range(8)]
        def rd(n):
            j, kp = seq[n]
            ba.set(WOSLOT[2 * j + kp // 4])
            for u in range(2):
                e.lds(f"ds_read_b64_tr_b16 {vr(AF+4*(n%4)+2*u,2)}, v{vTA} offset:{(2*(kp%4)+u)*128}", ("A", n))
        def rdB(kp):
            for a, z in enumerate(zs):
                base = OBUF[z - (z - zs[0]) % 2] if False else OBUF[z]
                lo = min(OBUF[zz] for zz in zs)
                if base - bb.cur < 0 or base - bb.cur + kp * 1024 > 65535: bb.set(base)
                e.lds(f"ds_read_b128 {vr(BF+32*a+4*kp,4)}, v{vT} offset:{base - bb.cur + kp*1024}", ("B", kp, a))
        def fin(j):
            acc = ACC + 16 * (j % 2)
            ops = []
            for a in range(nz):
                ops += [f"v_mul_f32 v{acc+4*a+r}, v{RLR+a}, v{acc+4*a+r}" for r in range(4)]
                ops += [f"v_cvt_pk_bf16_f32 v{PK+2*a+n}, v{acc+4*a+2*n}, v{acc+4*a+2*n+1}" for n in range(2)]
            def st():
                if nost: return
                fl = " nt" if stnt else ""
                if stfl: fl = " " + stfl
                I(f"s_lshl_b32 s{sA}, s{sSTRIP}, 14")
                I(f"s_add_u32 s{sSTRIP}, s{sSTRIP}, 1")
                e.vmem(f"buffer_store_dwordx4 {vr(PK,4)}, v{vST}, s[{S_PT}:{S_PT+3}], s{sA} offen{fl}", ("ST", j))
                if nz == 4: e.vmem(f"buffer_store_dwordx4 {vr(PK+4,4)}, v{vST}, s[{S_PT}:{S_PT+3}], s{sA} offen offset:1024{fl}", ("ST", j))
                else: e.vmem(f"buffer_store_dwordx2 {vr(PK+4,2)}, v8, s[{S_PT}:{S_PT+3}], s{sA} offen offset:1024{fl}", ("ST", j))
                I(f"s_cmp_eq_u32 s{sSTRIP}, 7"); I(f"s_cselect_b32 s{sSTRIP}, 0, s{sSTRIP}")
            ops.append(st)
            return ops
        rd(0); rdB(0); rd(1); rdB(1); rd(2); rd(3)
        for j in range(7):
            fl = fin(j - 1) if j else []
            fil = spread(8 * nz, fl, 2 * nz, 8 * nz - 1) if fl else [[] for _ in range(8 * nz)]
            fl = fills_at(e, ("post", j))
            if fl:
                f2 = spread(8 * nz, fl, 0, min(8 * nz - 1, len(fl) - 1))
                fil = [a + b for a, b in zip(f2, fil)]
            for kp in range(8):
                n = 8 * j + kp
                for a in range(nz):
                    e.wl(("A", n), ("B", kp, a))
                    I(mfma(ACC + 16 * (j % 2) + 4 * a, AF + 4 * (n % 4), BF + 32 * a + 4 * kp, 0 if kp == 0 else None))
                    if a == nz - 1:
                        if j == 0 and kp + 2 < 8: rdB(kp + 2)
                        if n + 4 < len(seq): rd(n + 4)
                    e.items(fil[kp * nz + a])
            if j < 6:
                fills_at(e, ("pre", j + 1))
                e.bar()
                if otrace and role == 0: stamp0(e, 2 + j)
        I("s_nop 7")
        e.wl(("R",))
        e.items(fin(6))

    npoll = [0]
    def spin(e, load, test):
        k = npoll[0]; npoll[0] += 1
        e.I(f"s_mov_b32 s{sE}, 0x8000")
        e.lab(f"L_poll{k}")
        e.I(load); e.I("s_waitcnt vmcnt(0)")
        for t in test: e.I(t)
        e.I(f"s_cbranch_scc1 L_polled{k}")
        e.I(f"s_sleep {slp}"); e.I(f"s_sub_u32 s{sE}, s{sE}, 1"); e.I(f"s_cmp_lg_u32 s{sE}, 0"); e.I(f"s_cbranch_scc1 L_poll{k}")
        e.lab(f"L_polled{k}")
    def final_reduce(e):
        I = e.I
        I(f"s_load_dwordx2 s[12:13], s[0:1], 80")
        I(f"s_mul_i32 s6, s{sHEAD}, 7"); I(f"s_add_u32 s6, s6, s{sWAVE}")
        I(f"s_mul_i32 s17, s{sPB}, {16*PART_HEAD}"); I("s_lshl_b32 s18, s6, 10"); I("s_add_u32 s17, s17, s18")
        I(f"s_add_u32 s8, s{sWS}, s17"); I(f"s_addc_u32 s9, s{sWS+1}, 0"); I(f"s_mov_b32 s10, {15*PART_HEAD + 1024}"); I("s_mov_b32 s11, 0x20000")
        I("s_and_b32 s25, s6, 9"); I("s_cmp_eq_u32 s25, 9"); I("s_cselect_b32 s25, 3, 4")
        I("v_lshlrev_b32 v2, s25, v0")
        I("s_bfe_u32 s20, s6, 0x10003"); I("s_lshl_b32 s20, s20, 1"); I("s_and_b32 s21, s6, 1"); I("s_add_u32 s20, s20, s21")
        I(f"s_and_b32 s22, s{sPB}, 7"); I("s_mul_i32 s22, s22, 112"); I("s_lshl_b32 s23, s20, 5"); I("s_add_u32 s22, s22, s23")
        I("v_and_b32 v3, 15, v0"); I("v_add_u32 v3, s22, v3"); I("v_mul_u32_u24 v3, 1792, v3")
        I(f"s_lshr_b32 s22, s{sPB}, 3"); I("s_mul_i32 s22, s22, 896"); I("s_lshr_b32 s23, s6, 4"); I("s_lshl_b32 s23, s23, 7"); I("s_add_u32 s22, s22, s23")
        I("s_bfe_u32 s23, s6, 0x20001"); I("s_lshl_b32 s23, s23, 5"); I("s_add_u32 s22, s22, s23")
        I("v_lshrrev_b32 v4, 4, v0"); I("v_lshl_add_u32 v3, v4, 3, v3"); I("v_add_u32 v3, s22, v3")
        I(f"s_mov_b32 s24, {16*1792}")
        I("s_waitcnt vmcnt(0) lgkmcnt(0)")
        I(f"s_mov_b32 s14, {8*112*896*2}"); I("s_mov_b32 s15, 0x20000")
        e.bar()
        I(f"s_cmp_lg_u32 s{sWAVE}, 7"); I("s_cbranch_scc1 L_nopoll")
        I(f"s_lshl_b32 s{sA}, s{sPB}, 7"); I(f"s_add_u32 s{sA}, s{sA}, {FOFF}")
        I(f"s_lshl_b32 s{sD}, s{sHEAD}, 2"); I(f"s_add_u32 s{sD}, s{sD}, s{sA}"); I(f"v_mov_b32 v5, s{sD}"); I("v_mov_b32 v6, 1")
        I("s_mov_b64 exec, 1")
        I(f"global_store_dword v5, v6, s[{sWS}:{sWS+1}] sc1")
        I("s_mov_b64 exec, -1")
        I("v_and_b32 v5, 15, v0"); I(f"v_lshl_add_u32 v5, v5, 2, s{sA}")
        spin(e, f"global_load_dword v7, v5, s[{sWS}:{sWS+1}] sc1", ["v_cmp_ne_u32 vcc, 1, v7", "s_nop 1", "s_cmp_eq_u64 vcc, 0"])
        e.lab("L_nopoll")
        e.bar()
        I(f"s_cmp_eq_u32 s{sWAVE}, 7"); I("s_cbranch_scc1 L_done")
        I("s_mov_b32 s19, 0")
        for h in range(16):
            I(f"buffer_load_dwordx4 {vr(8+4*h,4)}, v2, s[8:11], s19 offen sc1")
            if h < 15: I(f"s_add_u32 s19, s19, {PART_HEAD}")
        for h in range(16):
            I(f"s_waitcnt vmcnt({15-h})")
            for d_ in range(4):
                src = 8 + 4 * h + d_
                if h == 0:
                    I(f"v_lshlrev_b32 v{72+2*d_}, 16, v{src}"); I(f"v_and_b32 v{73+2*d_}, 0xffff0000, v{src}")
                else:
                    I(f"v_lshlrev_b32 v5, 16, v{src}"); I(f"v_and_b32 v6, 0xffff0000, v{src}")
                    I(f"v_add_f32 v{72+2*d_}, v{72+2*d_}, v5"); I(f"v_add_f32 v{73+2*d_}, v{73+2*d_}, v6")
        for d_ in range(4): I(f"v_cvt_pk_bf16_f32 v{8+d_}, v{72+2*d_}, v{73+2*d_}")
        I("buffer_store_dwordx2 v[8:9], v3, s[12:15], 0 offen")
        I("s_cmp_eq_u32 s20, 3"); I("s_cbranch_scc1 L_rlast")
        I("buffer_store_dwordx2 v[10:11], v3, s[12:15], s24 offen")
        e.lab("L_rlast")

    LOOP0, LOOPN = 5, 61
    rare_s = []
    stamp0 = stamp
    if qtrace: stamp = lambda e, k: (stamp0(e, 8) if k == 2 else None)
    if otrace: stamp = lambda e, k: (stamp0(e, 8) if k == 8 else stamp0(e, 1) if k == 6 else None)
    if pstamp:
        stamp0 = stamp
        stamp = lambda e, k: (stamp0(e, k) if k == 8 else None)
    def swave(S, NZ, tag):
        I = S.I
        vKA, vPW, vAW, vL, vT0, vT1, vT2 = 1, 2, 3, 6, 9, 11, 13
        Q0, SA, SB, PO, EX, NM, KF = 16, 80, 96, 112, 120, 136, 144
        NKF = nkf
        I(f"v_lshlrev_b32 v{vPW}, 4, v0")
        if NZ == 2:
            I(f"s_mul_i32 s{sA}, s{sW4}, {SLOT}"); I(f"v_add_u32 v{vT0}, s{sA}, v{vPW}")
        else:
            I(f"v_add_u32 v{vT0}, {QBUF[6]}, v{vPW}")
        I(f"v_and_b32 v{vKA}, 15, v0"); I(f"v_mul_u32_u24 v{vKA}, {PIECE}, v{vKA}")
        I(f"v_lshrrev_b32 v{vT1}, 4, v0"); I(f"v_lshl_add_u32 v{vKA}, v{vT1}, 4, v{vKA}")
        I(f"s_lshl_b32 s{sA}, s{sW4}, 11"); I(f"v_add_u32 v{vPW}, s{sA}, v{vPW}")
        I(f"v_and_b32 v{vAW}, 15, v0"); I(f"v_lshlrev_b32 v{vAW}, 2, v{vAW}")
        I(f"s_lshl_b32 s{sA}, s{sW4}, 7"); I(f"s_add_u32 s{sA}, s{sA}, {ALPHA}"); I(f"v_add_u32 v{vAW}, s{sA}, v{vAW}")
        for a in range(NZ):
            I(f"v_mov_b32 v{vL+a}, 0")
            for r in range(4): I(f"v_mov_b32 v{NM+4*a+r}, 0")
        I(f"s_mov_b32 s{sT}, 0x40004000")
        if NZ == 1: I(f"s_mov_b32 s{sKOFF}, {0 if hot else 32768}")
        if prio == "S": I("s_setprio 1")
        S.wl0(); S.wv(("K", 0), ("K", 1))
        S.bar()
        stamp(S, 2)
        bk = Base(S, vKA)
        def rdk(p, n):
            bk.set(slot(KRING[p % 4]))
            S.lds(f"ds_read_b128 {vr(KF+4*(n%NKF),4)}, v{vKA} offset:{(n%2)*512 + (n//2)*64}", ("K", p, n))
        nv = 8 * NZ
        def exp_cvt(sp):
            ops = []
            for k in range(nv + 3):
                if k < nv: ops.append(f"v_exp_f32 v{EX+k}, v{sp+k}")
                if k >= 3 and k % 2 == 1: ops.append(f"v_cvt_pk_bf16_f32 v{PO+(k-3)//2}, v{EX+k-3}, v{EX+k-2}")
            return ops
        def rare_body(kind):
            sub = []
            par = int(kind[1])
            first = kind[0] == "f"
            sp, cur = (SA, SB) if par == 0 else (SB, SA)
            sub.append(f"L_rare_s{tag}_{kind}:")
            for a in range(NZ):
                b = sp + 8 * a
                sub.append(f"v_max3_f32 v{vT0+a}, v{b}, v{b+1}, v{b+2}")
                sub.append(f"v_max3_f32 v{vT0+a}, v{vT0+a}, v{b+3}, v{b+4}")
                sub.append(f"v_max3_f32 v{vT0+a}, v{vT0+a}, v{b+5}, v{b+6}")
                sub.append(f"v_max_f32 v{vT0+a}, v{vT0+a}, v{b+7}")
            for sw in ("v_permlane16_swap_b32", "v_permlane32_swap_b32"):
                for a in range(NZ): sub.append(f"v_mov_b32 v{vT1+a}, v{vT0+a}")
                sub.append("s_nop 1")
                for a in range(NZ): sub.append(f"{sw} v{vT0+a}, v{vT1+a}")
                for a in range(NZ): sub.append(f"v_max_f32 v{vT0+a}, v{vT0+a}, v{vT1+a}")
            for a in range(NZ):
                sub.append(f"v_sub_f32 v{vT0+a}, 0xc0e00000, v{vT0+a}")
                if not first:
                    sub.append(f"v_min_f32 v{vT0+a}, 0, v{vT0+a}")
                    sub.append(f"v_exp_f32 v{vT1+a}, v{vT0+a}")
                for r in range(4): sub.append(f"v_add_f32 v{NM+4*a+r}, v{NM+4*a+r}, v{vT0+a}")
                for r in range(8): sub.append(f"v_add_f32 v{sp+8*a+r}, v{sp+8*a+r}, v{vT0+a}")
                if kind[0] != "n":
                    for r in range(8): sub.append(f"v_add_f32 v{cur+8*a+r}, v{cur+8*a+r}, v{vT0+a}")
                if not first:
                    sub.append(f"v_mul_f32 v{vL+a}, v{vL+a}, v{vT1+a}")
                    sub.append(f"ds_write_b32 v{vAW}, v{vT1+a} offset:{par*448 + a*64}")
            sub += exp_cvt(sp)
            if not first:
                sub.append(f"s_lshl_b32 s{sA}, s{sW4}, 3"); sub.append(f"s_add_u32 s{sA}, s{sA}, {FLG + par*128}")
                sub.append(f"v_mov_b32 v{vT0}, s{sA}"); sub.append(f"v_mov_b32 v{vT2}, s{sBLK}")
                for a in range(NZ): sub.append(f"ds_write_b32 v{vT0}, v{vT2} offset:{4*a}")
            sub.append("s_waitcnt lgkmcnt(0)")
            sub.append(f"s_setpc_b64 s[{sRET}:{sRET+1}]")
            return sub
        def softmax_ops(p):
            sp = SB if p % 2 == 0 else SA
            par = (p - 1) % 2
            ops = exp_cvt(sp)
            ops.append(f"v_or3_b32 v{vT0}, v{PO}, v{PO+1}, v{PO+2}")
            nhead = None
            if NZ == 2:
                ops.append(f"v_or3_b32 v{vT1}, v{PO+3}, v{PO+4}, v{PO+5}")
                ops.append(f"v_or3_b32 v{vT0}, v{vT0}, v{PO+6}, v{PO+7}")
                ops.append(f"v_or_b32 v{vT0}, v{vT0}, v{vT1}")
            else:
                ops.append(f"v_or_b32 v{vT0}, v{vT0}, v{PO+3}")
            ops.append(f"v_and_b32 v{vT0}, s{sT}, v{vT0}")
            kind = ("q" if p < NB else "n") + str(par)
            def check():
                I(f"s_add_u32 s{sBLK}, s{sBLK}, 1")
                if p == 1:
                    for l in rare_body("f0")[1:-2]: I(l)
                else:
                    I(f"v_cmp_ne_u32 vcc, 0, v{vT0}")
                    I(f"s_cbranch_vccnz L_stub_s{tag}_{p}")
                    S.lab(f"L_back_s{tag}_{p}")
                    rare_s.append((tag, p, kind))
            if p == 1: ops = []
            ops.append(check)
            for a in range(NZ):
                ops.append(lambda a=a: S.lds(f"ds_write_b128 v{vPW}, {vr(PO+4*a,4)} offset:{par*7168 + a*1024}", ("P", a)))
            for k in range(nv): ops.append(f"v_add_f32 v{vL+(k%NZ)}, v{vL+(k%NZ)}, v{EX+8*(k%NZ)+k//NZ}")
            if nosm: return [o for o in ops if callable(o)][1:]
            return ops
        def k_piece(j, k):
            if nodma and j >= 4: return
            if k == 8: I(f"s_add_u32 s{sKOFF}, s{sKOFF}, 4096")
            I(f"s_mov_b32 m0, {slot(KRING[j % 4]) + k*PIECE - (k%8)*512}")
            I("s_nop 0")
            S.vmem(f"buffer_load_dwordx4 v{vDM}, s[{S_K}:{S_K+3}], s{sKOFF} offen offset:{(k%8)*512}{NT_} lds", ("K", j))
            if k == 15: I(f"s_add_u32 s{sKOFF}, s{sKOFF}, {-4096 & 0xffffffff if hot else 12288}")
        loader = s3k and NZ == 1
        def s_phase(p):
            cur = SA if p % 2 == 0 else SB
            do_qk, do_sm = p < NB, p >= 1
            sm = softmax_ops(p) if do_sm else []
            kf = []
            if loader:
                for j in ([2, 3] if p == 0 else [p + 3]):
                    if j < NB: kf += [(lambda j=j, k=k: k_piece(j, k)) for k in range(16)]
            if do_qk:
                if p == 0:
                    for a in range(NZ):
                        for ks in range(2): S.lds(f"ds_read_b128 {vr(Q0+32*a+4*ks,4)}, v{vT0} offset:{a*8192 + ks*1024}", ("Q", a, ks))
                if p in (0, 2):
                    for n in range(NKF - 2): rdk(p, n)
                if p == 0:
                    for ks in range(2, 8):
                        for a in range(NZ): S.lds(f"ds_read_b128 {vr(Q0+32*a+4*ks,4)}, v{vT0} offset:{a*8192 + ks*1024}", ("Q", a, ks))
                ng = 16 * NZ
                f0, f1 = (sfirst, slast) if NZ == 2 else (s3f, 15)
                fil = spread(ng, sm, f0, f1) if sm else [[] for _ in range(ng)]
                if kf: fil = [a + b for a, b in zip(spread(ng, kf, s3first, s3last), fil)]
                for n in range(16):
                    ks, y = n // 2, n % 2
                    for a in range(NZ):
                        if y == 0: S.wl(("K", p, n), ("K", p, n + 1), ("Q", a, ks))
                        if not noS:
                            if ks == 0: I(f"v_mfma_f32_16x16x32_bf16 {vr(cur+8*a+4*y,4)}, {vr(KF+4*(n%NKF),4)}, {vr(Q0+32*a,4)}, {vr(NM+4*a,4)}")
                            else: I(mfma(cur + 8 * a + 4 * y, KF + 4 * (n % NKF), Q0 + 32 * a + 4 * ks))
                        if a == NZ - 1:
                            m = n + NKF - 2
                            if m < 16: rdk(p, m)
                            elif p + 1 < NB and p != 1: rdk(p + 1, m - 16)
                        S.items(fil[n * NZ + a])
                S.wl(("P", 0), ("P", 1))
                if p == 0: S.wv(("V", 0))
                if loader and p >= 1: S.wv(("K", p + 2), ("K", p + 1))
                if p + 1 >= NB: I("s_nop 7")
            else:
                S.items(sm)
                for sw in ("v_permlane16_swap_b32", "v_permlane32_swap_b32"):
                    for a in range(NZ): I(f"v_mov_b32 v{vT0+a}, v{vL+a}")
                    I("s_nop 1")
                    for a in range(NZ): I(f"{sw} v{vL+a}, v{vT0+a}")
                    for a in range(NZ): I(f"v_add_f32 v{vL+a}, v{vL+a}, v{vT0+a}")
                for a in range(NZ): I(f"v_rcp_f32 v{vL+a}, v{vL+a}")
                I("s_nop 0")
                for a in range(NZ): S.lds(f"ds_write_b32 v{vAW}, v{vL+a} offset:{RL-ALPHA + a*64}", ("P", 2))
                S.wl0()
            S.bar()
        for p in range(0, LOOP0): s_phase(p)
        stamp(S, 3)
        I(f"s_mov_b32 s{sCNT}, {(LOOPN-LOOP0)//4}")
        if lalign: S.L.append(f".p2align {lalign}")
        S.lab(f"L_sloop{tag}")
        st = (list(S.lg), bk.cur, S.nbar)
        stv = list(S.vm)
        for p in range(LOOP0, LOOP0 + 4): s_phase(p)
        assert [(t[0], t[1] - 4) for t in S.vm] == stv
        S.vm = [(t[0], t[1] + LOOPN - LOOP0 - 4) for t in S.vm]
        assert [(t[0], t[1] - 4, t[2]) for t in S.lg] == st[0] and bk.cur == st[1], (S.lg, st)
        I(f"s_sub_u32 s{sCNT}, s{sCNT}, 1"); I(f"s_cmp_lg_u32 s{sCNT}, 0"); I(f"s_cbranch_scc1 L_sloop{tag}")
        stamp(S, 4)
        S.lg = [(t[0], LOOPN, t[2]) for t in S.lg]
        S.nbar = st[2] + (LOOPN - LOOP0)
        for p in range(LOOPN, NB + 1): s_phase(p)
        stamp(S, 5)
        sub = []
        for kind in ("q0", "q1") + (("n1",) if NB % 2 == 0 else ("n0",)): sub += rare_body(kind)
        return sub
    I(f"s_cmp_eq_u32 s{sWAVE}, 3"); I("s_cbranch_scc1 L_swave3")
    S3 = E.fork()
    subs = swave(E, 2, "a")
    I("s_branch L_sjoin")
    S3.lab("L_swave3")
    subs += swave(S3, 1, "b")
    if fuse:
        S3.wv0()
        I(f"s_lshr_b32 s{sD}, s2, 5"); I(f"s_lshl_b32 s{sD}, s{sD}, 5"); I(f"v_mov_b32 v6, s{sD}")
        I(f"s_and_b32 s{sA}, s2, 4"); I(f"s_lshl_b32 s{sA}, 0x0f0f0f0f, s{sA}")
        spin(S3, f"global_load_dword v7, v6, s[{sDBG}:{sDBG+1}] sc1",
             [f"v_readfirstlane_b32 s{sD}, v7", f"s_and_b32 s{sD}, s{sD}, s{sA}", f"s_cmp_eq_u32 s{sD}, s{sA}"])
    assert S3.nbar == E.nbar
    E.lab("L_sjoin")
    S = E
    S.bar()
    stamp(S, 6)
    oproj(S, 0, lambda e, st: [])
    stamp(S, 7)
    nbarS = S.nbar
    if fuse:
        E.lab("L_final")
        final_reduce(S)
    if diag:
        I(f"s_cmp_lg_u32 s{sWAVE}, 0"); I("s_cbranch_scc1 L_done")
        I("s_waitcnt vmcnt(0)")
        stamp(S, 8)
        I("s_waitcnt lgkmcnt(0)")
        I("s_mov_b64 exec, 1")
        if dbgwg is not None:
            I(f"s_cmp_lg_u32 s2, {dbgwg}"); I("s_cbranch_scc1 L_done")
            I(f"v_mov_b32 v1, {128<<20}")
            for k in range(8):
                I(f"s_sub_u32 s{sA}, s{sTS+4*k+4}, s{sTS+4*k}"); I(f"v_mov_b32 v4, s{sA}")
                I(f"s_sub_u32 s{sA}, s{sTS+4*k+6}, s{sTS+4*k+2}"); I(f"v_mov_b32 v5, s{sA}")
                I(f"global_store_dword v1, v4, s[58:59] offset:{4*k}"); I(f"global_store_dword v1, v5, s[58:59] offset:{32+4*k}")
            I("s_endpgm")
        I(f"s_lshl_b32 s{sA}, s2, 7"); I(f"s_add_u32 s{sA}, s{sA}, {64<<20}"); I(f"v_mov_b32 v1, s{sA}")
        for k in range(9):
            I(f"v_mov_b32 v4, s{sTS+4*k}"); I(f"v_mov_b32 v5, s{sTS+4*k+2}")
            I(f"global_store_dwordx2 v1, v[4:5], s[58:59] offset:{8*k}")
            I("s_nop 1")
    I("s_endpgm")

    I = O.I
    O.lab("L_owave")
    qproj(O, 1)
    vVA, vPA, vWX, vFA, vF = 1, 2, 9, 4, 5
    VF, OA, OX, PF = 12, 68, 180, 228
    tr_lane(O, vVA, 6, 3)
    I(f"v_lshlrev_b32 v{vPA}, 4, v0")
    I(f"v_and_b32 v{vFA}, 7, v0"); I(f"v_lshlrev_b32 v{vFA}, 2, v{vFA}"); I(f"v_add_u32 v{vFA}, {FLG}, v{vFA}")
    I(f"v_lshrrev_b32 v{vWX}, 3, v0"); I(f"v_mul_u32_u24 v{vWX}, {16*896}, v{vWX}")
    I(f"v_and_b32 v6, 7, v0"); I(f"v_lshl_add_u32 v{vWX}, v6, 4, v{vWX}")
    I(f"s_mul_i32 s{sA}, s{sW4}, {4*896}"); I(f"v_add_u32 v{vWX}, s{sA}, v{vWX}")
    I(f"s_lshl_b32 s{sPOFF}, s{sROT}, 7")
    def wo_piece(f, i, O=None):
        O = O or Ocur[0]
        if nowo and f >= 6: return
        O.I(f"s_add_u32 m0, s{sWLDS}, {WOSLOT[f] + i*PIECE}")
        O.I(f"s_add_u32 s{sD}, s{sPOFF}, {((f%2)*128 + i)*896}")
        O.vmem(f"buffer_load_dwordx4 v{vWX}, s[{S_WO}:{S_WO+3}], s{sD} offen lds", ("WO", f))
        if i == 3 and f % 2 == 1:
            O.I(f"s_add_u32 s{sPOFF}, s{sPOFF}, 128"); O.I(f"s_cmp_eq_u32 s{sPOFF}, 896"); O.I(f"s_cselect_b32 s{sPOFF}, 0, s{sPOFF}")
    Ocur = [O]
    O.wl0()
    if prio == "O": I("s_setprio 1")
    O.wv(("K", 0), ("K", 1))
    rare_o = []; osubs = []
    def owave(O, tag, chk=False):
        I = O.I
        big = bal and tag == "b"
        nsl = 7 if big else 4
        voff = [384 + 32 * sl for sl in range(4)] + [128 * e + 96 for e in range(3)] if big else [32 * sl for sl in range(4)]
        def units(z):
            if not bal: return [0, 1, 2, 3]
            if big: return [0, 1, 2, 3] + ([4, 5, 6] if z >= balz else [])
            return [0, 1, 2] + ([3] if z < balz else [])
        acc = lambda z, sl: OA + 16 * z + 4 * sl if sl < 4 else OX + 12 * (z - 3) + 4 * (sl - 4)
        if not big: I(f"s_lshl_b32 s{sA}, s{sW4}, 7"); I(f"v_add_u32 v{vVA}, s{sA}, v{vVA}")
        O.bar()
        bv = Base(O, vVA)
        def rdv1(j, k):
            sl, y = k // 2, k % 2
            bv.set(slot(VRING[j % 4]))
            O.lds(f"ds_read_b64_tr_b16 {vr(VF+28*(j%2)+4*sl+2*y,2)}, v{vVA} offset:{y*512 + voff[sl]}", ("V", j, sl))
        def rdv(j):
            for k in range(2 * nsl): rdv1(j, k)
        bo, b2 = Base(O, 6), Base(O, 7)
        def pack(z):
            us = units(z)
            ops = [f"v_cvt_pk_bf16_f32 v{acc(z,sl&~1 if sl < 4 else sl)+2*(sl&1 if sl < 4 else 0)+n}, v{acc(z,sl)+2*n}, v{acc(z,sl)+2*n+1}" for sl in us for n in range(2)]
            def wr():
                if not (0 <= OBUF[z] - bo.cur < 57000):
                    bo.set(OBUF[z])
                    if big: b2.set(OBUF[z])
                O.lds(f"ds_write_b128 v6, {vr(acc(z,0),4)} offset:{OBUF[z]-bo.cur}", ("W",))
                if 3 in us: O.lds(f"ds_write_b128 v6, {vr(acc(z,2),4)} offset:{OBUF[z]-bo.cur + 1024}", ("W",))
                else: O.lds(f"ds_write_b64 v6, {vr(acc(z,2),2)} offset:{OBUF[z]-bo.cur + 1024}", ("W",))
                for sl in us:
                    if sl >= 4: O.lds(f"ds_write_b64 v7, {vr(acc(z,sl),2)} offset:{OBUF[z]-b2.cur + (2*(sl-4)+1)*1024 + 8}", ("W",))
            return ops + [wr]
        def o_phase(p):
            j = p - 2
            pieces = []
            def kv(kind, jj): return [(lambda i=i: kv_piece(O, kind, jj, i)) for i in range(4)]
            if p == 0 and not s3k: pieces += kv("K", 2)
            if p + 1 < NB: pieces += kv("V", p + 1)
            if p + 3 < NB:
                if not s3k: pieces += kv("K", p + 3)
            else:
                for f in {NB - 3: [0], NB - 2: [1], NB - 1: [2], NB: [3, 4], NB + 1: []}[p]:
                    pieces += [(lambda i=i, f=f: wo_piece(f, i, O)) for i in range(4)]
            if j < 0:
                O.items(pieces)
                if p == 0:
                    for r in range(OA, OA + 112 + (48 if big else 0)): I(f"v_mov_b32 v{r}, 0")
                if p == 1: rdv(0)
            else:
                par = j % 2
                def rdp(z): O.lds(f"ds_read_b128 {vr(PF+4*(z%npf),4)}, v{vPA} offset:{par*7168 + z*1024}", ("P", z))
                O.lds(f"ds_read_b32 v{vF}, v{vFA} offset:{par*128}", ("F",))
                for z in range(npf): rdp(z)
                I(f"s_add_u32 s{sBLK}, s{sBLK}, 1")
                fil = spread(8, pieces, dmafirst, dmalast) if pieces else [[] for _ in range(8)]
                O.items(fil[0])
                O.wl(("F",))
                I(f"v_cmp_eq_u32 vcc, s{sBLK}, v{vF}")
                I(f"s_cbranch_vccnz L_stub_o{tag}{p}")
                O.lab(f"L_back_o{tag}{p}")
                rare_o.append((tag, p, par))
                kv_ = 0
                if p == NB + 1:
                    I(f"s_lshl_b32 s{sA}, s{sW4}, 11"); I(f"v_add_u32 v6, s{sA}, v{vPA}"); I(f"v_mov_b32 v7, v{vPA}")
                for z in range(7):
                    if p == NB + 1 and z >= 2: O.items(pack(z - 2)) if z > 2 else None
                    for sl in units(z):
                        O.wl(("P", z), ("V", j, sl))
                        if not noO: I(mfma(acc(z, sl), VF + 28 * (j % 2) + 4 * sl, PF + 4 * (z % npf)))
                        if z >= vz0 and j + 1 < NB and kv_ < 2 * nsl: rdv1(j + 1, kv_); kv_ += 1
                    if p == NB + 1 and z == 2: O.items(pack(0))
                    if z + npf < 7: rdp(z + npf)
                    O.items(fil[z + 1])
            if p <= NB:
                if p == 0: O.wv(("V", 0))
                else: O.wv(("K", p + 2), ("V", p), ("K", p + 1))
                if p == NB: O.wl0()
                O.bar()
        for p in range(0, LOOP0): o_phase(p)
        I(f"s_mov_b32 s{sCNT}, {(LOOPN-LOOP0)//4}")
        O.lab(f"L_oloop{tag}")
        st = (list(O.lg), list(O.vm), bv.cur, O.nbar)
        for p in range(LOOP0, LOOP0 + 4): o_phase(p)
        sh = lambda q, d: [(t[0], t[1] + d) + tuple(t[2:]) for t in q]
        assert sh(O.lg, -4) == st[0] and sh(O.vm, -4) == st[1] and bv.cur == st[2], (O.lg, O.vm, st)
        I(f"s_sub_u32 s{sCNT}, s{sCNT}, 1"); I(f"s_cmp_lg_u32 s{sCNT}, 0"); I(f"s_cbranch_scc1 L_oloop{tag}")
        d = LOOPN - LOOP0 - 4
        O.lg = sh(O.lg, d); O.vm = sh(O.vm, d); O.nbar = st[3] + (LOOPN - LOOP0)
        for p in range(LOOPN, NB + 2): o_phase(p)
        for z in range(5, 7): O.items(pack(z))
        O.wv(("WO", 0), ("WO", 1), ("WO", 2))
        O.wl0()
        for par in range(2):
            osubs.append(f"L_rare_o{tag}_{par}:")
            osubs.append("s_nop 7"); osubs.append(f"s_mov_b32 s{sA}, vcc_lo")
            osubs.extend([f"v_and_b32 v6, 15, v0", f"v_lshlrev_b32 v6, 2, v6", f"v_add_u32 v6, {ALPHA + par*448}, v6"])
            for z in range(7):
                osubs.extend([f"s_bitcmp1_b32 s{sA}, {z}", f"s_cbranch_scc0 L_rare_o{tag}_{par}_{z}", f"ds_read_b32 v{vF}, v6 offset:{z*64}", "s_waitcnt lgkmcnt(0)"])
                for sl in units(z):
                    osubs.extend([f"v_mul_f32 v{acc(z,sl)+r}, v{vF}, v{acc(z,sl)+r}" for r in range(4)])
                osubs.append(f"L_rare_o{tag}_{par}_{z}:")
            osubs.append("s_nop 1"); osubs.append(f"s_setpc_b64 s[{sRET}:{sRET+1}]")
    if bal:
        I(f"s_cmp_eq_u32 s{sWAVE}, 7"); I("s_cbranch_scc1 L_owave7")
        O7 = O.fork()
        owave(O, "a")
        I("s_branch L_ojoin")
        O7.lab("L_owave7")
        owave(O7, "b", chk=fuse)
        assert O7.nbar == O.nbar and O7.vm == O.vm and O7.lg == O.lg, (O7.vm, O.vm)
        O.lab("L_ojoin")
    else:
        owave(O, "a")
    O.bar()
    def fills_at(e, st):
        when, j = st
        if when == "pre":
            e.wv(*[("WO", f) for f in range(min(14, 2 * j + 3))])
            return []
        fl = ({0: [5], 1: [6, 7, 8], 2: [9, 10], 3: [11, 12], 4: [13]} if wosplit else {0: [5], 1: [6, 7, 8, 9, 10], 2: [11, 12], 3: [13]}).get(j, [])
        return [(lambda f=f, i=i: wo_piece(f, i)) for f in fl for i in range(4)]
    oproj(O, 1, fills_at)
    assert O.nbar == nbarS, (O.nbar, nbarS)
    if fuse: I("s_branch L_final")
    O.lab("L_done"); I("s_endpgm")
    for tag, site, kind in rare_s:
        O.lab(f"L_stub_s{tag}_{site}"); I(f"s_call_b64 s[{sRET}:{sRET+1}], L_rare_s{tag}_{kind}"); I(f"s_branch L_back_s{tag}_{site}")
    for l in subs: (O.lab(l[:-1]) if l.endswith(":") else I(l))
    for tag, site, par in rare_o:
        O.lab(f"L_stub_o{tag}{site}"); I(f"s_call_b64 s[{sRET}:{sRET+1}], L_rare_o{tag}_{par}"); I(f"s_branch L_back_o{tag}{site}")
    for l in osubs: (O.lab(l[:-1]) if l.endswith(":") else I(l))

    E.lab("L_code_end")
    R = Em(E.L); I = R.I
    R.L += kernel_head("reduce_kernel")
    I(f"s_cmp_ge_u32 s2, {1792//k2w}"); I("s_cbranch_scc1 L_rdone")
    I("s_load_dwordx2 s[8:9], s[0:1], 96"); I("s_load_dwordx2 s[12:13], s[0:1], 80")
    if dbgwg is not None:
        I("s_cmp_lg_u32 s2, 0"); I("s_cbranch_scc1 L_rnodbg")
        I("s_load_dwordx4 s[24:27], s[0:1], 88"); I("s_waitcnt lgkmcnt(0)")
        I("v_and_b32 v2, 15, v0"); I("v_lshlrev_b32 v2, 2, v2"); I(f"v_add_u32 v3, {128<<20}, v2")
        I("global_load_dword v4, v3, s[26:27]"); I("s_waitcnt vmcnt(0)"); I("global_store_dword v2, v4, s[24:25]"); I("s_waitcnt vmcnt(0)")
        R.lab("L_rnodbg")
    I("v_lshrrev_b32 v1, 6, v0"); I("v_and_b32 v0, 63, v0"); I("v_readfirstlane_b32 s3, v1")
    I(f"s_mul_i32 s4, s2, {k2w}"); I("s_add_u32 s4, s4, s3")
    I(f"s_mov_b32 s5, {(2**32 + 111)//112}"); I("s_mul_hi_u32 s5, s4, s5")
    I("s_mul_i32 s6, s5, 112"); I("s_sub_u32 s6, s4, s6")
    I(f"s_mul_i32 s17, s5, {16*PART_HEAD}"); I("s_lshl_b32 s18, s6, 10"); I("s_add_u32 s17, s17, s18")
    I("s_and_b32 s25, s6, 9"); I("s_cmp_eq_u32 s25, 9"); I("s_cselect_b32 s25, 3, 4")
    I("v_lshlrev_b32 v2, s25, v0")
    I("s_waitcnt lgkmcnt(0)")
    I("s_add_u32 s8, s8, s17"); I("s_addc_u32 s9, s9, 0"); I(f"s_mov_b32 s10, {15*PART_HEAD + 1024}"); I("s_mov_b32 s11, 0x20000")
    I(f"s_mov_b32 s14, {8*112*896*2}"); I("s_mov_b32 s15, 0x20000")
    I("s_mov_b32 s19, 0")
    for h in range(16):
        I(f"buffer_load_dwordx4 {vr(8+4*h,4)}, v2, s[8:11], s19 offen")
        if h < 15: I(f"s_add_u32 s19, s19, {PART_HEAD}")
    I("s_bfe_u32 s20, s6, 0x10003"); I("s_lshl_b32 s20, s20, 1"); I("s_and_b32 s21, s6, 1"); I("s_add_u32 s20, s20, s21")
    I("s_and_b32 s22, s5, 7"); I("s_mul_i32 s22, s22, 112"); I("s_lshl_b32 s23, s20, 5"); I("s_add_u32 s22, s22, s23")
    I("v_and_b32 v3, 15, v0"); I("v_add_u32 v3, s22, v3"); I("v_mul_u32_u24 v3, 1792, v3")
    I("s_lshr_b32 s22, s5, 3"); I("s_mul_i32 s22, s22, 896"); I("s_lshr_b32 s23, s6, 4"); I("s_lshl_b32 s23, s23, 7"); I("s_add_u32 s22, s22, s23")
    I("s_bfe_u32 s23, s6, 0x20001"); I("s_lshl_b32 s23, s23, 5"); I("s_add_u32 s22, s22, s23")
    I("v_lshrrev_b32 v4, 4, v0"); I("v_lshl_add_u32 v3, v4, 3, v3"); I("v_add_u32 v3, s22, v3")
    I(f"s_mov_b32 s24, {16*1792}")
    for h in range(16):
        I(f"s_waitcnt vmcnt({15-h})")
        for d_ in range(4):
            src = 8 + 4 * h + d_
            if h == 0:
                I(f"v_lshlrev_b32 v{72+2*d_}, 16, v{src}"); I(f"v_and_b32 v{73+2*d_}, 0xffff0000, v{src}")
            else:
                I(f"v_lshlrev_b32 v5, 16, v{src}"); I(f"v_and_b32 v6, 0xffff0000, v{src}")
                I(f"v_add_f32 v{72+2*d_}, v{72+2*d_}, v5"); I(f"v_add_f32 v{73+2*d_}, v{73+2*d_}, v6")
    for d_ in range(4): I(f"v_cvt_pk_bf16_f32 v{8+d_}, v{72+2*d_}, v{73+2*d_}")
    I("buffer_store_dwordx2 v[8:9], v3, s[12:15], 0 offen")
    I("s_cmp_eq_u32 s20, 3"); I("s_cbranch_scc1 L_rdone")
    I("buffer_store_dwordx2 v[10:11], v3, s[12:15], s24 offen")
    R.lab("L_rdone"); I("s_endpgm")
    if fuse: del E.L[E.L.index(".globl reduce_kernel"):]
    tail = ['.section .rodata,"a"'] + kd(NAME + "_kernel") + ([] if fuse else kd("reduce_kernel", vgpr=80, sgpr=32, accum=80))
    return "\n".join(head + E.L + tail) + "\n"

if __name__ == "__main__":
    kw = eval("dict(%s)" % (sys.argv[2] if len(sys.argv) > 2 else ""))
    open(sys.argv[1], "w").write(gen(**kw))
```

```python
import sys
from asmlib import *

NB = 64
PIECE = 1056
SLOT = 16 * PIECE
TSLOT = 0
def slot(i): return SLOT * (i + 1)
SPARE = slot(8)
FLG = SPARE + 8192
ALPHA = FLG + 256
RL = ALPHA + 1024
QSETS = [[slot(5), slot(6), slot(7)], [slot(2), slot(3), slot(4)], [TSLOT, slot(0), slot(1)]]
QBUF = [TSLOT, TSLOT + 8192, slot(0), slot(0) + 8192, slot(1), slot(1) + 8192, SPARE]
KRING = [2, 3, 5, 7]
VRING = [4, 6, 0, 1]
PART_HEAD = 114688
FOFF = 30 << 20

S_X, S_WQ, S_K, S_V, S_WO, S_PT = 8, 12, 16, 20, 24, 28
sWAVE, sW4, sROT, sWLDS, sKOFF, sVOFF, sCNT, sBLK, sC, sT = 32, 33, 34, 35, 36, 37, 38, 39, 40, 41
sA, sB2, sD, sE, sHH, sPOFF, sSTRIP, sXOFF, sXLDS = 42, 43, 44, 45, 46, 47, 48, 49, 52
sRET = 54
sROTO = 6
sDBG, sWS, sOUT, sPB, sHEAD = 56, 58, 50, 5, 4
sTS = 60

class Em:
    def __init__(self, L=None):
        self.L = [] if L is None else L; self.lg = []; self.vm = []; self.nbar = 0
    def fork(self):
        e = Em(self.L); e.lg = list(self.lg); e.vm = list(self.vm); e.nbar = self.nbar; return e
    def I(self, s): self.L.append("    " + s)
    def lab(self, s): self.L.append(s + ":")
    def lds(self, s, tag): self.I(s); self.lg.append(tag)
    def vmem(self, s, tag): self.I(s); self.vm.append(tag)
    def _need(self, q, tags):
        idx = [i for i, t in enumerate(q) if t in tags]
        return None if not idx else max(idx)
    def wl(self, *tags):
        i = self._need(self.lg, tags)
        if i is None: return
        n = min(len(self.lg) - i - 1, 15)
        self.I(f"s_waitcnt lgkmcnt({n})"); self.lg = self.lg[len(self.lg) - n:] if n else []
    def wv(self, *tags):
        i = self._need(self.vm, tags)
        if i is None: return
        n = min(len(self.vm) - i - 1, 63)
        self.I(f"s_waitcnt vmcnt({n})"); self.vm = self.vm[len(self.vm) - n:] if n else []
    def wl0(self):
        if self.lg: self.I("s_waitcnt lgkmcnt(0)")
        self.lg = []
    def wv0(self):
        if self.vm: self.I("s_waitcnt vmcnt(0)")
        self.vm = []
    def bar(self): self.I("s_barrier"); self.nbar += 1
    def items(self, its):
        for f in its:
            if callable(f): f()
            else: self.I(f)

class Base:
    def __init__(self, e, reg, cur=0): self.e, self.reg, self.cur = e, reg, cur
    def set(self, b):
        d = b - self.cur
        if d: self.e.I(f"v_add_u32 v{self.reg}, {d & 0xffffffff}, v{self.reg}")
        self.cur = b

def vr(a, n): return f"v[{a}:{a+n-1}]"
def mfma(d, a, b, c=None):
    return f"v_mfma_f32_16x16x32_bf16 {vr(d,4)}, {vr(a,4)}, {vr(b,4)}, " + ("0" if c == 0 else vr(d, 4))
def spread(nslots, fillers, first=0, last=None):
    last = nslots - 1 if last is None else last
    out = [[] for _ in range(nslots)]
    n = last - first + 1
    for i, f in enumerate(fillers): out[first + (i * n) // len(fillers)].append(f)
    return out

def gen(diag=False, kvnt=True, stnt=False, hot=False, nodma=False, prio="S", sfirst=8, slast=28, dmafirst=0, dmalast=3, k1only=False, pstamp=False, qpre=2, nosm=False, noO=False, noS=False, nobar=False, ipf=False, stfl='sc1', pad=0, lalign=0, s3k=True, s3first=0, s3last=15, nkf=16, npf=7, nost=False, nowo=False, noqf=False, bal=True, qprio=1, balz=4, vz0=2, s3f=4, k2w=4, dbgwg=None, qtrace=False, otrace=False, qwho=None, wosplit=True, fuse=True, slp=2, L1=3, dot=True, ftrace=False, tlbw=True):
    NT_ = " nt" if kvnt else ""
    E = Em(); I = E.I
    def stamp(e, k):
        if diag:
            e.I(f"s_memtime s[{sTS+4*k}:{sTS+4*k+1}]"); e.I(f"s_memrealtime s[{sTS+4*k+2}:{sTS+4*k+3}]")
    head = [l for l in open("ref.s.txt").read().split("\n") if l.startswith(";") and "@launch" not in l and "Override" not in l and "grid=ceil" not in l]
    if fuse: head += ["; @launch grid=(256,1,1) block=(512,1,1) lds=163840"]
    else: head += [f"; @launch kernel={NAME}_kernel grid=(256,1,1) block=(512,1,1) lds=163840"]
    if not k1only and not fuse: head += [f"; @launch kernel=reduce_kernel grid=({1792//k2w},1,1) block=({64*k2w},1,1) lds=0"]
    head += ['.amdgcn_target "amdgcn-amd-amdhsa--gfx950"', ".text"]
    E.L += kernel_head(NAME + "_kernel")
    I("s_cmp_ge_u32 s2, 256"); I("s_cbranch_scc1 L_done")
    stamp(E, 0)
    I("s_bfe_u32 s6, s2, 0x10002"); I("s_and_b32 s3, s2, 3"); I("s_lshl_b32 s3, s3, 1"); I("s_bfe_u32 s4, s2, 0x10004"); I("s_add_u32 s3, s3, s4")
    I(f"s_bfe_u32 s{sHH}, s2, 0x10003"); I("s_lshr_b32 s7, s2, 5")
    I("s_lshl_b32 s5, s6, 3"); I("s_add_u32 s5, s5, s7"); I(f"s_mul_i32 s{sA}, s6, 40")
    I(f"s_add_u32 s50, s0, s{sA}"); I("s_addc_u32 s51, s1, 0")
    I(f"s_load_dwordx2 s[{S_X}:{S_X+1}], s[50:51], 0")
    I(f"s_load_dwordx2 s[{S_WQ}:{S_WQ+1}], s[50:51], 24")
    I(f"s_load_dwordx2 s[{S_K}:{S_K+1}], s[50:51], 8")
    I(f"s_load_dwordx2 s[{S_V}:{S_V+1}], s[50:51], 16")
    I(f"s_load_dwordx2 s[{S_WO}:{S_WO+1}], s[50:51], 32")
    I(f"s_load_dwordx2 s[{S_PT}:{S_PT+1}], s[0:1], 96")
    I(f"s_load_dwordx4 s[{sDBG}:{sDBG+3}], s[0:1], 88")
    I("v_lshrrev_b32 v1, 6, v0"); I("v_and_b32 v0, 63, v0")
    I(f"v_readfirstlane_b32 s{sWAVE}, v1")
    I(f"s_lshl_b32 s4, s3, 1"); I(f"s_add_u32 s4, s4, s{sHH}")
    I(f"s_bfe_u32 s{sA}, s2, 0x20003"); I(f"s_lshl_b32 s{sA}, s{sA}, 1"); I(f"s_add_u32 s{sROT}, s7, s{sA}")
    I(f"s_cmp_ge_u32 s{sROT}, 7"); I(f"s_cselect_b32 s{sA}, 7, 0"); I(f"s_sub_u32 s{sROT}, s{sROT}, s{sA}")
    I(f"s_and_b32 s{sW4}, s{sWAVE}, 3")
    I(f"s_cmp_eq_u32 s7, 7"); I(f"s_cselect_b32 s{sROTO}, 0, s7")
    I(f"s_mul_i32 s{sWLDS}, s{sW4}, {4*PIECE}")
    I(f"s_mov_b32 s{sC}, 0x3db8aa3b"); I(f"s_mov_b32 s{sT}, 0x41000000")
    vXD, vWD, vXA0, vXA1, vQA, t0, t1 = 1, 2, 3, 4, 5, 6, 7
    I(f"v_lshrrev_b32 v{vXD}, 3, v0"); I(f"v_mul_u32_u24 v{vXD}, 896, v{vXD}")
    I(f"v_lshrrev_b32 v{t0}, 4, v0"); I(f"v_lshlrev_b32 v{t0}, 1, v{t0}"); I(f"v_and_b32 v{t1}, 7, v0"); I(f"v_xor_b32 v{t0}, v{t0}, v{t1}")
    I(f"v_lshl_add_u32 v{vXD}, v{t0}, 4, v{vXD}")
    I(f"v_lshrrev_b32 v{t0}, 5, v0"); I(f"v_lshlrev_b32 v{vWD}, 15, v{t0}"); I(f"v_and_b32 v{t0}, 31, v0")
    I(f"v_lshl_add_u32 v{vWD}, v{t0}, 4, v{vWD}")
    I(f"s_lshl_b32 s{sPOFF}, s{sROT}, 19"); I(f"s_lshl_b32 s{sE}, s{sWAVE}, 16")
    I(f"s_lshl_b32 s{sXOFF}, s{sROT}, 7"); I(f"s_mul_i32 s{sB2}, s{sWAVE}, {16*896}")
    I(f"s_lshl_b32 s{sXLDS}, s{sWAVE}, 11")
    I(f"s_lshr_b32 s{sD}, s{sWAVE}, 2"); I(f"s_mul_i32 s{sD}, s{sD}, {SLOT}"); I(f"s_add_u32 s53, s{sD}, s{sWLDS}")
    I("s_waitcnt lgkmcnt(0)")
    if pstamp: stamp(E, 1)
    def srd(r, off_sgpr, size):
        I(f"s_add_u32 s{r}, s{r}, s{off_sgpr}"); I(f"s_addc_u32 s{r+1}, s{r+1}, 0")
        if isinstance(size, int): I(f"s_mov_b32 s{r+2}, {size}")
        else: I(size)
        I(f"s_mov_b32 s{r+3}, 0x20000")
    I(f"s_mul_i32 s{sA}, s7, 100352"); srd(S_X, sA, 100352)
    I(f"s_lshl_b32 s{sA}, s4, 9"); srd(S_WQ, sA, f"s_sub_u32 s{S_WQ+2}, {448*8192}, s{sA}")
    def qfill_ops(e, i):
        if noqf and i >= 3: return []
        xs, wa, wb = QSETS[i % 3]
        assert wb == wa + SLOT
        ops = []
        for j in range(2):
            def f(j=j):
                e.I(f"s_add_u32 m0, s{sXLDS}, {xs + j*1024}")
                e.I(f"s_add_u32 s{sD}, s{sXOFF}, s{sB2}" if j == 0 else f"s_add_u32 s{sD}, s{sD}, {8*896}")
                e.vmem(f"buffer_load_dwordx4 v{vXD}, s[{S_X}:{S_X+3}], s{sD} offen lds", ("QF", i))
            ops.append(f)
        for j in range(4):
            def f(j=j):
                e.I(f"s_add_u32 m0, s53, {wa + j*PIECE}")
                e.I(f"s_add_u32 s{sD}, s{sPOFF}, s{sE}" if j == 0 else f"s_add_u32 s{sD}, s{sD}, 8192")
                e.vmem(f"buffer_load_dwordx4 v{vWD}, s[{S_WQ}:{S_WQ+3}], s{sD} offen lds", ("QF", i))
                if j == 3:
                    e.I(f"s_add_u32 s{sPOFF}, s{sPOFF}, {1<<19}"); e.I(f"s_add_u32 s{sXOFF}, s{sXOFF}, 128")
                    e.I(f"s_cmp_eq_u32 s{sXOFF}, 896"); e.I(f"s_cselect_b32 s{sPOFF}, 0, s{sPOFF}"); e.I(f"s_cselect_b32 s{sXOFF}, 0, s{sXOFF}")
            ops.append(f)
        return ops
    if fuse:
        I(f"s_cmp_lg_u32 s{sWAVE}, 3"); I("s_cbranch_scc1 L_noclr")
        I(f"s_lshl_b32 s{sA}, s5, 5"); I(f"s_add_u32 s{sA}, s{sA}, s4"); I(f"s_lshl_b32 s{sA}, s{sA}, 2"); I(f"s_add_u32 s{sA}, s{sA}, {FOFF}")
        I(f"v_mov_b32 v12, s{sA}"); I("v_mov_b32 v13, 0")
        I("s_mov_b64 exec, 1")
        I(f"global_store_dword v12, v13, s[{sWS}:{sWS+1}] sc1")
        I("s_mov_b64 exec, -1")
        E.lab("L_noclr")
    for _ in range(pad): I("s_nop 0")
    if ipf:
        I("s_getpc_b64 s[56:57]")
        E.lab("L_pc")
        I(f"s_lshl_b32 s{sA}, s{sWAVE}, 13"); I(f"v_lshl_add_u32 v{t0}, v0, 7, s{sA}")
        I(f"s_min_u32 s{sA}, s{sA}, s{sA}")
        I(f"v_min_u32 v{t0}, L_code_end-L_pc-4, v{t0}")
        E.vmem(f"global_load_dword v15, v{t0}, s[56:57]", ("QF", -1))
    for i in range(qpre): E.items(qfill_ops(E, i))
    if pstamp: stamp(E, 2)
    I(f"s_lshl_b32 s{sA}, s7, 3"); I(f"s_add_u32 s{sA}, s{sA}, s3"); I(f"s_lshl_b32 s{sA}, s{sA}, 20")
    srd(S_K, sA, 1 << 20); srd(S_V, sA, 1 << 20)
    I(f"s_mul_i32 s{sA}, s4, {256*896}"); srd(S_WO, sA, 256 * 896)
    I(f"s_lshl_b32 s{sA}, s5, 4"); I(f"s_add_u32 s{sA}, s{sA}, s4"); I(f"s_mul_i32 s{sA}, s{sA}, {PART_HEAD}"); srd(S_PT, sA, PART_HEAD)
    I(f"v_and_b32 v{t0}, 15, v0"); I(f"v_lshlrev_b32 v{vXA0}, 7, v{t0}")
    I(f"v_and_b32 v{t0}, 6, v0"); I(f"v_lshrrev_b32 v{t1}, 4, v0"); I(f"v_xor_b32 v{t0}, v{t0}, v{t1}")
    I(f"v_lshl_add_u32 v{vXA0}, v{t0}, 4, v{vXA0}"); I(f"v_xor_b32 v{vXA1}, 64, v{vXA0}")
    def tr_lane(e, dst, tmp, sh):
        e.I(f"v_lshrrev_b32 v{dst}, 2, v0"); e.I(f"v_mul_u32_u24 v{dst}, {PIECE}, v{dst}")
        e.I(f"v_and_b32 v{tmp}, 3, v0"); e.I(f"v_lshl_add_u32 v{dst}, v{tmp}, {sh}, v{dst}")
    tr_lane(E, vQA, t0, 4)
    I(f"s_lshl_b32 s{sA}, s{sWAVE}, 6"); I(f"v_add_u32 v{vQA}, s{sA}, v{vQA}")
    vDM = 8
    I(f"v_and_b32 v{vDM}, 31, v0"); I(f"v_lshlrev_b32 v{vDM}, 4, v{vDM}")
    I(f"v_lshrrev_b32 v{t0}, 5, v0"); I(f"v_lshl_add_u32 v{vDM}, v{t0}, 13, v{vDM}")
    I(f"s_lshl_b32 s{sKOFF}, s{sW4}, 11"); I(f"s_add_u32 s{sVOFF}, s{sKOFF}, {0 if hot else 16384}"); I(f"s_add_u32 s{sKOFF}, s{sKOFF}, {0 if hot else 32768}")
    I(f"v_lshlrev_b32 v{t0}, 2, v0"); I(f"v_add_u32 v{t0}, {FLG}, v{t0}"); I(f"v_mov_b32 v{t1}, 0")
    E.lds(f"ds_write_b32 v{t0}, v{t1}", ("F",))
    def kv_piece(e, kind, j, i):
        if nodma and j >= 4: return
        ring, srd_, off = (KRING, S_K, sKOFF) if kind == "K" else (VRING, S_V, sVOFF)
        e.I(f"s_add_u32 m0, s{sWLDS}, {slot(ring[j % 4]) + i*(PIECE-512)}")
        e.I("s_nop 0")
        e.vmem(f"buffer_load_dwordx4 v{vDM}, s[{srd_}:{srd_+3}], s{off} offen offset:{i*512}{NT_} lds", (kind, j))
        if i == 3 and not hot: e.I(f"s_add_u32 s{off}, s{off}, 16384")
    QA, QB_, QACC, QP = 16, 32, 96, 152
    def qproj(E, lag):
        I = E.I
        bx0, bx1, bq = Base(E, vXA0), Base(E, vXA1), Base(E, vQA)
        def fin(z):
            ops = [f"v_pk_mul_f32 {vr(QACC+8*z+2*n,2)}, {vr(QACC+8*z+2*n,2)}, s[{sC}:{sC+1}] op_sel_hi:[1,0]" for n in range(4)]
            ops += [f"v_cvt_pk_bf16_f32 v{QP+4*z+n}, v{QACC+8*z+2*n}, v{QACC+8*z+2*n+1}" for n in range(4)]
            def wr():
                off = QBUF[z]
                if off > 60000: I(f"v_add_u32 v{t0}, {off}, v{t0}"); off = 0
                E.lds(f"ds_write_b128 v{t0}, {vr(QP+4*z,4)} offset:{off}", ("QW",))
            return ops + [wr]
        def pair(i, kk, z):
            E.wl(("A", i, kk), ("B", i, kk, z))
            for b in range(2):
                I(mfma(QACC + 8 * z + 4 * b, QA + 8 * kk + 4 * b, QB_ + 28 * kk + 4 * z, 0 if (i == 0 and kk == 0) else None))
        def last_half(i):
            I(f"v_lshlrev_b32 v{t0}, 4, v0"); I(f"s_lshl_b32 s{sA}, s{sWAVE}, 10"); I(f"v_add_u32 v{t0}, s{sA}, v{t0}")
            for z in range(7):
                pair(i, 1, z)
                if z >= 3: E.items(fin(z - 3))
            E.items(fin(4)); E.items(fin(5)); E.items(fin(6))
        if qprio is not None and lag == qprio: I("s_setprio 1")
        for i in range(7):
            E.wv(("QF", i))
            if i == 0 or lag: E.wl0()
            E.bar()
            if i == 0 and not lag and not otrace: stamp(E, 1)
            if qtrace and not lag and i >= 1: stamp(E, 1 + i)
            if fuse and i == 1 and not lag:
                I(f"s_cmp_lg_u32 s{sWAVE}, 3"); I("s_cbranch_scc1 L_noclr2")
                I(f"s_lshr_b32 s{sD}, s2, 5"); I(f"s_lshl_b32 s{sD}, s{sD}, 5"); I(f"v_mov_b32 v12, s{sD}")
                I(f"s_and_b32 s{sA}, s2, 31"); I(f"s_lshl_b32 s{sA}, 1, s{sA}"); I(f"v_mov_b32 v13, s{sA}")
                I("s_mov_b64 exec, 1")
                I(f"global_atomic_or v12, v13, s[{sDBG}:{sDBG+1}] sc1")
                I("s_mov_b64 exec, -1")
                if tlbw:
                    I(f"s_load_dwordx2 s[{sOUT}:{sOUT+1}], s[0:1], 80")
                    I(f"v_mul_u32_u24 v12, {PART_HEAD}, v0"); I(f"s_mul_i32 s{sA}, s{sPB}, {16*PART_HEAD}"); I(f"v_add_u32 v12, s{sA}, v12")
                    I("s_mov_b64 exec, 0xffff")
                    I(f"global_load_dword v13, v12, s[{sWS}:{sWS+1}]")
                    I("s_mov_b64 exec, 3")
                    I(f"v_mul_u32_u24 v12, {256*896-4}, v0")
                    I(f"buffer_load_dword v13, v12, s[{S_WO}:{S_WO+3}], 0 offen")
                    I(f"v_mul_u32_u24 v12, {112*1792-4}, v0"); I(f"s_and_b32 s{sA}, s{sPB}, 7"); I(f"s_mul_i32 s{sA}, s{sA}, {112*1792}"); I(f"v_add_u32 v12, s{sA}, v12")
                    I("s_waitcnt lgkmcnt(0)")
                    I(f"global_load_dword v13, v12, s[{sOUT}:{sOUT+1}]")
                    I("s_mov_b64 exec, -1")
                E.lab("L_noclr2")
            xs, wa, wb = QSETS[i % 3]
            bx0.set(xs); bx1.set(xs); bq.set(wa)
            def rda(kk):
                for b in range(2):
                    for u in range(2):
                        E.lds(f"ds_read_b64_tr_b16 {vr(QA+8*kk+4*b+2*u,2)}, v{vQA} offset:{kk*SLOT + u*512 + b*8}", ("A", i, kk))
            def rdb(kk, z):
                E.lds(f"ds_read_b128 {vr(QB_+28*kk+4*z,4)}, v{vXA1 if kk else vXA0} offset:{z*2048}", ("B", i, kk, z))
            fl = []
            if i >= 1 and i + 2 < 7: fl = qfill_ops(E, i + 2)
            if i == 0 and qpre < 3: fl = sum([qfill_ops(E, k) for k in range(qpre, 3)], [])
            if i == 5:
                I(f"s_lshl_b32 s{sE}, s{sWAVE}, 10"); I(f"s_mul_i32 s{sB2}, s{sWAVE}, {2*PIECE}")
                def pre(kind, j, i_):
                    ring, srd_ = (KRING, S_K) if kind == "K" else (VRING, S_V)
                    I(f"s_add_u32 m0, s{sB2}, {slot(ring[j]) + i_*(PIECE-512)}")
                    I(f"s_add_u32 s{sD}, s{sE}, {j*16384}")
                    E.vmem(f"buffer_load_dwordx4 v{vDM}, s[{srd_}:{srd_+3}], s{sD} offen offset:{i_*512}{NT_} lds", (kind, j))
                fl = [(lambda k=k, j=j, i_=i_: pre(k, j, i_)) for k, j in (("K", 0), ("K", 1), ("V", 0)) for i_ in range(2)]
            fil = spread(14, fl, 0, 9) if fl else [[] for _ in range(14)]
            if not lag:
                rda(0)
                for z in range(5): rdb(0, z)
                order = [(kk, z) for kk in range(2) for z in range(7)]
                for n, (kk, z) in enumerate(order):
                    if i == 6 and kk == 1: break
                    pair(i, kk, z)
                    if n == 0: rda(1)
                    if n + 5 < 14: rdb(*order[n + 5])
                    E.items(fil[n])
                if i == 6:
                    for z in range(5, 7): rdb(1, z)
                    last_half(6)
            else:
                n = 0
                if i > 0:
                    for z in range(7):
                        pair(i - 1, 1, z)
                        if z == 0: rda(0)
                        if z >= 1: rdb(0, z - 1)
                        E.items(fil[n]); n += 1
                    rdb(0, 6)
                else:
                    rda(0)
                    for z in range(7): rdb(0, z)
                rda(1)
                for z in range(7):
                    pair(i, 0, z)
                    rdb(1, z)
                    E.items(fil[n]); n += 1
                for k in range(n, 14): E.items(fil[k])
                if i == 6: last_half(6)
        if qprio is not None and lag == qprio: I("s_setprio 0")
        I(f"s_mov_b32 s{sBLK}, 0")
    I(f"s_cmp_ge_u32 s{sWAVE}, 4"); I("s_cbranch_scc1 L_owave")
    O = E.fork()
    qproj(E, 0)

    kfree = [slot(KRING[(NB - 4 + i) % 4]) for i in range(4)]
    vs = [slot(VRING[(NB - 4 + i) % 4]) for i in range(4)]
    WOSLOT = kfree + [vs[0], TSLOT, vs[1], vs[2], vs[3]]
    WOSLOT += [WOSLOT[i] for i in range(5)]
    OBUF = [vs[2], vs[2] + 8192, vs[3], vs[3] + 8192, vs[1], vs[1] + 8192, SPARE]
    def set_flag(e, level):
        e.I(f"s_lshl_b32 s{sA}, s{sPB}, 5"); e.I(f"s_add_u32 s{sA}, s{sA}, s{sHEAD}"); e.I(f"s_lshl_b32 s{sA}, s{sA}, 2"); e.I(f"s_add_u32 s{sA}, s{sA}, {FOFF}")
        e.I(f"v_mov_b32 v10, s{sA}"); e.I(f"v_mov_b32 v11, {level}")
        e.I("s_mov_b64 exec, 1")
        e.I(f"global_store_dword v10, v11, s[{sWS}:{sWS+1}] sc1")
        e.I("s_mov_b64 exec, -1")
    def oproj(e, role, fills_at):
        I = e.I
        vTA, vST, vT, RLR, AF, PK, ACC, BF = 1, 2, 3, 4, 16, 32, 40, 72
        zs = [0, 1, 2, 3] if role == 0 else [4, 5, 6]
        nz = len(zs)
        I(f"v_lshlrev_b32 v{vT}, 4, v0")
        I(f"v_and_b32 v{vST}, 15, v0"); I(f"v_lshlrev_b32 v{vST}, 2, v{vST}"); I(f"v_add_u32 v{vST}, {RL}, v{vST}")
        for a, z in enumerate(zs): e.lds(f"ds_read_b32 v{RLR+a}, v{vST} offset:{z*64}", ("R",))
        tr_lane(e, vTA, vST, 3)
        I(f"s_lshl_b32 s{sA}, s{sW4}, 5"); I(f"v_add_u32 v{vTA}, s{sA}, v{vTA}")
        I(f"s_lshl_b32 s{sA}, s{sWAVE}, 11"); I(f"v_add_u32 v{vST}, s{sA}, v{vT}")
        if role: I(f"v_lshlrev_b32 v8, 3, v0"); I(f"v_add_u32 v8, s{sA}, v8")
        I(f"s_mov_b32 s{sSTRIP}, s{sROTO}")
        ba, bb = Base(e, vTA), Base(e, vT)
        seq = [(j, kp) for j in range(7) for kp in range(8)]
        def rd(n):
            j, kp = seq[n]
            ba.set(WOSLOT[2 * j + kp // 4])
            for u in range(2):
                e.lds(f"ds_read_b64_tr_b16 {vr(AF+4*(n%4)+2*u,2)}, v{vTA} offset:{(2*(kp%4)+u)*128}", ("A", n))
        def rdB(kp):
            for a, z in enumerate(zs):
                base = OBUF[z - (z - zs[0]) % 2] if False else OBUF[z]
                lo = min(OBUF[zz] for zz in zs)
                if base - bb.cur < 0 or base - bb.cur + kp * 1024 > 65535: bb.set(base)
                e.lds(f"ds_read_b128 {vr(BF+32*a+4*kp,4)}, v{vT} offset:{base - bb.cur + kp*1024}", ("B", kp, a))
        def fin(j):
            acc = ACC + 16 * (j % 2)
            ops = []
            for a in range(nz):
                ops += [f"v_mul_f32 v{acc+4*a+r}, v{RLR+a}, v{acc+4*a+r}" for r in range(4)]
                ops += [f"v_cvt_pk_bf16_f32 v{PK+2*a+n}, v{acc+4*a+2*n}, v{acc+4*a+2*n+1}" for n in range(2)]
            def st():
                if nost: return
                fl = " nt" if stnt else ""
                if stfl: fl = " " + stfl
                I(f"s_lshl_b32 s{sA}, s{sSTRIP}, 14")
                I(f"s_add_u32 s{sSTRIP}, s{sSTRIP}, 1")
                e.vmem(f"buffer_store_dwordx4 {vr(PK,4)}, v{vST}, s[{S_PT}:{S_PT+3}], s{sA} offen{fl}", ("ST", j))
                if nz == 4: e.vmem(f"buffer_store_dwordx4 {vr(PK+4,4)}, v{vST}, s[{S_PT}:{S_PT+3}], s{sA} offen offset:1024{fl}", ("ST", j))
                else: e.vmem(f"buffer_store_dwordx2 {vr(PK+4,2)}, v8, s[{S_PT}:{S_PT+3}], s{sA} offen offset:1024{fl}", ("ST", j))
                I(f"s_cmp_eq_u32 s{sSTRIP}, 7"); I(f"s_cselect_b32 s{sSTRIP}, 0, s{sSTRIP}")
            ops.append(st)
            return ops
        rd(0); rdB(0); rd(1); rdB(1); rd(2); rd(3)
        for j in range(7):
            fl = fin(j - 1) if j else []
            fil = spread(8 * nz, fl, 2 * nz, 8 * nz - 1) if fl else [[] for _ in range(8 * nz)]
            fl = fills_at(e, ("post", j))
            if fl:
                f2 = spread(8 * nz, fl, 0, min(8 * nz - 1, len(fl) - 1))
                fil = [a + b for a, b in zip(f2, fil)]
            for kp in range(8):
                n = 8 * j + kp
                for a in range(nz):
                    e.wl(("A", n), ("B", kp, a))
                    I(mfma(ACC + 16 * (j % 2) + 4 * a, AF + 4 * (n % 4), BF + 32 * a + 4 * kp, 0 if kp == 0 else None))
                    if a == nz - 1:
                        if j == 0 and kp + 2 < 8: rdB(kp + 2)
                        if n + 4 < len(seq): rd(n + 4)
                    e.items(fil[kp * nz + a])
            if j < 6:
                fills_at(e, ("pre", j + 1))
                if fuse and j == L1 + 1: e.wv(("ST", L1 - 1))
                e.bar()
                if fuse and j == L1 + 1 and role == 0:
                    I(f"s_cmp_lg_u32 s{sWAVE}, 3"); I("s_cbranch_scc1 L_nofl1")
                    set_flag(e, 1)
                    e.lab("L_nofl1")
                if otrace and role == 0: stamp0(e, 2 + j)
        I("s_nop 7")
        e.wl(("R",))
        e.items(fin(6))

    npoll = [0]
    def spin(e, load, test):
        k = npoll[0]; npoll[0] += 1
        e.I(f"s_mov_b32 s{sE}, 0x8000")
        e.lab(f"L_poll{k}")
        e.I(load); e.I("s_waitcnt vmcnt(0)")
        for t in test: e.I(t)
        e.I(f"s_cbranch_scc1 L_polled{k}")
        e.I(f"s_sleep {slp}"); e.I(f"s_sub_u32 s{sE}, s{sE}, 1"); e.I(f"s_cmp_lg_u32 s{sE}, 0"); e.I(f"s_cbranch_scc1 L_poll{k}")
        e.lab(f"L_polled{k}")
    def final_reduce(e):
        I = e.I
        LD, AC = 80, 72
        I(f"s_load_dwordx2 s[12:13], s[0:1], 80")
        I(f"s_add_u32 s7, s{sROTO}, s{sWAVE}"); I("s_cmp_ge_u32 s7, 7"); I("s_cselect_b32 s16, 7, 0"); I("s_sub_u32 s7, s7, s16")
        I(f"s_lshl_b32 s7, s7, 4"); I(f"s_add_u32 s7, s7, s{sHEAD}")
        I(f"s_mul_i32 s17, s{sPB}, {16*PART_HEAD}"); I("s_lshl_b32 s18, s7, 10"); I("s_add_u32 s17, s17, s18")
        I(f"s_add_u32 s8, s{sWS}, s17"); I(f"s_addc_u32 s9, s{sWS+1}, 0"); I(f"s_mov_b32 s10, {15*PART_HEAD + 1024}"); I("s_mov_b32 s11, 0x20000")
        I("s_and_b32 s25, s7, 9"); I("s_cmp_eq_u32 s25, 9"); I("s_cselect_b32 s25, 3, 4")
        I("v_lshlrev_b32 v12, s25, v0")
        I(f"s_lshl_b32 s{sA}, s{sPB}, 7"); I(f"s_add_u32 s{sA}, s{sA}, {FOFF}")
        I("v_and_b32 v13, 15, v0"); I(f"v_lshl_add_u32 v14, v13, 2, s{sA}")
        def loads():
            I("s_mov_b32 s19, 0")
            for h in range(16):
                I(f"buffer_load_dwordx4 {vr(LD+4*h,4)}, v12, s[8:11], s19 offen sc1")
                if h < 15: I(f"s_add_u32 s19, s19, {PART_HEAD}")
        def wait_flags(level):
            spin(e, f"global_load_dword v15, v14, s[{sWS}:{sWS+1}] sc1", [f"v_cmp_gt_u32 vcc, {level}, v15", "s_nop 1", "s_cmp_eq_u64 vcc, 0"])
        I(f"s_cmp_ge_u32 s{sWAVE}, {L1}"); I("s_cbranch_scc1 L_late")
        wait_flags(1)
        if ftrace: stamp0(e, 4)
        loads()
        I("s_branch L_z1")
        e.lab("L_late")
        I("s_waitcnt vmcnt(0)")
        e.lab("L_z1")
        e.bar()
        if ftrace: stamp0(e, 5)
        I(f"s_cmp_lg_u32 s{sWAVE}, 7"); I("s_cbranch_scc1 L_nopoll")
        set_flag(e, 2)
        wait_flags(2)
        e.lab("L_nopoll")
        I("s_bfe_u32 s20, s7, 0x10003"); I("s_lshl_b32 s20, s20, 1"); I("s_and_b32 s21, s7, 1"); I("s_add_u32 s20, s20, s21")
        I(f"s_and_b32 s22, s{sPB}, 7"); I("s_mul_i32 s22, s22, 112"); I("s_lshl_b32 s23, s20, 5"); I("s_add_u32 s22, s22, s23")
        I("v_add_u32 v3, s22, v13"); I("v_mul_u32_u24 v3, 1792, v3")
        I(f"s_lshr_b32 s22, s{sPB}, 3"); I("s_mul_i32 s22, s22, 896"); I("s_lshr_b32 s23, s7, 4"); I("s_lshl_b32 s23, s23, 7"); I("s_add_u32 s22, s22, s23")
        I("s_bfe_u32 s23, s7, 0x20001"); I("s_lshl_b32 s23, s23, 5"); I("s_add_u32 s22, s22, s23")
        I("v_lshrrev_b32 v4, 4, v0"); I("v_lshl_add_u32 v3, v4, 3, v3"); I("v_add_u32 v3, s22, v3")
        I(f"s_mov_b32 s24, {16*1792}"); I("s_mov_b32 s26, 0x3f80"); I("s_mov_b32 s27, 0x3f800000")
        I("s_waitcnt lgkmcnt(0)")
        I(f"s_mov_b32 s14, {8*112*896*2}"); I("s_mov_b32 s15, 0x20000")
        def summ(tag):
            for h in range(16):
                I(f"s_waitcnt vmcnt({15-h})")
                for d_ in range(4):
                    src = LD + 4 * h + d_
                    if h == 0:
                        I(f"v_lshlrev_b32 v{AC+2*d_}, 16, v{src}"); I(f"v_and_b32 v{AC+1+2*d_}, 0xffff0000, v{src}")
                    elif dot:
                        I(f"v_dot2_f32_bf16 v{AC+2*d_}, v{src}, s26, v{AC+2*d_}"); I(f"v_dot2_f32_bf16 v{AC+1+2*d_}, v{src}, s27, v{AC+1+2*d_}")
                    else:
                        I(f"v_lshlrev_b32 v5, 16, v{src}"); I(f"v_and_b32 v6, 0xffff0000, v{src}")
                        I(f"v_add_f32 v{AC+2*d_}, v{AC+2*d_}, v5"); I(f"v_add_f32 v{AC+1+2*d_}, v{AC+1+2*d_}, v6")
            I("s_nop 2")
            for d_ in range(4): I(f"v_cvt_pk_bf16_f32 v{16+d_}, v{AC+2*d_}, v{AC+1+2*d_}")
            I("buffer_store_dwordx2 v[16:17], v3, s[12:15], 0 offen")
            I("s_cmp_eq_u32 s20, 3"); I(f"s_cbranch_scc1 L_rlast{tag}")
            I("buffer_store_dwordx2 v[18:19], v3, s[12:15], s24 offen")
            e.lab(f"L_rlast{tag}")
        e.bar()
        if ftrace: stamp0(e, 6)
        I(f"s_cmp_eq_u32 s{sWAVE}, 7"); I("s_cbranch_scc1 L_done")
        I(f"s_cmp_lt_u32 s{sWAVE}, {L1}"); I("s_cbranch_scc1 L_sum")
        loads()
        e.lab("L_sum")
        summ("")
        if ftrace: stamp0(e, 7)
        if diag: I("s_waitcnt vmcnt(0)"); I("s_barrier")

    LOOP0, LOOPN = 5, 61
    rare_s = []
    stamp0 = stamp
    if qtrace: stamp = lambda e, k: (stamp0(e, 8) if k == 2 else None)
    if otrace: stamp = lambda e, k: (stamp0(e, 8) if k == 8 else stamp0(e, 1) if k == 6 else None)
    if ftrace: stamp = lambda e, k: (stamp0(e, {6: 2, 7: 3, 8: 8}[k]) if k in (6, 7, 8) else None)
    if pstamp:
        stamp0 = stamp
        stamp = lambda e, k: (stamp0(e, k) if k == 8 else None)
    def swave(S, NZ, tag):
        I = S.I
        vKA, vPW, vAW, vL, vT0, vT1, vT2 = 1, 2, 3, 6, 9, 11, 13
        Q0, SA, SB, PO, EX, NM, KF = 16, 80, 96, 112, 120, 136, 144
        NKF = nkf
        I(f"v_lshlrev_b32 v{vPW}, 4, v0")
        if NZ == 2:
            I(f"s_mul_i32 s{sA}, s{sW4}, {SLOT}"); I(f"v_add_u32 v{vT0}, s{sA}, v{vPW}")
        else:
            I(f"v_add_u32 v{vT0}, {QBUF[6]}, v{vPW}")
        I(f"v_and_b32 v{vKA}, 15, v0"); I(f"v_mul_u32_u24 v{vKA}, {PIECE}, v{vKA}")
        I(f"v_lshrrev_b32 v{vT1}, 4, v0"); I(f"v_lshl_add_u32 v{vKA}, v{vT1}, 4, v{vKA}")
        I(f"s_lshl_b32 s{sA}, s{sW4}, 11"); I(f"v_add_u32 v{vPW}, s{sA}, v{vPW}")
        I(f"v_and_b32 v{vAW}, 15, v0"); I(f"v_lshlrev_b32 v{vAW}, 2, v{vAW}")
        I(f"s_lshl_b32 s{sA}, s{sW4}, 7"); I(f"s_add_u32 s{sA}, s{sA}, {ALPHA}"); I(f"v_add_u32 v{vAW}, s{sA}, v{vAW}")
        for a in range(NZ):
            I(f"v_mov_b32 v{vL+a}, 0")
            for r in range(4): I(f"v_mov_b32 v{NM+4*a+r}, 0")
        I(f"s_mov_b32 s{sT}, 0x40004000")
        if NZ == 1: I(f"s_mov_b32 s{sKOFF}, {0 if hot else 32768}")
        if prio == "S": I("s_setprio 1")
        S.wl0(); S.wv(("K", 0), ("K", 1))
        S.bar()
        stamp(S, 2)
        bk = Base(S, vKA)
        def rdk(p, n):
            bk.set(slot(KRING[p % 4]))
            S.lds(f"ds_read_b128 {vr(KF+4*(n%NKF),4)}, v{vKA} offset:{(n%2)*512 + (n//2)*64}", ("K", p, n))
        nv = 8 * NZ
        def exp_cvt(sp):
            ops = []
            for k in range(nv + 3):
                if k < nv: ops.append(f"v_exp_f32 v{EX+k}, v{sp+k}")
                if k >= 3 and k % 2 == 1: ops.append(f"v_cvt_pk_bf16_f32 v{PO+(k-3)//2}, v{EX+k-3}, v{EX+k-2}")
            return ops
        def rare_body(kind):
            sub = []
            par = int(kind[1])
            first = kind[0] == "f"
            sp, cur = (SA, SB) if par == 0 else (SB, SA)
            sub.append(f"L_rare_s{tag}_{kind}:")
            for a in range(NZ):
                b = sp + 8 * a
                sub.append(f"v_max3_f32 v{vT0+a}, v{b}, v{b+1}, v{b+2}")
                sub.append(f"v_max3_f32 v{vT0+a}, v{vT0+a}, v{b+3}, v{b+4}")
                sub.append(f"v_max3_f32 v{vT0+a}, v{vT0+a}, v{b+5}, v{b+6}")
                sub.append(f"v_max_f32 v{vT0+a}, v{vT0+a}, v{b+7}")
            for sw in ("v_permlane16_swap_b32", "v_permlane32_swap_b32"):
                for a in range(NZ): sub.append(f"v_mov_b32 v{vT1+a}, v{vT0+a}")
                sub.append("s_nop 1")
                for a in range(NZ): sub.append(f"{sw} v{vT0+a}, v{vT1+a}")
                for a in range(NZ): sub.append(f"v_max_f32 v{vT0+a}, v{vT0+a}, v{vT1+a}")
            for a in range(NZ):
                sub.append(f"v_sub_f32 v{vT0+a}, 0xc0e00000, v{vT0+a}")
                if not first:
                    sub.append(f"v_min_f32 v{vT0+a}, 0, v{vT0+a}")
                    sub.append(f"v_exp_f32 v{vT1+a}, v{vT0+a}")
                for r in range(4): sub.append(f"v_add_f32 v{NM+4*a+r}, v{NM+4*a+r}, v{vT0+a}")
                for r in range(8): sub.append(f"v_add_f32 v{sp+8*a+r}, v{sp+8*a+r}, v{vT0+a}")
                if kind[0] != "n":
                    for r in range(8): sub.append(f"v_add_f32 v{cur+8*a+r}, v{cur+8*a+r}, v{vT0+a}")
                if not first:
                    sub.append(f"v_mul_f32 v{vL+a}, v{vL+a}, v{vT1+a}")
                    sub.append(f"ds_write_b32 v{vAW}, v{vT1+a} offset:{par*448 + a*64}")
            sub += exp_cvt(sp)
            if not first:
                sub.append(f"s_lshl_b32 s{sA}, s{sW4}, 3"); sub.append(f"s_add_u32 s{sA}, s{sA}, {FLG + par*128}")
                sub.append(f"v_mov_b32 v{vT0}, s{sA}"); sub.append(f"v_mov_b32 v{vT2}, s{sBLK}")
                for a in range(NZ): sub.append(f"ds_write_b32 v{vT0}, v{vT2} offset:{4*a}")
            sub.append("s_waitcnt lgkmcnt(0)")
            sub.append(f"s_setpc_b64 s[{sRET}:{sRET+1}]")
            return sub
        def softmax_ops(p):
            sp = SB if p % 2 == 0 else SA
            par = (p - 1) % 2
            ops = exp_cvt(sp)
            ops.append(f"v_or3_b32 v{vT0}, v{PO}, v{PO+1}, v{PO+2}")
            nhead = None
            if NZ == 2:
                ops.append(f"v_or3_b32 v{vT1}, v{PO+3}, v{PO+4}, v{PO+5}")
                ops.append(f"v_or3_b32 v{vT0}, v{vT0}, v{PO+6}, v{PO+7}")
                ops.append(f"v_or_b32 v{vT0}, v{vT0}, v{vT1}")
            else:
                ops.append(f"v_or_b32 v{vT0}, v{vT0}, v{PO+3}")
            ops.append(f"v_and_b32 v{vT0}, s{sT}, v{vT0}")
            kind = ("q" if p < NB else "n") + str(par)
            def check():
                I(f"s_add_u32 s{sBLK}, s{sBLK}, 1")
                if p == 1:
                    for l in rare_body("f0")[1:-2]: I(l)
                else:
                    I(f"v_cmp_ne_u32 vcc, 0, v{vT0}")
                    I(f"s_cbranch_vccnz L_stub_s{tag}_{p}")
                    S.lab(f"L_back_s{tag}_{p}")
                    rare_s.append((tag, p, kind))
            if p == 1: ops = []
            ops.append(check)
            for a in range(NZ):
                ops.append(lambda a=a: S.lds(f"ds_write_b128 v{vPW}, {vr(PO+4*a,4)} offset:{par*7168 + a*1024}", ("P", a)))
            for k in range(nv): ops.append(f"v_add_f32 v{vL+(k%NZ)}, v{vL+(k%NZ)}, v{EX+8*(k%NZ)+k//NZ}")
            if nosm: return [o for o in ops if callable(o)][1:]
            return ops
        def k_piece(j, k):
            if nodma and j >= 4: return
            if k == 8: I(f"s_add_u32 s{sKOFF}, s{sKOFF}, 4096")
            I(f"s_mov_b32 m0, {slot(KRING[j % 4]) + k*PIECE - (k%8)*512}")
            I("s_nop 0")
            S.vmem(f"buffer_load_dwordx4 v{vDM}, s[{S_K}:{S_K+3}], s{sKOFF} offen offset:{(k%8)*512}{NT_} lds", ("K", j))
            if k == 15: I(f"s_add_u32 s{sKOFF}, s{sKOFF}, {-4096 & 0xffffffff if hot else 12288}")
        loader = s3k and NZ == 1
        def s_phase(p):
            cur = SA if p % 2 == 0 else SB
            do_qk, do_sm = p < NB, p >= 1
            sm = softmax_ops(p) if do_sm else []
            kf = []
            if loader:
                for j in ([2, 3] if p == 0 else [p + 3]):
                    if j < NB: kf += [(lambda j=j, k=k: k_piece(j, k)) for k in range(16)]
            if do_qk:
                if p == 0:
                    for a in range(NZ):
                        for ks in range(2): S.lds(f"ds_read_b128 {vr(Q0+32*a+4*ks,4)}, v{vT0} offset:{a*8192 + ks*1024}", ("Q", a, ks))
                if p in (0, 2):
                    for n in range(NKF - 2): rdk(p, n)
                if p == 0:
                    for ks in range(2, 8):
                        for a in range(NZ): S.lds(f"ds_read_b128 {vr(Q0+32*a+4*ks,4)}, v{vT0} offset:{a*8192 + ks*1024}", ("Q", a, ks))
                ng = 16 * NZ
                f0, f1 = (sfirst, slast) if NZ == 2 else (s3f, 15)
                fil = spread(ng, sm, f0, f1) if sm else [[] for _ in range(ng)]
                if kf: fil = [a + b for a, b in zip(spread(ng, kf, s3first, s3last), fil)]
                for n in range(16):
                    ks, y = n // 2, n % 2
                    for a in range(NZ):
                        if y == 0: S.wl(("K", p, n), ("K", p, n + 1), ("Q", a, ks))
                        if not noS:
                            if ks == 0: I(f"v_mfma_f32_16x16x32_bf16 {vr(cur+8*a+4*y,4)}, {vr(KF+4*(n%NKF),4)}, {vr(Q0+32*a,4)}, {vr(NM+4*a,4)}")
                            else: I(mfma(cur + 8 * a + 4 * y, KF + 4 * (n % NKF), Q0 + 32 * a + 4 * ks))
                        if a == NZ - 1:
                            m = n + NKF - 2
                            if m < 16: rdk(p, m)
                            elif p + 1 < NB and p != 1: rdk(p + 1, m - 16)
                        S.items(fil[n * NZ + a])
                S.wl(("P", 0), ("P", 1))
                if p == 0: S.wv(("V", 0))
                if loader and p >= 1: S.wv(("K", p + 2), ("K", p + 1))
                if p + 1 >= NB: I("s_nop 7")
            else:
                S.items(sm)
                for sw in ("v_permlane16_swap_b32", "v_permlane32_swap_b32"):
                    for a in range(NZ): I(f"v_mov_b32 v{vT0+a}, v{vL+a}")
                    I("s_nop 1")
                    for a in range(NZ): I(f"{sw} v{vL+a}, v{vT0+a}")
                    for a in range(NZ): I(f"v_add_f32 v{vL+a}, v{vL+a}, v{vT0+a}")
                for a in range(NZ): I(f"v_rcp_f32 v{vL+a}, v{vL+a}")
                I("s_nop 0")
                for a in range(NZ): S.lds(f"ds_write_b32 v{vAW}, v{vL+a} offset:{RL-ALPHA + a*64}", ("P", 2))
                S.wl0()
            S.bar()
        for p in range(0, LOOP0): s_phase(p)
        stamp(S, 3)
        I(f"s_mov_b32 s{sCNT}, {(LOOPN-LOOP0)//4}")
        if lalign: S.L.append(f".p2align {lalign}")
        S.lab(f"L_sloop{tag}")
        st = (list(S.lg), bk.cur, S.nbar)
        stv = list(S.vm)
        for p in range(LOOP0, LOOP0 + 4): s_phase(p)
        assert [(t[0], t[1] - 4) for t in S.vm] == stv
        S.vm = [(t[0], t[1] + LOOPN - LOOP0 - 4) for t in S.vm]
        assert [(t[0], t[1] - 4, t[2]) for t in S.lg] == st[0] and bk.cur == st[1], (S.lg, st)
        I(f"s_sub_u32 s{sCNT}, s{sCNT}, 1"); I(f"s_cmp_lg_u32 s{sCNT}, 0"); I(f"s_cbranch_scc1 L_sloop{tag}")
        stamp(S, 4)
        S.lg = [(t[0], LOOPN, t[2]) for t in S.lg]
        S.nbar = st[2] + (LOOPN - LOOP0)
        for p in range(LOOPN, NB + 1): s_phase(p)
        stamp(S, 5)
        sub = []
        for kind in ("q0", "q1") + (("n1",) if NB % 2 == 0 else ("n0",)): sub += rare_body(kind)
        return sub
    I(f"s_cmp_eq_u32 s{sWAVE}, 3"); I("s_cbranch_scc1 L_swave3")
    S3 = E.fork()
    subs = swave(E, 2, "a")
    I("s_branch L_sjoin")
    S3.lab("L_swave3")
    subs += swave(S3, 1, "b")
    if fuse:
        S3.wv0()
        I(f"s_lshr_b32 s{sD}, s2, 5"); I(f"s_lshl_b32 s{sD}, s{sD}, 5"); I(f"v_mov_b32 v6, s{sD}")
        I(f"s_and_b32 s{sA}, s2, 4"); I(f"s_lshl_b32 s{sA}, 0x0f0f0f0f, s{sA}")
        spin(S3, f"global_load_dword v7, v6, s[{sDBG}:{sDBG+1}] sc1",
             [f"v_readfirstlane_b32 s{sD}, v7", f"s_and_b32 s{sD}, s{sD}, s{sA}", f"s_cmp_eq_u32 s{sD}, s{sA}"])
    assert S3.nbar == E.nbar
    E.lab("L_sjoin")
    S = E
    S.bar()
    stamp(S, 6)
    oproj(S, 0, lambda e, st: [])
    stamp(S, 7)
    nbarS = S.nbar
    if fuse:
        E.lab("L_final")
        final_reduce(S)
    if diag:
        I(f"s_cmp_lg_u32 s{sWAVE}, 0"); I("s_cbranch_scc1 L_done")
        I("s_waitcnt vmcnt(0)")
        stamp(S, 8)
        I("s_waitcnt lgkmcnt(0)")
        I("s_mov_b64 exec, 1")
        if dbgwg is not None:
            I(f"s_cmp_lg_u32 s2, {dbgwg}"); I("s_cbranch_scc1 L_done")
            I(f"v_mov_b32 v1, {128<<20}")
            for k in range(8):
                I(f"s_sub_u32 s{sA}, s{sTS+4*k+4}, s{sTS+4*k}"); I(f"v_mov_b32 v4, s{sA}")
                I(f"s_sub_u32 s{sA}, s{sTS+4*k+6}, s{sTS+4*k+2}"); I(f"v_mov_b32 v5, s{sA}")
                I(f"global_store_dword v1, v4, s[58:59] offset:{4*k}"); I(f"global_store_dword v1, v5, s[58:59] offset:{32+4*k}")
            I("s_endpgm")
        I(f"s_lshl_b32 s{sA}, s2, 7"); I(f"s_add_u32 s{sA}, s{sA}, {64<<20}"); I(f"v_mov_b32 v1, s{sA}")
        for k in range(9):
            I(f"v_mov_b32 v4, s{sTS+4*k}"); I(f"v_mov_b32 v5, s{sTS+4*k+2}")
            I(f"global_store_dwordx2 v1, v[4:5], s[58:59] offset:{8*k}")
            I("s_nop 1")
    I("s_endpgm")

    I = O.I
    O.lab("L_owave")
    qproj(O, 1)
    vVA, vPA, vWX, vFA, vF = 1, 2, 9, 4, 5
    VF, OA, OX, PF = 12, 68, 180, 228
    tr_lane(O, vVA, 6, 3)
    I(f"v_lshlrev_b32 v{vPA}, 4, v0")
    I(f"v_and_b32 v{vFA}, 7, v0"); I(f"v_lshlrev_b32 v{vFA}, 2, v{vFA}"); I(f"v_add_u32 v{vFA}, {FLG}, v{vFA}")
    I(f"v_lshrrev_b32 v{vWX}, 3, v0"); I(f"v_mul_u32_u24 v{vWX}, {16*896}, v{vWX}")
    I(f"v_and_b32 v6, 7, v0"); I(f"v_lshl_add_u32 v{vWX}, v6, 4, v{vWX}")
    I(f"s_mul_i32 s{sA}, s{sW4}, {4*896}"); I(f"v_add_u32 v{vWX}, s{sA}, v{vWX}")
    I(f"s_lshl_b32 s{sPOFF}, s{sROTO}, 7")
    def wo_piece(f, i, O=None):
        O = O or Ocur[0]
        if nowo and f >= 6: return
        O.I(f"s_add_u32 m0, s{sWLDS}, {WOSLOT[f] + i*PIECE}")
        O.I(f"s_add_u32 s{sD}, s{sPOFF}, {((f%2)*128 + i)*896}")
        O.vmem(f"buffer_load_dwordx4 v{vWX}, s[{S_WO}:{S_WO+3}], s{sD} offen lds", ("WO", f))
        if i == 3 and f % 2 == 1:
            O.I(f"s_add_u32 s{sPOFF}, s{sPOFF}, 128"); O.I(f"s_cmp_eq_u32 s{sPOFF}, 896"); O.I(f"s_cselect_b32 s{sPOFF}, 0, s{sPOFF}")
    Ocur = [O]
    O.wl0()
    if prio == "O": I("s_setprio 1")
    O.wv(("K", 0), ("K", 1))
    rare_o = []; osubs = []
    def owave(O, tag, chk=False):
        I = O.I
        big = bal and tag == "b"
        nsl = 7 if big else 4
        voff = [384 + 32 * sl for sl in range(4)] + [128 * e + 96 for e in range(3)] if big else [32 * sl for sl in range(4)]
        def units(z):
            if not bal: return [0, 1, 2, 3]
            if big: return [0, 1, 2, 3] + ([4, 5, 6] if z >= balz else [])
            return [0, 1, 2] + ([3] if z < balz else [])
        acc = lambda z, sl: OA + 16 * z + 4 * sl if sl < 4 else OX + 12 * (z - 3) + 4 * (sl - 4)
        if not big: I(f"s_lshl_b32 s{sA}, s{sW4}, 7"); I(f"v_add_u32 v{vVA}, s{sA}, v{vVA}")
        O.bar()
        bv = Base(O, vVA)
        def rdv1(j, k):
            sl, y = k // 2, k % 2
            bv.set(slot(VRING[j % 4]))
            O.lds(f"ds_read_b64_tr_b16 {vr(VF+28*(j%2)+4*sl+2*y,2)}, v{vVA} offset:{y*512 + voff[sl]}", ("V", j, sl))
        def rdv(j):
            for k in range(2 * nsl): rdv1(j, k)
        bo, b2 = Base(O, 6), Base(O, 7)
        def pack(z):
            us = units(z)
            ops = [f"v_cvt_pk_bf16_f32 v{acc(z,sl&~1 if sl < 4 else sl)+2*(sl&1 if sl < 4 else 0)+n}, v{acc(z,sl)+2*n}, v{acc(z,sl)+2*n+1}" for sl in us for n in range(2)]
            def wr():
                if not (0 <= OBUF[z] - bo.cur < 57000):
                    bo.set(OBUF[z])
                    if big: b2.set(OBUF[z])
                O.lds(f"ds_write_b128 v6, {vr(acc(z,0),4)} offset:{OBUF[z]-bo.cur}", ("W",))
                if 3 in us: O.lds(f"ds_write_b128 v6, {vr(acc(z,2),4)} offset:{OBUF[z]-bo.cur + 1024}", ("W",))
                else: O.lds(f"ds_write_b64 v6, {vr(acc(z,2),2)} offset:{OBUF[z]-bo.cur + 1024}", ("W",))
                for sl in us:
                    if sl >= 4: O.lds(f"ds_write_b64 v7, {vr(acc(z,sl),2)} offset:{OBUF[z]-b2.cur + (2*(sl-4)+1)*1024 + 8}", ("W",))
            return ops + [wr]
        def o_phase(p):
            j = p - 2
            pieces = []
            def kv(kind, jj): return [(lambda i=i: kv_piece(O, kind, jj, i)) for i in range(4)]
            if p == 0 and not s3k: pieces += kv("K", 2)
            if p + 1 < NB: pieces += kv("V", p + 1)
            if p + 3 < NB:
                if not s3k: pieces += kv("K", p + 3)
            else:
                for f in {NB - 3: [0], NB - 2: [1], NB - 1: [2], NB: [3, 4], NB + 1: []}[p]:
                    pieces += [(lambda i=i, f=f: wo_piece(f, i, O)) for i in range(4)]
            if j < 0:
                O.items(pieces)
                if p == 0:
                    for r in range(OA, OA + 112 + (48 if big else 0)): I(f"v_mov_b32 v{r}, 0")
                if p == 1: rdv(0)
            else:
                par = j % 2
                def rdp(z): O.lds(f"ds_read_b128 {vr(PF+4*(z%npf),4)}, v{vPA} offset:{par*7168 + z*1024}", ("P", z))
                O.lds(f"ds_read_b32 v{vF}, v{vFA} offset:{par*128}", ("F",))
                for z in range(npf): rdp(z)
                I(f"s_add_u32 s{sBLK}, s{sBLK}, 1")
                fil = spread(8, pieces, dmafirst, dmalast) if pieces else [[] for _ in range(8)]
                O.items(fil[0])
                O.wl(("F",))
                I(f"v_cmp_eq_u32 vcc, s{sBLK}, v{vF}")
                I(f"s_cbranch_vccnz L_stub_o{tag}{p}")
                O.lab(f"L_back_o{tag}{p}")
                rare_o.append((tag, p, par))
                kv_ = 0
                if p == NB + 1:
                    I(f"s_lshl_b32 s{sA}, s{sW4}, 11"); I(f"v_add_u32 v6, s{sA}, v{vPA}"); I(f"v_mov_b32 v7, v{vPA}")
                for z in range(7):
                    if p == NB + 1 and z >= 2: O.items(pack(z - 2)) if z > 2 else None
                    for sl in units(z):
                        O.wl(("P", z), ("V", j, sl))
                        if not noO: I(mfma(acc(z, sl), VF + 28 * (j % 2) + 4 * sl, PF + 4 * (z % npf)))
                        if z >= vz0 and j + 1 < NB and kv_ < 2 * nsl: rdv1(j + 1, kv_); kv_ += 1
                    if p == NB + 1 and z == 2: O.items(pack(0))
                    if z + npf < 7: rdp(z + npf)
                    O.items(fil[z + 1])
            if p <= NB:
                if p == 0: O.wv(("V", 0))
                else: O.wv(("K", p + 2), ("V", p), ("K", p + 1))
                if p == NB: O.wl0()
                O.bar()
        for p in range(0, LOOP0): o_phase(p)
        I(f"s_mov_b32 s{sCNT}, {(LOOPN-LOOP0)//4}")
        O.lab(f"L_oloop{tag}")
        st = (list(O.lg), list(O.vm), bv.cur, O.nbar)
        for p in range(LOOP0, LOOP0 + 4): o_phase(p)
        sh = lambda q, d: [(t[0], t[1] + d) + tuple(t[2:]) for t in q]
        assert sh(O.lg, -4) == st[0] and sh(O.vm, -4) == st[1] and bv.cur == st[2], (O.lg, O.vm, st)
        I(f"s_sub_u32 s{sCNT}, s{sCNT}, 1"); I(f"s_cmp_lg_u32 s{sCNT}, 0"); I(f"s_cbranch_scc1 L_oloop{tag}")
        d = LOOPN - LOOP0 - 4
        O.lg = sh(O.lg, d); O.vm = sh(O.vm, d); O.nbar = st[3] + (LOOPN - LOOP0)
        for p in range(LOOPN, NB + 2): o_phase(p)
        for z in range(5, 7): O.items(pack(z))
        O.wv(("WO", 0), ("WO", 1), ("WO", 2))
        O.wl0()
        for par in range(2):
            osubs.append(f"L_rare_o{tag}_{par}:")
            osubs.append("s_nop 7"); osubs.append(f"s_mov_b32 s{sA}, vcc_lo")
            osubs.extend([f"v_and_b32 v6, 15, v0", f"v_lshlrev_b32 v6, 2, v6", f"v_add_u32 v6, {ALPHA + par*448}, v6"])
            for z in range(7):
                osubs.extend([f"s_bitcmp1_b32 s{sA}, {z}", f"s_cbranch_scc0 L_rare_o{tag}_{par}_{z}", f"ds_read_b32 v{vF}, v6 offset:{z*64}", "s_waitcnt lgkmcnt(0)"])
                for sl in units(z):
                    osubs.extend([f"v_mul_f32 v{acc(z,sl)+r}, v{vF}, v{acc(z,sl)+r}" for r in range(4)])
                osubs.append(f"L_rare_o{tag}_{par}_{z}:")
            osubs.append("s_nop 1"); osubs.append(f"s_setpc_b64 s[{sRET}:{sRET+1}]")
    if bal:
        I(f"s_cmp_eq_u32 s{sWAVE}, 7"); I("s_cbranch_scc1 L_owave7")
        O7 = O.fork()
        owave(O, "a")
        I("s_branch L_ojoin")
        O7.lab("L_owave7")
        owave(O7, "b", chk=fuse)
        assert O7.nbar == O.nbar and O7.vm == O.vm and O7.lg == O.lg, (O7.vm, O.vm)
        O.lab("L_ojoin")
    else:
        owave(O, "a")
    O.bar()
    def fills_at(e, st):
        when, j = st
        if when == "pre":
            e.wv(*[("WO", f) for f in range(min(14, 2 * j + 3))])
            return []
        fl = ({0: [5], 1: [6, 7, 8], 2: [9, 10], 3: [11, 12], 4: [13]} if wosplit else {0: [5], 1: [6, 7, 8, 9, 10], 2: [11, 12], 3: [13]}).get(j, [])
        return [(lambda f=f, i=i: wo_piece(f, i)) for f in fl for i in range(4)]
    oproj(O, 1, fills_at)
    assert O.nbar == nbarS, (O.nbar, nbarS)
    if fuse: I("s_branch L_final")
    O.lab("L_done"); I("s_endpgm")
    for tag, site, kind in rare_s:
        O.lab(f"L_stub_s{tag}_{site}"); I(f"s_call_b64 s[{sRET}:{sRET+1}], L_rare_s{tag}_{kind}"); I(f"s_branch L_back_s{tag}_{site}")
    for l in subs: (O.lab(l[:-1]) if l.endswith(":") else I(l))
    for tag, site, par in rare_o:
        O.lab(f"L_stub_o{tag}{site}"); I(f"s_call_b64 s[{sRET}:{sRET+1}], L_rare_o{tag}_{par}"); I(f"s_branch L_back_o{tag}{site}")
    for l in osubs: (O.lab(l[:-1]) if l.endswith(":") else I(l))

    E.lab("L_code_end")
    R = Em(E.L); I = R.I
    R.L += kernel_head("reduce_kernel")
    I(f"s_cmp_ge_u32 s2, {1792//k2w}"); I("s_cbranch_scc1 L_rdone")
    I("s_load_dwordx2 s[8:9], s[0:1], 96"); I("s_load_dwordx2 s[12:13], s[0:1], 80")
    if dbgwg is not None:
        I("s_cmp_lg_u32 s2, 0"); I("s_cbranch_scc1 L_rnodbg")
        I("s_load_dwordx4 s[24:27], s[0:1], 88"); I("s_waitcnt lgkmcnt(0)")
        I("v_and_b32 v2, 15, v0"); I("v_lshlrev_b32 v2, 2, v2"); I(f"v_add_u32 v3, {128<<20}, v2")
        I("global_load_dword v4, v3, s[26:27]"); I("s_waitcnt vmcnt(0)"); I("global_store_dword v2, v4, s[24:25]"); I("s_waitcnt vmcnt(0)")
        R.lab("L_rnodbg")
    I("v_lshrrev_b32 v1, 6, v0"); I("v_and_b32 v0, 63, v0"); I("v_readfirstlane_b32 s3, v1")
    I(f"s_mul_i32 s4, s2, {k2w}"); I("s_add_u32 s4, s4, s3")
    I(f"s_mov_b32 s5, {(2**32 + 111)//112}"); I("s_mul_hi_u32 s5, s4, s5")
    I("s_mul_i32 s6, s5, 112"); I("s_sub_u32 s6, s4, s6")
    I(f"s_mul_i32 s17, s5, {16*PART_HEAD}"); I("s_lshl_b32 s18, s6, 10"); I("s_add_u32 s17, s17, s18")
    I("s_and_b32 s25, s6, 9"); I("s_cmp_eq_u32 s25, 9"); I("s_cselect_b32 s25, 3, 4")
    I("v_lshlrev_b32 v2, s25, v0")
    I("s_waitcnt lgkmcnt(0)")
    I("s_add_u32 s8, s8, s17"); I("s_addc_u32 s9, s9, 0"); I(f"s_mov_b32 s10, {15*PART_HEAD + 1024}"); I("s_mov_b32 s11, 0x20000")
    I(f"s_mov_b32 s14, {8*112*896*2}"); I("s_mov_b32 s15, 0x20000")
    I("s_mov_b32 s19, 0")
    for h in range(16):
        I(f"buffer_load_dwordx4 {vr(8+4*h,4)}, v2, s[8:11], s19 offen")
        if h < 15: I(f"s_add_u32 s19, s19, {PART_HEAD}")
    I("s_bfe_u32 s20, s6, 0x10003"); I("s_lshl_b32 s20, s20, 1"); I("s_and_b32 s21, s6, 1"); I("s_add_u32 s20, s20, s21")
    I("s_and_b32 s22, s5, 7"); I("s_mul_i32 s22, s22, 112"); I("s_lshl_b32 s23, s20, 5"); I("s_add_u32 s22, s22, s23")
    I("v_and_b32 v3, 15, v0"); I("v_add_u32 v3, s22, v3"); I("v_mul_u32_u24 v3, 1792, v3")
    I("s_lshr_b32 s22, s5, 3"); I("s_mul_i32 s22, s22, 896"); I("s_lshr_b32 s23, s6, 4"); I("s_lshl_b32 s23, s23, 7"); I("s_add_u32 s22, s22, s23")
    I("s_bfe_u32 s23, s6, 0x20001"); I("s_lshl_b32 s23, s23, 5"); I("s_add_u32 s22, s22, s23")
    I("v_lshrrev_b32 v4, 4, v0"); I("v_lshl_add_u32 v3, v4, 3, v3"); I("v_add_u32 v3, s22, v3")
    I(f"s_mov_b32 s24, {16*1792}")
    for h in range(16):
        I(f"s_waitcnt vmcnt({15-h})")
        for d_ in range(4):
            src = 8 + 4 * h + d_
            if h == 0:
                I(f"v_lshlrev_b32 v{72+2*d_}, 16, v{src}"); I(f"v_and_b32 v{73+2*d_}, 0xffff0000, v{src}")
            else:
                I(f"v_lshlrev_b32 v5, 16, v{src}"); I(f"v_and_b32 v6, 0xffff0000, v{src}")
                I(f"v_add_f32 v{72+2*d_}, v{72+2*d_}, v5"); I(f"v_add_f32 v{73+2*d_}, v{73+2*d_}, v6")
    for d_ in range(4): I(f"v_cvt_pk_bf16_f32 v{8+d_}, v{72+2*d_}, v{73+2*d_}")
    I("buffer_store_dwordx2 v[8:9], v3, s[12:15], 0 offen")
    I("s_cmp_eq_u32 s20, 3"); I("s_cbranch_scc1 L_rdone")
    I("buffer_store_dwordx2 v[10:11], v3, s[12:15], s24 offen")
    R.lab("L_rdone"); I("s_endpgm")
    if fuse: del E.L[E.L.index(".globl reduce_kernel"):]
    tail = ['.section .rodata,"a"'] + kd(NAME + "_kernel") + ([] if fuse else kd("reduce_kernel", vgpr=80, sgpr=32, accum=80))
    return "\n".join(head + E.L + tail) + "\n"

if __name__ == "__main__":
    kw = eval("dict(%s)" % (sys.argv[2] if len(sys.argv) > 2 else ""))
    open(sys.argv[1], "w").write(gen(**kw))
```

```python
import sys
from asmlib import *

NB = 64
PIECE = 1056
SLOT = 16 * PIECE
TSLOT = 0
def slot(i): return SLOT * (i + 1)
SPARE = slot(8)
FLG = SPARE + 8192
ALPHA = FLG + 256
RL = ALPHA + 1024
QSETS = [[slot(5), slot(6), slot(7)], [slot(2), slot(3), slot(4)], [TSLOT, slot(0), slot(1)]]
QBUF = [TSLOT, TSLOT + 8192, slot(0), slot(0) + 8192, slot(1), slot(1) + 8192, SPARE]
KRING = [2, 3, 5, 7]
VRING = [4, 6, 0, 1]
PART_HEAD = 114688
FOFF = 30 << 20

S_X, S_WQ, S_K, S_V, S_WO, S_PT = 8, 12, 16, 20, 24, 28
sWAVE, sW4, sROT, sWLDS, sKOFF, sVOFF, sCNT, sBLK, sC, sT = 32, 33, 34, 35, 36, 37, 38, 39, 40, 41
sA, sB2, sD, sE, sHH, sPOFF, sSTRIP, sXOFF, sXLDS = 42, 43, 44, 45, 46, 47, 48, 49, 52
sRET = 54
sROTO = 6
sDBG, sWS, sOUT, sPB, sHEAD = 56, 58, 50, 5, 4
sTS = 60

class Em:
    def __init__(self, L=None):
        self.L = [] if L is None else L; self.lg = []; self.vm = []; self.nbar = 0
    def fork(self):
        e = Em(self.L); e.lg = list(self.lg); e.vm = list(self.vm); e.nbar = self.nbar; return e
    def I(self, s): self.L.append("    " + s)
    def lab(self, s): self.L.append(s + ":")
    def lds(self, s, tag): self.I(s); self.lg.append(tag)
    def vmem(self, s, tag): self.I(s); self.vm.append(tag)
    def _need(self, q, tags):
        idx = [i for i, t in enumerate(q) if t in tags]
        return None if not idx else max(idx)
    def wl(self, *tags):
        i = self._need(self.lg, tags)
        if i is None: return
        n = min(len(self.lg) - i - 1, 15)
        self.I(f"s_waitcnt lgkmcnt({n})"); self.lg = self.lg[len(self.lg) - n:] if n else []
    def wv(self, *tags):
        i = self._need(self.vm, tags)
        if i is None: return
        n = min(len(self.vm) - i - 1, 63)
        self.I(f"s_waitcnt vmcnt({n})"); self.vm = self.vm[len(self.vm) - n:] if n else []
    def wl0(self):
        if self.lg: self.I("s_waitcnt lgkmcnt(0)")
        self.lg = []
    def wv0(self):
        if self.vm: self.I("s_waitcnt vmcnt(0)")
        self.vm = []
    def bar(self): self.I("s_barrier"); self.nbar += 1
    def items(self, its):
        for f in its:
            if callable(f): f()
            else: self.I(f)

class Base:
    def __init__(self, e, reg, cur=0): self.e, self.reg, self.cur = e, reg, cur
    def set(self, b):
        d = b - self.cur
        if d: self.e.I(f"v_add_u32 v{self.reg}, {d & 0xffffffff}, v{self.reg}")
        self.cur = b

def vr(a, n): return f"v[{a}:{a+n-1}]"
def mfma(d, a, b, c=None):
    return f"v_mfma_f32_16x16x32_bf16 {vr(d,4)}, {vr(a,4)}, {vr(b,4)}, " + ("0" if c == 0 else vr(d, 4))
def spread(nslots, fillers, first=0, last=None):
    last = nslots - 1 if last is None else last
    out = [[] for _ in range(nslots)]
    n = last - first + 1
    for i, f in enumerate(fillers): out[first + (i * n) // len(fillers)].append(f)
    return out

def gen(diag=False, kvnt=True, stnt=False, hot=False, nodma=False, prio="S", sfirst=8, slast=28, dmafirst=0, dmalast=3, k1only=False, pstamp=False, qpre=2, nosm=False, noO=False, noS=False, nobar=False, ipf=False, stfl='sc1', pad=0, lalign=0, s3k=True, s3first=0, s3last=15, nkf=16, npf=7, nost=False, nowo=False, noqf=False, bal=True, qprio=1, balz=4, vz0=2, s3f=4, k2w=4, dbgwg=None, qtrace=False, otrace=False, qwho=None, wosplit=True, fuse=True, slp=2, L1=2, dot=True, ftrace=False, tlbw=False, qbar=False, oprio=None, outfl='', xfirst=True, keep=''):
    NT_ = " nt" if kvnt else ""
    def ntf(kind, j):
        return "" if f"{kind}{j % 4}" in keep else NT_
    E = Em(); I = E.I
    def stamp(e, k):
        if diag:
            e.I(f"s_memtime s[{sTS+4*k}:{sTS+4*k+1}]"); e.I(f"s_memrealtime s[{sTS+4*k+2}:{sTS+4*k+3}]")
    head = [l for l in open("ref.s.txt").read().split("\n") if l.startswith(";") and "@launch" not in l and "Override" not in l and "grid=ceil" not in l]
    if fuse: head += ["; @launch grid=(256,1,1) block=(512,1,1) lds=163840"]
    else: head += [f"; @launch kernel={NAME}_kernel grid=(256,1,1) block=(512,1,1) lds=163840"]
    if not k1only and not fuse: head += [f"; @launch kernel=reduce_kernel grid=({1792//k2w},1,1) block=({64*k2w},1,1) lds=0"]
    head += ['.amdgcn_target "amdgcn-amd-amdhsa--gfx950"', ".text"]
    E.L += kernel_head(NAME + "_kernel")
    I("s_cmp_ge_u32 s2, 256"); I("s_cbranch_scc1 L_done")
    stamp(E, 0)
    I("s_bfe_u32 s6, s2, 0x10002"); I("s_and_b32 s3, s2, 3"); I("s_lshl_b32 s3, s3, 1"); I("s_bfe_u32 s4, s2, 0x10004"); I("s_add_u32 s3, s3, s4")
    I(f"s_bfe_u32 s{sHH}, s2, 0x10003"); I("s_lshr_b32 s7, s2, 5")
    I("s_lshl_b32 s5, s6, 3"); I("s_add_u32 s5, s5, s7"); I(f"s_mul_i32 s{sA}, s6, 40")
    I(f"s_add_u32 s50, s0, s{sA}"); I("s_addc_u32 s51, s1, 0")
    I(f"s_load_dwordx2 s[{S_X}:{S_X+1}], s[50:51], 0")
    I(f"s_load_dwordx2 s[{S_WQ}:{S_WQ+1}], s[50:51], 24")
    I(f"s_load_dwordx2 s[{S_K}:{S_K+1}], s[50:51], 8")
    I(f"s_load_dwordx2 s[{S_V}:{S_V+1}], s[50:51], 16")
    I(f"s_load_dwordx2 s[{S_WO}:{S_WO+1}], s[50:51], 32")
    I(f"s_load_dwordx2 s[{S_PT}:{S_PT+1}], s[0:1], 96")
    I(f"s_load_dwordx4 s[{sDBG}:{sDBG+3}], s[0:1], 88")
    I("v_lshrrev_b32 v1, 6, v0"); I("v_and_b32 v0, 63, v0")
    I(f"v_readfirstlane_b32 s{sWAVE}, v1")
    I(f"s_lshl_b32 s4, s3, 1"); I(f"s_add_u32 s4, s4, s{sHH}")
    I(f"s_bfe_u32 s{sA}, s2, 0x20003"); I(f"s_lshl_b32 s{sA}, s{sA}, 1"); I(f"s_add_u32 s{sROT}, s7, s{sA}")
    I(f"s_cmp_ge_u32 s{sROT}, 7"); I(f"s_cselect_b32 s{sA}, 7, 0"); I(f"s_sub_u32 s{sROT}, s{sROT}, s{sA}")
    I(f"s_and_b32 s{sW4}, s{sWAVE}, 3")
    I(f"s_cmp_eq_u32 s7, 7"); I(f"s_cselect_b32 s{sROTO}, 0, s7")
    I(f"s_mul_i32 s{sWLDS}, s{sW4}, {4*PIECE}")
    I(f"s_mov_b32 s{sC}, 0x3db8aa3b"); I(f"s_mov_b32 s{sT}, 0x41000000")
    vXD, vWD, vXA0, vXA1, vQA, t0, t1 = 1, 2, 3, 4, 5, 6, 7
    I(f"v_lshrrev_b32 v{vXD}, 3, v0"); I(f"v_mul_u32_u24 v{vXD}, 896, v{vXD}")
    I(f"v_lshrrev_b32 v{t0}, 4, v0"); I(f"v_lshlrev_b32 v{t0}, 1, v{t0}"); I(f"v_and_b32 v{t1}, 7, v0"); I(f"v_xor_b32 v{t0}, v{t0}, v{t1}")
    I(f"v_lshl_add_u32 v{vXD}, v{t0}, 4, v{vXD}")
    I(f"v_lshrrev_b32 v{t0}, 5, v0"); I(f"v_lshlrev_b32 v{vWD}, 15, v{t0}"); I(f"v_and_b32 v{t0}, 31, v0")
    I(f"v_lshl_add_u32 v{vWD}, v{t0}, 4, v{vWD}")
    I(f"s_lshl_b32 s{sPOFF}, s{sROT}, 19"); I(f"s_lshl_b32 s{sE}, s{sWAVE}, 16")
    I(f"s_lshl_b32 s{sXOFF}, s{sROT}, 7"); I(f"s_mul_i32 s{sB2}, s{sWAVE}, {16*896}")
    I(f"s_lshl_b32 s{sXLDS}, s{sWAVE}, 11")
    I(f"s_lshr_b32 s{sD}, s{sWAVE}, 2"); I(f"s_mul_i32 s{sD}, s{sD}, {SLOT}"); I(f"s_add_u32 s53, s{sD}, s{sWLDS}")
    I("s_waitcnt lgkmcnt(0)")
    if pstamp: stamp(E, 1)
    def srd(r, off_sgpr, size):
        I(f"s_add_u32 s{r}, s{r}, s{off_sgpr}"); I(f"s_addc_u32 s{r+1}, s{r+1}, 0")
        if isinstance(size, int): I(f"s_mov_b32 s{r+2}, {size}")
        else: I(size)
        I(f"s_mov_b32 s{r+3}, 0x20000")
    I(f"s_mul_i32 s{sA}, s7, 100352"); srd(S_X, sA, 100352)
    I(f"s_lshl_b32 s{sA}, s4, 9"); srd(S_WQ, sA, f"s_sub_u32 s{S_WQ+2}, {448*8192}, s{sA}")
    def qfill_ops(e, i):
        if noqf and i >= 3: return []
        xs, wa, wb = QSETS[i % 3]
        assert wb == wa + SLOT
        ops = []
        for j in range(2):
            def f(j=j):
                e.I(f"s_add_u32 m0, s{sXLDS}, {xs + j*1024}")
                e.I(f"s_add_u32 s{sD}, s{sXOFF}, s{sB2}" if j == 0 else f"s_add_u32 s{sD}, s{sD}, {8*896}")
                e.vmem(f"buffer_load_dwordx4 v{vXD}, s[{S_X}:{S_X+3}], s{sD} offen lds", ("QF", i))
            ops.append(f)
        for j in range(4):
            def f(j=j):
                e.I(f"s_add_u32 m0, s53, {wa + j*PIECE}")
                e.I(f"s_add_u32 s{sD}, s{sPOFF}, s{sE}" if j == 0 else f"s_add_u32 s{sD}, s{sD}, 8192")
                e.vmem(f"buffer_load_dwordx4 v{vWD}, s[{S_WQ}:{S_WQ+3}], s{sD} offen lds", ("QF", i))
                if j == 3:
                    e.I(f"s_add_u32 s{sPOFF}, s{sPOFF}, {1<<19}"); e.I(f"s_add_u32 s{sXOFF}, s{sXOFF}, 128")
                    e.I(f"s_cmp_eq_u32 s{sXOFF}, 896"); e.I(f"s_cselect_b32 s{sPOFF}, 0, s{sPOFF}"); e.I(f"s_cselect_b32 s{sXOFF}, 0, s{sXOFF}")
            ops.append(f)
        if not xfirst: ops = ops[2:5] + ops[:2] + ops[5:]
        return ops
    if fuse:
        I(f"s_cmp_lg_u32 s{sWAVE}, 3"); I("s_cbranch_scc1 L_noclr")
        I(f"s_lshl_b32 s{sA}, s5, 5"); I(f"s_add_u32 s{sA}, s{sA}, s4"); I(f"s_lshl_b32 s{sA}, s{sA}, 2"); I(f"s_add_u32 s{sA}, s{sA}, {FOFF}")
        I(f"v_mov_b32 v12, s{sA}"); I("v_mov_b32 v13, 0")
        I("s_mov_b64 exec, 1")
        I(f"global_store_dword v12, v13, s[{sWS}:{sWS+1}] sc1")
        I("s_mov_b64 exec, -1")
        E.lab("L_noclr")
    for _ in range(pad): I("s_nop 0")
    if ipf:
        I("s_getpc_b64 s[56:57]")
        E.lab("L_pc")
        I(f"s_lshl_b32 s{sA}, s{sWAVE}, 13"); I(f"v_lshl_add_u32 v{t0}, v0, 7, s{sA}")
        I(f"s_min_u32 s{sA}, s{sA}, s{sA}")
        I(f"v_min_u32 v{t0}, L_code_end-L_pc-4, v{t0}")
        E.vmem(f"global_load_dword v15, v{t0}, s[56:57]", ("QF", -1))
    for i in range(qpre):
        E.items(qfill_ops(E, i))
        if qbar and i == 0: E.bar()
    if pstamp: stamp(E, 2)
    I(f"s_lshl_b32 s{sA}, s7, 3"); I(f"s_add_u32 s{sA}, s{sA}, s3"); I(f"s_lshl_b32 s{sA}, s{sA}, 20")
    srd(S_K, sA, 1 << 20); srd(S_V, sA, 1 << 20)
    I(f"s_mul_i32 s{sA}, s4, {256*896}"); srd(S_WO, sA, 256 * 896)
    I(f"s_lshl_b32 s{sA}, s5, 4"); I(f"s_add_u32 s{sA}, s{sA}, s4"); I(f"s_mul_i32 s{sA}, s{sA}, {PART_HEAD}"); srd(S_PT, sA, PART_HEAD)
    I(f"v_and_b32 v{t0}, 15, v0"); I(f"v_lshlrev_b32 v{vXA0}, 7, v{t0}")
    I(f"v_and_b32 v{t0}, 6, v0"); I(f"v_lshrrev_b32 v{t1}, 4, v0"); I(f"v_xor_b32 v{t0}, v{t0}, v{t1}")
    I(f"v_lshl_add_u32 v{vXA0}, v{t0}, 4, v{vXA0}"); I(f"v_xor_b32 v{vXA1}, 64, v{vXA0}")
    def tr_lane(e, dst, tmp, sh):
        e.I(f"v_lshrrev_b32 v{dst}, 2, v0"); e.I(f"v_mul_u32_u24 v{dst}, {PIECE}, v{dst}")
        e.I(f"v_and_b32 v{tmp}, 3, v0"); e.I(f"v_lshl_add_u32 v{dst}, v{tmp}, {sh}, v{dst}")
    tr_lane(E, vQA, t0, 4)
    I(f"s_lshl_b32 s{sA}, s{sWAVE}, 6"); I(f"v_add_u32 v{vQA}, s{sA}, v{vQA}")
    vDM = 8
    I(f"v_and_b32 v{vDM}, 31, v0"); I(f"v_lshlrev_b32 v{vDM}, 4, v{vDM}")
    I(f"v_lshrrev_b32 v{t0}, 5, v0"); I(f"v_lshl_add_u32 v{vDM}, v{t0}, 13, v{vDM}")
    I(f"s_lshl_b32 s{sKOFF}, s{sW4}, 11"); I(f"s_add_u32 s{sVOFF}, s{sKOFF}, {0 if hot else 16384}"); I(f"s_add_u32 s{sKOFF}, s{sKOFF}, {0 if hot else 32768}")
    I(f"v_lshlrev_b32 v{t0}, 2, v0"); I(f"v_add_u32 v{t0}, {FLG}, v{t0}"); I(f"v_mov_b32 v{t1}, 0")
    E.lds(f"ds_write_b32 v{t0}, v{t1}", ("F",))
    def kv_piece(e, kind, j, i):
        if nodma and j >= 4: return
        ring, srd_, off = (KRING, S_K, sKOFF) if kind == "K" else (VRING, S_V, sVOFF)
        e.I(f"s_add_u32 m0, s{sWLDS}, {slot(ring[j % 4]) + i*(PIECE-512)}")
        e.I("s_nop 0")
        e.vmem(f"buffer_load_dwordx4 v{vDM}, s[{srd_}:{srd_+3}], s{off} offen offset:{i*512}{ntf(kind, j)} lds", (kind, j))
        if i == 3 and not hot: e.I(f"s_add_u32 s{off}, s{off}, 16384")
    QA, QB_, QACC, QP = 16, 32, 96, 152
    def qproj(E, lag):
        I = E.I
        bx0, bx1, bq = Base(E, vXA0), Base(E, vXA1), Base(E, vQA)
        def fin(z):
            ops = [f"v_pk_mul_f32 {vr(QACC+8*z+2*n,2)}, {vr(QACC+8*z+2*n,2)}, s[{sC}:{sC+1}] op_sel_hi:[1,0]" for n in range(4)]
            ops += [f"v_cvt_pk_bf16_f32 v{QP+4*z+n}, v{QACC+8*z+2*n}, v{QACC+8*z+2*n+1}" for n in range(4)]
            def wr():
                off = QBUF[z]
                if off > 60000: I(f"v_add_u32 v{t0}, {off}, v{t0}"); off = 0
                E.lds(f"ds_write_b128 v{t0}, {vr(QP+4*z,4)} offset:{off}", ("QW",))
            return ops + [wr]
        def pair(i, kk, z):
            E.wl(("A", i, kk), ("B", i, kk, z))
            for b in range(2):
                I(mfma(QACC + 8 * z + 4 * b, QA + 8 * kk + 4 * b, QB_ + 28 * kk + 4 * z, 0 if (i == 0 and kk == 0) else None))
        def last_half(i):
            I(f"v_lshlrev_b32 v{t0}, 4, v0"); I(f"s_lshl_b32 s{sA}, s{sWAVE}, 10"); I(f"v_add_u32 v{t0}, s{sA}, v{t0}")
            for z in range(7):
                pair(i, 1, z)
                if z >= 3: E.items(fin(z - 3))
            E.items(fin(4)); E.items(fin(5)); E.items(fin(6))
        if qprio is not None and lag == qprio: I("s_setprio 1")
        for i in range(7):
            E.wv(("QF", i))
            if i == 0 or lag: E.wl0()
            E.bar()
            if i == 0 and not lag and not otrace: stamp(E, 1)
            if qtrace and not lag and i >= 1: stamp(E, 1 + i)
            if fuse and i == 1 and not lag:
                I(f"s_cmp_lg_u32 s{sWAVE}, 3"); I("s_cbranch_scc1 L_noclr2")
                I(f"s_lshr_b32 s{sD}, s2, 5"); I(f"s_lshl_b32 s{sD}, s{sD}, 5"); I(f"v_mov_b32 v12, s{sD}")
                I(f"s_and_b32 s{sA}, s2, 31"); I(f"s_lshl_b32 s{sA}, 1, s{sA}"); I(f"v_mov_b32 v13, s{sA}")
                I("s_mov_b64 exec, 1")
                I(f"global_atomic_or v12, v13, s[{sDBG}:{sDBG+1}] sc1")
                I("s_mov_b64 exec, -1")
                if tlbw:
                    I(f"s_load_dwordx2 s[{sOUT}:{sOUT+1}], s[0:1], 80")
                    I(f"v_mul_u32_u24 v12, {PART_HEAD}, v0"); I(f"s_mul_i32 s{sA}, s{sPB}, {16*PART_HEAD}"); I(f"v_add_u32 v12, s{sA}, v12")
                    I("s_mov_b64 exec, 0xffff")
                    I(f"global_load_dword v13, v12, s[{sWS}:{sWS+1}]")
                    I("s_mov_b64 exec, 3")
                    I(f"v_mul_u32_u24 v12, {256*896-4}, v0")
                    I(f"buffer_load_dword v13, v12, s[{S_WO}:{S_WO+3}], 0 offen")
                    I(f"v_mul_u32_u24 v12, {112*1792-4}, v0"); I(f"s_and_b32 s{sA}, s{sPB}, 7"); I(f"s_mul_i32 s{sA}, s{sA}, {112*1792}"); I(f"v_add_u32 v12, s{sA}, v12")
                    I("s_waitcnt lgkmcnt(0)")
                    I(f"global_load_dword v13, v12, s[{sOUT}:{sOUT+1}]")
                    I("s_mov_b64 exec, -1")
                E.lab("L_noclr2")
            xs, wa, wb = QSETS[i % 3]
            bx0.set(xs); bx1.set(xs); bq.set(wa)
            def rda(kk):
                for b in range(2):
                    for u in range(2):
                        E.lds(f"ds_read_b64_tr_b16 {vr(QA+8*kk+4*b+2*u,2)}, v{vQA} offset:{kk*SLOT + u*512 + b*8}", ("A", i, kk))
            def rdb(kk, z):
                E.lds(f"ds_read_b128 {vr(QB_+28*kk+4*z,4)}, v{vXA1 if kk else vXA0} offset:{z*2048}", ("B", i, kk, z))
            fl = []
            if i >= 1 and i + 2 < 7: fl = qfill_ops(E, i + 2)
            if i == 0 and qpre < 3: fl = sum([qfill_ops(E, k) for k in range(qpre, 3)], [])
            if i == 5:
                I(f"s_lshl_b32 s{sE}, s{sWAVE}, 10"); I(f"s_mul_i32 s{sB2}, s{sWAVE}, {2*PIECE}")
                def pre(kind, j, i_):
                    ring, srd_ = (KRING, S_K) if kind == "K" else (VRING, S_V)
                    I(f"s_add_u32 m0, s{sB2}, {slot(ring[j]) + i_*(PIECE-512)}")
                    I(f"s_add_u32 s{sD}, s{sE}, {j*16384}")
                    E.vmem(f"buffer_load_dwordx4 v{vDM}, s[{srd_}:{srd_+3}], s{sD} offen offset:{i_*512}{ntf(kind, j)} lds", (kind, j))
                fl = [(lambda k=k, j=j, i_=i_: pre(k, j, i_)) for k, j in (("K", 0), ("K", 1), ("V", 0)) for i_ in range(2)]
            fil = spread(14, fl, 0, 9) if fl else [[] for _ in range(14)]
            if not lag:
                rda(0)
                for z in range(5): rdb(0, z)
                order = [(kk, z) for kk in range(2) for z in range(7)]
                for n, (kk, z) in enumerate(order):
                    if i == 6 and kk == 1: break
                    pair(i, kk, z)
                    if n == 0: rda(1)
                    if n + 5 < 14: rdb(*order[n + 5])
                    E.items(fil[n])
                if i == 6:
                    for z in range(5, 7): rdb(1, z)
                    last_half(6)
            else:
                n = 0
                if i > 0:
                    for z in range(7):
                        pair(i - 1, 1, z)
                        if z == 0: rda(0)
                        if z >= 1: rdb(0, z - 1)
                        E.items(fil[n]); n += 1
                    rdb(0, 6)
                else:
                    rda(0)
                    for z in range(7): rdb(0, z)
                rda(1)
                for z in range(7):
                    pair(i, 0, z)
                    rdb(1, z)
                    E.items(fil[n]); n += 1
                for k in range(n, 14): E.items(fil[k])
                if i == 6: last_half(6)
        if qprio is not None and lag == qprio: I("s_setprio 0")
        I(f"s_mov_b32 s{sBLK}, 0")
    I(f"s_cmp_ge_u32 s{sWAVE}, 4"); I("s_cbranch_scc1 L_owave")
    O = E.fork()
    qproj(E, 0)

    kfree = [slot(KRING[(NB - 4 + i) % 4]) for i in range(4)]
    vs = [slot(VRING[(NB - 4 + i) % 4]) for i in range(4)]
    WOSLOT = kfree + [vs[0], TSLOT, vs[1], vs[2], vs[3]]
    WOSLOT += [WOSLOT[i] for i in range(5)]
    OBUF = [vs[2], vs[2] + 8192, vs[3], vs[3] + 8192, vs[1], vs[1] + 8192, SPARE]
    def set_flag(e, level):
        e.I(f"s_lshl_b32 s{sA}, s{sPB}, 5"); e.I(f"s_add_u32 s{sA}, s{sA}, s{sHEAD}"); e.I(f"s_lshl_b32 s{sA}, s{sA}, 2"); e.I(f"s_add_u32 s{sA}, s{sA}, {FOFF}")
        e.I(f"v_mov_b32 v10, s{sA}"); e.I(f"v_mov_b32 v11, {level}")
        e.I("s_mov_b64 exec, 1")
        e.I(f"global_store_dword v10, v11, s[{sWS}:{sWS+1}] sc1")
        e.I("s_mov_b64 exec, -1")
    def oproj(e, role, fills_at):
        I = e.I
        vTA, vST, vT, RLR, AF, PK, ACC, BF = 1, 2, 3, 4, 16, 32, 40, 72
        zs = [0, 1, 2, 3] if role == 0 else [4, 5, 6]
        nz = len(zs)
        I(f"v_lshlrev_b32 v{vT}, 4, v0")
        I(f"v_and_b32 v{vST}, 15, v0"); I(f"v_lshlrev_b32 v{vST}, 2, v{vST}"); I(f"v_add_u32 v{vST}, {RL}, v{vST}")
        for a, z in enumerate(zs): e.lds(f"ds_read_b32 v{RLR+a}, v{vST} offset:{z*64}", ("R",))
        tr_lane(e, vTA, vST, 3)
        I(f"s_lshl_b32 s{sA}, s{sW4}, 5"); I(f"v_add_u32 v{vTA}, s{sA}, v{vTA}")
        I(f"s_lshl_b32 s{sA}, s{sWAVE}, 11"); I(f"v_add_u32 v{vST}, s{sA}, v{vT}")
        if role: I(f"v_lshlrev_b32 v8, 3, v0"); I(f"v_add_u32 v8, s{sA}, v8")
        I(f"s_mov_b32 s{sSTRIP}, s{sROTO}")
        ba, bb = Base(e, vTA), Base(e, vT)
        seq = [(j, kp) for j in range(7) for kp in range(8)]
        def rd(n):
            j, kp = seq[n]
            ba.set(WOSLOT[2 * j + kp // 4])
            for u in range(2):
                e.lds(f"ds_read_b64_tr_b16 {vr(AF+4*(n%4)+2*u,2)}, v{vTA} offset:{(2*(kp%4)+u)*128}", ("A", n))
        def rdB(kp):
            for a, z in enumerate(zs):
                base = OBUF[z - (z - zs[0]) % 2] if False else OBUF[z]
                lo = min(OBUF[zz] for zz in zs)
                if base - bb.cur < 0 or base - bb.cur + kp * 1024 > 65535: bb.set(base)
                e.lds(f"ds_read_b128 {vr(BF+32*a+4*kp,4)}, v{vT} offset:{base - bb.cur + kp*1024}", ("B", kp, a))
        def fin(j):
            acc = ACC + 16 * (j % 2)
            ops = []
            for a in range(nz):
                ops += [f"v_mul_f32 v{acc+4*a+r}, v{RLR+a}, v{acc+4*a+r}" for r in range(4)]
                ops += [f"v_cvt_pk_bf16_f32 v{PK+2*a+n}, v{acc+4*a+2*n}, v{acc+4*a+2*n+1}" for n in range(2)]
            def st():
                if nost: return
                fl = " nt" if stnt else ""
                if stfl: fl = " " + stfl
                I(f"s_lshl_b32 s{sA}, s{sSTRIP}, 14")
                I(f"s_add_u32 s{sSTRIP}, s{sSTRIP}, 1")
                e.vmem(f"buffer_store_dwordx4 {vr(PK,4)}, v{vST}, s[{S_PT}:{S_PT+3}], s{sA} offen{fl}", ("ST", j))
                if nz == 4: e.vmem(f"buffer_store_dwordx4 {vr(PK+4,4)}, v{vST}, s[{S_PT}:{S_PT+3}], s{sA} offen offset:1024{fl}", ("ST", j))
                else: e.vmem(f"buffer_store_dwordx2 {vr(PK+4,2)}, v8, s[{S_PT}:{S_PT+3}], s{sA} offen offset:1024{fl}", ("ST", j))
                I(f"s_cmp_eq_u32 s{sSTRIP}, 7"); I(f"s_cselect_b32 s{sSTRIP}, 0, s{sSTRIP}")
            ops.append(st)
            return ops
        I(f"s_setprio {1 if oprio == role else 0}")
        rd(0); rdB(0); rd(1); rdB(1); rd(2); rd(3)
        for j in range(7):
            fl = fin(j - 1) if j else []
            fil = spread(8 * nz, fl, 2 * nz, 8 * nz - 1) if fl else [[] for _ in range(8 * nz)]
            fl = fills_at(e, ("post", j))
            if fl:
                f2 = spread(8 * nz, fl, 0, min(8 * nz - 1, len(fl) - 1))
                fil = [a + b for a, b in zip(f2, fil)]
            for kp in range(8):
                n = 8 * j + kp
                for a in range(nz):
                    e.wl(("A", n), ("B", kp, a))
                    I(mfma(ACC + 16 * (j % 2) + 4 * a, AF + 4 * (n % 4), BF + 32 * a + 4 * kp, 0 if kp == 0 else None))
                    if a == nz - 1:
                        if j == 0 and kp + 2 < 8: rdB(kp + 2)
                        if n + 4 < len(seq): rd(n + 4)
                    e.items(fil[kp * nz + a])
            if j < 6:
                fills_at(e, ("pre", j + 1))
                if fuse and j == L1 + 1: e.wv(("ST", L1 - 1))
                e.bar()
                if fuse and j == L1 + 1 and role == 0:
                    I(f"s_cmp_lg_u32 s{sWAVE}, 3"); I("s_cbranch_scc1 L_nofl1")
                    set_flag(e, 1)
                    e.lab("L_nofl1")
                if otrace and role == 0: stamp0(e, 2 + j)
        I("s_nop 7")
        e.wl(("R",))
        e.items(fin(6))

    npoll = [0]
    def spin(e, load, test):
        k = npoll[0]; npoll[0] += 1
        e.I(f"s_mov_b32 s{sE}, 0x8000")
        e.lab(f"L_poll{k}")
        e.I(load); e.I("s_waitcnt vmcnt(0)")
        for t in test: e.I(t)
        e.I(f"s_cbranch_scc1 L_polled{k}")
        e.I(f"s_sleep {slp}"); e.I(f"s_sub_u32 s{sE}, s{sE}, 1"); e.I(f"s_cmp_lg_u32 s{sE}, 0"); e.I(f"s_cbranch_scc1 L_poll{k}")
        e.lab(f"L_polled{k}")
    def final_reduce(e):
        I = e.I
        LD, AC = 80, 72
        I(f"s_load_dwordx2 s[12:13], s[0:1], 80")
        I(f"s_add_u32 s7, s{sROTO}, s{sWAVE}"); I("s_cmp_ge_u32 s7, 7"); I("s_cselect_b32 s16, 7, 0"); I("s_sub_u32 s7, s7, s16")
        I(f"s_lshl_b32 s7, s7, 4"); I(f"s_add_u32 s7, s7, s{sHEAD}")
        I(f"s_mul_i32 s17, s{sPB}, {16*PART_HEAD}"); I("s_lshl_b32 s18, s7, 10"); I("s_add_u32 s17, s17, s18")
        I(f"s_add_u32 s8, s{sWS}, s17"); I(f"s_addc_u32 s9, s{sWS+1}, 0"); I(f"s_mov_b32 s10, {15*PART_HEAD + 1024}"); I("s_mov_b32 s11, 0x20000")
        I("s_and_b32 s25, s7, 9"); I("s_cmp_eq_u32 s25, 9"); I("s_cselect_b32 s25, 3, 4")
        I("v_lshlrev_b32 v12, s25, v0")
        I(f"s_lshl_b32 s{sA}, s{sPB}, 7"); I(f"s_add_u32 s{sA}, s{sA}, {FOFF}")
        I("v_and_b32 v13, 15, v0"); I(f"v_lshl_add_u32 v14, v13, 2, s{sA}")
        def loads():
            I("s_mov_b32 s19, 0")
            for h in range(16):
                I(f"buffer_load_dwordx4 {vr(LD+4*h,4)}, v12, s[8:11], s19 offen sc1")
                if h < 15: I(f"s_add_u32 s19, s19, {PART_HEAD}")
        def wait_flags(level):
            spin(e, f"global_load_dword v15, v14, s[{sWS}:{sWS+1}] sc1", [f"v_cmp_gt_u32 vcc, {level}, v15", "s_nop 1", "s_cmp_eq_u64 vcc, 0"])
        I(f"s_cmp_ge_u32 s{sWAVE}, {L1}"); I("s_cbranch_scc1 L_late")
        wait_flags(1)
        if ftrace: stamp0(e, 4)
        loads()
        I("s_branch L_z1")
        e.lab("L_late")
        I("s_waitcnt vmcnt(0)")
        e.lab("L_z1")
        e.bar()
        if ftrace: stamp0(e, 5)
        I(f"s_cmp_lg_u32 s{sWAVE}, 7"); I("s_cbranch_scc1 L_nopoll")
        set_flag(e, 2)
        wait_flags(2)
        e.lab("L_nopoll")
        I("s_bfe_u32 s20, s7, 0x10003"); I("s_lshl_b32 s20, s20, 1"); I("s_and_b32 s21, s7, 1"); I("s_add_u32 s20, s20, s21")
        I(f"s_and_b32 s22, s{sPB}, 7"); I("s_mul_i32 s22, s22, 112"); I("s_lshl_b32 s23, s20, 5"); I("s_add_u32 s22, s22, s23")
        I("v_add_u32 v3, s22, v13"); I("v_mul_u32_u24 v3, 1792, v3")
        I(f"s_lshr_b32 s22, s{sPB}, 3"); I("s_mul_i32 s22, s22, 896"); I("s_lshr_b32 s23, s7, 4"); I("s_lshl_b32 s23, s23, 7"); I("s_add_u32 s22, s22, s23")
        I("s_bfe_u32 s23, s7, 0x20001"); I("s_lshl_b32 s23, s23, 5"); I("s_add_u32 s22, s22, s23")
        I("v_lshrrev_b32 v4, 4, v0"); I("v_lshl_add_u32 v3, v4, 3, v3"); I("v_add_u32 v3, s22, v3")
        I(f"s_mov_b32 s24, {16*1792}"); I("s_mov_b32 s26, 0x3f80"); I("s_mov_b32 s27, 0x3f800000")
        I("s_waitcnt lgkmcnt(0)")
        I(f"s_mov_b32 s14, {8*112*896*2}"); I("s_mov_b32 s15, 0x20000")
        def summ(tag):
            for h in range(16):
                I(f"s_waitcnt vmcnt({15-h})")
                for d_ in range(4):
                    src = LD + 4 * h + d_
                    if h == 0:
                        I(f"v_lshlrev_b32 v{AC+2*d_}, 16, v{src}"); I(f"v_and_b32 v{AC+1+2*d_}, 0xffff0000, v{src}")
                    elif dot:
                        I(f"v_dot2_f32_bf16 v{AC+2*d_}, v{src}, s26, v{AC+2*d_}"); I(f"v_dot2_f32_bf16 v{AC+1+2*d_}, v{src}, s27, v{AC+1+2*d_}")
                    else:
                        I(f"v_lshlrev_b32 v5, 16, v{src}"); I(f"v_and_b32 v6, 0xffff0000, v{src}")
                        I(f"v_add_f32 v{AC+2*d_}, v{AC+2*d_}, v5"); I(f"v_add_f32 v{AC+1+2*d_}, v{AC+1+2*d_}, v6")
            I("s_nop 2")
            for d_ in range(4): I(f"v_cvt_pk_bf16_f32 v{16+d_}, v{AC+2*d_}, v{AC+1+2*d_}")
            I(f"buffer_store_dwordx2 v[16:17], v3, s[12:15], 0 offen {outfl}")
            I("s_cmp_eq_u32 s20, 3"); I(f"s_cbranch_scc1 L_rlast{tag}")
            I(f"buffer_store_dwordx2 v[18:19], v3, s[12:15], s24 offen {outfl}")
            e.lab(f"L_rlast{tag}")
        e.bar()
        if ftrace: stamp0(e, 6)
        I(f"s_cmp_eq_u32 s{sWAVE}, 7"); I("s_cbranch_scc1 L_done")
        I(f"s_cmp_lt_u32 s{sWAVE}, {L1}"); I("s_cbranch_scc1 L_sum")
        loads()
        e.lab("L_sum")
        summ("")
        if ftrace: stamp0(e, 7)
        if diag: I("s_waitcnt vmcnt(0)"); I("s_barrier")

    LOOP0, LOOPN = 5, 61
    rare_s = []
    stamp0 = stamp
    if qtrace: stamp = lambda e, k: (stamp0(e, 8) if k == 2 else None)
    if otrace: stamp = lambda e, k: (stamp0(e, 8) if k == 8 else stamp0(e, 1) if k == 6 else None)
    if ftrace: stamp = lambda e, k: (stamp0(e, {6: 2, 7: 3, 8: 8}[k]) if k in (6, 7, 8) else None)
    if pstamp:
        stamp0 = stamp
        stamp = lambda e, k: (stamp0(e, k) if k == 8 else None)
    def swave(S, NZ, tag):
        I = S.I
        vKA, vPW, vAW, vL, vT0, vT1, vT2 = 1, 2, 3, 6, 9, 11, 13
        Q0, SA, SB, PO, EX, NM, KF = 16, 80, 96, 112, 120, 136, 144
        NKF = nkf
        I(f"v_lshlrev_b32 v{vPW}, 4, v0")
        if NZ == 2:
            I(f"s_mul_i32 s{sA}, s{sW4}, {SLOT}"); I(f"v_add_u32 v{vT0}, s{sA}, v{vPW}")
        else:
            I(f"v_add_u32 v{vT0}, {QBUF[6]}, v{vPW}")
        I(f"v_and_b32 v{vKA}, 15, v0"); I(f"v_mul_u32_u24 v{vKA}, {PIECE}, v{vKA}")
        I(f"v_lshrrev_b32 v{vT1}, 4, v0"); I(f"v_lshl_add_u32 v{vKA}, v{vT1}, 4, v{vKA}")
        I(f"s_lshl_b32 s{sA}, s{sW4}, 11"); I(f"v_add_u32 v{vPW}, s{sA}, v{vPW}")
        I(f"v_and_b32 v{vAW}, 15, v0"); I(f"v_lshlrev_b32 v{vAW}, 2, v{vAW}")
        I(f"s_lshl_b32 s{sA}, s{sW4}, 7"); I(f"s_add_u32 s{sA}, s{sA}, {ALPHA}"); I(f"v_add_u32 v{vAW}, s{sA}, v{vAW}")
        for a in range(NZ):
            I(f"v_mov_b32 v{vL+a}, 0")
            for r in range(4): I(f"v_mov_b32 v{NM+4*a+r}, 0")
        I(f"s_mov_b32 s{sT}, 0x40004000")
        if NZ == 1: I(f"s_mov_b32 s{sKOFF}, {0 if hot else 32768}")
        if prio == "S": I("s_setprio 1")
        S.wl0(); S.wv(("K", 0), ("K", 1))
        S.bar()
        stamp(S, 2)
        bk = Base(S, vKA)
        def rdk(p, n):
            bk.set(slot(KRING[p % 4]))
            S.lds(f"ds_read_b128 {vr(KF+4*(n%NKF),4)}, v{vKA} offset:{(n%2)*512 + (n//2)*64}", ("K", p, n))
        nv = 8 * NZ
        def exp_cvt(sp):
            ops = []
            for k in range(nv + 3):
                if k < nv: ops.append(f"v_exp_f32 v{EX+k}, v{sp+k}")
                if k >= 3 and k % 2 == 1: ops.append(f"v_cvt_pk_bf16_f32 v{PO+(k-3)//2}, v{EX+k-3}, v{EX+k-2}")
            return ops
        def rare_body(kind):
            sub = []
            par = int(kind[1])
            first = kind[0] == "f"
            sp, cur = (SA, SB) if par == 0 else (SB, SA)
            sub.append(f"L_rare_s{tag}_{kind}:")
            for a in range(NZ):
                b = sp + 8 * a
                sub.append(f"v_max3_f32 v{vT0+a}, v{b}, v{b+1}, v{b+2}")
                sub.append(f"v_max3_f32 v{vT0+a}, v{vT0+a}, v{b+3}, v{b+4}")
                sub.append(f"v_max3_f32 v{vT0+a}, v{vT0+a}, v{b+5}, v{b+6}")
                sub.append(f"v_max_f32 v{vT0+a}, v{vT0+a}, v{b+7}")
            for sw in ("v_permlane16_swap_b32", "v_permlane32_swap_b32"):
                for a in range(NZ): sub.append(f"v_mov_b32 v{vT1+a}, v{vT0+a}")
                sub.append("s_nop 1")
                for a in range(NZ): sub.append(f"{sw} v{vT0+a}, v{vT1+a}")
                for a in range(NZ): sub.append(f"v_max_f32 v{vT0+a}, v{vT0+a}, v{vT1+a}")
            for a in range(NZ):
                sub.append(f"v_sub_f32 v{vT0+a}, 0xc0e00000, v{vT0+a}")
                if not first:
                    sub.append(f"v_min_f32 v{vT0+a}, 0, v{vT0+a}")
                    sub.append(f"v_exp_f32 v{vT1+a}, v{vT0+a}")
                for r in range(4): sub.append(f"v_add_f32 v{NM+4*a+r}, v{NM+4*a+r}, v{vT0+a}")
                for r in range(8): sub.append(f"v_add_f32 v{sp+8*a+r}, v{sp+8*a+r}, v{vT0+a}")
                if kind[0] != "n":
                    for r in range(8): sub.append(f"v_add_f32 v{cur+8*a+r}, v{cur+8*a+r}, v{vT0+a}")
                if not first:
                    sub.append(f"v_mul_f32 v{vL+a}, v{vL+a}, v{vT1+a}")
                    sub.append(f"ds_write_b32 v{vAW}, v{vT1+a} offset:{par*448 + a*64}")
            sub += exp_cvt(sp)
            if not first:
                sub.append(f"s_lshl_b32 s{sA}, s{sW4}, 3"); sub.append(f"s_add_u32 s{sA}, s{sA}, {FLG + par*128}")
                sub.append(f"v_mov_b32 v{vT0}, s{sA}"); sub.append(f"v_mov_b32 v{vT2}, s{sBLK}")
                for a in range(NZ): sub.append(f"ds_write_b32 v{vT0}, v{vT2} offset:{4*a}")
            sub.append("s_waitcnt lgkmcnt(0)")
            sub.append(f"s_setpc_b64 s[{sRET}:{sRET+1}]")
            return sub
        def softmax_ops(p):
            sp = SB if p % 2 == 0 else SA
            par = (p - 1) % 2
            ops = exp_cvt(sp)
            ops.append(f"v_or3_b32 v{vT0}, v{PO}, v{PO+1}, v{PO+2}")
            nhead = None
            if NZ == 2:
                ops.append(f"v_or3_b32 v{vT1}, v{PO+3}, v{PO+4}, v{PO+5}")
                ops.append(f"v_or3_b32 v{vT0}, v{vT0}, v{PO+6}, v{PO+7}")
                ops.append(f"v_or_b32 v{vT0}, v{vT0}, v{vT1}")
            else:
                ops.append(f"v_or_b32 v{vT0}, v{vT0}, v{PO+3}")
            ops.append(f"v_and_b32 v{vT0}, s{sT}, v{vT0}")
            kind = ("q" if p < NB else "n") + str(par)
            def check():
                I(f"s_add_u32 s{sBLK}, s{sBLK}, 1")
                if p == 1:
                    for l in rare_body("f0")[1:-2]: I(l)
                else:
                    I(f"v_cmp_ne_u32 vcc, 0, v{vT0}")
                    I(f"s_cbranch_vccnz L_stub_s{tag}_{p}")
                    S.lab(f"L_back_s{tag}_{p}")
                    rare_s.append((tag, p, kind))
            if p == 1: ops = []
            ops.append(check)
            for a in range(NZ):
                ops.append(lambda a=a: S.lds(f"ds_write_b128 v{vPW}, {vr(PO+4*a,4)} offset:{par*7168 + a*1024}", ("P", a)))
            for k in range(nv): ops.append(f"v_add_f32 v{vL+(k%NZ)}, v{vL+(k%NZ)}, v{EX+8*(k%NZ)+k//NZ}")
            if nosm: return [o for o in ops if callable(o)][1:]
            return ops
        def k_piece(j, k):
            if nodma and j >= 4: return
            if k == 8: I(f"s_add_u32 s{sKOFF}, s{sKOFF}, 4096")
            I(f"s_mov_b32 m0, {slot(KRING[j % 4]) + k*PIECE - (k%8)*512}")
            I("s_nop 0")
            S.vmem(f"buffer_load_dwordx4 v{vDM}, s[{S_K}:{S_K+3}], s{sKOFF} offen offset:{(k%8)*512}{ntf('K', j)} lds", ("K", j))
            if k == 15: I(f"s_add_u32 s{sKOFF}, s{sKOFF}, {-4096 & 0xffffffff if hot else 12288}")
        loader = s3k and NZ == 1
        def s_phase(p):
            cur = SA if p % 2 == 0 else SB
            do_qk, do_sm = p < NB, p >= 1
            sm = softmax_ops(p) if do_sm else []
            kf = []
            if loader:
                for j in ([2, 3] if p == 0 else [p + 3]):
                    if j < NB: kf += [(lambda j=j, k=k: k_piece(j, k)) for k in range(16)]
            if do_qk:
                if p == 0:
                    for a in range(NZ):
                        for ks in range(2): S.lds(f"ds_read_b128 {vr(Q0+32*a+4*ks,4)}, v{vT0} offset:{a*8192 + ks*1024}", ("Q", a, ks))
                if p in (0, 2):
                    for n in range(NKF - 2): rdk(p, n)
                if p == 0:
                    for ks in range(2, 8):
                        for a in range(NZ): S.lds(f"ds_read_b128 {vr(Q0+32*a+4*ks,4)}, v{vT0} offset:{a*8192 + ks*1024}", ("Q", a, ks))
                ng = 16 * NZ
                f0, f1 = (sfirst, slast) if NZ == 2 else (s3f, 15)
                fil = spread(ng, sm, f0, f1) if sm else [[] for _ in range(ng)]
                if kf: fil = [a + b for a, b in zip(spread(ng, kf, s3first, s3last), fil)]
                for n in range(16):
                    ks, y = n // 2, n % 2
                    for a in range(NZ):
                        if y == 0: S.wl(("K", p, n), ("K", p, n + 1), ("Q", a, ks))
                        if not noS:
                            if ks == 0: I(f"v_mfma_f32_16x16x32_bf16 {vr(cur+8*a+4*y,4)}, {vr(KF+4*(n%NKF),4)}, {vr(Q0+32*a,4)}, {vr(NM+4*a,4)}")
                            else: I(mfma(cur + 8 * a + 4 * y, KF + 4 * (n % NKF), Q0 + 32 * a + 4 * ks))
                        if a == NZ - 1:
                            m = n + NKF - 2
                            if m < 16: rdk(p, m)
                            elif p + 1 < NB and p != 1: rdk(p + 1, m - 16)
                        S.items(fil[n * NZ + a])
                S.wl(("P", 0), ("P", 1))
                if p == 0: S.wv(("V", 0))
                if loader and p >= 1: S.wv(("K", p + 2), ("K", p + 1))
                if p + 1 >= NB: I("s_nop 7")
            else:
                S.items(sm)
                for sw in ("v_permlane16_swap_b32", "v_permlane32_swap_b32"):
                    for a in range(NZ): I(f"v_mov_b32 v{vT0+a}, v{vL+a}")
                    I("s_nop 1")
                    for a in range(NZ): I(f"{sw} v{vL+a}, v{vT0+a}")
                    for a in range(NZ): I(f"v_add_f32 v{vL+a}, v{vL+a}, v{vT0+a}")
                for a in range(NZ): I(f"v_rcp_f32 v{vL+a}, v{vL+a}")
                I("s_nop 0")
                for a in range(NZ): S.lds(f"ds_write_b32 v{vAW}, v{vL+a} offset:{RL-ALPHA + a*64}", ("P", 2))
                S.wl0()
            S.bar()
        for p in range(0, LOOP0): s_phase(p)
        stamp(S, 3)
        I(f"s_mov_b32 s{sCNT}, {(LOOPN-LOOP0)//4}")
        if lalign: S.L.append(f".p2align {lalign}")
        S.lab(f"L_sloop{tag}")
        st = (list(S.lg), bk.cur, S.nbar)
        stv = list(S.vm)
        for p in range(LOOP0, LOOP0 + 4): s_phase(p)
        assert [(t[0], t[1] - 4) for t in S.vm] == stv
        S.vm = [(t[0], t[1] + LOOPN - LOOP0 - 4) for t in S.vm]
        assert [(t[0], t[1] - 4, t[2]) for t in S.lg] == st[0] and bk.cur == st[1], (S.lg, st)
        I(f"s_sub_u32 s{sCNT}, s{sCNT}, 1"); I(f"s_cmp_lg_u32 s{sCNT}, 0"); I(f"s_cbranch_scc1 L_sloop{tag}")
        stamp(S, 4)
        S.lg = [(t[0], LOOPN, t[2]) for t in S.lg]
        S.nbar = st[2] + (LOOPN - LOOP0)
        for p in range(LOOPN, NB + 1): s_phase(p)
        stamp(S, 5)
        sub = []
        for kind in ("q0", "q1") + (("n1",) if NB % 2 == 0 else ("n0",)): sub += rare_body(kind)
        return sub
    I(f"s_cmp_eq_u32 s{sWAVE}, 3"); I("s_cbranch_scc1 L_swave3")
    S3 = E.fork()
    subs = swave(E, 2, "a")
    I("s_branch L_sjoin")
    S3.lab("L_swave3")
    subs += swave(S3, 1, "b")
    if fuse:
        S3.wv0()
        I(f"s_lshr_b32 s{sD}, s2, 5"); I(f"s_lshl_b32 s{sD}, s{sD}, 5"); I(f"v_mov_b32 v6, s{sD}")
        I(f"s_and_b32 s{sA}, s2, 4"); I(f"s_lshl_b32 s{sA}, 0x0f0f0f0f, s{sA}")
        spin(S3, f"global_load_dword v7, v6, s[{sDBG}:{sDBG+1}] sc1",
             [f"v_readfirstlane_b32 s{sD}, v7", f"s_and_b32 s{sD}, s{sD}, s{sA}", f"s_cmp_eq_u32 s{sD}, s{sA}"])
    assert S3.nbar == E.nbar
    E.lab("L_sjoin")
    S = E
    S.bar()
    stamp(S, 6)
    oproj(S, 0, lambda e, st: [])
    stamp(S, 7)
    nbarS = S.nbar
    if fuse:
        E.lab("L_final")
        final_reduce(S)
    if diag:
        I(f"s_cmp_lg_u32 s{sWAVE}, 0"); I("s_cbranch_scc1 L_done")
        I("s_waitcnt vmcnt(0)")
        stamp(S, 8)
        I("s_waitcnt lgkmcnt(0)")
        I("s_mov_b64 exec, 1")
        if dbgwg is not None:
            I(f"s_cmp_lg_u32 s2, {dbgwg}"); I("s_cbranch_scc1 L_done")
            I(f"v_mov_b32 v1, {128<<20}")
            for k in range(8):
                I(f"s_sub_u32 s{sA}, s{sTS+4*k+4}, s{sTS+4*k}"); I(f"v_mov_b32 v4, s{sA}")
                I(f"s_sub_u32 s{sA}, s{sTS+4*k+6}, s{sTS+4*k+2}"); I(f"v_mov_b32 v5, s{sA}")
                I(f"global_store_dword v1, v4, s[58:59] offset:{4*k}"); I(f"global_store_dword v1, v5, s[58:59] offset:{32+4*k}")
            I("s_endpgm")
        I(f"s_lshl_b32 s{sA}, s2, 7"); I(f"s_add_u32 s{sA}, s{sA}, {64<<20}"); I(f"v_mov_b32 v1, s{sA}")
        for k in range(9):
            I(f"v_mov_b32 v4, s{sTS+4*k}"); I(f"v_mov_b32 v5, s{sTS+4*k+2}")
            I(f"global_store_dwordx2 v1, v[4:5], s[58:59] offset:{8*k}")
            I("s_nop 1")
    I("s_endpgm")

    I = O.I
    O.lab("L_owave")
    qproj(O, 1)
    vVA, vPA, vWX, vFA, vF = 1, 2, 9, 4, 5
    VF, OA, OX, PF = 12, 68, 180, 228
    tr_lane(O, vVA, 6, 3)
    I(f"v_lshlrev_b32 v{vPA}, 4, v0")
    I(f"v_and_b32 v{vFA}, 7, v0"); I(f"v_lshlrev_b32 v{vFA}, 2, v{vFA}"); I(f"v_add_u32 v{vFA}, {FLG}, v{vFA}")
    I(f"v_lshrrev_b32 v{vWX}, 3, v0"); I(f"v_mul_u32_u24 v{vWX}, {16*896}, v{vWX}")
    I(f"v_and_b32 v6, 7, v0"); I(f"v_lshl_add_u32 v{vWX}, v6, 4, v{vWX}")
    I(f"s_mul_i32 s{sA}, s{sW4}, {4*896}"); I(f"v_add_u32 v{vWX}, s{sA}, v{vWX}")
    I(f"s_lshl_b32 s{sPOFF}, s{sROTO}, 7")
    def wo_piece(f, i, O=None):
        O = O or Ocur[0]
        if nowo and f >= 6: return
        O.I(f"s_add_u32 m0, s{sWLDS}, {WOSLOT[f] + i*PIECE}")
        O.I(f"s_add_u32 s{sD}, s{sPOFF}, {((f%2)*128 + i)*896}")
        O.vmem(f"buffer_load_dwordx4 v{vWX}, s[{S_WO}:{S_WO+3}], s{sD} offen lds", ("WO", f))
        if i == 3 and f % 2 == 1:
            O.I(f"s_add_u32 s{sPOFF}, s{sPOFF}, 128"); O.I(f"s_cmp_eq_u32 s{sPOFF}, 896"); O.I(f"s_cselect_b32 s{sPOFF}, 0, s{sPOFF}")
    Ocur = [O]
    O.wl0()
    if prio == "O": I("s_setprio 1")
    O.wv(("K", 0), ("K", 1))
    rare_o = []; osubs = []
    def owave(O, tag, chk=False):
        I = O.I
        big = bal and tag == "b"
        nsl = 7 if big else 4
        voff = [384 + 32 * sl for sl in range(4)] + [128 * e + 96 for e in range(3)] if big else [32 * sl for sl in range(4)]
        def units(z):
            if not bal: return [0, 1, 2, 3]
            if big: return [0, 1, 2, 3] + ([4, 5, 6] if z >= balz else [])
            return [0, 1, 2] + ([3] if z < balz else [])
        acc = lambda z, sl: OA + 16 * z + 4 * sl if sl < 4 else OX + 12 * (z - 3) + 4 * (sl - 4)
        if not big: I(f"s_lshl_b32 s{sA}, s{sW4}, 7"); I(f"v_add_u32 v{vVA}, s{sA}, v{vVA}")
        O.bar()
        bv = Base(O, vVA)
        def rdv1(j, k):
            sl, y = k // 2, k % 2
            bv.set(slot(VRING[j % 4]))
            O.lds(f"ds_read_b64_tr_b16 {vr(VF+28*(j%2)+4*sl+2*y,2)}, v{vVA} offset:{y*512 + voff[sl]}", ("V", j, sl))
        def rdv(j):
            for k in range(2 * nsl): rdv1(j, k)
        bo, b2 = Base(O, 6), Base(O, 7)
        def pack(z):
            us = units(z)
            ops = [f"v_cvt_pk_bf16_f32 v{acc(z,sl&~1 if sl < 4 else sl)+2*(sl&1 if sl < 4 else 0)+n}, v{acc(z,sl)+2*n}, v{acc(z,sl)+2*n+1}" for sl in us for n in range(2)]
            def wr():
                if not (0 <= OBUF[z] - bo.cur < 57000):
                    bo.set(OBUF[z])
                    if big: b2.set(OBUF[z])
                O.lds(f"ds_write_b128 v6, {vr(acc(z,0),4)} offset:{OBUF[z]-bo.cur}", ("W",))
                if 3 in us: O.lds(f"ds_write_b128 v6, {vr(acc(z,2),4)} offset:{OBUF[z]-bo.cur + 1024}", ("W",))
                else: O.lds(f"ds_write_b64 v6, {vr(acc(z,2),2)} offset:{OBUF[z]-bo.cur + 1024}", ("W",))
                for sl in us:
                    if sl >= 4: O.lds(f"ds_write_b64 v7, {vr(acc(z,sl),2)} offset:{OBUF[z]-b2.cur + (2*(sl-4)+1)*1024 + 8}", ("W",))
            return ops + [wr]
        def o_phase(p):
            j = p - 2
            pieces = []
            def kv(kind, jj): return [(lambda i=i: kv_piece(O, kind, jj, i)) for i in range(4)]
            if p == 0 and not s3k: pieces += kv("K", 2)
            if p + 1 < NB: pieces += kv("V", p + 1)
            if p + 3 < NB:
                if not s3k: pieces += kv("K", p + 3)
            else:
                for f in {NB - 3: [0], NB - 2: [1], NB - 1: [2], NB: [3, 4], NB + 1: []}[p]:
                    pieces += [(lambda i=i, f=f: wo_piece(f, i, O)) for i in range(4)]
            if j < 0:
                O.items(pieces)
                if p == 0:
                    for r in range(OA, OA + 112 + (48 if big else 0)): I(f"v_mov_b32 v{r}, 0")
                if p == 1: rdv(0)
            else:
                par = j % 2
                def rdp(z): O.lds(f"ds_read_b128 {vr(PF+4*(z%npf),4)}, v{vPA} offset:{par*7168 + z*1024}", ("P", z))
                O.lds(f"ds_read_b32 v{vF}, v{vFA} offset:{par*128}", ("F",))
                for z in range(npf): rdp(z)
                I(f"s_add_u32 s{sBLK}, s{sBLK}, 1")
                fil = spread(8, pieces, dmafirst, dmalast) if pieces else [[] for _ in range(8)]
                O.items(fil[0])
                O.wl(("F",))
                I(f"v_cmp_eq_u32 vcc, s{sBLK}, v{vF}")
                I(f"s_cbranch_vccnz L_stub_o{tag}{p}")
                O.lab(f"L_back_o{tag}{p}")
                rare_o.append((tag, p, par))
                kv_ = 0
                if p == NB + 1:
                    I(f"s_lshl_b32 s{sA}, s{sW4}, 11"); I(f"v_add_u32 v6, s{sA}, v{vPA}"); I(f"v_mov_b32 v7, v{vPA}")
                for z in range(7):
                    if p == NB + 1 and z >= 2: O.items(pack(z - 2)) if z > 2 else None
                    for sl in units(z):
                        O.wl(("P", z), ("V", j, sl))
                        if not noO: I(mfma(acc(z, sl), VF + 28 * (j % 2) + 4 * sl, PF + 4 * (z % npf)))
                        if z >= vz0 and j + 1 < NB and kv_ < 2 * nsl: rdv1(j + 1, kv_); kv_ += 1
                    if p == NB + 1 and z == 2: O.items(pack(0))
                    if z + npf < 7: rdp(z + npf)
                    O.items(fil[z + 1])
            if p <= NB:
                if p == 0: O.wv(("V", 0))
                else: O.wv(("K", p + 2), ("V", p), ("K", p + 1))
                if p == NB: O.wl0()
                O.bar()
        for p in range(0, LOOP0): o_phase(p)
        I(f"s_mov_b32 s{sCNT}, {(LOOPN-LOOP0)//4}")
        O.lab(f"L_oloop{tag}")
        st = (list(O.lg), list(O.vm), bv.cur, O.nbar)
        for p in range(LOOP0, LOOP0 + 4): o_phase(p)
        sh = lambda q, d: [(t[0], t[1] + d) + tuple(t[2:]) for t in q]
        assert sh(O.lg, -4) == st[0] and sh(O.vm, -4) == st[1] and bv.cur == st[2], (O.lg, O.vm, st)
        I(f"s_sub_u32 s{sCNT}, s{sCNT}, 1"); I(f"s_cmp_lg_u32 s{sCNT}, 0"); I(f"s_cbranch_scc1 L_oloop{tag}")
        d = LOOPN - LOOP0 - 4
        O.lg = sh(O.lg, d); O.vm = sh(O.vm, d); O.nbar = st[3] + (LOOPN - LOOP0)
        for p in range(LOOPN, NB + 2): o_phase(p)
        for z in range(5, 7): O.items(pack(z))
        O.wv(("WO", 0), ("WO", 1), ("WO", 2))
        O.wl0()
        for par in range(2):
            osubs.append(f"L_rare_o{tag}_{par}:")
            osubs.append("s_nop 7"); osubs.append(f"s_mov_b32 s{sA}, vcc_lo")
            osubs.extend([f"v_and_b32 v6, 15, v0", f"v_lshlrev_b32 v6, 2, v6", f"v_add_u32 v6, {ALPHA + par*448}, v6"])
            for z in range(7):
                osubs.extend([f"s_bitcmp1_b32 s{sA}, {z}", f"s_cbranch_scc0 L_rare_o{tag}_{par}_{z}", f"ds_read_b32 v{vF}, v6 offset:{z*64}", "s_waitcnt lgkmcnt(0)"])
                for sl in units(z):
                    osubs.extend([f"v_mul_f32 v{acc(z,sl)+r}, v{vF}, v{acc(z,sl)+r}" for r in range(4)])
                osubs.append(f"L_rare_o{tag}_{par}_{z}:")
            osubs.append("s_nop 1"); osubs.append(f"s_setpc_b64 s[{sRET}:{sRET+1}]")
    if bal:
        I(f"s_cmp_eq_u32 s{sWAVE}, 7"); I("s_cbranch_scc1 L_owave7")
        O7 = O.fork()
        owave(O, "a")
        I("s_branch L_ojoin")
        O7.lab("L_owave7")
        owave(O7, "b", chk=fuse)
        assert O7.nbar == O.nbar and O7.vm == O.vm and O7.lg == O.lg, (O7.vm, O.vm)
        O.lab("L_ojoin")
    else:
        owave(O, "a")
    O.bar()
    def fills_at(e, st):
        when, j = st
        if when == "pre":
            e.wv(*[("WO", f) for f in range(min(14, 2 * j + 3))])
            return []
        fl = ({0: [5], 1: [6, 7, 8], 2: [9, 10], 3: [11, 12], 4: [13]} if wosplit else {0: [5], 1: [6, 7, 8, 9, 10], 2: [11, 12], 3: [13]}).get(j, [])
        return [(lambda f=f, i=i: wo_piece(f, i)) for f in fl for i in range(4)]
    oproj(O, 1, fills_at)
    assert O.nbar == nbarS, (O.nbar, nbarS)
    if fuse: I("s_branch L_final")
    O.lab("L_done"); I("s_endpgm")
    for tag, site, kind in rare_s:
        O.lab(f"L_stub_s{tag}_{site}"); I(f"s_call_b64 s[{sRET}:{sRET+1}], L_rare_s{tag}_{kind}"); I(f"s_branch L_back_s{tag}_{site}")
    for l in subs: (O.lab(l[:-1]) if l.endswith(":") else I(l))
    for tag, site, par in rare_o:
        O.lab(f"L_stub_o{tag}{site}"); I(f"s_call_b64 s[{sRET}:{sRET+1}], L_rare_o{tag}_{par}"); I(f"s_branch L_back_o{tag}{site}")
    for l in osubs: (O.lab(l[:-1]) if l.endswith(":") else I(l))

    E.lab("L_code_end")
    R = Em(E.L); I = R.I
    R.L += kernel_head("reduce_kernel")
    I(f"s_cmp_ge_u32 s2, {1792//k2w}"); I("s_cbranch_scc1 L_rdone")
    I("s_load_dwordx2 s[8:9], s[0:1], 96"); I("s_load_dwordx2 s[12:13], s[0:1], 80")
    if dbgwg is not None:
        I("s_cmp_lg_u32 s2, 0"); I("s_cbranch_scc1 L_rnodbg")
        I("s_load_dwordx4 s[24:27], s[0:1], 88"); I("s_waitcnt lgkmcnt(0)")
        I("v_and_b32 v2, 15, v0"); I("v_lshlrev_b32 v2, 2, v2"); I(f"v_add_u32 v3, {128<<20}, v2")
        I("global_load_dword v4, v3, s[26:27]"); I("s_waitcnt vmcnt(0)"); I("global_store_dword v2, v4, s[24:25]"); I("s_waitcnt vmcnt(0)")
        R.lab("L_rnodbg")
    I("v_lshrrev_b32 v1, 6, v0"); I("v_and_b32 v0, 63, v0"); I("v_readfirstlane_b32 s3, v1")
    I(f"s_mul_i32 s4, s2, {k2w}"); I("s_add_u32 s4, s4, s3")
    I(f"s_mov_b32 s5, {(2**32 + 111)//112}"); I("s_mul_hi_u32 s5, s4, s5")
    I("s_mul_i32 s6, s5, 112"); I("s_sub_u32 s6, s4, s6")
    I(f"s_mul_i32 s17, s5, {16*PART_HEAD}"); I("s_lshl_b32 s18, s6, 10"); I("s_add_u32 s17, s17, s18")
    I("s_and_b32 s25, s6, 9"); I("s_cmp_eq_u32 s25, 9"); I("s_cselect_b32 s25, 3, 4")
    I("v_lshlrev_b32 v2, s25, v0")
    I("s_waitcnt lgkmcnt(0)")
    I("s_add_u32 s8, s8, s17"); I("s_addc_u32 s9, s9, 0"); I(f"s_mov_b32 s10, {15*PART_HEAD + 1024}"); I("s_mov_b32 s11, 0x20000")
    I(f"s_mov_b32 s14, {8*112*896*2}"); I("s_mov_b32 s15, 0x20000")
    I("s_mov_b32 s19, 0")
    for h in range(16):
        I(f"buffer_load_dwordx4 {vr(8+4*h,4)}, v2, s[8:11], s19 offen")
        if h < 15: I(f"s_add_u32 s19, s19, {PART_HEAD}")
    I("s_bfe_u32 s20, s6, 0x10003"); I("s_lshl_b32 s20, s20, 1"); I("s_and_b32 s21, s6, 1"); I("s_add_u32 s20, s20, s21")
    I("s_and_b32 s22, s5, 7"); I("s_mul_i32 s22, s22, 112"); I("s_lshl_b32 s23, s20, 5"); I("s_add_u32 s22, s22, s23")
    I("v_and_b32 v3, 15, v0"); I("v_add_u32 v3, s22, v3"); I("v_mul_u32_u24 v3, 1792, v3")
    I("s_lshr_b32 s22, s5, 3"); I("s_mul_i32 s22, s22, 896"); I("s_lshr_b32 s23, s6, 4"); I("s_lshl_b32 s23, s23, 7"); I("s_add_u32 s22, s22, s23")
    I("s_bfe_u32 s23, s6, 0x20001"); I("s_lshl_b32 s23, s23, 5"); I("s_add_u32 s22, s22, s23")
    I("v_lshrrev_b32 v4, 4, v0"); I("v_lshl_add_u32 v3, v4, 3, v3"); I("v_add_u32 v3, s22, v3")
    I(f"s_mov_b32 s24, {16*1792}")
    for h in range(16):
        I(f"s_waitcnt vmcnt({15-h})")
        for d_ in range(4):
            src = 8 + 4 * h + d_
            if h == 0:
                I(f"v_lshlrev_b32 v{72+2*d_}, 16, v{src}"); I(f"v_and_b32 v{73+2*d_}, 0xffff0000, v{src}")
            else:
                I(f"v_lshlrev_b32 v5, 16, v{src}"); I(f"v_and_b32 v6, 0xffff0000, v{src}")
                I(f"v_add_f32 v{72+2*d_}, v{72+2*d_}, v5"); I(f"v_add_f32 v{73+2*d_}, v{73+2*d_}, v6")
    for d_ in range(4): I(f"v_cvt_pk_bf16_f32 v{8+d_}, v{72+2*d_}, v{73+2*d_}")
    I("buffer_store_dwordx2 v[8:9], v3, s[12:15], 0 offen")
    I("s_cmp_eq_u32 s20, 3"); I("s_cbranch_scc1 L_rdone")
    I("buffer_store_dwordx2 v[10:11], v3, s[12:15], s24 offen")
    R.lab("L_rdone"); I("s_endpgm")
    if fuse: del E.L[E.L.index(".globl reduce_kernel"):]
    tail = ['.section .rodata,"a"'] + kd(NAME + "_kernel") + ([] if fuse else kd("reduce_kernel", vgpr=80, sgpr=32, accum=80))
    return "\n".join(head + E.L + tail) + "\n"

if __name__ == "__main__":
    kw = eval("dict(%s)" % (sys.argv[2] if len(sys.argv) > 2 else ""))
    open(sys.argv[1], "w").write(gen(**kw))
```

```python
import sys
from asmlib import *

NB = 64
PIECE = 1056
SLOT = 16 * PIECE
TSLOT = 0
def slot(i): return SLOT * (i + 1)
SPARE = slot(8)
FLG = SPARE + 8192
ALPHA = FLG + 256
RL = ALPHA + 1024
QSETS = [[slot(5), slot(6), slot(7)], [slot(2), slot(3), slot(4)], [TSLOT, slot(0), slot(1)]]
QBUF = [TSLOT, TSLOT + 8192, slot(0), slot(0) + 8192, slot(1), slot(1) + 8192, SPARE]
KRING = [2, 3, 5, 7]
VRING = [4, 6, 0, 1]
PART_HEAD = 114688
FOFF = 30 << 20

S_X, S_WQ, S_K, S_V, S_WO, S_PT = 8, 12, 16, 20, 24, 28
sWAVE, sW4, sROT, sWLDS, sKOFF, sVOFF, sCNT, sBLK, sC, sT = 32, 33, 34, 35, 36, 37, 38, 39, 40, 41
sA, sB2, sD, sE, sHH, sPOFF, sSTRIP, sXOFF, sXLDS = 42, 43, 44, 45, 46, 47, 48, 49, 52
sRET = 54
sROTO = 6
sDBG, sWS, sOUT, sPB, sHEAD = 56, 58, 50, 5, 4
sTS = 60

class Em:
    def __init__(self, L=None):
        self.L = [] if L is None else L; self.lg = []; self.vm = []; self.nbar = 0
    def fork(self):
        e = Em(self.L); e.lg = list(self.lg); e.vm = list(self.vm); e.nbar = self.nbar; return e
    def I(self, s): self.L.append("    " + s)
    def lab(self, s): self.L.append(s + ":")
    def lds(self, s, tag): self.I(s); self.lg.append(tag)
    def vmem(self, s, tag): self.I(s); self.vm.append(tag)
    def _need(self, q, tags):
        idx = [i for i, t in enumerate(q) if t in tags]
        return None if not idx else max(idx)
    def wl(self, *tags):
        i = self._need(self.lg, tags)
        if i is None: return
        n = min(len(self.lg) - i - 1, 15)
        self.I(f"s_waitcnt lgkmcnt({n})"); self.lg = self.lg[len(self.lg) - n:] if n else []
    def wv(self, *tags):
        i = self._need(self.vm, tags)
        if i is None: return
        n = min(len(self.vm) - i - 1, 63)
        self.I(f"s_waitcnt vmcnt({n})"); self.vm = self.vm[len(self.vm) - n:] if n else []
    def wl0(self):
        if self.lg: self.I("s_waitcnt lgkmcnt(0)")
        self.lg = []
    def wv0(self):
        if self.vm: self.I("s_waitcnt vmcnt(0)")
        self.vm = []
    def bar(self): self.I("s_barrier"); self.nbar += 1
    def items(self, its):
        for f in its:
            if callable(f): f()
            else: self.I(f)

class Base:
    def __init__(self, e, reg, cur=0): self.e, self.reg, self.cur = e, reg, cur
    def set(self, b):
        d = b - self.cur
        if d: self.e.I(f"v_add_u32 v{self.reg}, {d & 0xffffffff}, v{self.reg}")
        self.cur = b

def vr(a, n): return f"v[{a}:{a+n-1}]"
def mfma(d, a, b, c=None):
    return f"v_mfma_f32_16x16x32_bf16 {vr(d,4)}, {vr(a,4)}, {vr(b,4)}, " + ("0" if c == 0 else vr(d, 4))
def spread(nslots, fillers, first=0, last=None):
    last = nslots - 1 if last is None else last
    out = [[] for _ in range(nslots)]
    n = last - first + 1
    for i, f in enumerate(fillers): out[first + (i * n) // len(fillers)].append(f)
    return out

def gen(diag=False, kvnt=True, stnt=False, hot=False, nodma=False, prio="S", sfirst=8, slast=28, dmafirst=0, dmalast=3, k1only=False, pstamp=False, qpre=2, nosm=False, noO=False, noS=False, nobar=False, ipf=False, stfl='sc1', pad=0, lalign=0, s3k=True, s3first=0, s3last=15, nkf=16, npf=7, nost=False, nowo=False, noqf=False, bal=True, qprio=1, balz=4, vz0=2, s3f=4, k2w=4, dbgwg=None, qtrace=False, otrace=False, qwho=None, wosplit=True, fuse=True, slp=2, L1=2, dot=True, ftrace=False, tlbw=False, qbar=False, oprio=0, outfl='', xfirst=True, keep='', fdel=1):
    NT_ = " nt" if kvnt else ""
    def ntf(kind, j):
        return "" if f"{kind}{j % 4}" in keep else NT_
    E = Em(); I = E.I
    def stamp(e, k):
        if diag:
            e.I(f"s_memtime s[{sTS+4*k}:{sTS+4*k+1}]"); e.I(f"s_memrealtime s[{sTS+4*k+2}:{sTS+4*k+3}]")
    head = [l for l in open("ref.s.txt").read().split("\n") if l.startswith(";") and "@launch" not in l and "Override" not in l and "grid=ceil" not in l]
    if fuse: head += ["; @launch grid=(256,1,1) block=(512,1,1) lds=163840"]
    else: head += [f"; @launch kernel={NAME}_kernel grid=(256,1,1) block=(512,1,1) lds=163840"]
    if not k1only and not fuse: head += [f"; @launch kernel=reduce_kernel grid=({1792//k2w},1,1) block=({64*k2w},1,1) lds=0"]
    head += ['.amdgcn_target "amdgcn-amd-amdhsa--gfx950"', ".text"]
    E.L += kernel_head(NAME + "_kernel")
    I("s_cmp_ge_u32 s2, 256"); I("s_cbranch_scc1 L_done")
    stamp(E, 0)
    I("s_bfe_u32 s6, s2, 0x10002"); I("s_and_b32 s3, s2, 3"); I("s_lshl_b32 s3, s3, 1"); I("s_bfe_u32 s4, s2, 0x10004"); I("s_add_u32 s3, s3, s4")
    I(f"s_bfe_u32 s{sHH}, s2, 0x10003"); I("s_lshr_b32 s7, s2, 5")
    I("s_lshl_b32 s5, s6, 3"); I("s_add_u32 s5, s5, s7"); I(f"s_mul_i32 s{sA}, s6, 40")
    I(f"s_add_u32 s50, s0, s{sA}"); I("s_addc_u32 s51, s1, 0")
    I(f"s_load_dwordx2 s[{S_X}:{S_X+1}], s[50:51], 0")
    I(f"s_load_dwordx2 s[{S_WQ}:{S_WQ+1}], s[50:51], 24")
    I(f"s_load_dwordx2 s[{S_K}:{S_K+1}], s[50:51], 8")
    I(f"s_load_dwordx2 s[{S_V}:{S_V+1}], s[50:51], 16")
    I(f"s_load_dwordx2 s[{S_WO}:{S_WO+1}], s[50:51], 32")
    I(f"s_load_dwordx2 s[{S_PT}:{S_PT+1}], s[0:1], 96")
    I(f"s_load_dwordx4 s[{sDBG}:{sDBG+3}], s[0:1], 88")
    I("v_lshrrev_b32 v1, 6, v0"); I("v_and_b32 v0, 63, v0")
    I(f"v_readfirstlane_b32 s{sWAVE}, v1")
    I(f"s_lshl_b32 s4, s3, 1"); I(f"s_add_u32 s4, s4, s{sHH}")
    I(f"s_bfe_u32 s{sA}, s2, 0x20003"); I(f"s_lshl_b32 s{sA}, s{sA}, 1"); I(f"s_add_u32 s{sROT}, s7, s{sA}")
    I(f"s_cmp_ge_u32 s{sROT}, 7"); I(f"s_cselect_b32 s{sA}, 7, 0"); I(f"s_sub_u32 s{sROT}, s{sROT}, s{sA}")
    I(f"s_and_b32 s{sW4}, s{sWAVE}, 3")
    I(f"s_cmp_eq_u32 s7, 7"); I(f"s_cselect_b32 s{sROTO}, 0, s7")
    I(f"s_mul_i32 s{sWLDS}, s{sW4}, {4*PIECE}")
    I(f"s_mov_b32 s{sC}, 0x3db8aa3b"); I(f"s_mov_b32 s{sT}, 0x41000000")
    vXD, vWD, vXA0, vXA1, vQA, t0, t1 = 1, 2, 3, 4, 5, 6, 7
    I(f"v_lshrrev_b32 v{vXD}, 3, v0"); I(f"v_mul_u32_u24 v{vXD}, 896, v{vXD}")
    I(f"v_lshrrev_b32 v{t0}, 4, v0"); I(f"v_lshlrev_b32 v{t0}, 1, v{t0}"); I(f"v_and_b32 v{t1}, 7, v0"); I(f"v_xor_b32 v{t0}, v{t0}, v{t1}")
    I(f"v_lshl_add_u32 v{vXD}, v{t0}, 4, v{vXD}")
    I(f"v_lshrrev_b32 v{t0}, 5, v0"); I(f"v_lshlrev_b32 v{vWD}, 15, v{t0}"); I(f"v_and_b32 v{t0}, 31, v0")
    I(f"v_lshl_add_u32 v{vWD}, v{t0}, 4, v{vWD}")
    I(f"s_lshl_b32 s{sPOFF}, s{sROT}, 19"); I(f"s_lshl_b32 s{sE}, s{sWAVE}, 16")
    I(f"s_lshl_b32 s{sXOFF}, s{sROT}, 7"); I(f"s_mul_i32 s{sB2}, s{sWAVE}, {16*896}")
    I(f"s_lshl_b32 s{sXLDS}, s{sWAVE}, 11")
    I(f"s_lshr_b32 s{sD}, s{sWAVE}, 2"); I(f"s_mul_i32 s{sD}, s{sD}, {SLOT}"); I(f"s_add_u32 s53, s{sD}, s{sWLDS}")
    I("s_waitcnt lgkmcnt(0)")
    if pstamp: stamp(E, 1)
    def srd(r, off_sgpr, size):
        I(f"s_add_u32 s{r}, s{r}, s{off_sgpr}"); I(f"s_addc_u32 s{r+1}, s{r+1}, 0")
        if isinstance(size, int): I(f"s_mov_b32 s{r+2}, {size}")
        else: I(size)
        I(f"s_mov_b32 s{r+3}, 0x20000")
    I(f"s_mul_i32 s{sA}, s7, 100352"); srd(S_X, sA, 100352)
    I(f"s_lshl_b32 s{sA}, s4, 9"); srd(S_WQ, sA, f"s_sub_u32 s{S_WQ+2}, {448*8192}, s{sA}")
    def qfill_ops(e, i):
        if noqf and i >= 3: return []
        xs, wa, wb = QSETS[i % 3]
        assert wb == wa + SLOT
        ops = []
        for j in range(2):
            def f(j=j):
                e.I(f"s_add_u32 m0, s{sXLDS}, {xs + j*1024}")
                e.I(f"s_add_u32 s{sD}, s{sXOFF}, s{sB2}" if j == 0 else f"s_add_u32 s{sD}, s{sD}, {8*896}")
                e.vmem(f"buffer_load_dwordx4 v{vXD}, s[{S_X}:{S_X+3}], s{sD} offen lds", ("QF", i))
            ops.append(f)
        for j in range(4):
            def f(j=j):
                e.I(f"s_add_u32 m0, s53, {wa + j*PIECE}")
                e.I(f"s_add_u32 s{sD}, s{sPOFF}, s{sE}" if j == 0 else f"s_add_u32 s{sD}, s{sD}, 8192")
                e.vmem(f"buffer_load_dwordx4 v{vWD}, s[{S_WQ}:{S_WQ+3}], s{sD} offen lds", ("QF", i))
                if j == 3:
                    e.I(f"s_add_u32 s{sPOFF}, s{sPOFF}, {1<<19}"); e.I(f"s_add_u32 s{sXOFF}, s{sXOFF}, 128")
                    e.I(f"s_cmp_eq_u32 s{sXOFF}, 896"); e.I(f"s_cselect_b32 s{sPOFF}, 0, s{sPOFF}"); e.I(f"s_cselect_b32 s{sXOFF}, 0, s{sXOFF}")
            ops.append(f)
        if not xfirst: ops = ops[2:5] + ops[:2] + ops[5:]
        return ops
    if fuse:
        I(f"s_cmp_lg_u32 s{sWAVE}, 3"); I("s_cbranch_scc1 L_noclr")
        I(f"s_lshl_b32 s{sA}, s5, 5"); I(f"s_add_u32 s{sA}, s{sA}, s4"); I(f"s_lshl_b32 s{sA}, s{sA}, 2"); I(f"s_add_u32 s{sA}, s{sA}, {FOFF}")
        I(f"v_mov_b32 v12, s{sA}"); I("v_mov_b32 v13, 0")
        I("s_mov_b64 exec, 1")
        I(f"global_store_dword v12, v13, s[{sWS}:{sWS+1}] sc1")
        I("s_mov_b64 exec, -1")
        E.lab("L_noclr")
    for _ in range(pad): I("s_nop 0")
    if ipf:
        I("s_getpc_b64 s[56:57]")
        E.lab("L_pc")
        I(f"s_lshl_b32 s{sA}, s{sWAVE}, 13"); I(f"v_lshl_add_u32 v{t0}, v0, 7, s{sA}")
        I(f"s_min_u32 s{sA}, s{sA}, s{sA}")
        I(f"v_min_u32 v{t0}, L_code_end-L_pc-4, v{t0}")
        E.vmem(f"global_load_dword v15, v{t0}, s[56:57]", ("QF", -1))
    for i in range(qpre):
        E.items(qfill_ops(E, i))
        if qbar and i == 0: E.bar()
    if pstamp: stamp(E, 2)
    I(f"s_lshl_b32 s{sA}, s7, 3"); I(f"s_add_u32 s{sA}, s{sA}, s3"); I(f"s_lshl_b32 s{sA}, s{sA}, 20")
    srd(S_K, sA, 1 << 20); srd(S_V, sA, 1 << 20)
    I(f"s_mul_i32 s{sA}, s4, {256*896}"); srd(S_WO, sA, 256 * 896)
    I(f"s_lshl_b32 s{sA}, s5, 4"); I(f"s_add_u32 s{sA}, s{sA}, s4"); I(f"s_mul_i32 s{sA}, s{sA}, {PART_HEAD}"); srd(S_PT, sA, PART_HEAD)
    I(f"v_and_b32 v{t0}, 15, v0"); I(f"v_lshlrev_b32 v{vXA0}, 7, v{t0}")
    I(f"v_and_b32 v{t0}, 6, v0"); I(f"v_lshrrev_b32 v{t1}, 4, v0"); I(f"v_xor_b32 v{t0}, v{t0}, v{t1}")
    I(f"v_lshl_add_u32 v{vXA0}, v{t0}, 4, v{vXA0}"); I(f"v_xor_b32 v{vXA1}, 64, v{vXA0}")
    def tr_lane(e, dst, tmp, sh):
        e.I(f"v_lshrrev_b32 v{dst}, 2, v0"); e.I(f"v_mul_u32_u24 v{dst}, {PIECE}, v{dst}")
        e.I(f"v_and_b32 v{tmp}, 3, v0"); e.I(f"v_lshl_add_u32 v{dst}, v{tmp}, {sh}, v{dst}")
    tr_lane(E, vQA, t0, 4)
    I(f"s_lshl_b32 s{sA}, s{sWAVE}, 6"); I(f"v_add_u32 v{vQA}, s{sA}, v{vQA}")
    vDM = 8
    I(f"v_and_b32 v{vDM}, 31, v0"); I(f"v_lshlrev_b32 v{vDM}, 4, v{vDM}")
    I(f"v_lshrrev_b32 v{t0}, 5, v0"); I(f"v_lshl_add_u32 v{vDM}, v{t0}, 13, v{vDM}")
    I(f"s_lshl_b32 s{sKOFF}, s{sW4}, 11"); I(f"s_add_u32 s{sVOFF}, s{sKOFF}, {0 if hot else 16384}"); I(f"s_add_u32 s{sKOFF}, s{sKOFF}, {0 if hot else 32768}")
    I(f"v_lshlrev_b32 v{t0}, 2, v0"); I(f"v_add_u32 v{t0}, {FLG}, v{t0}"); I(f"v_mov_b32 v{t1}, 0")
    E.lds(f"ds_write_b32 v{t0}, v{t1}", ("F",))
    def kv_piece(e, kind, j, i):
        if nodma and j >= 4: return
        ring, srd_, off = (KRING, S_K, sKOFF) if kind == "K" else (VRING, S_V, sVOFF)
        e.I(f"s_add_u32 m0, s{sWLDS}, {slot(ring[j % 4]) + i*(PIECE-512)}")
        e.I("s_nop 0")
        e.vmem(f"buffer_load_dwordx4 v{vDM}, s[{srd_}:{srd_+3}], s{off} offen offset:{i*512}{ntf(kind, j)} lds", (kind, j))
        if i == 3 and not hot: e.I(f"s_add_u32 s{off}, s{off}, 16384")
    QA, QB_, QACC, QP = 16, 32, 96, 152
    def qproj(E, lag):
        I = E.I
        bx0, bx1, bq = Base(E, vXA0), Base(E, vXA1), Base(E, vQA)
        def fin(z):
            ops = [f"v_pk_mul_f32 {vr(QACC+8*z+2*n,2)}, {vr(QACC+8*z+2*n,2)}, s[{sC}:{sC+1}] op_sel_hi:[1,0]" for n in range(4)]
            ops += [f"v_cvt_pk_bf16_f32 v{QP+4*z+n}, v{QACC+8*z+2*n}, v{QACC+8*z+2*n+1}" for n in range(4)]
            def wr():
                off = QBUF[z]
                if off > 60000: I(f"v_add_u32 v{t0}, {off}, v{t0}"); off = 0
                E.lds(f"ds_write_b128 v{t0}, {vr(QP+4*z,4)} offset:{off}", ("QW",))
            return ops + [wr]
        def pair(i, kk, z):
            E.wl(("A", i, kk), ("B", i, kk, z))
            for b in range(2):
                I(mfma(QACC + 8 * z + 4 * b, QA + 8 * kk + 4 * b, QB_ + 28 * kk + 4 * z, 0 if (i == 0 and kk == 0) else None))
        def last_half(i):
            I(f"v_lshlrev_b32 v{t0}, 4, v0"); I(f"s_lshl_b32 s{sA}, s{sWAVE}, 10"); I(f"v_add_u32 v{t0}, s{sA}, v{t0}")
            for z in range(7):
                pair(i, 1, z)
                if z >= 3: E.items(fin(z - 3))
            E.items(fin(4)); E.items(fin(5)); E.items(fin(6))
        if qprio is not None and lag == qprio: I("s_setprio 1")
        for i in range(7):
            E.wv(("QF", i))
            if i == 0 or lag: E.wl0()
            E.bar()
            if i == 0 and not lag and not otrace: stamp(E, 1)
            if qtrace and not lag and i >= 1: stamp(E, 1 + i)
            if fuse and i == 1 and not lag:
                I(f"s_cmp_lg_u32 s{sWAVE}, 3"); I("s_cbranch_scc1 L_noclr2")
                I(f"s_lshr_b32 s{sD}, s2, 5"); I(f"s_lshl_b32 s{sD}, s{sD}, 5"); I(f"v_mov_b32 v12, s{sD}")
                I(f"s_and_b32 s{sA}, s2, 31"); I(f"s_lshl_b32 s{sA}, 1, s{sA}"); I(f"v_mov_b32 v13, s{sA}")
                I("s_mov_b64 exec, 1")
                I(f"global_atomic_or v12, v13, s[{sDBG}:{sDBG+1}] sc1")
                I("s_mov_b64 exec, -1")
                if tlbw:
                    I(f"s_load_dwordx2 s[{sOUT}:{sOUT+1}], s[0:1], 80")
                    I(f"v_mul_u32_u24 v12, {PART_HEAD}, v0"); I(f"s_mul_i32 s{sA}, s{sPB}, {16*PART_HEAD}"); I(f"v_add_u32 v12, s{sA}, v12")
                    I("s_mov_b64 exec, 0xffff")
                    I(f"global_load_dword v13, v12, s[{sWS}:{sWS+1}]")
                    I("s_mov_b64 exec, 3")
                    I(f"v_mul_u32_u24 v12, {256*896-4}, v0")
                    I(f"buffer_load_dword v13, v12, s[{S_WO}:{S_WO+3}], 0 offen")
                    I(f"v_mul_u32_u24 v12, {112*1792-4}, v0"); I(f"s_and_b32 s{sA}, s{sPB}, 7"); I(f"s_mul_i32 s{sA}, s{sA}, {112*1792}"); I(f"v_add_u32 v12, s{sA}, v12")
                    I("s_waitcnt lgkmcnt(0)")
                    I(f"global_load_dword v13, v12, s[{sOUT}:{sOUT+1}]")
                    I("s_mov_b64 exec, -1")
                E.lab("L_noclr2")
            xs, wa, wb = QSETS[i % 3]
            bx0.set(xs); bx1.set(xs); bq.set(wa)
            def rda(kk):
                for b in range(2):
                    for u in range(2):
                        E.lds(f"ds_read_b64_tr_b16 {vr(QA+8*kk+4*b+2*u,2)}, v{vQA} offset:{kk*SLOT + u*512 + b*8}", ("A", i, kk))
            def rdb(kk, z):
                E.lds(f"ds_read_b128 {vr(QB_+28*kk+4*z,4)}, v{vXA1 if kk else vXA0} offset:{z*2048}", ("B", i, kk, z))
            fl = []
            if i >= 1 and i + 2 < 7: fl = qfill_ops(E, i + 2)
            if i == 0 and qpre < 3: fl = sum([qfill_ops(E, k) for k in range(qpre, 3)], [])
            if i == 5:
                I(f"s_lshl_b32 s{sE}, s{sWAVE}, 10"); I(f"s_mul_i32 s{sB2}, s{sWAVE}, {2*PIECE}")
                def pre(kind, j, i_):
                    ring, srd_ = (KRING, S_K) if kind == "K" else (VRING, S_V)
                    I(f"s_add_u32 m0, s{sB2}, {slot(ring[j]) + i_*(PIECE-512)}")
                    I(f"s_add_u32 s{sD}, s{sE}, {j*16384}")
                    E.vmem(f"buffer_load_dwordx4 v{vDM}, s[{srd_}:{srd_+3}], s{sD} offen offset:{i_*512}{ntf(kind, j)} lds", (kind, j))
                fl = [(lambda k=k, j=j, i_=i_: pre(k, j, i_)) for k, j in (("K", 0), ("K", 1), ("V", 0)) for i_ in range(2)]
            fil = spread(14, fl, 0, 9) if fl else [[] for _ in range(14)]
            if not lag:
                rda(0)
                for z in range(5): rdb(0, z)
                order = [(kk, z) for kk in range(2) for z in range(7)]
                for n, (kk, z) in enumerate(order):
                    if i == 6 and kk == 1: break
                    pair(i, kk, z)
                    if n == 0: rda(1)
                    if n + 5 < 14: rdb(*order[n + 5])
                    E.items(fil[n])
                if i == 6:
                    for z in range(5, 7): rdb(1, z)
                    last_half(6)
            else:
                n = 0
                if i > 0:
                    for z in range(7):
                        pair(i - 1, 1, z)
                        if z == 0: rda(0)
                        if z >= 1: rdb(0, z - 1)
                        E.items(fil[n]); n += 1
                    rdb(0, 6)
                else:
                    rda(0)
                    for z in range(7): rdb(0, z)
                rda(1)
                for z in range(7):
                    pair(i, 0, z)
                    rdb(1, z)
                    E.items(fil[n]); n += 1
                for k in range(n, 14): E.items(fil[k])
                if i == 6: last_half(6)
        if qprio is not None and lag == qprio: I("s_setprio 0")
        I(f"s_mov_b32 s{sBLK}, 0")
    I(f"s_cmp_ge_u32 s{sWAVE}, 4"); I("s_cbranch_scc1 L_owave")
    O = E.fork()
    qproj(E, 0)

    kfree = [slot(KRING[(NB - 4 + i) % 4]) for i in range(4)]
    vs = [slot(VRING[(NB - 4 + i) % 4]) for i in range(4)]
    WOSLOT = kfree + [vs[0], TSLOT, vs[1], vs[2], vs[3]]
    WOSLOT += [WOSLOT[i] for i in range(5)]
    OBUF = [vs[2], vs[2] + 8192, vs[3], vs[3] + 8192, vs[1], vs[1] + 8192, SPARE]
    def set_flag(e, level):
        e.I(f"s_lshl_b32 s{sA}, s{sPB}, 5"); e.I(f"s_add_u32 s{sA}, s{sA}, s{sHEAD}"); e.I(f"s_lshl_b32 s{sA}, s{sA}, 2"); e.I(f"s_add_u32 s{sA}, s{sA}, {FOFF}")
        e.I(f"v_mov_b32 v10, s{sA}"); e.I(f"v_mov_b32 v11, {level}")
        e.I("s_mov_b64 exec, 1")
        e.I(f"global_store_dword v10, v11, s[{sWS}:{sWS+1}] sc1")
        e.I("s_mov_b64 exec, -1")
    def oproj(e, role, fills_at):
        I = e.I
        vTA, vST, vT, RLR, AF, PK, ACC, BF = 1, 2, 3, 4, 16, 32, 40, 72
        zs = [0, 1, 2, 3] if role == 0 else [4, 5, 6]
        nz = len(zs)
        I(f"v_lshlrev_b32 v{vT}, 4, v0")
        I(f"v_and_b32 v{vST}, 15, v0"); I(f"v_lshlrev_b32 v{vST}, 2, v{vST}"); I(f"v_add_u32 v{vST}, {RL}, v{vST}")
        for a, z in enumerate(zs): e.lds(f"ds_read_b32 v{RLR+a}, v{vST} offset:{z*64}", ("R",))
        tr_lane(e, vTA, vST, 3)
        I(f"s_lshl_b32 s{sA}, s{sW4}, 5"); I(f"v_add_u32 v{vTA}, s{sA}, v{vTA}")
        I(f"s_lshl_b32 s{sA}, s{sWAVE}, 11"); I(f"v_add_u32 v{vST}, s{sA}, v{vT}")
        if role: I(f"v_lshlrev_b32 v8, 3, v0"); I(f"v_add_u32 v8, s{sA}, v8")
        I(f"s_mov_b32 s{sSTRIP}, s{sROTO}")
        ba, bb = Base(e, vTA), Base(e, vT)
        seq = [(j, kp) for j in range(7) for kp in range(8)]
        def rd(n):
            j, kp = seq[n]
            ba.set(WOSLOT[2 * j + kp // 4])
            for u in range(2):
                e.lds(f"ds_read_b64_tr_b16 {vr(AF+4*(n%4)+2*u,2)}, v{vTA} offset:{(2*(kp%4)+u)*128}", ("A", n))
        def rdB(kp):
            for a, z in enumerate(zs):
                base = OBUF[z - (z - zs[0]) % 2] if False else OBUF[z]
                lo = min(OBUF[zz] for zz in zs)
                if base - bb.cur < 0 or base - bb.cur + kp * 1024 > 65535: bb.set(base)
                e.lds(f"ds_read_b128 {vr(BF+32*a+4*kp,4)}, v{vT} offset:{base - bb.cur + kp*1024}", ("B", kp, a))
        def fin(j):
            acc = ACC + 16 * (j % 2)
            ops = []
            for a in range(nz):
                ops += [f"v_mul_f32 v{acc+4*a+r}, v{RLR+a}, v{acc+4*a+r}" for r in range(4)]
                ops += [f"v_cvt_pk_bf16_f32 v{PK+2*a+n}, v{acc+4*a+2*n}, v{acc+4*a+2*n+1}" for n in range(2)]
            def st():
                if nost: return
                fl = " nt" if stnt else ""
                if stfl: fl = " " + stfl
                I(f"s_lshl_b32 s{sA}, s{sSTRIP}, 14")
                I(f"s_add_u32 s{sSTRIP}, s{sSTRIP}, 1")
                e.vmem(f"buffer_store_dwordx4 {vr(PK,4)}, v{vST}, s[{S_PT}:{S_PT+3}], s{sA} offen{fl}", ("ST", j))
                if nz == 4: e.vmem(f"buffer_store_dwordx4 {vr(PK+4,4)}, v{vST}, s[{S_PT}:{S_PT+3}], s{sA} offen offset:1024{fl}", ("ST", j))
                else: e.vmem(f"buffer_store_dwordx2 {vr(PK+4,2)}, v8, s[{S_PT}:{S_PT+3}], s{sA} offen offset:1024{fl}", ("ST", j))
                I(f"s_cmp_eq_u32 s{sSTRIP}, 7"); I(f"s_cselect_b32 s{sSTRIP}, 0, s{sSTRIP}")
            ops.append(st)
            return ops
        I(f"s_setprio {1 if oprio == role else 0}")
        rd(0); rdB(0); rd(1); rdB(1); rd(2); rd(3)
        for j in range(7):
            fl = fin(j - 1) if j else []
            fil = spread(8 * nz, fl, 2 * nz, 8 * nz - 1) if fl else [[] for _ in range(8 * nz)]
            fl = fills_at(e, ("post", j))
            if fl:
                f2 = spread(8 * nz, fl, 0, min(8 * nz - 1, len(fl) - 1))
                fil = [a + b for a, b in zip(f2, fil)]
            for kp in range(8):
                n = 8 * j + kp
                for a in range(nz):
                    e.wl(("A", n), ("B", kp, a))
                    I(mfma(ACC + 16 * (j % 2) + 4 * a, AF + 4 * (n % 4), BF + 32 * a + 4 * kp, 0 if kp == 0 else None))
                    if a == nz - 1:
                        if j == 0 and kp + 2 < 8: rdB(kp + 2)
                        if n + 4 < len(seq): rd(n + 4)
                    e.items(fil[kp * nz + a])
            if j < 6:
                fills_at(e, ("pre", j + 1))
                if fuse and j == L1 + fdel: e.wv(("ST", L1 - 1))
                e.bar()
                if fuse and j == L1 + fdel and role == 0:
                    I(f"s_cmp_lg_u32 s{sWAVE}, 3"); I("s_cbranch_scc1 L_nofl1")
                    set_flag(e, 1)
                    e.lab("L_nofl1")
                if otrace and role == 0: stamp0(e, 2 + j)
        I("s_nop 7")
        e.wl(("R",))
        e.items(fin(6))

    npoll = [0]
    def spin(e, load, test):
        k = npoll[0]; npoll[0] += 1
        e.I(f"s_mov_b32 s{sE}, 0x8000")
        e.lab(f"L_poll{k}")
        e.I(load); e.I("s_waitcnt vmcnt(0)")
        for t in test: e.I(t)
        e.I(f"s_cbranch_scc1 L_polled{k}")
        e.I(f"s_sleep {slp}"); e.I(f"s_sub_u32 s{sE}, s{sE}, 1"); e.I(f"s_cmp_lg_u32 s{sE}, 0"); e.I(f"s_cbranch_scc1 L_poll{k}")
        e.lab(f"L_polled{k}")
    def final_reduce(e):
        I = e.I
        LD, AC = 80, 72
        I(f"s_load_dwordx2 s[12:13], s[0:1], 80")
        I(f"s_add_u32 s7, s{sROTO}, s{sWAVE}"); I("s_cmp_ge_u32 s7, 7"); I("s_cselect_b32 s16, 7, 0"); I("s_sub_u32 s7, s7, s16")
        I(f"s_lshl_b32 s7, s7, 4"); I(f"s_add_u32 s7, s7, s{sHEAD}")
        I(f"s_mul_i32 s17, s{sPB}, {16*PART_HEAD}"); I("s_lshl_b32 s18, s7, 10"); I("s_add_u32 s17, s17, s18")
        I(f"s_add_u32 s8, s{sWS}, s17"); I(f"s_addc_u32 s9, s{sWS+1}, 0"); I(f"s_mov_b32 s10, {15*PART_HEAD + 1024}"); I("s_mov_b32 s11, 0x20000")
        I("s_and_b32 s25, s7, 9"); I("s_cmp_eq_u32 s25, 9"); I("s_cselect_b32 s25, 3, 4")
        I("v_lshlrev_b32 v12, s25, v0")
        I(f"s_lshl_b32 s{sA}, s{sPB}, 7"); I(f"s_add_u32 s{sA}, s{sA}, {FOFF}")
        I("v_and_b32 v13, 15, v0"); I(f"v_lshl_add_u32 v14, v13, 2, s{sA}")
        def loads():
            I("s_mov_b32 s19, 0")
            for h in range(16):
                I(f"buffer_load_dwordx4 {vr(LD+4*h,4)}, v12, s[8:11], s19 offen sc1")
                if h < 15: I(f"s_add_u32 s19, s19, {PART_HEAD}")
        def wait_flags(level):
            spin(e, f"global_load_dword v15, v14, s[{sWS}:{sWS+1}] sc1", [f"v_cmp_gt_u32 vcc, {level}, v15", "s_nop 1", "s_cmp_eq_u64 vcc, 0"])
        I(f"s_cmp_ge_u32 s{sWAVE}, {L1}"); I("s_cbranch_scc1 L_late")
        wait_flags(1)
        if ftrace: stamp0(e, 4)
        loads()
        I("s_branch L_z1")
        e.lab("L_late")
        I("s_waitcnt vmcnt(0)")
        e.lab("L_z1")
        e.bar()
        if ftrace: stamp0(e, 5)
        I(f"s_cmp_lg_u32 s{sWAVE}, 7"); I("s_cbranch_scc1 L_nopoll")
        set_flag(e, 2)
        wait_flags(2)
        e.lab("L_nopoll")
        I("s_bfe_u32 s20, s7, 0x10003"); I("s_lshl_b32 s20, s20, 1"); I("s_and_b32 s21, s7, 1"); I("s_add_u32 s20, s20, s21")
        I(f"s_and_b32 s22, s{sPB}, 7"); I("s_mul_i32 s22, s22, 112"); I("s_lshl_b32 s23, s20, 5"); I("s_add_u32 s22, s22, s23")
        I("v_add_u32 v3, s22, v13"); I("v_mul_u32_u24 v3, 1792, v3")
        I(f"s_lshr_b32 s22, s{sPB}, 3"); I("s_mul_i32 s22, s22, 896"); I("s_lshr_b32 s23, s7, 4"); I("s_lshl_b32 s23, s23, 7"); I("s_add_u32 s22, s22, s23")
        I("s_bfe_u32 s23, s7, 0x20001"); I("s_lshl_b32 s23, s23, 5"); I("s_add_u32 s22, s22, s23")
        I("v_lshrrev_b32 v4, 4, v0"); I("v_lshl_add_u32 v3, v4, 3, v3"); I("v_add_u32 v3, s22, v3")
        I(f"s_mov_b32 s24, {16*1792}"); I("s_mov_b32 s26, 0x3f80"); I("s_mov_b32 s27, 0x3f800000")
        I("s_waitcnt lgkmcnt(0)")
        I(f"s_mov_b32 s14, {8*112*896*2}"); I("s_mov_b32 s15, 0x20000")
        def summ(tag):
            for h in range(16):
                I(f"s_waitcnt vmcnt({15-h})")
                for d_ in range(4):
                    src = LD + 4 * h + d_
                    if h == 0:
                        I(f"v_lshlrev_b32 v{AC+2*d_}, 16, v{src}"); I(f"v_and_b32 v{AC+1+2*d_}, 0xffff0000, v{src}")
                    elif dot:
                        I(f"v_dot2_f32_bf16 v{AC+2*d_}, v{src}, s26, v{AC+2*d_}"); I(f"v_dot2_f32_bf16 v{AC+1+2*d_}, v{src}, s27, v{AC+1+2*d_}")
                    else:
                        I(f"v_lshlrev_b32 v5, 16, v{src}"); I(f"v_and_b32 v6, 0xffff0000, v{src}")
                        I(f"v_add_f32 v{AC+2*d_}, v{AC+2*d_}, v5"); I(f"v_add_f32 v{AC+1+2*d_}, v{AC+1+2*d_}, v6")
            I("s_nop 2")
            for d_ in range(4): I(f"v_cvt_pk_bf16_f32 v{16+d_}, v{AC+2*d_}, v{AC+1+2*d_}")
            I(f"buffer_store_dwordx2 v[16:17], v3, s[12:15], 0 offen {outfl}")
            I("s_cmp_eq_u32 s20, 3"); I(f"s_cbranch_scc1 L_rlast{tag}")
            I(f"buffer_store_dwordx2 v[18:19], v3, s[12:15], s24 offen {outfl}")
            e.lab(f"L_rlast{tag}")
        e.bar()
        if ftrace: stamp0(e, 6)
        I(f"s_cmp_eq_u32 s{sWAVE}, 7"); I("s_cbranch_scc1 L_done")
        I(f"s_cmp_lt_u32 s{sWAVE}, {L1}"); I("s_cbranch_scc1 L_sum")
        loads()
        e.lab("L_sum")
        summ("")
        if ftrace: stamp0(e, 7)
        if diag: I("s_waitcnt vmcnt(0)"); I("s_barrier")

    LOOP0, LOOPN = 5, 61
    rare_s = []
    stamp0 = stamp
    if qtrace: stamp = lambda e, k: (stamp0(e, 8) if k == 2 else None)
    if otrace: stamp = lambda e, k: (stamp0(e, 8) if k == 8 else stamp0(e, 1) if k == 6 else None)
    if ftrace: stamp = lambda e, k: (stamp0(e, {6: 2, 7: 3, 8: 8}[k]) if k in (6, 7, 8) else None)
    if pstamp:
        stamp0 = stamp
        stamp = lambda e, k: (stamp0(e, k) if k == 8 else None)
    def swave(S, NZ, tag):
        I = S.I
        vKA, vPW, vAW, vL, vT0, vT1, vT2 = 1, 2, 3, 6, 9, 11, 13
        Q0, SA, SB, PO, EX, NM, KF = 16, 80, 96, 112, 120, 136, 144
        NKF = nkf
        I(f"v_lshlrev_b32 v{vPW}, 4, v0")
        if NZ == 2:
            I(f"s_mul_i32 s{sA}, s{sW4}, {SLOT}"); I(f"v_add_u32 v{vT0}, s{sA}, v{vPW}")
        else:
            I(f"v_add_u32 v{vT0}, {QBUF[6]}, v{vPW}")
        I(f"v_and_b32 v{vKA}, 15, v0"); I(f"v_mul_u32_u24 v{vKA}, {PIECE}, v{vKA}")
        I(f"v_lshrrev_b32 v{vT1}, 4, v0"); I(f"v_lshl_add_u32 v{vKA}, v{vT1}, 4, v{vKA}")
        I(f"s_lshl_b32 s{sA}, s{sW4}, 11"); I(f"v_add_u32 v{vPW}, s{sA}, v{vPW}")
        I(f"v_and_b32 v{vAW}, 15, v0"); I(f"v_lshlrev_b32 v{vAW}, 2, v{vAW}")
        I(f"s_lshl_b32 s{sA}, s{sW4}, 7"); I(f"s_add_u32 s{sA}, s{sA}, {ALPHA}"); I(f"v_add_u32 v{vAW}, s{sA}, v{vAW}")
        for a in range(NZ):
            I(f"v_mov_b32 v{vL+a}, 0")
            for r in range(4): I(f"v_mov_b32 v{NM+4*a+r}, 0")
        I(f"s_mov_b32 s{sT}, 0x40004000")
        if NZ == 1: I(f"s_mov_b32 s{sKOFF}, {0 if hot else 32768}")
        if prio == "S": I("s_setprio 1")
        S.wl0(); S.wv(("K", 0), ("K", 1))
        S.bar()
        stamp(S, 2)
        bk = Base(S, vKA)
        def rdk(p, n):
            bk.set(slot(KRING[p % 4]))
            S.lds(f"ds_read_b128 {vr(KF+4*(n%NKF),4)}, v{vKA} offset:{(n%2)*512 + (n//2)*64}", ("K", p, n))
        nv = 8 * NZ
        def exp_cvt(sp):
            ops = []
            for k in range(nv + 3):
                if k < nv: ops.append(f"v_exp_f32 v{EX+k}, v{sp+k}")
                if k >= 3 and k % 2 == 1: ops.append(f"v_cvt_pk_bf16_f32 v{PO+(k-3)//2}, v{EX+k-3}, v{EX+k-2}")
            return ops
        def rare_body(kind):
            sub = []
            par = int(kind[1])
            first = kind[0] == "f"
            sp, cur = (SA, SB) if par == 0 else (SB, SA)
            sub.append(f"L_rare_s{tag}_{kind}:")
            for a in range(NZ):
                b = sp + 8 * a
                sub.append(f"v_max3_f32 v{vT0+a}, v{b}, v{b+1}, v{b+2}")
                sub.append(f"v_max3_f32 v{vT0+a}, v{vT0+a}, v{b+3}, v{b+4}")
                sub.append(f"v_max3_f32 v{vT0+a}, v{vT0+a}, v{b+5}, v{b+6}")
                sub.append(f"v_max_f32 v{vT0+a}, v{vT0+a}, v{b+7}")
            for sw in ("v_permlane16_swap_b32", "v_permlane32_swap_b32"):
                for a in range(NZ): sub.append(f"v_mov_b32 v{vT1+a}, v{vT0+a}")
                sub.append("s_nop 1")
                for a in range(NZ): sub.append(f"{sw} v{vT0+a}, v{vT1+a}")
                for a in range(NZ): sub.append(f"v_max_f32 v{vT0+a}, v{vT0+a}, v{vT1+a}")
            for a in range(NZ):
                sub.append(f"v_sub_f32 v{vT0+a}, 0xc0e00000, v{vT0+a}")
                if not first:
                    sub.append(f"v_min_f32 v{vT0+a}, 0, v{vT0+a}")
                    sub.append(f"v_exp_f32 v{vT1+a}, v{vT0+a}")
                for r in range(4): sub.append(f"v_add_f32 v{NM+4*a+r}, v{NM+4*a+r}, v{vT0+a}")
                for r in range(8): sub.append(f"v_add_f32 v{sp+8*a+r}, v{sp+8*a+r}, v{vT0+a}")
                if kind[0] != "n":
                    for r in range(8): sub.append(f"v_add_f32 v{cur+8*a+r}, v{cur+8*a+r}, v{vT0+a}")
                if not first:
                    sub.append(f"v_mul_f32 v{vL+a}, v{vL+a}, v{vT1+a}")
                    sub.append(f"ds_write_b32 v{vAW}, v{vT1+a} offset:{par*448 + a*64}")
            sub += exp_cvt(sp)
            if not first:
                sub.append(f"s_lshl_b32 s{sA}, s{sW4}, 3"); sub.append(f"s_add_u32 s{sA}, s{sA}, {FLG + par*128}")
                sub.append(f"v_mov_b32 v{vT0}, s{sA}"); sub.append(f"v_mov_b32 v{vT2}, s{sBLK}")
                for a in range(NZ): sub.append(f"ds_write_b32 v{vT0}, v{vT2} offset:{4*a}")
            sub.append("s_waitcnt lgkmcnt(0)")
            sub.append(f"s_setpc_b64 s[{sRET}:{sRET+1}]")
            return sub
        def softmax_ops(p):
            sp = SB if p % 2 == 0 else SA
            par = (p - 1) % 2
            ops = exp_cvt(sp)
            ops.append(f"v_or3_b32 v{vT0}, v{PO}, v{PO+1}, v{PO+2}")
            nhead = None
            if NZ == 2:
                ops.append(f"v_or3_b32 v{vT1}, v{PO+3}, v{PO+4}, v{PO+5}")
                ops.append(f"v_or3_b32 v{vT0}, v{vT0}, v{PO+6}, v{PO+7}")
                ops.append(f"v_or_b32 v{vT0}, v{vT0}, v{vT1}")
            else:
                ops.append(f"v_or_b32 v{vT0}, v{vT0}, v{PO+3}")
            ops.append(f"v_and_b32 v{vT0}, s{sT}, v{vT0}")
            kind = ("q" if p < NB else "n") + str(par)
            def check():
                I(f"s_add_u32 s{sBLK}, s{sBLK}, 1")
                if p == 1:
                    for l in rare_body("f0")[1:-2]: I(l)
                else:
                    I(f"v_cmp_ne_u32 vcc, 0, v{vT0}")
                    I(f"s_cbranch_vccnz L_stub_s{tag}_{p}")
                    S.lab(f"L_back_s{tag}_{p}")
                    rare_s.append((tag, p, kind))
            if p == 1: ops = []
            ops.append(check)
            for a in range(NZ):
                ops.append(lambda a=a: S.lds(f"ds_write_b128 v{vPW}, {vr(PO+4*a,4)} offset:{par*7168 + a*1024}", ("P", a)))
            for k in range(nv): ops.append(f"v_add_f32 v{vL+(k%NZ)}, v{vL+(k%NZ)}, v{EX+8*(k%NZ)+k//NZ}")
            if nosm: return [o for o in ops if callable(o)][1:]
            return ops
        def k_piece(j, k):
            if nodma and j >= 4: return
            if k == 8: I(f"s_add_u32 s{sKOFF}, s{sKOFF}, 4096")
            I(f"s_mov_b32 m0, {slot(KRING[j % 4]) + k*PIECE - (k%8)*512}")
            I("s_nop 0")
            S.vmem(f"buffer_load_dwordx4 v{vDM}, s[{S_K}:{S_K+3}], s{sKOFF} offen offset:{(k%8)*512}{ntf('K', j)} lds", ("K", j))
            if k == 15: I(f"s_add_u32 s{sKOFF}, s{sKOFF}, {-4096 & 0xffffffff if hot else 12288}")
        loader = s3k and NZ == 1
        def s_phase(p):
            cur = SA if p % 2 == 0 else SB
            do_qk, do_sm = p < NB, p >= 1
            sm = softmax_ops(p) if do_sm else []
            kf = []
            if loader:
                for j in ([2, 3] if p == 0 else [p + 3]):
                    if j < NB: kf += [(lambda j=j, k=k: k_piece(j, k)) for k in range(16)]
            if do_qk:
                if p == 0:
                    for a in range(NZ):
                        for ks in range(2): S.lds(f"ds_read_b128 {vr(Q0+32*a+4*ks,4)}, v{vT0} offset:{a*8192 + ks*1024}", ("Q", a, ks))
                if p in (0, 2):
                    for n in range(NKF - 2): rdk(p, n)
                if p == 0:
                    for ks in range(2, 8):
                        for a in range(NZ): S.lds(f"ds_read_b128 {vr(Q0+32*a+4*ks,4)}, v{vT0} offset:{a*8192 + ks*1024}", ("Q", a, ks))
                ng = 16 * NZ
                f0, f1 = (sfirst, slast) if NZ == 2 else (s3f, 15)
                fil = spread(ng, sm, f0, f1) if sm else [[] for _ in range(ng)]
                if kf: fil = [a + b for a, b in zip(spread(ng, kf, s3first, s3last), fil)]
                for n in range(16):
                    ks, y = n // 2, n % 2
                    for a in range(NZ):
                        if y == 0: S.wl(("K", p, n), ("K", p, n + 1), ("Q", a, ks))
                        if not noS:
                            if ks == 0: I(f"v_mfma_f32_16x16x32_bf16 {vr(cur+8*a+4*y,4)}, {vr(KF+4*(n%NKF),4)}, {vr(Q0+32*a,4)}, {vr(NM+4*a,4)}")
                            else: I(mfma(cur + 8 * a + 4 * y, KF + 4 * (n % NKF), Q0 + 32 * a + 4 * ks))
                        if a == NZ - 1:
                            m = n + NKF - 2
                            if m < 16: rdk(p, m)
                            elif p + 1 < NB and p != 1: rdk(p + 1, m - 16)
                        S.items(fil[n * NZ + a])
                S.wl(("P", 0), ("P", 1))
                if p == 0: S.wv(("V", 0))
                if loader and p >= 1: S.wv(("K", p + 2), ("K", p + 1))
                if p + 1 >= NB: I("s_nop 7")
            else:
                S.items(sm)
                for sw in ("v_permlane16_swap_b32", "v_permlane32_swap_b32"):
                    for a in range(NZ): I(f"v_mov_b32 v{vT0+a}, v{vL+a}")
                    I("s_nop 1")
                    for a in range(NZ): I(f"{sw} v{vL+a}, v{vT0+a}")
                    for a in range(NZ): I(f"v_add_f32 v{vL+a}, v{vL+a}, v{vT0+a}")
                for a in range(NZ): I(f"v_rcp_f32 v{vL+a}, v{vL+a}")
                I("s_nop 0")
                for a in range(NZ): S.lds(f"ds_write_b32 v{vAW}, v{vL+a} offset:{RL-ALPHA + a*64}", ("P", 2))
                S.wl0()
            S.bar()
        for p in range(0, LOOP0): s_phase(p)
        stamp(S, 3)
        I(f"s_mov_b32 s{sCNT}, {(LOOPN-LOOP0)//4}")
        if lalign: S.L.append(f".p2align {lalign}")
        S.lab(f"L_sloop{tag}")
        st = (list(S.lg), bk.cur, S.nbar)
        stv = list(S.vm)
        for p in range(LOOP0, LOOP0 + 4): s_phase(p)
        assert [(t[0], t[1] - 4) for t in S.vm] == stv
        S.vm = [(t[0], t[1] + LOOPN - LOOP0 - 4) for t in S.vm]
        assert [(t[0], t[1] - 4, t[2]) for t in S.lg] == st[0] and bk.cur == st[1], (S.lg, st)
        I(f"s_sub_u32 s{sCNT}, s{sCNT}, 1"); I(f"s_cmp_lg_u32 s{sCNT}, 0"); I(f"s_cbranch_scc1 L_sloop{tag}")
        stamp(S, 4)
        S.lg = [(t[0], LOOPN, t[2]) for t in S.lg]
        S.nbar = st[2] + (LOOPN - LOOP0)
        for p in range(LOOPN, NB + 1): s_phase(p)
        stamp(S, 5)
        sub = []
        for kind in ("q0", "q1") + (("n1",) if NB % 2 == 0 else ("n0",)): sub += rare_body(kind)
        return sub
    I(f"s_cmp_eq_u32 s{sWAVE}, 3"); I("s_cbranch_scc1 L_swave3")
    S3 = E.fork()
    subs = swave(E, 2, "a")
    I("s_branch L_sjoin")
    S3.lab("L_swave3")
    subs += swave(S3, 1, "b")
    if fuse:
        S3.wv0()
        I(f"s_lshr_b32 s{sD}, s2, 5"); I(f"s_lshl_b32 s{sD}, s{sD}, 5"); I(f"v_mov_b32 v6, s{sD}")
        I(f"s_and_b32 s{sA}, s2, 4"); I(f"s_lshl_b32 s{sA}, 0x0f0f0f0f, s{sA}")
        spin(S3, f"global_load_dword v7, v6, s[{sDBG}:{sDBG+1}] sc1",
             [f"v_readfirstlane_b32 s{sD}, v7", f"s_and_b32 s{sD}, s{sD}, s{sA}", f"s_cmp_eq_u32 s{sD}, s{sA}"])
    assert S3.nbar == E.nbar
    E.lab("L_sjoin")
    S = E
    S.bar()
    stamp(S, 6)
    oproj(S, 0, lambda e, st: [])
    stamp(S, 7)
    nbarS = S.nbar
    if fuse:
        E.lab("L_final")
        final_reduce(S)
    if diag:
        I(f"s_cmp_lg_u32 s{sWAVE}, 0"); I("s_cbranch_scc1 L_done")
        I("s_waitcnt vmcnt(0)")
        stamp(S, 8)
        I("s_waitcnt lgkmcnt(0)")
        I("s_mov_b64 exec, 1")
        if dbgwg is not None:
            I(f"s_cmp_lg_u32 s2, {dbgwg}"); I("s_cbranch_scc1 L_done")
            I(f"v_mov_b32 v1, {128<<20}")
            for k in range(8):
                I(f"s_sub_u32 s{sA}, s{sTS+4*k+4}, s{sTS+4*k}"); I(f"v_mov_b32 v4, s{sA}")
                I(f"s_sub_u32 s{sA}, s{sTS+4*k+6}, s{sTS+4*k+2}"); I(f"v_mov_b32 v5, s{sA}")
                I(f"global_store_dword v1, v4, s[58:59] offset:{4*k}"); I(f"global_store_dword v1, v5, s[58:59] offset:{32+4*k}")
            I("s_endpgm")
        I(f"s_lshl_b32 s{sA}, s2, 7"); I(f"s_add_u32 s{sA}, s{sA}, {64<<20}"); I(f"v_mov_b32 v1, s{sA}")
        for k in range(9):
            I(f"v_mov_b32 v4, s{sTS+4*k}"); I(f"v_mov_b32 v5, s{sTS+4*k+2}")
            I(f"global_store_dwordx2 v1, v[4:5], s[58:59] offset:{8*k}")
            I("s_nop 1")
    I("s_endpgm")

    I = O.I
    O.lab("L_owave")
    qproj(O, 1)
    vVA, vPA, vWX, vFA, vF = 1, 2, 9, 4, 5
    VF, OA, OX, PF = 12, 68, 180, 228
    tr_lane(O, vVA, 6, 3)
    I(f"v_lshlrev_b32 v{vPA}, 4, v0")
    I(f"v_and_b32 v{vFA}, 7, v0"); I(f"v_lshlrev_b32 v{vFA}, 2, v{vFA}"); I(f"v_add_u32 v{vFA}, {FLG}, v{vFA}")
    I(f"v_lshrrev_b32 v{vWX}, 3, v0"); I(f"v_mul_u32_u24 v{vWX}, {16*896}, v{vWX}")
    I(f"v_and_b32 v6, 7, v0"); I(f"v_lshl_add_u32 v{vWX}, v6, 4, v{vWX}")
    I(f"s_mul_i32 s{sA}, s{sW4}, {4*896}"); I(f"v_add_u32 v{vWX}, s{sA}, v{vWX}")
    I(f"s_lshl_b32 s{sPOFF}, s{sROTO}, 7")
    def wo_piece(f, i, O=None):
        O = O or Ocur[0]
        if nowo and f >= 6: return
        O.I(f"s_add_u32 m0, s{sWLDS}, {WOSLOT[f] + i*PIECE}")
        O.I(f"s_add_u32 s{sD}, s{sPOFF}, {((f%2)*128 + i)*896}")
        O.vmem(f"buffer_load_dwordx4 v{vWX}, s[{S_WO}:{S_WO+3}], s{sD} offen lds", ("WO", f))
        if i == 3 and f % 2 == 1:
            O.I(f"s_add_u32 s{sPOFF}, s{sPOFF}, 128"); O.I(f"s_cmp_eq_u32 s{sPOFF}, 896"); O.I(f"s_cselect_b32 s{sPOFF}, 0, s{sPOFF}")
    Ocur = [O]
    O.wl0()
    if prio == "O": I("s_setprio 1")
    O.wv(("K", 0), ("K", 1))
    rare_o = []; osubs = []
    def owave(O, tag, chk=False):
        I = O.I
        big = bal and tag == "b"
        nsl = 7 if big else 4
        voff = [384 + 32 * sl for sl in range(4)] + [128 * e + 96 for e in range(3)] if big else [32 * sl for sl in range(4)]
        def units(z):
            if not bal: return [0, 1, 2, 3]
            if big: return [0, 1, 2, 3] + ([4, 5, 6] if z >= balz else [])
            return [0, 1, 2] + ([3] if z < balz else [])
        acc = lambda z, sl: OA + 16 * z + 4 * sl if sl < 4 else OX + 12 * (z - 3) + 4 * (sl - 4)
        if not big: I(f"s_lshl_b32 s{sA}, s{sW4}, 7"); I(f"v_add_u32 v{vVA}, s{sA}, v{vVA}")
        O.bar()
        bv = Base(O, vVA)
        def rdv1(j, k):
            sl, y = k // 2, k % 2
            bv.set(slot(VRING[j % 4]))
            O.lds(f"ds_read_b64_tr_b16 {vr(VF+28*(j%2)+4*sl+2*y,2)}, v{vVA} offset:{y*512 + voff[sl]}", ("V", j, sl))
        def rdv(j):
            for k in range(2 * nsl): rdv1(j, k)
        bo, b2 = Base(O, 6), Base(O, 7)
        def pack(z):
            us = units(z)
            ops = [f"v_cvt_pk_bf16_f32 v{acc(z,sl&~1 if sl < 4 else sl)+2*(sl&1 if sl < 4 else 0)+n}, v{acc(z,sl)+2*n}, v{acc(z,sl)+2*n+1}" for sl in us for n in range(2)]
            def wr():
                if not (0 <= OBUF[z] - bo.cur < 57000):
                    bo.set(OBUF[z])
                    if big: b2.set(OBUF[z])
                O.lds(f"ds_write_b128 v6, {vr(acc(z,0),4)} offset:{OBUF[z]-bo.cur}", ("W",))
                if 3 in us: O.lds(f"ds_write_b128 v6, {vr(acc(z,2),4)} offset:{OBUF[z]-bo.cur + 1024}", ("W",))
                else: O.lds(f"ds_write_b64 v6, {vr(acc(z,2),2)} offset:{OBUF[z]-bo.cur + 1024}", ("W",))
                for sl in us:
                    if sl >= 4: O.lds(f"ds_write_b64 v7, {vr(acc(z,sl),2)} offset:{OBUF[z]-b2.cur + (2*(sl-4)+1)*1024 + 8}", ("W",))
            return ops + [wr]
        def o_phase(p):
            j = p - 2
            pieces = []
            def kv(kind, jj): return [(lambda i=i: kv_piece(O, kind, jj, i)) for i in range(4)]
            if p == 0 and not s3k: pieces += kv("K", 2)
            if p + 1 < NB: pieces += kv("V", p + 1)
            if p + 3 < NB:
                if not s3k: pieces += kv("K", p + 3)
            else:
                for f in {NB - 3: [0], NB - 2: [1], NB - 1: [2], NB: [3, 4], NB + 1: []}[p]:
                    pieces += [(lambda i=i, f=f: wo_piece(f, i, O)) for i in range(4)]
            if j < 0:
                O.items(pieces)
                if p == 0:
                    for r in range(OA, OA + 112 + (48 if big else 0)): I(f"v_mov_b32 v{r}, 0")
                if p == 1: rdv(0)
            else:
                par = j % 2
                def rdp(z): O.lds(f"ds_read_b128 {vr(PF+4*(z%npf),4)}, v{vPA} offset:{par*7168 + z*1024}", ("P", z))
                O.lds(f"ds_read_b32 v{vF}, v{vFA} offset:{par*128}", ("F",))
                for z in range(npf): rdp(z)
                I(f"s_add_u32 s{sBLK}, s{sBLK}, 1")
                fil = spread(8, pieces, dmafirst, dmalast) if pieces else [[] for _ in range(8)]
                O.items(fil[0])
                O.wl(("F",))
                I(f"v_cmp_eq_u32 vcc, s{sBLK}, v{vF}")
                I(f"s_cbranch_vccnz L_stub_o{tag}{p}")
                O.lab(f"L_back_o{tag}{p}")
                rare_o.append((tag, p, par))
                kv_ = 0
                if p == NB + 1:
                    I(f"s_lshl_b32 s{sA}, s{sW4}, 11"); I(f"v_add_u32 v6, s{sA}, v{vPA}"); I(f"v_mov_b32 v7, v{vPA}")
                for z in range(7):
                    if p == NB + 1 and z >= 2: O.items(pack(z - 2)) if z > 2 else None
                    for sl in units(z):
                        O.wl(("P", z), ("V", j, sl))
                        if not noO: I(mfma(acc(z, sl), VF + 28 * (j % 2) + 4 * sl, PF + 4 * (z % npf)))
                        if z >= vz0 and j + 1 < NB and kv_ < 2 * nsl: rdv1(j + 1, kv_); kv_ += 1
                    if p == NB + 1 and z == 2: O.items(pack(0))
                    if z + npf < 7: rdp(z + npf)
                    O.items(fil[z + 1])
            if p <= NB:
                if p == 0: O.wv(("V", 0))
                else: O.wv(("K", p + 2), ("V", p), ("K", p + 1))
                if p == NB: O.wl0()
                O.bar()
        for p in range(0, LOOP0): o_phase(p)
        I(f"s_mov_b32 s{sCNT}, {(LOOPN-LOOP0)//4}")
        O.lab(f"L_oloop{tag}")
        st = (list(O.lg), list(O.vm), bv.cur, O.nbar)
        for p in range(LOOP0, LOOP0 + 4): o_phase(p)
        sh = lambda q, d: [(t[0], t[1] + d) + tuple(t[2:]) for t in q]
        assert sh(O.lg, -4) == st[0] and sh(O.vm, -4) == st[1] and bv.cur == st[2], (O.lg, O.vm, st)
        I(f"s_sub_u32 s{sCNT}, s{sCNT}, 1"); I(f"s_cmp_lg_u32 s{sCNT}, 0"); I(f"s_cbranch_scc1 L_oloop{tag}")
        d = LOOPN - LOOP0 - 4
        O.lg = sh(O.lg, d); O.vm = sh(O.vm, d); O.nbar = st[3] + (LOOPN - LOOP0)
        for p in range(LOOPN, NB + 2): o_phase(p)
        for z in range(5, 7): O.items(pack(z))
        O.wv(("WO", 0), ("WO", 1), ("WO", 2))
        O.wl0()
        for par in range(2):
            osubs.append(f"L_rare_o{tag}_{par}:")
            osubs.append("s_nop 7"); osubs.append(f"s_mov_b32 s{sA}, vcc_lo")
            osubs.extend([f"v_and_b32 v6, 15, v0", f"v_lshlrev_b32 v6, 2, v6", f"v_add_u32 v6, {ALPHA + par*448}, v6"])
            for z in range(7):
                osubs.extend([f"s_bitcmp1_b32 s{sA}, {z}", f"s_cbranch_scc0 L_rare_o{tag}_{par}_{z}", f"ds_read_b32 v{vF}, v6 offset:{z*64}", "s_waitcnt lgkmcnt(0)"])
                for sl in units(z):
                    osubs.extend([f"v_mul_f32 v{acc(z,sl)+r}, v{vF}, v{acc(z,sl)+r}" for r in range(4)])
                osubs.append(f"L_rare_o{tag}_{par}_{z}:")
            osubs.append("s_nop 1"); osubs.append(f"s_setpc_b64 s[{sRET}:{sRET+1}]")
    if bal:
        I(f"s_cmp_eq_u32 s{sWAVE}, 7"); I("s_cbranch_scc1 L_owave7")
        O7 = O.fork()
        owave(O, "a")
        I("s_branch L_ojoin")
        O7.lab("L_owave7")
        owave(O7, "b", chk=fuse)
        assert O7.nbar == O.nbar and O7.vm == O.vm and O7.lg == O.lg, (O7.vm, O.vm)
        O.lab("L_ojoin")
    else:
        owave(O, "a")
    O.bar()
    def fills_at(e, st):
        when, j = st
        if when == "pre":
            e.wv(*[("WO", f) for f in range(min(14, 2 * j + 3))])
            return []
        fl = ({0: [5], 1: [6, 7, 8], 2: [9, 10], 3: [11, 12], 4: [13]} if wosplit else {0: [5], 1: [6, 7, 8, 9, 10], 2: [11, 12], 3: [13]}).get(j, [])
        return [(lambda f=f, i=i: wo_piece(f, i)) for f in fl for i in range(4)]
    oproj(O, 1, fills_at)
    assert O.nbar == nbarS, (O.nbar, nbarS)
    if fuse: I("s_branch L_final")
    O.lab("L_done"); I("s_endpgm")
    for tag, site, kind in rare_s:
        O.lab(f"L_stub_s{tag}_{site}"); I(f"s_call_b64 s[{sRET}:{sRET+1}], L_rare_s{tag}_{kind}"); I(f"s_branch L_back_s{tag}_{site}")
    for l in subs: (O.lab(l[:-1]) if l.endswith(":") else I(l))
    for tag, site, par in rare_o:
        O.lab(f"L_stub_o{tag}{site}"); I(f"s_call_b64 s[{sRET}:{sRET+1}], L_rare_o{tag}_{par}"); I(f"s_branch L_back_o{tag}{site}")
    for l in osubs: (O.lab(l[:-1]) if l.endswith(":") else I(l))

    E.lab("L_code_end")
    R = Em(E.L); I = R.I
    R.L += kernel_head("reduce_kernel")
    I(f"s_cmp_ge_u32 s2, {1792//k2w}"); I("s_cbranch_scc1 L_rdone")
    I("s_load_dwordx2 s[8:9], s[0:1], 96"); I("s_load_dwordx2 s[12:13], s[0:1], 80")
    if dbgwg is not None:
        I("s_cmp_lg_u32 s2, 0"); I("s_cbranch_scc1 L_rnodbg")
        I("s_load_dwordx4 s[24:27], s[0:1], 88"); I("s_waitcnt lgkmcnt(0)")
        I("v_and_b32 v2, 15, v0"); I("v_lshlrev_b32 v2, 2, v2"); I(f"v_add_u32 v3, {128<<20}, v2")
        I("global_load_dword v4, v3, s[26:27]"); I("s_waitcnt vmcnt(0)"); I("global_store_dword v2, v4, s[24:25]"); I("s_waitcnt vmcnt(0)")
        R.lab("L_rnodbg")
    I("v_lshrrev_b32 v1, 6, v0"); I("v_and_b32 v0, 63, v0"); I("v_readfirstlane_b32 s3, v1")
    I(f"s_mul_i32 s4, s2, {k2w}"); I("s_add_u32 s4, s4, s3")
    I(f"s_mov_b32 s5, {(2**32 + 111)//112}"); I("s_mul_hi_u32 s5, s4, s5")
    I("s_mul_i32 s6, s5, 112"); I("s_sub_u32 s6, s4, s6")
    I(f"s_mul_i32 s17, s5, {16*PART_HEAD}"); I("s_lshl_b32 s18, s6, 10"); I("s_add_u32 s17, s17, s18")
    I("s_and_b32 s25, s6, 9"); I("s_cmp_eq_u32 s25, 9"); I("s_cselect_b32 s25, 3, 4")
    I("v_lshlrev_b32 v2, s25, v0")
    I("s_waitcnt lgkmcnt(0)")
    I("s_add_u32 s8, s8, s17"); I("s_addc_u32 s9, s9, 0"); I(f"s_mov_b32 s10, {15*PART_HEAD + 1024}"); I("s_mov_b32 s11, 0x20000")
    I(f"s_mov_b32 s14, {8*112*896*2}"); I("s_mov_b32 s15, 0x20000")
    I("s_mov_b32 s19, 0")
    for h in range(16):
        I(f"buffer_load_dwordx4 {vr(8+4*h,4)}, v2, s[8:11], s19 offen")
        if h < 15: I(f"s_add_u32 s19, s19, {PART_HEAD}")
    I("s_bfe_u32 s20, s6, 0x10003"); I("s_lshl_b32 s20, s20, 1"); I("s_and_b32 s21, s6, 1"); I("s_add_u32 s20, s20, s21")
    I("s_and_b32 s22, s5, 7"); I("s_mul_i32 s22, s22, 112"); I("s_lshl_b32 s23, s20, 5"); I("s_add_u32 s22, s22, s23")
    I("v_and_b32 v3, 15, v0"); I("v_add_u32 v3, s22, v3"); I("v_mul_u32_u24 v3, 1792, v3")
    I("s_lshr_b32 s22, s5, 3"); I("s_mul_i32 s22, s22, 896"); I("s_lshr_b32 s23, s6, 4"); I("s_lshl_b32 s23, s23, 7"); I("s_add_u32 s22, s22, s23")
    I("s_bfe_u32 s23, s6, 0x20001"); I("s_lshl_b32 s23, s23, 5"); I("s_add_u32 s22, s22, s23")
    I("v_lshrrev_b32 v4, 4, v0"); I("v_lshl_add_u32 v3, v4, 3, v3"); I("v_add_u32 v3, s22, v3")
    I(f"s_mov_b32 s24, {16*1792}")
    for h in range(16):
        I(f"s_waitcnt vmcnt({15-h})")
        for d_ in range(4):
            src = 8 + 4 * h + d_
            if h == 0:
                I(f"v_lshlrev_b32 v{72+2*d_}, 16, v{src}"); I(f"v_and_b32 v{73+2*d_}, 0xffff0000, v{src}")
            else:
                I(f"v_lshlrev_b32 v5, 16, v{src}"); I(f"v_and_b32 v6, 0xffff0000, v{src}")
                I(f"v_add_f32 v{72+2*d_}, v{72+2*d_}, v5"); I(f"v_add_f32 v{73+2*d_}, v{73+2*d_}, v6")
    for d_ in range(4): I(f"v_cvt_pk_bf16_f32 v{8+d_}, v{72+2*d_}, v{73+2*d_}")
    I("buffer_store_dwordx2 v[8:9], v3, s[12:15], 0 offen")
    I("s_cmp_eq_u32 s20, 3"); I("s_cbranch_scc1 L_rdone")
    I("buffer_store_dwordx2 v[10:11], v3, s[12:15], s24 offen")
    R.lab("L_rdone"); I("s_endpgm")
    if fuse: del E.L[E.L.index(".globl reduce_kernel"):]
    tail = ['.section .rodata,"a"'] + kd(NAME + "_kernel") + ([] if fuse else kd("reduce_kernel", vgpr=80, sgpr=32, accum=80))
    return "\n".join(head + E.L + tail) + "\n"

if __name__ == "__main__":
    kw = eval("dict(%s)" % (sys.argv[2] if len(sys.argv) > 2 else ""))
    open(sys.argv[1], "w").write(gen(**kw))
```

```python
import sys
from asmlib import *

NB = 64
PIECE = 1056
SLOT = 16 * PIECE
TSLOT = 0
def slot(i): return SLOT * (i + 1)
SPARE = slot(8)
FLG = SPARE + 8192
ALPHA = FLG + 256
RL = ALPHA + 1024
QSETS = [[slot(5), slot(6), slot(7)], [slot(2), slot(3), slot(4)], [TSLOT, slot(0), slot(1)]]
QBUF = [TSLOT, TSLOT + 8192, slot(0), slot(0) + 8192, slot(1), slot(1) + 8192, SPARE]
KRING = [2, 3, 5, 7]
VRING = [4, 6, 0, 1]
PART_HEAD = 114688
FOFF = 30 << 20

S_X, S_WQ, S_K, S_V, S_WO, S_PT = 8, 12, 16, 20, 24, 28
sWAVE, sW4, sROT, sWLDS, sKOFF, sVOFF, sCNT, sBLK, sC, sT = 32, 33, 34, 35, 36, 37, 38, 39, 40, 41
sA, sB2, sD, sE, sHH, sPOFF, sSTRIP, sXOFF, sXLDS = 42, 43, 44, 45, 46, 47, 48, 49, 52
sRET = 54
sROTO = 6
sDBG, sWS, sOUT, sPB, sHEAD = 56, 58, 50, 5, 4
sTS = 60

class Em:
    def __init__(self, L=None):
        self.L = [] if L is None else L; self.lg = []; self.vm = []; self.nbar = 0
    def fork(self):
        e = Em(self.L); e.lg = list(self.lg); e.vm = list(self.vm); e.nbar = self.nbar; return e
    def I(self, s): self.L.append("    " + s)
    def lab(self, s): self.L.append(s + ":")
    def lds(self, s, tag): self.I(s); self.lg.append(tag)
    def vmem(self, s, tag): self.I(s); self.vm.append(tag)
    def _need(self, q, tags):
        idx = [i for i, t in enumerate(q) if t in tags]
        return None if not idx else max(idx)
    def wl(self, *tags):
        i = self._need(self.lg, tags)
        if i is None: return
        n = min(len(self.lg) - i - 1, 15)
        self.I(f"s_waitcnt lgkmcnt({n})"); self.lg = self.lg[len(self.lg) - n:] if n else []
    def wv(self, *tags):
        i = self._need(self.vm, tags)
        if i is None: return
        n = min(len(self.vm) - i - 1, 63)
        self.I(f"s_waitcnt vmcnt({n})"); self.vm = self.vm[len(self.vm) - n:] if n else []
    def wst(self, tag):
        i = self._need(self.vm, (tag,))
        if i is None: return
        n = sum(1 for t in self.vm[i + 1:] if t[0] == "ST")
        self.I(f"s_waitcnt vmcnt({n})"); self.vm = self.vm[len(self.vm) - n:] if n else []
    def wl0(self):
        if self.lg: self.I("s_waitcnt lgkmcnt(0)")
        self.lg = []
    def wv0(self):
        if self.vm: self.I("s_waitcnt vmcnt(0)")
        self.vm = []
    def bar(self): self.I("s_barrier"); self.nbar += 1
    def items(self, its):
        for f in its:
            if callable(f): f()
            else: self.I(f)

class Base:
    def __init__(self, e, reg, cur=0): self.e, self.reg, self.cur = e, reg, cur
    def set(self, b):
        d = b - self.cur
        if d: self.e.I(f"v_add_u32 v{self.reg}, {d & 0xffffffff}, v{self.reg}")
        self.cur = b

def vr(a, n): return f"v[{a}:{a+n-1}]"
def mfma(d, a, b, c=None):
    return f"v_mfma_f32_16x16x32_bf16 {vr(d,4)}, {vr(a,4)}, {vr(b,4)}, " + ("0" if c == 0 else vr(d, 4))
def spread(nslots, fillers, first=0, last=None):
    last = nslots - 1 if last is None else last
    out = [[] for _ in range(nslots)]
    n = last - first + 1
    for i, f in enumerate(fillers): out[first + (i * n) // len(fillers)].append(f)
    return out

def layout(early):
    global QBUF, KRING, VRING
    if early:
        QBUF = [slot(5), slot(5) + 8192, slot(6), slot(6) + 8192, slot(7), slot(7) + 8192, SPARE]
        KRING = [2, 3, 0, 5]; VRING = [4, 1, 6, 7]
    else:
        QBUF = [TSLOT, TSLOT + 8192, slot(0), slot(0) + 8192, slot(1), slot(1) + 8192, SPARE]
        KRING = [2, 3, 5, 7]; VRING = [4, 6, 0, 1]

def gen(diag=False, kvnt=True, stnt=False, hot=False, nodma=False, prio="S", sfirst=8, slast=28, dmafirst=0, dmalast=3, k1only=False, pstamp=False, qpre=2, nosm=False, noO=False, noS=False, nobar=False, ipf=False, stfl='sc1', pad=0, lalign=0, s3k=True, s3first=0, s3last=15, nkf=16, npf=7, nost=False, nowo=False, noqf=False, bal=True, qprio=1, balz=4, vz0=2, s3f=4, k2w=4, dbgwg=None, qtrace=False, otrace=False, qwho=None, wosplit=False, fuse=True, slp=2, L1=2, dot=True, ftrace=False, tlbw=False, qbar=False, oprio=0, outfl='', xfirst=True, keep='', fdel=1, early=False, qlag=True, qlf=2):
    NT_ = " nt" if kvnt else ""
    layout(early)
    def ntf(kind, j):
        return "" if f"{kind}{j % 4}" in keep else NT_
    E = Em(); I = E.I
    def stamp(e, k):
        if diag:
            e.I(f"s_memtime s[{sTS+4*k}:{sTS+4*k+1}]"); e.I(f"s_memrealtime s[{sTS+4*k+2}:{sTS+4*k+3}]")
    head = [l for l in open("ref.s.txt").read().split("\n") if l.startswith(";") and "@launch" not in l and "Override" not in l and "grid=ceil" not in l]
    if fuse: head += ["; @launch grid=(256,1,1) block=(512,1,1) lds=163840"]
    else: head += [f"; @launch kernel={NAME}_kernel grid=(256,1,1) block=(512,1,1) lds=163840"]
    if not k1only and not fuse: head += [f"; @launch kernel=reduce_kernel grid=({1792//k2w},1,1) block=({64*k2w},1,1) lds=0"]
    head += ['.amdgcn_target "amdgcn-amd-amdhsa--gfx950"', ".text"]
    E.L += kernel_head(NAME + "_kernel")
    I("s_cmp_ge_u32 s2, 256"); I("s_cbranch_scc1 L_done")
    stamp(E, 0)
    I("s_bfe_u32 s6, s2, 0x10002"); I("s_and_b32 s3, s2, 3"); I("s_lshl_b32 s3, s3, 1"); I("s_bfe_u32 s4, s2, 0x10004"); I("s_add_u32 s3, s3, s4")
    I(f"s_bfe_u32 s{sHH}, s2, 0x10003"); I("s_lshr_b32 s7, s2, 5")
    I("s_lshl_b32 s5, s6, 3"); I("s_add_u32 s5, s5, s7"); I(f"s_mul_i32 s{sA}, s6, 40")
    I(f"s_add_u32 s50, s0, s{sA}"); I("s_addc_u32 s51, s1, 0")
    I(f"s_load_dwordx2 s[{S_X}:{S_X+1}], s[50:51], 0")
    I(f"s_load_dwordx2 s[{S_WQ}:{S_WQ+1}], s[50:51], 24")
    I(f"s_load_dwordx2 s[{S_K}:{S_K+1}], s[50:51], 8")
    I(f"s_load_dwordx2 s[{S_V}:{S_V+1}], s[50:51], 16")
    I(f"s_load_dwordx2 s[{S_WO}:{S_WO+1}], s[50:51], 32")
    I(f"s_load_dwordx2 s[{S_PT}:{S_PT+1}], s[0:1], 96")
    I(f"s_load_dwordx4 s[{sDBG}:{sDBG+3}], s[0:1], 88")
    I("v_lshrrev_b32 v1, 6, v0"); I("v_and_b32 v0, 63, v0")
    I(f"v_readfirstlane_b32 s{sWAVE}, v1")
    I(f"s_lshl_b32 s4, s3, 1"); I(f"s_add_u32 s4, s4, s{sHH}")
    I(f"s_bfe_u32 s{sA}, s2, 0x20003"); I(f"s_lshl_b32 s{sA}, s{sA}, 1"); I(f"s_add_u32 s{sROT}, s7, s{sA}")
    I(f"s_cmp_ge_u32 s{sROT}, 7"); I(f"s_cselect_b32 s{sA}, 7, 0"); I(f"s_sub_u32 s{sROT}, s{sROT}, s{sA}")
    I(f"s_and_b32 s{sW4}, s{sWAVE}, 3")
    I(f"s_cmp_eq_u32 s7, 7"); I(f"s_cselect_b32 s{sROTO}, 0, s7")
    I(f"s_mul_i32 s{sWLDS}, s{sW4}, {4*PIECE}")
    I(f"s_mov_b32 s{sC}, 0x3db8aa3b"); I(f"s_mov_b32 s{sT}, 0x41000000")
    vXD, vWD, vXA0, vXA1, vQA, t0, t1 = 1, 2, 3, 4, 5, 6, 7
    I(f"v_lshrrev_b32 v{vXD}, 3, v0"); I(f"v_mul_u32_u24 v{vXD}, 896, v{vXD}")
    I(f"v_lshrrev_b32 v{t0}, 4, v0"); I(f"v_lshlrev_b32 v{t0}, 1, v{t0}"); I(f"v_and_b32 v{t1}, 7, v0"); I(f"v_xor_b32 v{t0}, v{t0}, v{t1}")
    I(f"v_lshl_add_u32 v{vXD}, v{t0}, 4, v{vXD}")
    I(f"v_lshrrev_b32 v{t0}, 5, v0"); I(f"v_lshlrev_b32 v{vWD}, 15, v{t0}"); I(f"v_and_b32 v{t0}, 31, v0")
    I(f"v_lshl_add_u32 v{vWD}, v{t0}, 4, v{vWD}")
    I(f"s_lshl_b32 s{sPOFF}, s{sROT}, 19"); I(f"s_lshl_b32 s{sE}, s{sWAVE}, 16")
    I(f"s_lshl_b32 s{sXOFF}, s{sROT}, 7"); I(f"s_mul_i32 s{sB2}, s{sWAVE}, {16*896}")
    I(f"s_lshl_b32 s{sXLDS}, s{sWAVE}, 11")
    I(f"s_lshr_b32 s{sD}, s{sWAVE}, 2"); I(f"s_mul_i32 s{sD}, s{sD}, {SLOT}"); I(f"s_add_u32 s53, s{sD}, s{sWLDS}")
    I("s_waitcnt lgkmcnt(0)")
    if pstamp: stamp(E, 1)
    def srd(r, off_sgpr, size):
        I(f"s_add_u32 s{r}, s{r}, s{off_sgpr}"); I(f"s_addc_u32 s{r+1}, s{r+1}, 0")
        if isinstance(size, int): I(f"s_mov_b32 s{r+2}, {size}")
        else: I(size)
        I(f"s_mov_b32 s{r+3}, 0x20000")
    I(f"s_mul_i32 s{sA}, s7, 100352"); srd(S_X, sA, 100352)
    I(f"s_lshl_b32 s{sA}, s4, 9"); srd(S_WQ, sA, f"s_sub_u32 s{S_WQ+2}, {448*8192}, s{sA}")
    def qfill4_ops(e, i):
        xs, wa, wb = QSETS[i % 3]
        ops = []
        for j in range(4):
            def f(j=j):
                e.I(f"s_add_u32 m0, s{sXLDS}, {xs + j*1024}")
                e.I(f"s_add_u32 s{sD}, s{sXOFF}, s{sB2}" if j == 0 else f"s_add_u32 s{sD}, s{sD}, {8*896}")
                e.vmem(f"buffer_load_dwordx4 v{vXD}, s[{S_X}:{S_X+3}], s{sD} offen lds", ("QF", i))
            ops.append(f)
        for j in range(8):
            def f(j=j):
                e.I(f"s_add_u32 m0, s{sWLDS}, {wa + (j//4)*SLOT + (j%4)*PIECE}")
                e.I(f"s_add_u32 s{sD}, s{sPOFF}, s{sE}" if j == 0 else f"s_add_u32 s{sD}, s{sD}, {8192 if j != 4 else 29*8192}")
                e.vmem(f"buffer_load_dwordx4 v{vWD}, s[{S_WQ}:{S_WQ+3}], s{sD} offen lds", ("QF", i))
                if j == 7:
                    e.I(f"s_add_u32 s{sPOFF}, s{sPOFF}, {1<<19}"); e.I(f"s_add_u32 s{sXOFF}, s{sXOFF}, 128")
                    e.I(f"s_cmp_eq_u32 s{sXOFF}, 896"); e.I(f"s_cselect_b32 s{sPOFF}, 0, s{sPOFF}"); e.I(f"s_cselect_b32 s{sXOFF}, 0, s{sXOFF}")
            ops.append(f)
        return ops
    def qfill_ops(e, i):
        if noqf and i >= 3: return []
        xs, wa, wb = QSETS[i % 3]
        assert wb == wa + SLOT
        ops = []
        for j in range(2):
            def f(j=j):
                e.I(f"s_add_u32 m0, s{sXLDS}, {xs + j*1024}")
                e.I(f"s_add_u32 s{sD}, s{sXOFF}, s{sB2}" if j == 0 else f"s_add_u32 s{sD}, s{sD}, {8*896}")
                e.vmem(f"buffer_load_dwordx4 v{vXD}, s[{S_X}:{S_X+3}], s{sD} offen lds", ("QF", i))
            ops.append(f)
        for j in range(4):
            def f(j=j):
                e.I(f"s_add_u32 m0, s53, {wa + j*PIECE}")
                e.I(f"s_add_u32 s{sD}, s{sPOFF}, s{sE}" if j == 0 else f"s_add_u32 s{sD}, s{sD}, 8192")
                e.vmem(f"buffer_load_dwordx4 v{vWD}, s[{S_WQ}:{S_WQ+3}], s{sD} offen lds", ("QF", i))
                if j == 3:
                    e.I(f"s_add_u32 s{sPOFF}, s{sPOFF}, {1<<19}"); e.I(f"s_add_u32 s{sXOFF}, s{sXOFF}, 128")
                    e.I(f"s_cmp_eq_u32 s{sXOFF}, 896"); e.I(f"s_cselect_b32 s{sPOFF}, 0, s{sPOFF}"); e.I(f"s_cselect_b32 s{sXOFF}, 0, s{sXOFF}")
            ops.append(f)
        if not xfirst: ops = ops[2:5] + ops[:2] + ops[5:]
        return ops
    if fuse:
        I(f"s_cmp_lg_u32 s{sWAVE}, 0"); I("s_cbranch_scc1 L_noclr")
        I(f"s_lshl_b32 s{sA}, s5, 5"); I(f"s_add_u32 s{sA}, s{sA}, s4"); I(f"s_lshl_b32 s{sA}, s{sA}, 2"); I(f"s_add_u32 s{sA}, s{sA}, {FOFF}")
        I(f"v_mov_b32 v12, s{sA}"); I("v_mov_b32 v13, 0")
        I("s_mov_b64 exec, 1")
        I(f"global_store_dword v12, v13, s[{sWS}:{sWS+1}] sc1")
        I("s_mov_b64 exec, -1")
        E.lab("L_noclr")
    for _ in range(pad): I("s_nop 0")
    if ipf:
        I("s_getpc_b64 s[56:57]")
        E.lab("L_pc")
        I(f"s_lshl_b32 s{sA}, s{sWAVE}, 13"); I(f"v_lshl_add_u32 v{t0}, v0, 7, s{sA}")
        I(f"s_min_u32 s{sA}, s{sA}, s{sA}")
        I(f"v_min_u32 v{t0}, L_code_end-L_pc-4, v{t0}")
        E.vmem(f"global_load_dword v15, v{t0}, s[56:57]", ("QF", -1))
    for i in range(qpre):
        E.items(qfill_ops(E, i))
        if qbar and i == 0: E.bar()
    if pstamp: stamp(E, 2)
    I(f"s_lshl_b32 s{sA}, s7, 3"); I(f"s_add_u32 s{sA}, s{sA}, s3"); I(f"s_lshl_b32 s{sA}, s{sA}, 20")
    srd(S_K, sA, 1 << 20); srd(S_V, sA, 1 << 20)
    I(f"s_mul_i32 s{sA}, s4, {256*896}"); srd(S_WO, sA, 256 * 896)
    I(f"s_lshl_b32 s{sA}, s5, 4"); I(f"s_add_u32 s{sA}, s{sA}, s4"); I(f"s_mul_i32 s{sA}, s{sA}, {PART_HEAD}"); srd(S_PT, sA, PART_HEAD)
    I(f"v_and_b32 v{t0}, 15, v0"); I(f"v_lshlrev_b32 v{vXA0}, 7, v{t0}")
    I(f"v_and_b32 v{t0}, 6, v0"); I(f"v_lshrrev_b32 v{t1}, 4, v0"); I(f"v_xor_b32 v{t0}, v{t0}, v{t1}")
    I(f"v_lshl_add_u32 v{vXA0}, v{t0}, 4, v{vXA0}"); I(f"v_xor_b32 v{vXA1}, 64, v{vXA0}")
    def tr_lane(e, dst, tmp, sh):
        e.I(f"v_lshrrev_b32 v{dst}, 2, v0"); e.I(f"v_mul_u32_u24 v{dst}, {PIECE}, v{dst}")
        e.I(f"v_and_b32 v{tmp}, 3, v0"); e.I(f"v_lshl_add_u32 v{dst}, v{tmp}, {sh}, v{dst}")
    tr_lane(E, vQA, t0, 4)
    I(f"s_lshl_b32 s{sA}, s{sWAVE}, 6"); I(f"v_add_u32 v{vQA}, s{sA}, v{vQA}")
    vDM = 8
    I(f"v_and_b32 v{vDM}, 31, v0"); I(f"v_lshlrev_b32 v{vDM}, 4, v{vDM}")
    I(f"v_lshrrev_b32 v{t0}, 5, v0"); I(f"v_lshl_add_u32 v{vDM}, v{t0}, 13, v{vDM}")
    I(f"s_lshl_b32 s{sKOFF}, s{sW4}, 11"); I(f"s_add_u32 s{sVOFF}, s{sKOFF}, {32768 if early else 16384}"); I(f"s_add_u32 s{sKOFF}, s{sKOFF}, {0 if hot else 32768}")
    I(f"v_lshlrev_b32 v{t0}, 2, v0"); I(f"v_add_u32 v{t0}, {FLG}, v{t0}"); I(f"v_mov_b32 v{t1}, 0")
    E.lds(f"ds_write_b32 v{t0}, v{t1}", ("F",))
    def kv_piece(e, kind, j, i):
        if nodma and j >= 4: return
        ring, srd_, off = (KRING, S_K, sKOFF) if kind == "K" else (VRING, S_V, sVOFF)
        e.I(f"s_add_u32 m0, s{sWLDS}, {slot(ring[j % 4]) + i*(PIECE-512)}")
        e.I("s_nop 0")
        e.vmem(f"buffer_load_dwordx4 v{vDM}, s[{srd_}:{srd_+3}], s{off} offen offset:{i*512}{ntf(kind, j)} lds", (kind, j))
        if i == 3 and not hot: e.I(f"s_add_u32 s{off}, s{off}, 16384")
    QA, QB_, QACC, QP = 16, 32, 96, 152
    def qproj(E, lag):
        I = E.I
        bx0, bx1, bq = Base(E, vXA0), Base(E, vXA1), Base(E, vQA)
        def fin(z):
            ops = [f"v_pk_mul_f32 {vr(QACC+8*z+2*n,2)}, {vr(QACC+8*z+2*n,2)}, s[{sC}:{sC+1}] op_sel_hi:[1,0]" for n in range(4)]
            ops += [f"v_cvt_pk_bf16_f32 v{QP+4*z+n}, v{QACC+8*z+2*n}, v{QACC+8*z+2*n+1}" for n in range(4)]
            return ops + ([] if early else [lambda: wr(z)])
        bw = Base(E, t0)
        def wr(z):
            if not 0 <= QBUF[z] - bw.cur < 57000: bw.set(QBUF[z])
            E.lds(f"ds_write_b128 v{t0}, {vr(QP+4*z,4)} offset:{QBUF[z] - bw.cur}", ("QW",))
        def pair(i, kk, z):
            E.wl(("A", i, kk), ("B", i, kk, z))
            for b in range(2):
                I(mfma(QACC + 8 * z + 4 * b, QA + 8 * kk + 4 * b, QB_ + 28 * kk + 4 * z, 0 if (i == 0 and kk == 0) else None))
        def last_half(i):
            I(f"v_lshlrev_b32 v{t0}, 4, v0"); I(f"s_lshl_b32 s{sA}, s{sWAVE}, 10"); I(f"v_add_u32 v{t0}, s{sA}, v{t0}")
            for z in range(7):
                pair(i, 1, z)
                if z >= 3: E.items(fin(z - 3))
            if early:
                E.bar()
                for z in range(4): wr(z)
                for z in range(4, 7): E.items(fin(z)); wr(z)
            else:
                E.items(fin(4)); E.items(fin(5)); E.items(fin(6))
        if qprio is not None and lag == qprio: I("s_setprio 1")
        for i in range(7):
            E.wv(("QF", i))
            if i == 0 or lag: E.wl0()
            E.bar()
            if i == 0 and not lag and not otrace: stamp(E, 1)
            if qtrace and not lag and i >= 1: stamp(E, 1 + i)
            xs, wa, wb = QSETS[i % 3]
            bx0.set(xs); bx1.set(xs); bq.set(wa)
            def rda(kk):
                for b in range(2):
                    for u in range(2):
                        E.lds(f"ds_read_b64_tr_b16 {vr(QA+8*kk+4*b+2*u,2)}, v{vQA} offset:{kk*SLOT + u*512 + b*8}", ("A", i, kk))
            def rdb(kk, z):
                E.lds(f"ds_read_b128 {vr(QB_+28*kk+4*z,4)}, v{vXA1 if kk else vXA0} offset:{z*2048}", ("B", i, kk, z))
            fl = []
            if qlag:
                assert qpre == 2
                if i == 0 and lag:
                    I(f"s_lshl_b32 s{sXLDS}, s{sW4}, 12"); I(f"s_mul_i32 s{sB2}, s{sW4}, {32*896}"); I(f"s_lshl_b32 s{sE}, s{sW4}, 16")
                if i + 2 < 7 and lag: fl = qfill4_ops(E, i + 2)
            else:
                if i >= 1 and i + 2 < 7: fl = qfill_ops(E, i + 2)
                if i == 0 and qpre < 3: fl = sum([qfill_ops(E, k) for k in range(qpre, 3)], [])
            if i == 5 or (i == 6 and early):
                I(f"s_lshl_b32 s{sE}, s{sWAVE}, 10"); I(f"s_mul_i32 s{sB2}, s{sWAVE}, {2*PIECE}")
                def pre(kind, j, i_):
                    ring, srd_ = (KRING, S_K) if kind == "K" else (VRING, S_V)
                    I(f"s_add_u32 m0, s{sB2}, {slot(ring[j]) + i_*(PIECE-512)}")
                    I(f"s_add_u32 s{sD}, s{sE}, {j*16384}")
                    E.vmem(f"buffer_load_dwordx4 v{vDM}, s[{srd_}:{srd_+3}], s{sD} offen offset:{i_*512}{ntf(kind, j)} lds", (kind, j))
                fl = [(lambda k=k, j=j, i_=i_: pre(k, j, i_)) for k, j in ((("K", 0), ("K", 1), ("V", 0)) if i == 5 else (("K", 2), ("V", 1))) for i_ in range(2)]
            fil = spread(14, fl, 0, 9 if i < 6 else 5) if fl else [[] for _ in range(14)]
            if qlag and lag and fl and i < 5: fil = spread(14, fl, qlf, 13)
            if not lag:
                rda(0)
                for z in range(5): rdb(0, z)
                order = [(kk, z) for kk in range(2) for z in range(7)]
                for n, (kk, z) in enumerate(order):
                    if i == 6 and kk == 1: break
                    pair(i, kk, z)
                    if n == 0: rda(1)
                    if n + 5 < 14: rdb(*order[n + 5])
                    E.items(fil[n])
                if i == 6:
                    for z in range(5, 7): rdb(1, z)
                    last_half(6)
            else:
                n = 0
                if i > 0:
                    for z in range(7):
                        pair(i - 1, 1, z)
                        if z == 0: rda(0)
                        if z >= 1: rdb(0, z - 1)
                        E.items(fil[n]); n += 1
                    rdb(0, 6)
                else:
                    rda(0)
                    for z in range(7): rdb(0, z)
                rda(1)
                for z in range(7):
                    pair(i, 0, z)
                    rdb(1, z)
                    E.items(fil[n]); n += 1
                for k in range(n, 14): E.items(fil[k])
                if i == 6: last_half(6)
        if qprio is not None and lag == qprio: I("s_setprio 0")
        I(f"s_mov_b32 s{sBLK}, 0")
    I(f"s_cmp_ge_u32 s{sWAVE}, 4"); I("s_cbranch_scc1 L_owave")
    O = E.fork()
    qproj(E, 0)

    kfree = [slot(KRING[(NB - 4 + i) % 4]) for i in range(4)]
    vs = [slot(VRING[(NB - 4 + i) % 4]) for i in range(4)]
    WOSLOT = kfree + [vs[0], TSLOT, vs[1], vs[2], vs[3]]
    WOSLOT += [WOSLOT[i] for i in range(5)]
    OBUF = [vs[2], vs[2] + 8192, vs[3], vs[3] + 8192, vs[1], vs[1] + 8192, SPARE]
    def set_flag(e, level):
        e.I(f"s_lshl_b32 s{sA}, s{sPB}, 5"); e.I(f"s_add_u32 s{sA}, s{sA}, s{sHEAD}"); e.I(f"s_lshl_b32 s{sA}, s{sA}, 2"); e.I(f"s_add_u32 s{sA}, s{sA}, {FOFF}")
        e.I(f"v_mov_b32 v10, s{sA}"); e.I(f"v_mov_b32 v11, {level}")
        e.I("s_mov_b64 exec, 1")
        e.I(f"global_store_dword v10, v11, s[{sWS}:{sWS+1}] sc1")
        e.I("s_mov_b64 exec, -1")
    def oproj(e, role, fills_at):
        I = e.I
        vTA, vST, vT, RLR, AF, PK, ACC, BF = 1, 2, 3, 4, 16, 32, 40, 72
        zs = [0, 1, 2, 3] if role == 0 else [4, 5, 6]
        nz = len(zs)
        I(f"v_lshlrev_b32 v{vT}, 4, v0")
        I(f"v_and_b32 v{vST}, 15, v0"); I(f"v_lshlrev_b32 v{vST}, 2, v{vST}"); I(f"v_add_u32 v{vST}, {RL}, v{vST}")
        for a, z in enumerate(zs): e.lds(f"ds_read_b32 v{RLR+a}, v{vST} offset:{z*64}", ("R",))
        tr_lane(e, vTA, vST, 3)
        I(f"s_lshl_b32 s{sA}, s{sW4}, 5"); I(f"v_add_u32 v{vTA}, s{sA}, v{vTA}")
        I(f"s_lshl_b32 s{sA}, s{sWAVE}, 11"); I(f"v_add_u32 v{vST}, s{sA}, v{vT}")
        if role: I(f"v_lshlrev_b32 v8, 3, v0"); I(f"v_add_u32 v8, s{sA}, v8")
        I(f"s_mov_b32 s{sSTRIP}, s{sROTO}")
        ba, bb = Base(e, vTA), Base(e, vT)
        seq = [(j, kp) for j in range(7) for kp in range(8)]
        def rd(n):
            j, kp = seq[n]
            ba.set(WOSLOT[2 * j + kp // 4])
            for u in range(2):
                e.lds(f"ds_read_b64_tr_b16 {vr(AF+4*(n%4)+2*u,2)}, v{vTA} offset:{(2*(kp%4)+u)*128}", ("A", n))
        def rdB(kp):
            for a, z in enumerate(zs):
                base = OBUF[z - (z - zs[0]) % 2] if False else OBUF[z]
                lo = min(OBUF[zz] for zz in zs)
                if base - bb.cur < 0 or base - bb.cur + kp * 1024 > 65535: bb.set(base)
                e.lds(f"ds_read_b128 {vr(BF+32*a+4*kp,4)}, v{vT} offset:{base - bb.cur + kp*1024}", ("B", kp, a))
        def fin(j):
            acc = ACC + 16 * (j % 2)
            ops = []
            for a in range(nz):
                ops += [f"v_mul_f32 v{acc+4*a+r}, v{RLR+a}, v{acc+4*a+r}" for r in range(4)]
                ops += [f"v_cvt_pk_bf16_f32 v{PK+2*a+n}, v{acc+4*a+2*n}, v{acc+4*a+2*n+1}" for n in range(2)]
            def st():
                if nost: return
                fl = " nt" if stnt else ""
                if stfl: fl = " " + stfl
                I(f"s_lshl_b32 s{sA}, s{sSTRIP}, 14")
                I(f"s_add_u32 s{sSTRIP}, s{sSTRIP}, 1")
                e.vmem(f"buffer_store_dwordx4 {vr(PK,4)}, v{vST}, s[{S_PT}:{S_PT+3}], s{sA} offen{fl}", ("ST", j))
                if nz == 4: e.vmem(f"buffer_store_dwordx4 {vr(PK+4,4)}, v{vST}, s[{S_PT}:{S_PT+3}], s{sA} offen offset:1024{fl}", ("ST", j))
                else: e.vmem(f"buffer_store_dwordx2 {vr(PK+4,2)}, v8, s[{S_PT}:{S_PT+3}], s{sA} offen offset:1024{fl}", ("ST", j))
                I(f"s_cmp_eq_u32 s{sSTRIP}, 7"); I(f"s_cselect_b32 s{sSTRIP}, 0, s{sSTRIP}")
            ops.append(st)
            return ops
        I(f"s_setprio {1 if oprio == role else 0}")
        rd(0); rdB(0); rd(1); rdB(1); rd(2); rd(3)
        for j in range(7):
            fl = fin(j - 1) if j else []
            fil = spread(8 * nz, fl, 2 * nz, 8 * nz - 1) if fl else [[] for _ in range(8 * nz)]
            fl = fills_at(e, ("post", j))
            if fl:
                f2 = spread(8 * nz, fl, 0, min(8 * nz - 1, len(fl) - 1))
                fil = [a + b for a, b in zip(f2, fil)]
            for kp in range(8):
                n = 8 * j + kp
                for a in range(nz):
                    e.wl(("A", n), ("B", kp, a))
                    I(mfma(ACC + 16 * (j % 2) + 4 * a, AF + 4 * (n % 4), BF + 32 * a + 4 * kp, 0 if kp == 0 else None))
                    if a == nz - 1:
                        if j == 0 and kp + 2 < 8: rdB(kp + 2)
                        if n + 4 < len(seq): rd(n + 4)
                    e.items(fil[kp * nz + a])
            if j < 6:
                fills_at(e, ("pre", j + 1))
                if fuse and j == L1 + fdel: e.wst(("ST", L1 - 1))
                e.bar()
                if fuse and j == L1 + fdel and role == 0:
                    I(f"s_cmp_lg_u32 s{sWAVE}, 3"); I("s_cbranch_scc1 L_nofl1")
                    set_flag(e, 1)
                    e.lab("L_nofl1")
                if otrace and role == 0: stamp0(e, 2 + j)
        I("s_nop 7")
        e.wl(("R",))
        e.items(fin(6))

    npoll = [0]
    def spin(e, load, test):
        k = npoll[0]; npoll[0] += 1
        e.I(f"s_mov_b32 s{sE}, 0x8000")
        e.lab(f"L_poll{k}")
        e.I(load); e.I("s_waitcnt vmcnt(0)")
        for t in test: e.I(t)
        e.I(f"s_cbranch_scc1 L_polled{k}")
        e.I(f"s_sleep {slp}"); e.I(f"s_sub_u32 s{sE}, s{sE}, 1"); e.I(f"s_cmp_lg_u32 s{sE}, 0"); e.I(f"s_cbranch_scc1 L_poll{k}")
        e.lab(f"L_polled{k}")
    def final_reduce(e):
        I = e.I
        LD, AC = 80, 72
        I(f"s_load_dwordx2 s[12:13], s[0:1], 80")
        I(f"s_add_u32 s7, s{sROTO}, s{sWAVE}"); I("s_cmp_ge_u32 s7, 7"); I("s_cselect_b32 s16, 7, 0"); I("s_sub_u32 s7, s7, s16")
        I(f"s_lshl_b32 s7, s7, 4"); I(f"s_add_u32 s7, s7, s{sHEAD}")
        I(f"s_mul_i32 s17, s{sPB}, {16*PART_HEAD}"); I("s_lshl_b32 s18, s7, 10"); I("s_add_u32 s17, s17, s18")
        I(f"s_add_u32 s8, s{sWS}, s17"); I(f"s_addc_u32 s9, s{sWS+1}, 0"); I(f"s_mov_b32 s10, {15*PART_HEAD + 1024}"); I("s_mov_b32 s11, 0x20000")
        I("s_and_b32 s25, s7, 9"); I("s_cmp_eq_u32 s25, 9"); I("s_cselect_b32 s25, 3, 4")
        I("v_lshlrev_b32 v12, s25, v0")
        I(f"s_lshl_b32 s{sA}, s{sPB}, 7"); I(f"s_add_u32 s{sA}, s{sA}, {FOFF}")
        I("v_and_b32 v13, 15, v0"); I(f"v_lshl_add_u32 v14, v13, 2, s{sA}")
        def loads():
            I("s_mov_b32 s19, 0")
            for h in range(16):
                I(f"buffer_load_dwordx4 {vr(LD+4*h,4)}, v12, s[8:11], s19 offen sc1")
                if h < 15: I(f"s_add_u32 s19, s19, {PART_HEAD}")
        def wait_flags(level):
            spin(e, f"global_load_dword v15, v14, s[{sWS}:{sWS+1}] sc1", [f"v_cmp_gt_u32 vcc, {level}, v15", "s_nop 1", "s_cmp_eq_u64 vcc, 0"])
        I(f"s_cmp_ge_u32 s{sWAVE}, {L1}"); I("s_cbranch_scc1 L_late")
        wait_flags(1)
        if ftrace: stamp0(e, 4)
        loads()
        I("s_branch L_z1")
        e.lab("L_late")
        I("s_waitcnt vmcnt(0)")
        e.lab("L_z1")
        e.bar()
        if ftrace: stamp0(e, 5)
        I(f"s_cmp_lg_u32 s{sWAVE}, 7"); I("s_cbranch_scc1 L_nopoll")
        set_flag(e, 2)
        wait_flags(2)
        e.lab("L_nopoll")
        I("s_bfe_u32 s20, s7, 0x10003"); I("s_lshl_b32 s20, s20, 1"); I("s_and_b32 s21, s7, 1"); I("s_add_u32 s20, s20, s21")
        I(f"s_and_b32 s22, s{sPB}, 7"); I("s_mul_i32 s22, s22, 112"); I("s_lshl_b32 s23, s20, 5"); I("s_add_u32 s22, s22, s23")
        I("v_add_u32 v3, s22, v13"); I("v_mul_u32_u24 v3, 1792, v3")
        I(f"s_lshr_b32 s22, s{sPB}, 3"); I("s_mul_i32 s22, s22, 896"); I("s_lshr_b32 s23, s7, 4"); I("s_lshl_b32 s23, s23, 7"); I("s_add_u32 s22, s22, s23")
        I("s_bfe_u32 s23, s7, 0x20001"); I("s_lshl_b32 s23, s23, 5"); I("s_add_u32 s22, s22, s23")
        I("v_lshrrev_b32 v4, 4, v0"); I("v_lshl_add_u32 v3, v4, 3, v3"); I("v_add_u32 v3, s22, v3")
        I(f"s_mov_b32 s24, {16*1792}"); I("s_mov_b32 s26, 0x3f80"); I("s_mov_b32 s27, 0x3f800000")
        I("s_waitcnt lgkmcnt(0)")
        I(f"s_mov_b32 s14, {8*112*896*2}"); I("s_mov_b32 s15, 0x20000")
        def summ(tag):
            for h in range(16):
                I(f"s_waitcnt vmcnt({15-h})")
                for d_ in range(4):
                    src = LD + 4 * h + d_
                    if h == 0:
                        I(f"v_lshlrev_b32 v{AC+2*d_}, 16, v{src}"); I(f"v_and_b32 v{AC+1+2*d_}, 0xffff0000, v{src}")
                    elif dot:
                        I(f"v_dot2_f32_bf16 v{AC+2*d_}, v{src}, s26, v{AC+2*d_}"); I(f"v_dot2_f32_bf16 v{AC+1+2*d_}, v{src}, s27, v{AC+1+2*d_}")
                    else:
                        I(f"v_lshlrev_b32 v5, 16, v{src}"); I(f"v_and_b32 v6, 0xffff0000, v{src}")
                        I(f"v_add_f32 v{AC+2*d_}, v{AC+2*d_}, v5"); I(f"v_add_f32 v{AC+1+2*d_}, v{AC+1+2*d_}, v6")
            I("s_nop 2")
            for d_ in range(4): I(f"v_cvt_pk_bf16_f32 v{16+d_}, v{AC+2*d_}, v{AC+1+2*d_}")
            I(f"buffer_store_dwordx2 v[16:17], v3, s[12:15], 0 offen {outfl}")
            I("s_cmp_eq_u32 s20, 3"); I(f"s_cbranch_scc1 L_rlast{tag}")
            I(f"buffer_store_dwordx2 v[18:19], v3, s[12:15], s24 offen {outfl}")
            e.lab(f"L_rlast{tag}")
        e.bar()
        if ftrace: stamp0(e, 6)
        I(f"s_cmp_eq_u32 s{sWAVE}, 7"); I("s_cbranch_scc1 L_done")
        I(f"s_cmp_lt_u32 s{sWAVE}, {L1}"); I("s_cbranch_scc1 L_sum")
        loads()
        e.lab("L_sum")
        summ("")
        if ftrace: stamp0(e, 7)
        if diag: I("s_waitcnt vmcnt(0)"); I("s_barrier")

    LOOP0, LOOPN = 5, 61
    rare_s = []
    stamp0 = stamp
    if qtrace: stamp = lambda e, k: (stamp0(e, 8) if k == 2 else None)
    if otrace: stamp = lambda e, k: (stamp0(e, 8) if k == 8 else stamp0(e, 1) if k == 6 else None)
    if ftrace: stamp = lambda e, k: (stamp0(e, {6: 2, 7: 3, 8: 8}[k]) if k in (6, 7, 8) else None)
    if pstamp:
        stamp0 = stamp
        stamp = lambda e, k: (stamp0(e, k) if k == 8 else None)
    def swave(S, NZ, tag):
        I = S.I
        vKA, vPW, vAW, vL, vT0, vT1, vT2 = 1, 2, 3, 6, 9, 11, 13
        Q0, SA, SB, PO, EX, NM, KF = 16, 80, 96, 112, 120, 136, 144
        NKF = nkf
        I(f"v_lshlrev_b32 v{vPW}, 4, v0")
        if NZ == 2:
            I(f"s_mul_i32 s{sA}, s{sW4}, {SLOT}"); I(f"s_add_u32 s{sA}, s{sA}, {QBUF[0]}"); I(f"v_add_u32 v{vT0}, s{sA}, v{vPW}")
        else:
            I(f"v_add_u32 v{vT0}, {QBUF[6]}, v{vPW}")
        I(f"v_and_b32 v{vKA}, 15, v0"); I(f"v_mul_u32_u24 v{vKA}, {PIECE}, v{vKA}")
        I(f"v_lshrrev_b32 v{vT1}, 4, v0"); I(f"v_lshl_add_u32 v{vKA}, v{vT1}, 4, v{vKA}")
        I(f"s_lshl_b32 s{sA}, s{sW4}, 11"); I(f"v_add_u32 v{vPW}, s{sA}, v{vPW}")
        I(f"v_and_b32 v{vAW}, 15, v0"); I(f"v_lshlrev_b32 v{vAW}, 2, v{vAW}")
        I(f"s_lshl_b32 s{sA}, s{sW4}, 7"); I(f"s_add_u32 s{sA}, s{sA}, {ALPHA}"); I(f"v_add_u32 v{vAW}, s{sA}, v{vAW}")
        for a in range(NZ):
            I(f"v_mov_b32 v{vL+a}, 0")
            for r in range(4): I(f"v_mov_b32 v{NM+4*a+r}, 0")
        I(f"s_mov_b32 s{sT}, 0x40004000")
        if NZ == 1: I(f"s_mov_b32 s{sKOFF}, {49152 if early else 32768}")
        if prio == "S": I("s_setprio 1")
        S.wl0(); S.wv(("K", 0), ("K", 1))
        S.bar()
        stamp(S, 2)
        bk = Base(S, vKA)
        def rdk(p, n):
            bk.set(slot(KRING[p % 4]))
            S.lds(f"ds_read_b128 {vr(KF+4*(n%NKF),4)}, v{vKA} offset:{(n%2)*512 + (n//2)*64}", ("K", p, n))
        nv = 8 * NZ
        def exp_cvt(sp):
            ops = []
            for k in range(nv + 3):
                if k < nv: ops.append(f"v_exp_f32 v{EX+k}, v{sp+k}")
                if k >= 3 and k % 2 == 1: ops.append(f"v_cvt_pk_bf16_f32 v{PO+(k-3)//2}, v{EX+k-3}, v{EX+k-2}")
            return ops
        def rare_body(kind):
            sub = []
            par = int(kind[1])
            first = kind[0] == "f"
            sp, cur = (SA, SB) if par == 0 else (SB, SA)
            sub.append(f"L_rare_s{tag}_{kind}:")
            for a in range(NZ):
                b = sp + 8 * a
                sub.append(f"v_max3_f32 v{vT0+a}, v{b}, v{b+1}, v{b+2}")
                sub.append(f"v_max3_f32 v{vT0+a}, v{vT0+a}, v{b+3}, v{b+4}")
                sub.append(f"v_max3_f32 v{vT0+a}, v{vT0+a}, v{b+5}, v{b+6}")
                sub.append(f"v_max_f32 v{vT0+a}, v{vT0+a}, v{b+7}")
            for sw in ("v_permlane16_swap_b32", "v_permlane32_swap_b32"):
                for a in range(NZ): sub.append(f"v_mov_b32 v{vT1+a}, v{vT0+a}")
                sub.append("s_nop 1")
                for a in range(NZ): sub.append(f"{sw} v{vT0+a}, v{vT1+a}")
                for a in range(NZ): sub.append(f"v_max_f32 v{vT0+a}, v{vT0+a}, v{vT1+a}")
            for a in range(NZ):
                sub.append(f"v_sub_f32 v{vT0+a}, 0xc0e00000, v{vT0+a}")
                if not first:
                    sub.append(f"v_min_f32 v{vT0+a}, 0, v{vT0+a}")
                    sub.append(f"v_exp_f32 v{vT1+a}, v{vT0+a}")
                for r in range(4): sub.append(f"v_add_f32 v{NM+4*a+r}, v{NM+4*a+r}, v{vT0+a}")
                for r in range(8): sub.append(f"v_add_f32 v{sp+8*a+r}, v{sp+8*a+r}, v{vT0+a}")
                if kind[0] != "n":
                    for r in range(8): sub.append(f"v_add_f32 v{cur+8*a+r}, v{cur+8*a+r}, v{vT0+a}")
                if not first:
                    sub.append(f"v_mul_f32 v{vL+a}, v{vL+a}, v{vT1+a}")
                    sub.append(f"ds_write_b32 v{vAW}, v{vT1+a} offset:{par*448 + a*64}")
            sub += exp_cvt(sp)
            if not first:
                sub.append(f"s_lshl_b32 s{sA}, s{sW4}, 3"); sub.append(f"s_add_u32 s{sA}, s{sA}, {FLG + par*128}")
                sub.append(f"v_mov_b32 v{vT0}, s{sA}"); sub.append(f"v_mov_b32 v{vT2}, s{sBLK}")
                for a in range(NZ): sub.append(f"ds_write_b32 v{vT0}, v{vT2} offset:{4*a}")
            sub.append("s_waitcnt lgkmcnt(0)")
            sub.append(f"s_setpc_b64 s[{sRET}:{sRET+1}]")
            return sub
        def softmax_ops(p):
            sp = SB if p % 2 == 0 else SA
            par = (p - 1) % 2
            ops = exp_cvt(sp)
            ops.append(f"v_or3_b32 v{vT0}, v{PO}, v{PO+1}, v{PO+2}")
            nhead = None
            if NZ == 2:
                ops.append(f"v_or3_b32 v{vT1}, v{PO+3}, v{PO+4}, v{PO+5}")
                ops.append(f"v_or3_b32 v{vT0}, v{vT0}, v{PO+6}, v{PO+7}")
                ops.append(f"v_or_b32 v{vT0}, v{vT0}, v{vT1}")
            else:
                ops.append(f"v_or_b32 v{vT0}, v{vT0}, v{PO+3}")
            ops.append(f"v_and_b32 v{vT0}, s{sT}, v{vT0}")
            kind = ("q" if p < NB else "n") + str(par)
            def check():
                I(f"s_add_u32 s{sBLK}, s{sBLK}, 1")
                if p == 1:
                    for l in rare_body("f0")[1:-2]: I(l)
                else:
                    I(f"v_cmp_ne_u32 vcc, 0, v{vT0}")
                    I(f"s_cbranch_vccnz L_stub_s{tag}_{p}")
                    S.lab(f"L_back_s{tag}_{p}")
                    rare_s.append((tag, p, kind))
            if p == 1: ops = []
            ops.append(check)
            for a in range(NZ):
                ops.append(lambda a=a: S.lds(f"ds_write_b128 v{vPW}, {vr(PO+4*a,4)} offset:{par*7168 + a*1024}", ("P", a)))
            for k in range(nv): ops.append(f"v_add_f32 v{vL+(k%NZ)}, v{vL+(k%NZ)}, v{EX+8*(k%NZ)+k//NZ}")
            if nosm: return [o for o in ops if callable(o)][1:]
            return ops
        def k_piece(j, k):
            if nodma and j >= 4: return
            if k == 8: I(f"s_add_u32 s{sKOFF}, s{sKOFF}, 4096")
            I(f"s_mov_b32 m0, {slot(KRING[j % 4]) + k*PIECE - (k%8)*512}")
            I("s_nop 0")
            S.vmem(f"buffer_load_dwordx4 v{vDM}, s[{S_K}:{S_K+3}], s{sKOFF} offen offset:{(k%8)*512}{ntf('K', j)} lds", ("K", j))
            if k == 15: I(f"s_add_u32 s{sKOFF}, s{sKOFF}, {-4096 & 0xffffffff if hot else 12288}")
        loader = s3k and NZ == 1
        def s_phase(p):
            cur = SA if p % 2 == 0 else SB
            do_qk, do_sm = p < NB, p >= 1
            sm = softmax_ops(p) if do_sm else []
            if fuse and NZ == 2 and p == 1:
                assert not S.vm
                I(f"s_cmp_lg_u32 s{sWAVE}, 0"); I("s_cbranch_scc1 L_noclr2")
                I(f"s_lshr_b32 s{sD}, s2, 5"); I(f"s_lshl_b32 s{sD}, s{sD}, 5"); I(f"v_mov_b32 v14, s{sD}")
                I(f"s_and_b32 s{sA}, s2, 31"); I(f"s_lshl_b32 s{sA}, 1, s{sA}"); I(f"v_mov_b32 v15, s{sA}")
                I("s_mov_b64 exec, 1")
                I(f"global_atomic_or v14, v15, s[{sDBG}:{sDBG+1}] sc1")
                I("s_mov_b64 exec, -1")
                S.lab("L_noclr2")
            kf = []
            if loader:
                for j in (([] if p == 0 else [3, 4] if p == 1 else [p + 3]) if early else [2, 3] if p == 0 else [p + 3]):
                    if j < NB: kf += [(lambda j=j, k=k: k_piece(j, k)) for k in range(16)]
            if do_qk:
                if p == 0:
                    for a in range(NZ):
                        for ks in range(2): S.lds(f"ds_read_b128 {vr(Q0+32*a+4*ks,4)}, v{vT0} offset:{a*8192 + ks*1024}", ("Q", a, ks))
                if p in ((0, 3) if early else (0, 2)):
                    for n in range(NKF - 2): rdk(p, n)
                if p == 0:
                    for ks in range(2, 8):
                        for a in range(NZ): S.lds(f"ds_read_b128 {vr(Q0+32*a+4*ks,4)}, v{vT0} offset:{a*8192 + ks*1024}", ("Q", a, ks))
                ng = 16 * NZ
                f0, f1 = (sfirst, slast) if NZ == 2 else (s3f, 15)
                fil = spread(ng, sm, f0, f1) if sm else [[] for _ in range(ng)]
                if kf: fil = [a + b for a, b in zip(spread(ng, kf, s3first, s3last), fil)]
                for n in range(16):
                    ks, y = n // 2, n % 2
                    for a in range(NZ):
                        if y == 0: S.wl(("K", p, n), ("K", p, n + 1), ("Q", a, ks))
                        if not noS:
                            if ks == 0: I(f"v_mfma_f32_16x16x32_bf16 {vr(cur+8*a+4*y,4)}, {vr(KF+4*(n%NKF),4)}, {vr(Q0+32*a,4)}, {vr(NM+4*a,4)}")
                            else: I(mfma(cur + 8 * a + 4 * y, KF + 4 * (n % NKF), Q0 + 32 * a + 4 * ks))
                        if a == NZ - 1:
                            m = n + NKF - 2
                            if m < 16: rdk(p, m)
                            elif p + 1 < NB and p != (2 if early else 1): rdk(p + 1, m - 16)
                        S.items(fil[n * NZ + a])
                S.wl(("P", 0), ("P", 1))
                if p == 0: S.wv(("V", 0), *([("K", 2)] if early else []))
                if p == 1 and early: S.wv(("V", 1))
                if loader and p >= (2 if early else 1): S.wv(("K", p + 2), ("K", p + 1))
                if p + 1 >= NB: I("s_nop 7")
            else:
                S.items(sm)
                for sw in ("v_permlane16_swap_b32", "v_permlane32_swap_b32"):
                    for a in range(NZ): I(f"v_mov_b32 v{vT0+a}, v{vL+a}")
                    I("s_nop 1")
                    for a in range(NZ): I(f"{sw} v{vL+a}, v{vT0+a}")
                    for a in range(NZ): I(f"v_add_f32 v{vL+a}, v{vL+a}, v{vT0+a}")
                for a in range(NZ): I(f"v_rcp_f32 v{vL+a}, v{vL+a}")
                I("s_nop 0")
                for a in range(NZ): S.lds(f"ds_write_b32 v{vAW}, v{vL+a} offset:{RL-ALPHA + a*64}", ("P", 2))
                S.wl0()
            S.bar()
        for p in range(0, LOOP0): s_phase(p)
        stamp(S, 3)
        I(f"s_mov_b32 s{sCNT}, {(LOOPN-LOOP0)//4}")
        if lalign: S.L.append(f".p2align {lalign}")
        S.lab(f"L_sloop{tag}")
        st = (list(S.lg), bk.cur, S.nbar)
        stv = list(S.vm)
        for p in range(LOOP0, LOOP0 + 4): s_phase(p)
        assert [(t[0], t[1] - 4) for t in S.vm] == stv
        S.vm = [(t[0], t[1] + LOOPN - LOOP0 - 4) for t in S.vm]
        assert [(t[0], t[1] - 4, t[2]) for t in S.lg] == st[0] and bk.cur == st[1], (S.lg, st)
        I(f"s_sub_u32 s{sCNT}, s{sCNT}, 1"); I(f"s_cmp_lg_u32 s{sCNT}, 0"); I(f"s_cbranch_scc1 L_sloop{tag}")
        stamp(S, 4)
        S.lg = [(t[0], LOOPN, t[2]) for t in S.lg]
        S.nbar = st[2] + (LOOPN - LOOP0)
        for p in range(LOOPN, NB + 1): s_phase(p)
        stamp(S, 5)
        sub = []
        for kind in ("q0", "q1") + (("n1",) if NB % 2 == 0 else ("n0",)): sub += rare_body(kind)
        return sub
    I(f"s_cmp_eq_u32 s{sWAVE}, 3"); I("s_cbranch_scc1 L_swave3")
    S3 = E.fork()
    subs = swave(E, 2, "a")
    I("s_branch L_sjoin")
    S3.lab("L_swave3")
    subs += swave(S3, 1, "b")
    if fuse:
        S3.wv0()
        I(f"s_lshr_b32 s{sD}, s2, 5"); I(f"s_lshl_b32 s{sD}, s{sD}, 5"); I(f"v_mov_b32 v6, s{sD}")
        I(f"s_and_b32 s{sA}, s2, 4"); I(f"s_lshl_b32 s{sA}, 0x0f0f0f0f, s{sA}")
        spin(S3, f"global_load_dword v7, v6, s[{sDBG}:{sDBG+1}] sc1",
             [f"v_readfirstlane_b32 s{sD}, v7", f"s_and_b32 s{sD}, s{sD}, s{sA}", f"s_cmp_eq_u32 s{sD}, s{sA}"])
    assert S3.nbar == E.nbar
    E.lab("L_sjoin")
    S = E
    S.bar()
    stamp(S, 6)
    oproj(S, 0, lambda e, st: [])
    stamp(S, 7)
    nbarS = S.nbar
    if fuse:
        E.lab("L_final")
        final_reduce(S)
    if diag:
        I(f"s_cmp_lg_u32 s{sWAVE}, 0"); I("s_cbranch_scc1 L_done")
        I("s_waitcnt vmcnt(0)")
        stamp(S, 8)
        I("s_waitcnt lgkmcnt(0)")
        I("s_mov_b64 exec, 1")
        if dbgwg is not None:
            I(f"s_cmp_lg_u32 s2, {dbgwg}"); I("s_cbranch_scc1 L_done")
            I(f"v_mov_b32 v1, {128<<20}")
            for k in range(8):
                I(f"s_sub_u32 s{sA}, s{sTS+4*k+4}, s{sTS+4*k}"); I(f"v_mov_b32 v4, s{sA}")
                I(f"s_sub_u32 s{sA}, s{sTS+4*k+6}, s{sTS+4*k+2}"); I(f"v_mov_b32 v5, s{sA}")
                I(f"global_store_dword v1, v4, s[58:59] offset:{4*k}"); I(f"global_store_dword v1, v5, s[58:59] offset:{32+4*k}")
            I("s_endpgm")
        I(f"s_lshl_b32 s{sA}, s2, 7"); I(f"s_add_u32 s{sA}, s{sA}, {64<<20}"); I(f"v_mov_b32 v1, s{sA}")
        for k in range(9):
            I(f"v_mov_b32 v4, s{sTS+4*k}"); I(f"v_mov_b32 v5, s{sTS+4*k+2}")
            I(f"global_store_dwordx2 v1, v[4:5], s[58:59] offset:{8*k}")
            I("s_nop 1")
    I("s_endpgm")

    I = O.I
    O.lab("L_owave")
    qproj(O, 1)
    vVA, vPA, vWX, vFA, vF = 1, 2, 9, 4, 5
    VF, OA, OX, PF = 12, 68, 180, 228
    tr_lane(O, vVA, 6, 3)
    I(f"v_lshlrev_b32 v{vPA}, 4, v0")
    I(f"v_and_b32 v{vFA}, 7, v0"); I(f"v_lshlrev_b32 v{vFA}, 2, v{vFA}"); I(f"v_add_u32 v{vFA}, {FLG}, v{vFA}")
    I(f"v_lshrrev_b32 v{vWX}, 3, v0"); I(f"v_mul_u32_u24 v{vWX}, {16*896}, v{vWX}")
    I(f"v_and_b32 v6, 7, v0"); I(f"v_lshl_add_u32 v{vWX}, v6, 4, v{vWX}")
    I(f"s_mul_i32 s{sA}, s{sW4}, {4*896}"); I(f"v_add_u32 v{vWX}, s{sA}, v{vWX}")
    I(f"s_lshl_b32 s{sPOFF}, s{sROTO}, 7")
    def wo_piece(f, i, O=None):
        O = O or Ocur[0]
        if nowo and f >= 6: return
        O.I(f"s_add_u32 m0, s{sWLDS}, {WOSLOT[f] + i*PIECE}")
        O.I(f"s_add_u32 s{sD}, s{sPOFF}, {((f%2)*128 + i)*896}")
        O.vmem(f"buffer_load_dwordx4 v{vWX}, s[{S_WO}:{S_WO+3}], s{sD} offen lds", ("WO", f))
        if i == 3 and f % 2 == 1:
            O.I(f"s_add_u32 s{sPOFF}, s{sPOFF}, 128"); O.I(f"s_cmp_eq_u32 s{sPOFF}, 896"); O.I(f"s_cselect_b32 s{sPOFF}, 0, s{sPOFF}")
    Ocur = [O]
    O.wl0()
    if prio == "O": I("s_setprio 1")
    O.wv(("K", 0), ("K", 1))
    rare_o = []; osubs = []
    def owave(O, tag, chk=False):
        I = O.I
        big = bal and tag == "b"
        nsl = 7 if big else 4
        voff = [384 + 32 * sl for sl in range(4)] + [128 * e + 96 for e in range(3)] if big else [32 * sl for sl in range(4)]
        def units(z):
            if not bal: return [0, 1, 2, 3]
            if big: return [0, 1, 2, 3] + ([4, 5, 6] if z >= balz else [])
            return [0, 1, 2] + ([3] if z < balz else [])
        acc = lambda z, sl: OA + 16 * z + 4 * sl if sl < 4 else OX + 12 * (z - 3) + 4 * (sl - 4)
        if not big: I(f"s_lshl_b32 s{sA}, s{sW4}, 7"); I(f"v_add_u32 v{vVA}, s{sA}, v{vVA}")
        O.bar()
        bv = Base(O, vVA)
        def rdv1(j, k):
            sl, y = k // 2, k % 2
            bv.set(slot(VRING[j % 4]))
            O.lds(f"ds_read_b64_tr_b16 {vr(VF+28*(j%2)+4*sl+2*y,2)}, v{vVA} offset:{y*512 + voff[sl]}", ("V", j, sl))
        def rdv(j):
            for k in range(2 * nsl): rdv1(j, k)
        bo, b2 = Base(O, 6), Base(O, 7)
        def pack(z):
            us = units(z)
            ops = [f"v_cvt_pk_bf16_f32 v{acc(z,sl&~1 if sl < 4 else sl)+2*(sl&1 if sl < 4 else 0)+n}, v{acc(z,sl)+2*n}, v{acc(z,sl)+2*n+1}" for sl in us for n in range(2)]
            def wr():
                if not (0 <= OBUF[z] - bo.cur < 57000):
                    bo.set(OBUF[z])
                    if big: b2.set(OBUF[z])
                O.lds(f"ds_write_b128 v6, {vr(acc(z,0),4)} offset:{OBUF[z]-bo.cur}", ("W",))
                if 3 in us: O.lds(f"ds_write_b128 v6, {vr(acc(z,2),4)} offset:{OBUF[z]-bo.cur + 1024}", ("W",))
                else: O.lds(f"ds_write_b64 v6, {vr(acc(z,2),2)} offset:{OBUF[z]-bo.cur + 1024}", ("W",))
                for sl in us:
                    if sl >= 4: O.lds(f"ds_write_b64 v7, {vr(acc(z,sl),2)} offset:{OBUF[z]-b2.cur + (2*(sl-4)+1)*1024 + 8}", ("W",))
            return ops + [wr]
        def o_phase(p):
            j = p - 2
            pieces = []
            def kv(kind, jj): return [(lambda i=i: kv_piece(O, kind, jj, i)) for i in range(4)]
            if p == 0 and not s3k: pieces += kv("K", 2)
            if p + 1 < NB and not (early and p == 0): pieces += kv("V", p + 1)
            if p + 3 < NB:
                if not s3k: pieces += kv("K", p + 3)
            else:
                for f in {NB - 3: [0], NB - 2: [1], NB - 1: [2], NB: [3, 4], NB + 1: []}[p]:
                    pieces += [(lambda i=i, f=f: wo_piece(f, i, O)) for i in range(4)]
            if j < 0:
                O.items(pieces)
                if p == 0:
                    for r in range(OA, OA + 112 + (48 if big else 0)): I(f"v_mov_b32 v{r}, 0")
                if p == 1: rdv(0)
            else:
                par = j % 2
                def rdp(z): O.lds(f"ds_read_b128 {vr(PF+4*(z%npf),4)}, v{vPA} offset:{par*7168 + z*1024}", ("P", z))
                O.lds(f"ds_read_b32 v{vF}, v{vFA} offset:{par*128}", ("F",))
                for z in range(npf): rdp(z)
                I(f"s_add_u32 s{sBLK}, s{sBLK}, 1")
                fil = spread(8, pieces, dmafirst, dmalast) if pieces else [[] for _ in range(8)]
                O.items(fil[0])
                O.wl(("F",))
                I(f"v_cmp_eq_u32 vcc, s{sBLK}, v{vF}")
                I(f"s_cbranch_vccnz L_stub_o{tag}{p}")
                O.lab(f"L_back_o{tag}{p}")
                rare_o.append((tag, p, par))
                kv_ = 0
                if p == NB + 1:
                    I(f"s_lshl_b32 s{sA}, s{sW4}, 11"); I(f"v_add_u32 v6, s{sA}, v{vPA}"); I(f"v_mov_b32 v7, v{vPA}")
                for z in range(7):
                    if p == NB + 1 and z >= 2: O.items(pack(z - 2)) if z > 2 else None
                    for sl in units(z):
                        O.wl(("P", z), ("V", j, sl))
                        if not noO: I(mfma(acc(z, sl), VF + 28 * (j % 2) + 4 * sl, PF + 4 * (z % npf)))
                        if z >= vz0 and j + 1 < NB and kv_ < 2 * nsl: rdv1(j + 1, kv_); kv_ += 1
                    if p == NB + 1 and z == 2: O.items(pack(0))
                    if z + npf < 7: rdp(z + npf)
                    O.items(fil[z + 1])
            if p <= NB:
                if p == 0: O.wv(("V", 0), ("K", 2))
                else: O.wv(("K", p + 2), ("V", p), ("K", p + 1))
                if p == NB: O.wl0()
                O.bar()
        for p in range(0, LOOP0): o_phase(p)
        I(f"s_mov_b32 s{sCNT}, {(LOOPN-LOOP0)//4}")
        O.lab(f"L_oloop{tag}")
        st = (list(O.lg), list(O.vm), bv.cur, O.nbar)
        for p in range(LOOP0, LOOP0 + 4): o_phase(p)
        sh = lambda q, d: [(t[0], t[1] + d) + tuple(t[2:]) for t in q]
        assert sh(O.lg, -4) == st[0] and sh(O.vm, -4) == st[1] and bv.cur == st[2], (O.lg, O.vm, st)
        I(f"s_sub_u32 s{sCNT}, s{sCNT}, 1"); I(f"s_cmp_lg_u32 s{sCNT}, 0"); I(f"s_cbranch_scc1 L_oloop{tag}")
        d = LOOPN - LOOP0 - 4
        O.lg = sh(O.lg, d); O.vm = sh(O.vm, d); O.nbar = st[3] + (LOOPN - LOOP0)
        for p in range(LOOPN, NB + 2): o_phase(p)
        for z in range(5, 7): O.items(pack(z))
        O.wv(("WO", 0), ("WO", 1), ("WO", 2))
        O.wl0()
        for par in range(2):
            osubs.append(f"L_rare_o{tag}_{par}:")
            osubs.append("s_nop 7"); osubs.append(f"s_mov_b32 s{sA}, vcc_lo")
            osubs.extend([f"v_and_b32 v6, 15, v0", f"v_lshlrev_b32 v6, 2, v6", f"v_add_u32 v6, {ALPHA + par*448}, v6"])
            for z in range(7):
                osubs.extend([f"s_bitcmp1_b32 s{sA}, {z}", f"s_cbranch_scc0 L_rare_o{tag}_{par}_{z}", f"ds_read_b32 v{vF}, v6 offset:{z*64}", "s_waitcnt lgkmcnt(0)"])
                for sl in units(z):
                    osubs.extend([f"v_mul_f32 v{acc(z,sl)+r}, v{vF}, v{acc(z,sl)+r}" for r in range(4)])
                osubs.append(f"L_rare_o{tag}_{par}_{z}:")
            osubs.append("s_nop 1"); osubs.append(f"s_setpc_b64 s[{sRET}:{sRET+1}]")
    if bal:
        I(f"s_cmp_eq_u32 s{sWAVE}, 7"); I("s_cbranch_scc1 L_owave7")
        O7 = O.fork()
        owave(O, "a")
        I("s_branch L_ojoin")
        O7.lab("L_owave7")
        owave(O7, "b", chk=fuse)
        assert O7.nbar == O.nbar and O7.vm == O.vm and O7.lg == O.lg, (O7.vm, O.vm)
        O.lab("L_ojoin")
    else:
        owave(O, "a")
    O.bar()
    def fills_at(e, st):
        when, j = st
        if when == "pre":
            e.wv(*[("WO", f) for f in range(min(14, 2 * j + 3))])
            return []
        fl = ({0: [5], 1: [6, 7, 8], 2: [9, 10], 3: [11, 12], 4: [13]} if wosplit else {0: [5], 1: [6, 7, 8, 9, 10], 2: [11, 12], 3: [13]}).get(j, [])
        return [(lambda f=f, i=i: wo_piece(f, i)) for f in fl for i in range(4)]
    oproj(O, 1, fills_at)
    assert O.nbar == nbarS, (O.nbar, nbarS)
    if fuse: I("s_branch L_final")
    O.lab("L_done"); I("s_endpgm")
    for tag, site, kind in rare_s:
        O.lab(f"L_stub_s{tag}_{site}"); I(f"s_call_b64 s[{sRET}:{sRET+1}], L_rare_s{tag}_{kind}"); I(f"s_branch L_back_s{tag}_{site}")
    for l in subs: (O.lab(l[:-1]) if l.endswith(":") else I(l))
    for tag, site, par in rare_o:
        O.lab(f"L_stub_o{tag}{site}"); I(f"s_call_b64 s[{sRET}:{sRET+1}], L_rare_o{tag}_{par}"); I(f"s_branch L_back_o{tag}{site}")
    for l in osubs: (O.lab(l[:-1]) if l.endswith(":") else I(l))

    E.lab("L_code_end")
    R = Em(E.L); I = R.I
    R.L += kernel_head("reduce_kernel")
    I(f"s_cmp_ge_u32 s2, {1792//k2w}"); I("s_cbranch_scc1 L_rdone")
    I("s_load_dwordx2 s[8:9], s[0:1], 96"); I("s_load_dwordx2 s[12:13], s[0:1], 80")
    if dbgwg is not None:
        I("s_cmp_lg_u32 s2, 0"); I("s_cbranch_scc1 L_rnodbg")
        I("s_load_dwordx4 s[24:27], s[0:1], 88"); I("s_waitcnt lgkmcnt(0)")
        I("v_and_b32 v2, 15, v0"); I("v_lshlrev_b32 v2, 2, v2"); I(f"v_add_u32 v3, {128<<20}, v2")
        I("global_load_dword v4, v3, s[26:27]"); I("s_waitcnt vmcnt(0)"); I("global_store_dword v2, v4, s[24:25]"); I("s_waitcnt vmcnt(0)")
        R.lab("L_rnodbg")
    I("v_lshrrev_b32 v1, 6, v0"); I("v_and_b32 v0, 63, v0"); I("v_readfirstlane_b32 s3, v1")
    I(f"s_mul_i32 s4, s2, {k2w}"); I("s_add_u32 s4, s4, s3")
    I(f"s_mov_b32 s5, {(2**32 + 111)//112}"); I("s_mul_hi_u32 s5, s4, s5")
    I("s_mul_i32 s6, s5, 112"); I("s_sub_u32 s6, s4, s6")
    I(f"s_mul_i32 s17, s5, {16*PART_HEAD}"); I("s_lshl_b32 s18, s6, 10"); I("s_add_u32 s17, s17, s18")
    I("s_and_b32 s25, s6, 9"); I("s_cmp_eq_u32 s25, 9"); I("s_cselect_b32 s25, 3, 4")
    I("v_lshlrev_b32 v2, s25, v0")
    I("s_waitcnt lgkmcnt(0)")
    I("s_add_u32 s8, s8, s17"); I("s_addc_u32 s9, s9, 0"); I(f"s_mov_b32 s10, {15*PART_HEAD + 1024}"); I("s_mov_b32 s11, 0x20000")
    I(f"s_mov_b32 s14, {8*112*896*2}"); I("s_mov_b32 s15, 0x20000")
    I("s_mov_b32 s19, 0")
    for h in range(16):
        I(f"buffer_load_dwordx4 {vr(8+4*h,4)}, v2, s[8:11], s19 offen")
        if h < 15: I(f"s_add_u32 s19, s19, {PART_HEAD}")
    I("s_bfe_u32 s20, s6, 0x10003"); I("s_lshl_b32 s20, s20, 1"); I("s_and_b32 s21, s6, 1"); I("s_add_u32 s20, s20, s21")
    I("s_and_b32 s22, s5, 7"); I("s_mul_i32 s22, s22, 112"); I("s_lshl_b32 s23, s20, 5"); I("s_add_u32 s22, s22, s23")
    I("v_and_b32 v3, 15, v0"); I("v_add_u32 v3, s22, v3"); I("v_mul_u32_u24 v3, 1792, v3")
    I("s_lshr_b32 s22, s5, 3"); I("s_mul_i32 s22, s22, 896"); I("s_lshr_b32 s23, s6, 4"); I("s_lshl_b32 s23, s23, 7"); I("s_add_u32 s22, s22, s23")
    I("s_bfe_u32 s23, s6, 0x20001"); I("s_lshl_b32 s23, s23, 5"); I("s_add_u32 s22, s22, s23")
    I("v_lshrrev_b32 v4, 4, v0"); I("v_lshl_add_u32 v3, v4, 3, v3"); I("v_add_u32 v3, s22, v3")
    I(f"s_mov_b32 s24, {16*1792}")
    for h in range(16):
        I(f"s_waitcnt vmcnt({15-h})")
        for d_ in range(4):
            src = 8 + 4 * h + d_
            if h == 0:
                I(f"v_lshlrev_b32 v{72+2*d_}, 16, v{src}"); I(f"v_and_b32 v{73+2*d_}, 0xffff0000, v{src}")
            else:
                I(f"v_lshlrev_b32 v5, 16, v{src}"); I(f"v_and_b32 v6, 0xffff0000, v{src}")
                I(f"v_add_f32 v{72+2*d_}, v{72+2*d_}, v5"); I(f"v_add_f32 v{73+2*d_}, v{73+2*d_}, v6")
    for d_ in range(4): I(f"v_cvt_pk_bf16_f32 v{8+d_}, v{72+2*d_}, v{73+2*d_}")
    I("buffer_store_dwordx2 v[8:9], v3, s[12:15], 0 offen")
    I("s_cmp_eq_u32 s20, 3"); I("s_cbranch_scc1 L_rdone")
    I("buffer_store_dwordx2 v[10:11], v3, s[12:15], s24 offen")
    R.lab("L_rdone"); I("s_endpgm")
    if fuse: del E.L[E.L.index(".globl reduce_kernel"):]
    tail = ['.section .rodata,"a"'] + kd(NAME + "_kernel") + ([] if fuse else kd("reduce_kernel", vgpr=80, sgpr=32, accum=80))
    return "\n".join(head + E.L + tail) + "\n"

if __name__ == "__main__":
    kw = eval("dict(%s)" % (sys.argv[2] if len(sys.argv) > 2 else ""))
    open(sys.argv[1], "w").write(gen(**kw))
```

```python
import sys
from asmlib import *

NB = 64
PIECE = 1056
SLOT = 16 * PIECE
TSLOT = 0
def slot(i): return SLOT * (i + 1)
SPARE = slot(8)
FLG = SPARE + 8192
ALPHA = FLG + 256
RL = ALPHA + 1024
QSETS = [[slot(5), slot(6), slot(7)], [slot(2), slot(3), slot(4)], [TSLOT, slot(0), slot(1)]]
QBUF = [TSLOT, TSLOT + 8192, slot(0), slot(0) + 8192, slot(1), slot(1) + 8192, SPARE]
KRING = [2, 3, 5, 7]
VRING = [4, 6, 0, 1]
PART_HEAD = 114688
FOFF = 30 << 20

S_X, S_WQ, S_K, S_V, S_WO, S_PT = 8, 12, 16, 20, 24, 28
sWAVE, sW4, sROT, sWLDS, sKOFF, sVOFF, sCNT, sBLK, sC, sT = 32, 33, 34, 35, 36, 37, 38, 39, 40, 41
sA, sB2, sD, sE, sHH, sPOFF, sSTRIP, sXOFF, sXLDS = 42, 43, 44, 45, 46, 47, 48, 49, 52
sRET = 54
sROTO = 6
sDBG, sWS, sOUT, sPB, sHEAD = 56, 58, 50, 5, 4
sTS = 60

class Em:
    def __init__(self, L=None):
        self.L = [] if L is None else L; self.lg = []; self.vm = []; self.nbar = 0
    def fork(self):
        e = Em(self.L); e.lg = list(self.lg); e.vm = list(self.vm); e.nbar = self.nbar; return e
    def I(self, s): self.L.append("    " + s)
    def lab(self, s): self.L.append(s + ":")
    def lds(self, s, tag): self.I(s); self.lg.append(tag)
    def vmem(self, s, tag): self.I(s); self.vm.append(tag)
    def _need(self, q, tags):
        idx = [i for i, t in enumerate(q) if t in tags]
        return None if not idx else max(idx)
    def wl(self, *tags):
        i = self._need(self.lg, tags)
        if i is None: return
        n = min(len(self.lg) - i - 1, 15)
        self.I(f"s_waitcnt lgkmcnt({n})"); self.lg = self.lg[len(self.lg) - n:] if n else []
    def wv(self, *tags):
        i = self._need(self.vm, tags)
        if i is None: return
        n = min(len(self.vm) - i - 1, 63)
        self.I(f"s_waitcnt vmcnt({n})"); self.vm = self.vm[len(self.vm) - n:] if n else []
    def wst(self, tag):
        i = self._need(self.vm, (tag,))
        if i is None: return
        n = sum(1 for t in self.vm[i + 1:] if t[0] == "ST")
        self.I(f"s_waitcnt vmcnt({n})"); self.vm = self.vm[len(self.vm) - n:] if n else []
    def wl0(self):
        if self.lg: self.I("s_waitcnt lgkmcnt(0)")
        self.lg = []
    def wv0(self):
        if self.vm: self.I("s_waitcnt vmcnt(0)")
        self.vm = []
    def bar(self): self.I("s_barrier"); self.nbar += 1
    def items(self, its):
        for f in its:
            if callable(f): f()
            else: self.I(f)

class Base:
    def __init__(self, e, reg, cur=0): self.e, self.reg, self.cur = e, reg, cur
    def set(self, b):
        d = b - self.cur
        if d: self.e.I(f"v_add_u32 v{self.reg}, {d & 0xffffffff}, v{self.reg}")
        self.cur = b

def vr(a, n): return f"v[{a}:{a+n-1}]"
def mfma(d, a, b, c=None):
    return f"v_mfma_f32_16x16x32_bf16 {vr(d,4)}, {vr(a,4)}, {vr(b,4)}, " + ("0" if c == 0 else vr(d, 4))
def spread(nslots, fillers, first=0, last=None):
    last = nslots - 1 if last is None else last
    out = [[] for _ in range(nslots)]
    n = last - first + 1
    for i, f in enumerate(fillers): out[first + (i * n) // len(fillers)].append(f)
    return out

DOC = """
;
"""
def layout(early):
    global QBUF, KRING, VRING
    if early:
        QBUF = [slot(5), slot(5) + 8192, slot(6), slot(6) + 8192, slot(7), slot(7) + 8192, SPARE]
        KRING = [2, 3, 0, 5]; VRING = [4, 1, 6, 7]
    else:
        QBUF = [TSLOT, TSLOT + 8192, slot(0), slot(0) + 8192, slot(1), slot(1) + 8192, SPARE]
        KRING = [2, 3, 5, 7]; VRING = [4, 6, 0, 1]

def gen(diag=False, kvnt=True, stnt=False, hot=False, nodma=False, prio="S", sfirst=8, slast=28, dmafirst=0, dmalast=3, k1only=False, pstamp=False, qpre=2, nosm=False, noO=False, noS=False, nobar=False, ipf=False, stfl='sc1', pad=0, lalign=0, s3k=True, s3first=0, s3last=15, nkf=16, npf=7, nost=False, nowo=False, noqf=False, bal=True, qprio=1, balz=4, vz0=2, s3f=4, k2w=4, dbgwg=None, qtrace=False, otrace=False, qwho=None, wosplit=False, fuse=True, slp=2, L1=2, dot=True, ftrace=False, tlbw=False, qbar=False, oprio=0, outfl='', xfirst=True, keep='', fdel=1, early=False, qlag=True, qlf=2):
    NT_ = " nt" if kvnt else ""
    layout(early)
    def ntf(kind, j):
        return "" if f"{kind}{j % 4}" in keep else NT_
    E = Em(); I = E.I
    def stamp(e, k):
        if diag:
            e.I(f"s_memtime s[{sTS+4*k}:{sTS+4*k+1}]"); e.I(f"s_memrealtime s[{sTS+4*k+2}:{sTS+4*k+3}]")
    head = [l for l in open("ref.s.txt").read().split("\n") if l.startswith(";") and "@launch" not in l and "Override" not in l and "grid=ceil" not in l]
    if fuse: head += ["; @launch grid=(256,1,1) block=(512,1,1) lds=163840"]
    else: head += [f"; @launch kernel={NAME}_kernel grid=(256,1,1) block=(512,1,1) lds=163840"]
    if not k1only and not fuse: head += [f"; @launch kernel=reduce_kernel grid=({1792//k2w},1,1) block=({64*k2w},1,1) lds=0"]
    head += DOC.strip("\n").split("\n")
    head += ['.amdgcn_target "amdgcn-amd-amdhsa--gfx950"', ".text"]
    E.L += kernel_head(NAME + "_kernel")
    I("s_cmp_ge_u32 s2, 256"); I("s_cbranch_scc1 L_done")
    stamp(E, 0)
    I("s_bfe_u32 s6, s2, 0x10002"); I("s_and_b32 s3, s2, 3"); I("s_lshl_b32 s3, s3, 1"); I("s_bfe_u32 s4, s2, 0x10004"); I("s_add_u32 s3, s3, s4")
    I(f"s_bfe_u32 s{sHH}, s2, 0x10003"); I("s_lshr_b32 s7, s2, 5")
    I("s_lshl_b32 s5, s6, 3"); I("s_add_u32 s5, s5, s7"); I(f"s_mul_i32 s{sA}, s6, 40")
    I(f"s_add_u32 s50, s0, s{sA}"); I("s_addc_u32 s51, s1, 0")
    I(f"s_load_dwordx2 s[{S_X}:{S_X+1}], s[50:51], 0")
    I(f"s_load_dwordx2 s[{S_WQ}:{S_WQ+1}], s[50:51], 24")
    I(f"s_load_dwordx2 s[{S_K}:{S_K+1}], s[50:51], 8")
    I(f"s_load_dwordx2 s[{S_V}:{S_V+1}], s[50:51], 16")
    I(f"s_load_dwordx2 s[{S_WO}:{S_WO+1}], s[50:51], 32")
    I(f"s_load_dwordx2 s[{S_PT}:{S_PT+1}], s[0:1], 96")
    I(f"s_load_dwordx4 s[{sDBG}:{sDBG+3}], s[0:1], 88")
    I("v_lshrrev_b32 v1, 6, v0"); I("v_and_b32 v0, 63, v0")
    I(f"v_readfirstlane_b32 s{sWAVE}, v1")
    I(f"s_lshl_b32 s4, s3, 1"); I(f"s_add_u32 s4, s4, s{sHH}")
    I(f"s_bfe_u32 s{sA}, s2, 0x20003"); I(f"s_lshl_b32 s{sA}, s{sA}, 1"); I(f"s_add_u32 s{sROT}, s7, s{sA}")
    I(f"s_cmp_ge_u32 s{sROT}, 7"); I(f"s_cselect_b32 s{sA}, 7, 0"); I(f"s_sub_u32 s{sROT}, s{sROT}, s{sA}")
    I(f"s_and_b32 s{sW4}, s{sWAVE}, 3")
    I(f"s_cmp_eq_u32 s7, 7"); I(f"s_cselect_b32 s{sROTO}, 0, s7")
    I(f"s_mul_i32 s{sWLDS}, s{sW4}, {4*PIECE}")
    I(f"s_mov_b32 s{sC}, 0x3db8aa3b"); I(f"s_mov_b32 s{sT}, 0x41000000")
    vXD, vWD, vXA0, vXA1, vQA, t0, t1 = 1, 2, 3, 4, 5, 6, 7
    I(f"v_lshrrev_b32 v{vXD}, 3, v0"); I(f"v_mul_u32_u24 v{vXD}, 896, v{vXD}")
    I(f"v_lshrrev_b32 v{t0}, 4, v0"); I(f"v_lshlrev_b32 v{t0}, 1, v{t0}"); I(f"v_and_b32 v{t1}, 7, v0"); I(f"v_xor_b32 v{t0}, v{t0}, v{t1}")
    I(f"v_lshl_add_u32 v{vXD}, v{t0}, 4, v{vXD}")
    I(f"v_lshrrev_b32 v{t0}, 5, v0"); I(f"v_lshlrev_b32 v{vWD}, 15, v{t0}"); I(f"v_and_b32 v{t0}, 31, v0")
    I(f"v_lshl_add_u32 v{vWD}, v{t0}, 4, v{vWD}")
    I(f"s_lshl_b32 s{sPOFF}, s{sROT}, 19"); I(f"s_lshl_b32 s{sE}, s{sWAVE}, 16")
    I(f"s_lshl_b32 s{sXOFF}, s{sROT}, 7"); I(f"s_mul_i32 s{sB2}, s{sWAVE}, {16*896}")
    I(f"s_lshl_b32 s{sXLDS}, s{sWAVE}, 11")
    I(f"s_lshr_b32 s{sD}, s{sWAVE}, 2"); I(f"s_mul_i32 s{sD}, s{sD}, {SLOT}"); I(f"s_add_u32 s53, s{sD}, s{sWLDS}")
    I("s_waitcnt lgkmcnt(0)")
    if pstamp: stamp(E, 1)
    def srd(r, off_sgpr, size):
        I(f"s_add_u32 s{r}, s{r}, s{off_sgpr}"); I(f"s_addc_u32 s{r+1}, s{r+1}, 0")
        if isinstance(size, int): I(f"s_mov_b32 s{r+2}, {size}")
        else: I(size)
        I(f"s_mov_b32 s{r+3}, 0x20000")
    I(f"s_mul_i32 s{sA}, s7, 100352"); srd(S_X, sA, 100352)
    I(f"s_lshl_b32 s{sA}, s4, 9"); srd(S_WQ, sA, f"s_sub_u32 s{S_WQ+2}, {448*8192}, s{sA}")
    def qfill4_ops(e, i):
        xs, wa, wb = QSETS[i % 3]
        ops = []
        for j in range(4):
            def f(j=j):
                e.I(f"s_add_u32 m0, s{sXLDS}, {xs + j*1024}")
                e.I(f"s_add_u32 s{sD}, s{sXOFF}, s{sB2}" if j == 0 else f"s_add_u32 s{sD}, s{sD}, {8*896}")
                e.vmem(f"buffer_load_dwordx4 v{vXD}, s[{S_X}:{S_X+3}], s{sD} offen lds", ("QF", i))
            ops.append(f)
        for j in range(8):
            def f(j=j):
                e.I(f"s_add_u32 m0, s{sWLDS}, {wa + (j//4)*SLOT + (j%4)*PIECE}")
                e.I(f"s_add_u32 s{sD}, s{sPOFF}, s{sE}" if j == 0 else f"s_add_u32 s{sD}, s{sD}, {8192 if j != 4 else 29*8192}")
                e.vmem(f"buffer_load_dwordx4 v{vWD}, s[{S_WQ}:{S_WQ+3}], s{sD} offen lds", ("QF", i))
                if j == 7:
                    e.I(f"s_add_u32 s{sPOFF}, s{sPOFF}, {1<<19}"); e.I(f"s_add_u32 s{sXOFF}, s{sXOFF}, 128")
                    e.I(f"s_cmp_eq_u32 s{sXOFF}, 896"); e.I(f"s_cselect_b32 s{sPOFF}, 0, s{sPOFF}"); e.I(f"s_cselect_b32 s{sXOFF}, 0, s{sXOFF}")
            ops.append(f)
        return ops
    def qfill_ops(e, i):
        if noqf and i >= 3: return []
        xs, wa, wb = QSETS[i % 3]
        assert wb == wa + SLOT
        ops = []
        for j in range(2):
            def f(j=j):
                e.I(f"s_add_u32 m0, s{sXLDS}, {xs + j*1024}")
                e.I(f"s_add_u32 s{sD}, s{sXOFF}, s{sB2}" if j == 0 else f"s_add_u32 s{sD}, s{sD}, {8*896}")
                e.vmem(f"buffer_load_dwordx4 v{vXD}, s[{S_X}:{S_X+3}], s{sD} offen lds", ("QF", i))
            ops.append(f)
        for j in range(4):
            def f(j=j):
                e.I(f"s_add_u32 m0, s53, {wa + j*PIECE}")
                e.I(f"s_add_u32 s{sD}, s{sPOFF}, s{sE}" if j == 0 else f"s_add_u32 s{sD}, s{sD}, 8192")
                e.vmem(f"buffer_load_dwordx4 v{vWD}, s[{S_WQ}:{S_WQ+3}], s{sD} offen lds", ("QF", i))
                if j == 3:
                    e.I(f"s_add_u32 s{sPOFF}, s{sPOFF}, {1<<19}"); e.I(f"s_add_u32 s{sXOFF}, s{sXOFF}, 128")
                    e.I(f"s_cmp_eq_u32 s{sXOFF}, 896"); e.I(f"s_cselect_b32 s{sPOFF}, 0, s{sPOFF}"); e.I(f"s_cselect_b32 s{sXOFF}, 0, s{sXOFF}")
            ops.append(f)
        if not xfirst: ops = ops[2:5] + ops[:2] + ops[5:]
        return ops
    if fuse:
        I(f"s_cmp_lg_u32 s{sWAVE}, 0"); I("s_cbranch_scc1 L_noclr")
        I(f"s_lshl_b32 s{sA}, s5, 5"); I(f"s_add_u32 s{sA}, s{sA}, s4"); I(f"s_lshl_b32 s{sA}, s{sA}, 2"); I(f"s_add_u32 s{sA}, s{sA}, {FOFF}")
        I(f"v_mov_b32 v12, s{sA}"); I("v_mov_b32 v13, 0")
        I("s_mov_b64 exec, 1")
        I(f"global_store_dword v12, v13, s[{sWS}:{sWS+1}] sc1")
        I("s_mov_b64 exec, -1")
        E.lab("L_noclr")
    for _ in range(pad): I("s_nop 0")
    if ipf:
        I("s_getpc_b64 s[56:57]")
        E.lab("L_pc")
        I(f"s_lshl_b32 s{sA}, s{sWAVE}, 13"); I(f"v_lshl_add_u32 v{t0}, v0, 7, s{sA}")
        I(f"s_min_u32 s{sA}, s{sA}, s{sA}")
        I(f"v_min_u32 v{t0}, L_code_end-L_pc-4, v{t0}")
        E.vmem(f"global_load_dword v15, v{t0}, s[56:57]", ("QF", -1))
    for i in range(qpre):
        E.items(qfill_ops(E, i))
        if qbar and i == 0: E.bar()
    if pstamp: stamp(E, 2)
    I(f"s_lshl_b32 s{sA}, s7, 3"); I(f"s_add_u32 s{sA}, s{sA}, s3"); I(f"s_lshl_b32 s{sA}, s{sA}, 20")
    srd(S_K, sA, 1 << 20); srd(S_V, sA, 1 << 20)
    I(f"s_mul_i32 s{sA}, s4, {256*896}"); srd(S_WO, sA, 256 * 896)
    I(f"s_lshl_b32 s{sA}, s5, 4"); I(f"s_add_u32 s{sA}, s{sA}, s4"); I(f"s_mul_i32 s{sA}, s{sA}, {PART_HEAD}"); srd(S_PT, sA, PART_HEAD)
    I(f"v_and_b32 v{t0}, 15, v0"); I(f"v_lshlrev_b32 v{vXA0}, 7, v{t0}")
    I(f"v_and_b32 v{t0}, 6, v0"); I(f"v_lshrrev_b32 v{t1}, 4, v0"); I(f"v_xor_b32 v{t0}, v{t0}, v{t1}")
    I(f"v_lshl_add_u32 v{vXA0}, v{t0}, 4, v{vXA0}"); I(f"v_xor_b32 v{vXA1}, 64, v{vXA0}")
    def tr_lane(e, dst, tmp, sh):
        e.I(f"v_lshrrev_b32 v{dst}, 2, v0"); e.I(f"v_mul_u32_u24 v{dst}, {PIECE}, v{dst}")
        e.I(f"v_and_b32 v{tmp}, 3, v0"); e.I(f"v_lshl_add_u32 v{dst}, v{tmp}, {sh}, v{dst}")
    tr_lane(E, vQA, t0, 4)
    I(f"s_lshl_b32 s{sA}, s{sWAVE}, 6"); I(f"v_add_u32 v{vQA}, s{sA}, v{vQA}")
    vDM = 8
    I(f"v_and_b32 v{vDM}, 31, v0"); I(f"v_lshlrev_b32 v{vDM}, 4, v{vDM}")
    I(f"v_lshrrev_b32 v{t0}, 5, v0"); I(f"v_lshl_add_u32 v{vDM}, v{t0}, 13, v{vDM}")
    I(f"s_lshl_b32 s{sKOFF}, s{sW4}, 11"); I(f"s_add_u32 s{sVOFF}, s{sKOFF}, {32768 if early else 16384}"); I(f"s_add_u32 s{sKOFF}, s{sKOFF}, {0 if hot else 32768}")
    I(f"v_lshlrev_b32 v{t0}, 2, v0"); I(f"v_add_u32 v{t0}, {FLG}, v{t0}"); I(f"v_mov_b32 v{t1}, 0")
    E.lds(f"ds_write_b32 v{t0}, v{t1}", ("F",))
    def kv_piece(e, kind, j, i):
        if nodma and j >= 4: return
        ring, srd_, off = (KRING, S_K, sKOFF) if kind == "K" else (VRING, S_V, sVOFF)
        e.I(f"s_add_u32 m0, s{sWLDS}, {slot(ring[j % 4]) + i*(PIECE-512)}")
        e.I("s_nop 0")
        e.vmem(f"buffer_load_dwordx4 v{vDM}, s[{srd_}:{srd_+3}], s{off} offen offset:{i*512}{ntf(kind, j)} lds", (kind, j))
        if i == 3 and not hot: e.I(f"s_add_u32 s{off}, s{off}, 16384")
    QA, QB_, QACC, QP = 16, 32, 96, 152
    def qproj(E, lag):
        I = E.I
        bx0, bx1, bq = Base(E, vXA0), Base(E, vXA1), Base(E, vQA)
        def fin(z):
            ops = [f"v_pk_mul_f32 {vr(QACC+8*z+2*n,2)}, {vr(QACC+8*z+2*n,2)}, s[{sC}:{sC+1}] op_sel_hi:[1,0]" for n in range(4)]
            ops += [f"v_cvt_pk_bf16_f32 v{QP+4*z+n}, v{QACC+8*z+2*n}, v{QACC+8*z+2*n+1}" for n in range(4)]
            return ops + ([] if early else [lambda: wr(z)])
        bw = Base(E, t0)
        def wr(z):
            if not 0 <= QBUF[z] - bw.cur < 57000: bw.set(QBUF[z])
            E.lds(f"ds_write_b128 v{t0}, {vr(QP+4*z,4)} offset:{QBUF[z] - bw.cur}", ("QW",))
        def pair(i, kk, z):
            E.wl(("A", i, kk), ("B", i, kk, z))
            for b in range(2):
                I(mfma(QACC + 8 * z + 4 * b, QA + 8 * kk + 4 * b, QB_ + 28 * kk + 4 * z, 0 if (i == 0 and kk == 0) else None))
        def last_half(i):
            I(f"v_lshlrev_b32 v{t0}, 4, v0"); I(f"s_lshl_b32 s{sA}, s{sWAVE}, 10"); I(f"v_add_u32 v{t0}, s{sA}, v{t0}")
            for z in range(7):
                pair(i, 1, z)
                if z >= 3: E.items(fin(z - 3))
            if early:
                E.bar()
                for z in range(4): wr(z)
                for z in range(4, 7): E.items(fin(z)); wr(z)
            else:
                E.items(fin(4)); E.items(fin(5)); E.items(fin(6))
        if qprio is not None and lag == qprio: I("s_setprio 1")
        for i in range(7):
            E.wv(("QF", i))
            if i == 0 or lag: E.wl0()
            E.bar()
            if i == 0 and not lag and not otrace: stamp(E, 1)
            if qtrace and not lag and i >= 1: stamp(E, 1 + i)
            xs, wa, wb = QSETS[i % 3]
            bx0.set(xs); bx1.set(xs); bq.set(wa)
            def rda(kk):
                for b in range(2):
                    for u in range(2):
                        E.lds(f"ds_read_b64_tr_b16 {vr(QA+8*kk+4*b+2*u,2)}, v{vQA} offset:{kk*SLOT + u*512 + b*8}", ("A", i, kk))
            def rdb(kk, z):
                E.lds(f"ds_read_b128 {vr(QB_+28*kk+4*z,4)}, v{vXA1 if kk else vXA0} offset:{z*2048}", ("B", i, kk, z))
            fl = []
            if qlag:
                assert qpre == 2
                if i == 0 and lag:
                    I(f"s_lshl_b32 s{sXLDS}, s{sW4}, 12"); I(f"s_mul_i32 s{sB2}, s{sW4}, {32*896}"); I(f"s_lshl_b32 s{sE}, s{sW4}, 16")
                if i + 2 < 7 and lag: fl = qfill4_ops(E, i + 2)
            else:
                if i >= 1 and i + 2 < 7: fl = qfill_ops(E, i + 2)
                if i == 0 and qpre < 3: fl = sum([qfill_ops(E, k) for k in range(qpre, 3)], [])
            if i == 5 or (i == 6 and early):
                I(f"s_lshl_b32 s{sE}, s{sWAVE}, 10"); I(f"s_mul_i32 s{sB2}, s{sWAVE}, {2*PIECE}")
                def pre(kind, j, i_):
                    ring, srd_ = (KRING, S_K) if kind == "K" else (VRING, S_V)
                    I(f"s_add_u32 m0, s{sB2}, {slot(ring[j]) + i_*(PIECE-512)}")
                    I(f"s_add_u32 s{sD}, s{sE}, {j*16384}")
                    E.vmem(f"buffer_load_dwordx4 v{vDM}, s[{srd_}:{srd_+3}], s{sD} offen offset:{i_*512}{ntf(kind, j)} lds", (kind, j))
                fl = [(lambda k=k, j=j, i_=i_: pre(k, j, i_)) for k, j in ((("K", 0), ("K", 1), ("V", 0)) if i == 5 else (("K", 2), ("V", 1))) for i_ in range(2)]
            fil = spread(14, fl, 0, 9 if i < 6 else 5) if fl else [[] for _ in range(14)]
            if qlag and lag and fl and i < 5: fil = spread(14, fl, qlf, 13)
            if not lag:
                rda(0)
                for z in range(5): rdb(0, z)
                order = [(kk, z) for kk in range(2) for z in range(7)]
                for n, (kk, z) in enumerate(order):
                    if i == 6 and kk == 1: break
                    pair(i, kk, z)
                    if n == 0: rda(1)
                    if n + 5 < 14: rdb(*order[n + 5])
                    E.items(fil[n])
                if i == 6:
                    for z in range(5, 7): rdb(1, z)
                    last_half(6)
            else:
                n = 0
                if i > 0:
                    for z in range(7):
                        pair(i - 1, 1, z)
                        if z == 0: rda(0)
                        if z >= 1: rdb(0, z - 1)
                        E.items(fil[n]); n += 1
                    rdb(0, 6)
                else:
                    rda(0)
                    for z in range(7): rdb(0, z)
                rda(1)
                for z in range(7):
                    pair(i, 0, z)
                    rdb(1, z)
                    E.items(fil[n]); n += 1
                for k in range(n, 14): E.items(fil[k])
                if i == 6: last_half(6)
        if qprio is not None and lag == qprio: I("s_setprio 0")
        I(f"s_mov_b32 s{sBLK}, 0")
    I(f"s_cmp_ge_u32 s{sWAVE}, 4"); I("s_cbranch_scc1 L_owave")
    O = E.fork()
    qproj(E, 0)

    kfree = [slot(KRING[(NB - 4 + i) % 4]) for i in range(4)]
    vs = [slot(VRING[(NB - 4 + i) % 4]) for i in range(4)]
    WOSLOT = kfree + [vs[0], TSLOT, vs[1], vs[2], vs[3]]
    WOSLOT += [WOSLOT[i] for i in range(5)]
    OBUF = [vs[2], vs[2] + 8192, vs[3], vs[3] + 8192, vs[1], vs[1] + 8192, SPARE]
    def set_flag(e, level):
        e.I(f"s_lshl_b32 s{sA}, s{sPB}, 5"); e.I(f"s_add_u32 s{sA}, s{sA}, s{sHEAD}"); e.I(f"s_lshl_b32 s{sA}, s{sA}, 2"); e.I(f"s_add_u32 s{sA}, s{sA}, {FOFF}")
        e.I(f"v_mov_b32 v10, s{sA}"); e.I(f"v_mov_b32 v11, {level}")
        e.I("s_mov_b64 exec, 1")
        e.I(f"global_store_dword v10, v11, s[{sWS}:{sWS+1}] sc1")
        e.I("s_mov_b64 exec, -1")
    def oproj(e, role, fills_at):
        I = e.I
        vTA, vST, vT, RLR, AF, PK, ACC, BF = 1, 2, 3, 4, 16, 32, 40, 72
        zs = [0, 1, 2, 3] if role == 0 else [4, 5, 6]
        nz = len(zs)
        I(f"v_lshlrev_b32 v{vT}, 4, v0")
        I(f"v_and_b32 v{vST}, 15, v0"); I(f"v_lshlrev_b32 v{vST}, 2, v{vST}"); I(f"v_add_u32 v{vST}, {RL}, v{vST}")
        for a, z in enumerate(zs): e.lds(f"ds_read_b32 v{RLR+a}, v{vST} offset:{z*64}", ("R",))
        tr_lane(e, vTA, vST, 3)
        I(f"s_lshl_b32 s{sA}, s{sW4}, 5"); I(f"v_add_u32 v{vTA}, s{sA}, v{vTA}")
        I(f"s_lshl_b32 s{sA}, s{sWAVE}, 11"); I(f"v_add_u32 v{vST}, s{sA}, v{vT}")
        if role: I(f"v_lshlrev_b32 v8, 3, v0"); I(f"v_add_u32 v8, s{sA}, v8")
        I(f"s_mov_b32 s{sSTRIP}, s{sROTO}")
        ba, bb = Base(e, vTA), Base(e, vT)
        seq = [(j, kp) for j in range(7) for kp in range(8)]
        def rd(n):
            j, kp = seq[n]
            ba.set(WOSLOT[2 * j + kp // 4])
            for u in range(2):
                e.lds(f"ds_read_b64_tr_b16 {vr(AF+4*(n%4)+2*u,2)}, v{vTA} offset:{(2*(kp%4)+u)*128}", ("A", n))
        def rdB(kp):
            for a, z in enumerate(zs):
                base = OBUF[z - (z - zs[0]) % 2] if False else OBUF[z]
                lo = min(OBUF[zz] for zz in zs)
                if base - bb.cur < 0 or base - bb.cur + kp * 1024 > 65535: bb.set(base)
                e.lds(f"ds_read_b128 {vr(BF+32*a+4*kp,4)}, v{vT} offset:{base - bb.cur + kp*1024}", ("B", kp, a))
        def fin(j):
            acc = ACC + 16 * (j % 2)
            ops = []
            for a in range(nz):
                ops += [f"v_mul_f32 v{acc+4*a+r}, v{RLR+a}, v{acc+4*a+r}" for r in range(4)]
                ops += [f"v_cvt_pk_bf16_f32 v{PK+2*a+n}, v{acc+4*a+2*n}, v{acc+4*a+2*n+1}" for n in range(2)]
            def st():
                if nost: return
                fl = " nt" if stnt else ""
                if stfl: fl = " " + stfl
                I(f"s_lshl_b32 s{sA}, s{sSTRIP}, 14")
                I(f"s_add_u32 s{sSTRIP}, s{sSTRIP}, 1")
                e.vmem(f"buffer_store_dwordx4 {vr(PK,4)}, v{vST}, s[{S_PT}:{S_PT+3}], s{sA} offen{fl}", ("ST", j))
                if nz == 4: e.vmem(f"buffer_store_dwordx4 {vr(PK+4,4)}, v{vST}, s[{S_PT}:{S_PT+3}], s{sA} offen offset:1024{fl}", ("ST", j))
                else: e.vmem(f"buffer_store_dwordx2 {vr(PK+4,2)}, v8, s[{S_PT}:{S_PT+3}], s{sA} offen offset:1024{fl}", ("ST", j))
                I(f"s_cmp_eq_u32 s{sSTRIP}, 7"); I(f"s_cselect_b32 s{sSTRIP}, 0, s{sSTRIP}")
            ops.append(st)
            return ops
        I(f"s_setprio {1 if oprio == role else 0}")
        rd(0); rdB(0); rd(1); rdB(1); rd(2); rd(3)
        for j in range(7):
            fl = fin(j - 1) if j else []
            fil = spread(8 * nz, fl, 2 * nz, 8 * nz - 1) if fl else [[] for _ in range(8 * nz)]
            fl = fills_at(e, ("post", j))
            if fl:
                f2 = spread(8 * nz, fl, 0, min(8 * nz - 1, len(fl) - 1))
                fil = [a + b for a, b in zip(f2, fil)]
            for kp in range(8):
                n = 8 * j + kp
                for a in range(nz):
                    e.wl(("A", n), ("B", kp, a))
                    I(mfma(ACC + 16 * (j % 2) + 4 * a, AF + 4 * (n % 4), BF + 32 * a + 4 * kp, 0 if kp == 0 else None))
                    if a == nz - 1:
                        if j == 0 and kp + 2 < 8: rdB(kp + 2)
                        if n + 4 < len(seq): rd(n + 4)
                    e.items(fil[kp * nz + a])
            if j < 6:
                fills_at(e, ("pre", j + 1))
                if fuse and j == L1 + fdel: e.wst(("ST", L1 - 1))
                e.bar()
                if fuse and j == L1 + fdel and role == 0:
                    I(f"s_cmp_lg_u32 s{sWAVE}, 3"); I("s_cbranch_scc1 L_nofl1")
                    set_flag(e, 1)
                    e.lab("L_nofl1")
                if otrace and role == 0: stamp0(e, 2 + j)
        I("s_nop 7")
        e.wl(("R",))
        e.items(fin(6))

    npoll = [0]
    def spin(e, load, test):
        k = npoll[0]; npoll[0] += 1
        e.I(f"s_mov_b32 s{sE}, 0x8000")
        e.lab(f"L_poll{k}")
        e.I(load); e.I("s_waitcnt vmcnt(0)")
        for t in test: e.I(t)
        e.I(f"s_cbranch_scc1 L_polled{k}")
        e.I(f"s_sleep {slp}"); e.I(f"s_sub_u32 s{sE}, s{sE}, 1"); e.I(f"s_cmp_lg_u32 s{sE}, 0"); e.I(f"s_cbranch_scc1 L_poll{k}")
        e.lab(f"L_polled{k}")
    def final_reduce(e):
        I = e.I
        LD, AC = 80, 72
        I(f"s_load_dwordx2 s[12:13], s[0:1], 80")
        I(f"s_add_u32 s7, s{sROTO}, s{sWAVE}"); I("s_cmp_ge_u32 s7, 7"); I("s_cselect_b32 s16, 7, 0"); I("s_sub_u32 s7, s7, s16")
        I(f"s_lshl_b32 s7, s7, 4"); I(f"s_add_u32 s7, s7, s{sHEAD}")
        I(f"s_mul_i32 s17, s{sPB}, {16*PART_HEAD}"); I("s_lshl_b32 s18, s7, 10"); I("s_add_u32 s17, s17, s18")
        I(f"s_add_u32 s8, s{sWS}, s17"); I(f"s_addc_u32 s9, s{sWS+1}, 0"); I(f"s_mov_b32 s10, {15*PART_HEAD + 1024}"); I("s_mov_b32 s11, 0x20000")
        I("s_and_b32 s25, s7, 9"); I("s_cmp_eq_u32 s25, 9"); I("s_cselect_b32 s25, 3, 4")
        I("v_lshlrev_b32 v12, s25, v0")
        I(f"s_lshl_b32 s{sA}, s{sPB}, 7"); I(f"s_add_u32 s{sA}, s{sA}, {FOFF}")
        I("v_and_b32 v13, 15, v0"); I(f"v_lshl_add_u32 v14, v13, 2, s{sA}")
        def loads():
            I("s_mov_b32 s19, 0")
            for h in range(16):
                I(f"buffer_load_dwordx4 {vr(LD+4*h,4)}, v12, s[8:11], s19 offen sc1")
                if h < 15: I(f"s_add_u32 s19, s19, {PART_HEAD}")
        def wait_flags(level):
            spin(e, f"global_load_dword v15, v14, s[{sWS}:{sWS+1}] sc1", [f"v_cmp_gt_u32 vcc, {level}, v15", "s_nop 1", "s_cmp_eq_u64 vcc, 0"])
        I(f"s_cmp_ge_u32 s{sWAVE}, {L1}"); I("s_cbranch_scc1 L_late")
        wait_flags(1)
        if ftrace: stamp0(e, 4)
        loads()
        I("s_branch L_z1")
        e.lab("L_late")
        I("s_waitcnt vmcnt(0)")
        e.lab("L_z1")
        e.bar()
        if ftrace: stamp0(e, 5)
        I(f"s_cmp_lg_u32 s{sWAVE}, 7"); I("s_cbranch_scc1 L_nopoll")
        set_flag(e, 2)
        wait_flags(2)
        e.lab("L_nopoll")
        I("s_bfe_u32 s20, s7, 0x10003"); I("s_lshl_b32 s20, s20, 1"); I("s_and_b32 s21, s7, 1"); I("s_add_u32 s20, s20, s21")
        I(f"s_and_b32 s22, s{sPB}, 7"); I("s_mul_i32 s22, s22, 112"); I("s_lshl_b32 s23, s20, 5"); I("s_add_u32 s22, s22, s23")
        I("v_add_u32 v3, s22, v13"); I("v_mul_u32_u24 v3, 1792, v3")
        I(f"s_lshr_b32 s22, s{sPB}, 3"); I("s_mul_i32 s22, s22, 896"); I("s_lshr_b32 s23, s7, 4"); I("s_lshl_b32 s23, s23, 7"); I("s_add_u32 s22, s22, s23")
        I("s_bfe_u32 s23, s7, 0x20001"); I("s_lshl_b32 s23, s23, 5"); I("s_add_u32 s22, s22, s23")
        I("v_lshrrev_b32 v4, 4, v0"); I("v_lshl_add_u32 v3, v4, 3, v3"); I("v_add_u32 v3, s22, v3")
        I(f"s_mov_b32 s24, {16*1792}"); I("s_mov_b32 s26, 0x3f80"); I("s_mov_b32 s27, 0x3f800000")
        I("s_waitcnt lgkmcnt(0)")
        I(f"s_mov_b32 s14, {8*112*896*2}"); I("s_mov_b32 s15, 0x20000")
        def summ(tag):
            for h in range(16):
                I(f"s_waitcnt vmcnt({15-h})")
                for d_ in range(4):
                    src = LD + 4 * h + d_
                    if h == 0:
                        I(f"v_lshlrev_b32 v{AC+2*d_}, 16, v{src}"); I(f"v_and_b32 v{AC+1+2*d_}, 0xffff0000, v{src}")
                    elif dot:
                        I(f"v_dot2_f32_bf16 v{AC+2*d_}, v{src}, s26, v{AC+2*d_}"); I(f"v_dot2_f32_bf16 v{AC+1+2*d_}, v{src}, s27, v{AC+1+2*d_}")
                    else:
                        I(f"v_lshlrev_b32 v5, 16, v{src}"); I(f"v_and_b32 v6, 0xffff0000, v{src}")
                        I(f"v_add_f32 v{AC+2*d_}, v{AC+2*d_}, v5"); I(f"v_add_f32 v{AC+1+2*d_}, v{AC+1+2*d_}, v6")
            I("s_nop 2")
            for d_ in range(4): I(f"v_cvt_pk_bf16_f32 v{16+d_}, v{AC+2*d_}, v{AC+1+2*d_}")
            I(f"buffer_store_dwordx2 v[16:17], v3, s[12:15], 0 offen {outfl}")
            I("s_cmp_eq_u32 s20, 3"); I(f"s_cbranch_scc1 L_rlast{tag}")
            I(f"buffer_store_dwordx2 v[18:19], v3, s[12:15], s24 offen {outfl}")
            e.lab(f"L_rlast{tag}")
        e.bar()
        if ftrace: stamp0(e, 6)
        I(f"s_cmp_eq_u32 s{sWAVE}, 7"); I("s_cbranch_scc1 L_done")
        I(f"s_cmp_lt_u32 s{sWAVE}, {L1}"); I("s_cbranch_scc1 L_sum")
        loads()
        e.lab("L_sum")
        summ("")
        if ftrace: stamp0(e, 7)
        if diag: I("s_waitcnt vmcnt(0)"); I("s_barrier")

    LOOP0, LOOPN = 5, 61
    rare_s = []
    stamp0 = stamp
    if qtrace: stamp = lambda e, k: (stamp0(e, 8) if k == 2 else None)
    if otrace: stamp = lambda e, k: (stamp0(e, 8) if k == 8 else stamp0(e, 1) if k == 6 else None)
    if ftrace: stamp = lambda e, k: (stamp0(e, {6: 2, 7: 3, 8: 8}[k]) if k in (6, 7, 8) else None)
    if pstamp:
        stamp0 = stamp
        stamp = lambda e, k: (stamp0(e, k) if k == 8 else None)
    def swave(S, NZ, tag):
        I = S.I
        vKA, vPW, vAW, vL, vT0, vT1, vT2 = 1, 2, 3, 6, 9, 11, 13
        Q0, SA, SB, PO, EX, NM, KF = 16, 80, 96, 112, 120, 136, 144
        NKF = nkf
        I(f"v_lshlrev_b32 v{vPW}, 4, v0")
        if NZ == 2:
            I(f"s_mul_i32 s{sA}, s{sW4}, {SLOT}"); I(f"s_add_u32 s{sA}, s{sA}, {QBUF[0]}"); I(f"v_add_u32 v{vT0}, s{sA}, v{vPW}")
        else:
            I(f"v_add_u32 v{vT0}, {QBUF[6]}, v{vPW}")
        I(f"v_and_b32 v{vKA}, 15, v0"); I(f"v_mul_u32_u24 v{vKA}, {PIECE}, v{vKA}")
        I(f"v_lshrrev_b32 v{vT1}, 4, v0"); I(f"v_lshl_add_u32 v{vKA}, v{vT1}, 4, v{vKA}")
        I(f"s_lshl_b32 s{sA}, s{sW4}, 11"); I(f"v_add_u32 v{vPW}, s{sA}, v{vPW}")
        I(f"v_and_b32 v{vAW}, 15, v0"); I(f"v_lshlrev_b32 v{vAW}, 2, v{vAW}")
        I(f"s_lshl_b32 s{sA}, s{sW4}, 7"); I(f"s_add_u32 s{sA}, s{sA}, {ALPHA}"); I(f"v_add_u32 v{vAW}, s{sA}, v{vAW}")
        for a in range(NZ):
            I(f"v_mov_b32 v{vL+a}, 0")
            for r in range(4): I(f"v_mov_b32 v{NM+4*a+r}, 0")
        I(f"s_mov_b32 s{sT}, 0x40004000")
        if NZ == 1: I(f"s_mov_b32 s{sKOFF}, {49152 if early else 32768}")
        if prio == "S": I("s_setprio 1")
        S.wl0(); S.wv(("K", 0), ("K", 1))
        S.bar()
        stamp(S, 2)
        bk = Base(S, vKA)
        def rdk(p, n):
            bk.set(slot(KRING[p % 4]))
            S.lds(f"ds_read_b128 {vr(KF+4*(n%NKF),4)}, v{vKA} offset:{(n%2)*512 + (n//2)*64}", ("K", p, n))
        nv = 8 * NZ
        def exp_cvt(sp):
            ops = []
            for k in range(nv + 3):
                if k < nv: ops.append(f"v_exp_f32 v{EX+k}, v{sp+k}")
                if k >= 3 and k % 2 == 1: ops.append(f"v_cvt_pk_bf16_f32 v{PO+(k-3)//2}, v{EX+k-3}, v{EX+k-2}")
            return ops
        def rare_body(kind):
            sub = []
            par = int(kind[1])
            first = kind[0] == "f"
            sp, cur = (SA, SB) if par == 0 else (SB, SA)
            sub.append(f"L_rare_s{tag}_{kind}:")
            for a in range(NZ):
                b = sp + 8 * a
                sub.append(f"v_max3_f32 v{vT0+a}, v{b}, v{b+1}, v{b+2}")
                sub.append(f"v_max3_f32 v{vT0+a}, v{vT0+a}, v{b+3}, v{b+4}")
                sub.append(f"v_max3_f32 v{vT0+a}, v{vT0+a}, v{b+5}, v{b+6}")
                sub.append(f"v_max_f32 v{vT0+a}, v{vT0+a}, v{b+7}")
            for sw in ("v_permlane16_swap_b32", "v_permlane32_swap_b32"):
                for a in range(NZ): sub.append(f"v_mov_b32 v{vT1+a}, v{vT0+a}")
                sub.append("s_nop 1")
                for a in range(NZ): sub.append(f"{sw} v{vT0+a}, v{vT1+a}")
                for a in range(NZ): sub.append(f"v_max_f32 v{vT0+a}, v{vT0+a}, v{vT1+a}")
            for a in range(NZ):
                sub.append(f"v_sub_f32 v{vT0+a}, 0xc0e00000, v{vT0+a}")
                if not first:
                    sub.append(f"v_min_f32 v{vT0+a}, 0, v{vT0+a}")
                    sub.append(f"v_exp_f32 v{vT1+a}, v{vT0+a}")
                for r in range(4): sub.append(f"v_add_f32 v{NM+4*a+r}, v{NM+4*a+r}, v{vT0+a}")
                for r in range(8): sub.append(f"v_add_f32 v{sp+8*a+r}, v{sp+8*a+r}, v{vT0+a}")
                if kind[0] != "n":
                    for r in range(8): sub.append(f"v_add_f32 v{cur+8*a+r}, v{cur+8*a+r}, v{vT0+a}")
                if not first:
                    sub.append(f"v_mul_f32 v{vL+a}, v{vL+a}, v{vT1+a}")
                    sub.append(f"ds_write_b32 v{vAW}, v{vT1+a} offset:{par*448 + a*64}")
            sub += exp_cvt(sp)
            if not first:
                sub.append(f"s_lshl_b32 s{sA}, s{sW4}, 3"); sub.append(f"s_add_u32 s{sA}, s{sA}, {FLG + par*128}")
                sub.append(f"v_mov_b32 v{vT0}, s{sA}"); sub.append(f"v_mov_b32 v{vT2}, s{sBLK}")
                for a in range(NZ): sub.append(f"ds_write_b32 v{vT0}, v{vT2} offset:{4*a}")
            sub.append("s_waitcnt lgkmcnt(0)")
            sub.append(f"s_setpc_b64 s[{sRET}:{sRET+1}]")
            return sub
        def softmax_ops(p):
            sp = SB if p % 2 == 0 else SA
            par = (p - 1) % 2
            ops = exp_cvt(sp)
            ops.append(f"v_or3_b32 v{vT0}, v{PO}, v{PO+1}, v{PO+2}")
            nhead = None
            if NZ == 2:
                ops.append(f"v_or3_b32 v{vT1}, v{PO+3}, v{PO+4}, v{PO+5}")
                ops.append(f"v_or3_b32 v{vT0}, v{vT0}, v{PO+6}, v{PO+7}")
                ops.append(f"v_or_b32 v{vT0}, v{vT0}, v{vT1}")
            else:
                ops.append(f"v_or_b32 v{vT0}, v{vT0}, v{PO+3}")
            ops.append(f"v_and_b32 v{vT0}, s{sT}, v{vT0}")
            kind = ("q" if p < NB else "n") + str(par)
            def check():
                I(f"s_add_u32 s{sBLK}, s{sBLK}, 1")
                if p == 1:
                    for l in rare_body("f0")[1:-2]: I(l)
                else:
                    I(f"v_cmp_ne_u32 vcc, 0, v{vT0}")
                    I(f"s_cbranch_vccnz L_stub_s{tag}_{p}")
                    S.lab(f"L_back_s{tag}_{p}")
                    rare_s.append((tag, p, kind))
            if p == 1: ops = []
            ops.append(check)
            for a in range(NZ):
                ops.append(lambda a=a: S.lds(f"ds_write_b128 v{vPW}, {vr(PO+4*a,4)} offset:{par*7168 + a*1024}", ("P", a)))
            for k in range(nv): ops.append(f"v_add_f32 v{vL+(k%NZ)}, v{vL+(k%NZ)}, v{EX+8*(k%NZ)+k//NZ}")
            if nosm: return [o for o in ops if callable(o)][1:]
            return ops
        def k_piece(j, k):
            if nodma and j >= 4: return
            if k == 8: I(f"s_add_u32 s{sKOFF}, s{sKOFF}, 4096")
            I(f"s_mov_b32 m0, {slot(KRING[j % 4]) + k*PIECE - (k%8)*512}")
            I("s_nop 0")
            S.vmem(f"buffer_load_dwordx4 v{vDM}, s[{S_K}:{S_K+3}], s{sKOFF} offen offset:{(k%8)*512}{ntf('K', j)} lds", ("K", j))
            if k == 15: I(f"s_add_u32 s{sKOFF}, s{sKOFF}, {-4096 & 0xffffffff if hot else 12288}")
        loader = s3k and NZ == 1
        def s_phase(p):
            cur = SA if p % 2 == 0 else SB
            do_qk, do_sm = p < NB, p >= 1
            sm = softmax_ops(p) if do_sm else []
            if fuse and NZ == 2 and p == 1:
                assert not S.vm
                I(f"s_cmp_lg_u32 s{sWAVE}, 0"); I("s_cbranch_scc1 L_noclr2")
                I(f"s_lshr_b32 s{sD}, s2, 5"); I(f"s_lshl_b32 s{sD}, s{sD}, 5"); I(f"v_mov_b32 v14, s{sD}")
                I(f"s_and_b32 s{sA}, s2, 31"); I(f"s_lshl_b32 s{sA}, 1, s{sA}"); I(f"v_mov_b32 v15, s{sA}")
                I("s_mov_b64 exec, 1")
                I(f"global_atomic_or v14, v15, s[{sDBG}:{sDBG+1}] sc1")
                I("s_mov_b64 exec, -1")
                S.lab("L_noclr2")
            kf = []
            if loader:
                for j in (([] if p == 0 else [3, 4] if p == 1 else [p + 3]) if early else [2, 3] if p == 0 else [p + 3]):
                    if j < NB: kf += [(lambda j=j, k=k: k_piece(j, k)) for k in range(16)]
            if do_qk:
                if p == 0:
                    for a in range(NZ):
                        for ks in range(2): S.lds(f"ds_read_b128 {vr(Q0+32*a+4*ks,4)}, v{vT0} offset:{a*8192 + ks*1024}", ("Q", a, ks))
                if p in ((0, 3) if early else (0, 2)):
                    for n in range(NKF - 2): rdk(p, n)
                if p == 0:
                    for ks in range(2, 8):
                        for a in range(NZ): S.lds(f"ds_read_b128 {vr(Q0+32*a+4*ks,4)}, v{vT0} offset:{a*8192 + ks*1024}", ("Q", a, ks))
                ng = 16 * NZ
                f0, f1 = (sfirst, slast) if NZ == 2 else (s3f, 15)
                fil = spread(ng, sm, f0, f1) if sm else [[] for _ in range(ng)]
                if kf: fil = [a + b for a, b in zip(spread(ng, kf, s3first, s3last), fil)]
                for n in range(16):
                    ks, y = n // 2, n % 2
                    for a in range(NZ):
                        if y == 0: S.wl(("K", p, n), ("K", p, n + 1), ("Q", a, ks))
                        if not noS:
                            if ks == 0: I(f"v_mfma_f32_16x16x32_bf16 {vr(cur+8*a+4*y,4)}, {vr(KF+4*(n%NKF),4)}, {vr(Q0+32*a,4)}, {vr(NM+4*a,4)}")
                            else: I(mfma(cur + 8 * a + 4 * y, KF + 4 * (n % NKF), Q0 + 32 * a + 4 * ks))
                        if a == NZ - 1:
                            m = n + NKF - 2
                            if m < 16: rdk(p, m)
                            elif p + 1 < NB and p != (2 if early else 1): rdk(p + 1, m - 16)
                        S.items(fil[n * NZ + a])
                S.wl(("P", 0), ("P", 1))
                if p == 0: S.wv(("V", 0), *([("K", 2)] if early else []))
                if p == 1 and early: S.wv(("V", 1))
                if loader and p >= (2 if early else 1): S.wv(("K", p + 2), ("K", p + 1))
                if p + 1 >= NB: I("s_nop 7")
            else:
                S.items(sm)
                for sw in ("v_permlane16_swap_b32", "v_permlane32_swap_b32"):
                    for a in range(NZ): I(f"v_mov_b32 v{vT0+a}, v{vL+a}")
                    I("s_nop 1")
                    for a in range(NZ): I(f"{sw} v{vL+a}, v{vT0+a}")
                    for a in range(NZ): I(f"v_add_f32 v{vL+a}, v{vL+a}, v{vT0+a}")
                for a in range(NZ): I(f"v_rcp_f32 v{vL+a}, v{vL+a}")
                I("s_nop 0")
                for a in range(NZ): S.lds(f"ds_write_b32 v{vAW}, v{vL+a} offset:{RL-ALPHA + a*64}", ("P", 2))
                S.wl0()
            S.bar()
        for p in range(0, LOOP0): s_phase(p)
        stamp(S, 3)
        I(f"s_mov_b32 s{sCNT}, {(LOOPN-LOOP0)//4}")
        if lalign: S.L.append(f".p2align {lalign}")
        S.lab(f"L_sloop{tag}")
        st = (list(S.lg), bk.cur, S.nbar)
        stv = list(S.vm)
        for p in range(LOOP0, LOOP0 + 4): s_phase(p)
        assert [(t[0], t[1] - 4) for t in S.vm] == stv
        S.vm = [(t[0], t[1] + LOOPN - LOOP0 - 4) for t in S.vm]
        assert [(t[0], t[1] - 4, t[2]) for t in S.lg] == st[0] and bk.cur == st[1], (S.lg, st)
        I(f"s_sub_u32 s{sCNT}, s{sCNT}, 1"); I(f"s_cmp_lg_u32 s{sCNT}, 0"); I(f"s_cbranch_scc1 L_sloop{tag}")
        stamp(S, 4)
        S.lg = [(t[0], LOOPN, t[2]) for t in S.lg]
        S.nbar = st[2] + (LOOPN - LOOP0)
        for p in range(LOOPN, NB + 1): s_phase(p)
        stamp(S, 5)
        sub = []
        for kind in ("q0", "q1") + (("n1",) if NB % 2 == 0 else ("n0",)): sub += rare_body(kind)
        return sub
    I(f"s_cmp_eq_u32 s{sWAVE}, 3"); I("s_cbranch_scc1 L_swave3")
    S3 = E.fork()
    subs = swave(E, 2, "a")
    I("s_branch L_sjoin")
    S3.lab("L_swave3")
    subs += swave(S3, 1, "b")
    if fuse:
        S3.wv0()
        I(f"s_lshr_b32 s{sD}, s2, 5"); I(f"s_lshl_b32 s{sD}, s{sD}, 5"); I(f"v_mov_b32 v6, s{sD}")
        I(f"s_and_b32 s{sA}, s2, 4"); I(f"s_lshl_b32 s{sA}, 0x0f0f0f0f, s{sA}")
        spin(S3, f"global_load_dword v7, v6, s[{sDBG}:{sDBG+1}] sc1",
             [f"v_readfirstlane_b32 s{sD}, v7", f"s_and_b32 s{sD}, s{sD}, s{sA}", f"s_cmp_eq_u32 s{sD}, s{sA}"])
    assert S3.nbar == E.nbar
    E.lab("L_sjoin")
    S = E
    S.bar()
    stamp(S, 6)
    oproj(S, 0, lambda e, st: [])
    stamp(S, 7)
    nbarS = S.nbar
    if fuse:
        E.lab("L_final")
        final_reduce(S)
    if diag:
        I(f"s_cmp_lg_u32 s{sWAVE}, 0"); I("s_cbranch_scc1 L_done")
        I("s_waitcnt vmcnt(0)")
        stamp(S, 8)
        I("s_waitcnt lgkmcnt(0)")
        I("s_mov_b64 exec, 1")
        if dbgwg is not None:
            I(f"s_cmp_lg_u32 s2, {dbgwg}"); I("s_cbranch_scc1 L_done")
            I(f"v_mov_b32 v1, {128<<20}")
            for k in range(8):
                I(f"s_sub_u32 s{sA}, s{sTS+4*k+4}, s{sTS+4*k}"); I(f"v_mov_b32 v4, s{sA}")
                I(f"s_sub_u32 s{sA}, s{sTS+4*k+6}, s{sTS+4*k+2}"); I(f"v_mov_b32 v5, s{sA}")
                I(f"global_store_dword v1, v4, s[58:59] offset:{4*k}"); I(f"global_store_dword v1, v5, s[58:59] offset:{32+4*k}")
            I("s_endpgm")
        I(f"s_lshl_b32 s{sA}, s2, 7"); I(f"s_add_u32 s{sA}, s{sA}, {64<<20}"); I(f"v_mov_b32 v1, s{sA}")
        for k in range(9):
            I(f"v_mov_b32 v4, s{sTS+4*k}"); I(f"v_mov_b32 v5, s{sTS+4*k+2}")
            I(f"global_store_dwordx2 v1, v[4:5], s[58:59] offset:{8*k}")
            I("s_nop 1")
    I("s_endpgm")

    I = O.I
    O.lab("L_owave")
    qproj(O, 1)
    vVA, vPA, vWX, vFA, vF = 1, 2, 9, 4, 5
    VF, OA, OX, PF = 12, 68, 180, 228
    tr_lane(O, vVA, 6, 3)
    I(f"v_lshlrev_b32 v{vPA}, 4, v0")
    I(f"v_and_b32 v{vFA}, 7, v0"); I(f"v_lshlrev_b32 v{vFA}, 2, v{vFA}"); I(f"v_add_u32 v{vFA}, {FLG}, v{vFA}")
    I(f"v_lshrrev_b32 v{vWX}, 3, v0"); I(f"v_mul_u32_u24 v{vWX}, {16*896}, v{vWX}")
    I(f"v_and_b32 v6, 7, v0"); I(f"v_lshl_add_u32 v{vWX}, v6, 4, v{vWX}")
    I(f"s_mul_i32 s{sA}, s{sW4}, {4*896}"); I(f"v_add_u32 v{vWX}, s{sA}, v{vWX}")
    I(f"s_lshl_b32 s{sPOFF}, s{sROTO}, 7")
    def wo_piece(f, i, O=None):
        O = O or Ocur[0]
        if nowo and f >= 6: return
        O.I(f"s_add_u32 m0, s{sWLDS}, {WOSLOT[f] + i*PIECE}")
        O.I(f"s_add_u32 s{sD}, s{sPOFF}, {((f%2)*128 + i)*896}")
        O.vmem(f"buffer_load_dwordx4 v{vWX}, s[{S_WO}:{S_WO+3}], s{sD} offen lds", ("WO", f))
        if i == 3 and f % 2 == 1:
            O.I(f"s_add_u32 s{sPOFF}, s{sPOFF}, 128"); O.I(f"s_cmp_eq_u32 s{sPOFF}, 896"); O.I(f"s_cselect_b32 s{sPOFF}, 0, s{sPOFF}")
    Ocur = [O]
    O.wl0()
    if prio == "O": I("s_setprio 1")
    O.wv(("K", 0), ("K", 1))
    rare_o = []; osubs = []
    def owave(O, tag, chk=False):
        I = O.I
        big = bal and tag == "b"
        nsl = 7 if big else 4
        voff = [384 + 32 * sl for sl in range(4)] + [128 * e + 96 for e in range(3)] if big else [32 * sl for sl in range(4)]
        def units(z):
            if not bal: return [0, 1, 2, 3]
            if big: return [0, 1, 2, 3] + ([4, 5, 6] if z >= balz else [])
            return [0, 1, 2] + ([3] if z < balz else [])
        acc = lambda z, sl: OA + 16 * z + 4 * sl if sl < 4 else OX + 12 * (z - 3) + 4 * (sl - 4)
        if not big: I(f"s_lshl_b32 s{sA}, s{sW4}, 7"); I(f"v_add_u32 v{vVA}, s{sA}, v{vVA}")
        O.bar()
        bv = Base(O, vVA)
        def rdv1(j, k):
            sl, y = k // 2, k % 2
            bv.set(slot(VRING[j % 4]))
            O.lds(f"ds_read_b64_tr_b16 {vr(VF+28*(j%2)+4*sl+2*y,2)}, v{vVA} offset:{y*512 + voff[sl]}", ("V", j, sl))
        def rdv(j):
            for k in range(2 * nsl): rdv1(j, k)
        bo, b2 = Base(O, 6), Base(O, 7)
        def pack(z):
            us = units(z)
            ops = [f"v_cvt_pk_bf16_f32 v{acc(z,sl&~1 if sl < 4 else sl)+2*(sl&1 if sl < 4 else 0)+n}, v{acc(z,sl)+2*n}, v{acc(z,sl)+2*n+1}" for sl in us for n in range(2)]
            def wr():
                if not (0 <= OBUF[z] - bo.cur < 57000):
                    bo.set(OBUF[z])
                    if big: b2.set(OBUF[z])
                O.lds(f"ds_write_b128 v6, {vr(acc(z,0),4)} offset:{OBUF[z]-bo.cur}", ("W",))
                if 3 in us: O.lds(f"ds_write_b128 v6, {vr(acc(z,2),4)} offset:{OBUF[z]-bo.cur + 1024}", ("W",))
                else: O.lds(f"ds_write_b64 v6, {vr(acc(z,2),2)} offset:{OBUF[z]-bo.cur + 1024}", ("W",))
                for sl in us:
                    if sl >= 4: O.lds(f"ds_write_b64 v7, {vr(acc(z,sl),2)} offset:{OBUF[z]-b2.cur + (2*(sl-4)+1)*1024 + 8}", ("W",))
            return ops + [wr]
        def o_phase(p):
            j = p - 2
            pieces = []
            def kv(kind, jj): return [(lambda i=i: kv_piece(O, kind, jj, i)) for i in range(4)]
            if p == 0 and not s3k: pieces += kv("K", 2)
            if p + 1 < NB and not (early and p == 0): pieces += kv("V", p + 1)
            if p + 3 < NB:
                if not s3k: pieces += kv("K", p + 3)
            else:
                for f in {NB - 3: [0], NB - 2: [1], NB - 1: [2], NB: [3, 4], NB + 1: []}[p]:
                    pieces += [(lambda i=i, f=f: wo_piece(f, i, O)) for i in range(4)]
            if j < 0:
                O.items(pieces)
                if p == 0:
                    for r in range(OA, OA + 112 + (48 if big else 0)): I(f"v_mov_b32 v{r}, 0")
                if p == 1: rdv(0)
            else:
                par = j % 2
                def rdp(z): O.lds(f"ds_read_b128 {vr(PF+4*(z%npf),4)}, v{vPA} offset:{par*7168 + z*1024}", ("P", z))
                O.lds(f"ds_read_b32 v{vF}, v{vFA} offset:{par*128}", ("F",))
                for z in range(npf): rdp(z)
                I(f"s_add_u32 s{sBLK}, s{sBLK}, 1")
                fil = spread(8, pieces, dmafirst, dmalast) if pieces else [[] for _ in range(8)]
                O.items(fil[0])
                O.wl(("F",))
                I(f"v_cmp_eq_u32 vcc, s{sBLK}, v{vF}")
                I(f"s_cbranch_vccnz L_stub_o{tag}{p}")
                O.lab(f"L_back_o{tag}{p}")
                rare_o.append((tag, p, par))
                kv_ = 0
                if p == NB + 1:
                    I(f"s_lshl_b32 s{sA}, s{sW4}, 11"); I(f"v_add_u32 v6, s{sA}, v{vPA}"); I(f"v_mov_b32 v7, v{vPA}")
                for z in range(7):
                    if p == NB + 1 and z >= 2: O.items(pack(z - 2)) if z > 2 else None
                    for sl in units(z):
                        O.wl(("P", z), ("V", j, sl))
                        if not noO: I(mfma(acc(z, sl), VF + 28 * (j % 2) + 4 * sl, PF + 4 * (z % npf)))
                        if z >= vz0 and j + 1 < NB and kv_ < 2 * nsl: rdv1(j + 1, kv_); kv_ += 1
                    if p == NB + 1 and z == 2: O.items(pack(0))
                    if z + npf < 7: rdp(z + npf)
                    O.items(fil[z + 1])
            if p <= NB:
                if p == 0: O.wv(("V", 0), ("K", 2))
                else: O.wv(("K", p + 2), ("V", p), ("K", p + 1))
                if p == NB: O.wl0()
                O.bar()
        for p in range(0, LOOP0): o_phase(p)
        I(f"s_mov_b32 s{sCNT}, {(LOOPN-LOOP0)//4}")
        O.lab(f"L_oloop{tag}")
        st = (list(O.lg), list(O.vm), bv.cur, O.nbar)
        for p in range(LOOP0, LOOP0 + 4): o_phase(p)
        sh = lambda q, d: [(t[0], t[1] + d) + tuple(t[2:]) for t in q]
        assert sh(O.lg, -4) == st[0] and sh(O.vm, -4) == st[1] and bv.cur == st[2], (O.lg, O.vm, st)
        I(f"s_sub_u32 s{sCNT}, s{sCNT}, 1"); I(f"s_cmp_lg_u32 s{sCNT}, 0"); I(f"s_cbranch_scc1 L_oloop{tag}")
        d = LOOPN - LOOP0 - 4
        O.lg = sh(O.lg, d); O.vm = sh(O.vm, d); O.nbar = st[3] + (LOOPN - LOOP0)
        for p in range(LOOPN, NB + 2): o_phase(p)
        for z in range(5, 7): O.items(pack(z))
        O.wv(("WO", 0), ("WO", 1), ("WO", 2))
        O.wl0()
        for par in range(2):
            osubs.append(f"L_rare_o{tag}_{par}:")
            osubs.append("s_nop 7"); osubs.append(f"s_mov_b32 s{sA}, vcc_lo")
            osubs.extend([f"v_and_b32 v6, 15, v0", f"v_lshlrev_b32 v6, 2, v6", f"v_add_u32 v6, {ALPHA + par*448}, v6"])
            for z in range(7):
                osubs.extend([f"s_bitcmp1_b32 s{sA}, {z}", f"s_cbranch_scc0 L_rare_o{tag}_{par}_{z}", f"ds_read_b32 v{vF}, v6 offset:{z*64}", "s_waitcnt lgkmcnt(0)"])
                for sl in units(z):
                    osubs.extend([f"v_mul_f32 v{acc(z,sl)+r}, v{vF}, v{acc(z,sl)+r}" for r in range(4)])
                osubs.append(f"L_rare_o{tag}_{par}_{z}:")
            osubs.append("s_nop 1"); osubs.append(f"s_setpc_b64 s[{sRET}:{sRET+1}]")
    if bal:
        I(f"s_cmp_eq_u32 s{sWAVE}, 7"); I("s_cbranch_scc1 L_owave7")
        O7 = O.fork()
        owave(O, "a")
        I("s_branch L_ojoin")
        O7.lab("L_owave7")
        owave(O7, "b", chk=fuse)
        assert O7.nbar == O.nbar and O7.vm == O.vm and O7.lg == O.lg, (O7.vm, O.vm)
        O.lab("L_ojoin")
    else:
        owave(O, "a")
    O.bar()
    def fills_at(e, st):
        when, j = st
        if when == "pre":
            e.wv(*[("WO", f) for f in range(min(14, 2 * j + 3))])
            return []
        fl = ({0: [5], 1: [6, 7, 8], 2: [9, 10], 3: [11, 12], 4: [13]} if wosplit else {0: [5], 1: [6, 7, 8, 9, 10], 2: [11, 12], 3: [13]}).get(j, [])
        return [(lambda f=f, i=i: wo_piece(f, i)) for f in fl for i in range(4)]
    oproj(O, 1, fills_at)
    assert O.nbar == nbarS, (O.nbar, nbarS)
    if fuse: I("s_branch L_final")
    O.lab("L_done"); I("s_endpgm")
    for tag, site, kind in rare_s:
        O.lab(f"L_stub_s{tag}_{site}"); I(f"s_call_b64 s[{sRET}:{sRET+1}], L_rare_s{tag}_{kind}"); I(f"s_branch L_back_s{tag}_{site}")
    for l in subs: (O.lab(l[:-1]) if l.endswith(":") else I(l))
    for tag, site, par in rare_o:
        O.lab(f"L_stub_o{tag}{site}"); I(f"s_call_b64 s[{sRET}:{sRET+1}], L_rare_o{tag}_{par}"); I(f"s_branch L_back_o{tag}{site}")
    for l in osubs: (O.lab(l[:-1]) if l.endswith(":") else I(l))

    E.lab("L_code_end")
    R = Em(E.L); I = R.I
    R.L += kernel_head("reduce_kernel")
    I(f"s_cmp_ge_u32 s2, {1792//k2w}"); I("s_cbranch_scc1 L_rdone")
    I("s_load_dwordx2 s[8:9], s[0:1], 96"); I("s_load_dwordx2 s[12:13], s[0:1], 80")
    if dbgwg is not None:
        I("s_cmp_lg_u32 s2, 0"); I("s_cbranch_scc1 L_rnodbg")
        I("s_load_dwordx4 s[24:27], s[0:1], 88"); I("s_waitcnt lgkmcnt(0)")
        I("v_and_b32 v2, 15, v0"); I("v_lshlrev_b32 v2, 2, v2"); I(f"v_add_u32 v3, {128<<20}, v2")
        I("global_load_dword v4, v3, s[26:27]"); I("s_waitcnt vmcnt(0)"); I("global_store_dword v2, v4, s[24:25]"); I("s_waitcnt vmcnt(0)")
        R.lab("L_rnodbg")
    I("v_lshrrev_b32 v1, 6, v0"); I("v_and_b32 v0, 63, v0"); I("v_readfirstlane_b32 s3, v1")
    I(f"s_mul_i32 s4, s2, {k2w}"); I("s_add_u32 s4, s4, s3")
    I(f"s_mov_b32 s5, {(2**32 + 111)//112}"); I("s_mul_hi_u32 s5, s4, s5")
    I("s_mul_i32 s6, s5, 112"); I("s_sub_u32 s6, s4, s6")
    I(f"s_mul_i32 s17, s5, {16*PART_HEAD}"); I("s_lshl_b32 s18, s6, 10"); I("s_add_u32 s17, s17, s18")
    I("s_and_b32 s25, s6, 9"); I("s_cmp_eq_u32 s25, 9"); I("s_cselect_b32 s25, 3, 4")
    I("v_lshlrev_b32 v2, s25, v0")
    I("s_waitcnt lgkmcnt(0)")
    I("s_add_u32 s8, s8, s17"); I("s_addc_u32 s9, s9, 0"); I(f"s_mov_b32 s10, {15*PART_HEAD + 1024}"); I("s_mov_b32 s11, 0x20000")
    I(f"s_mov_b32 s14, {8*112*896*2}"); I("s_mov_b32 s15, 0x20000")
    I("s_mov_b32 s19, 0")
    for h in range(16):
        I(f"buffer_load_dwordx4 {vr(8+4*h,4)}, v2, s[8:11], s19 offen")
        if h < 15: I(f"s_add_u32 s19, s19, {PART_HEAD}")
    I("s_bfe_u32 s20, s6, 0x10003"); I("s_lshl_b32 s20, s20, 1"); I("s_and_b32 s21, s6, 1"); I("s_add_u32 s20, s20, s21")
    I("s_and_b32 s22, s5, 7"); I("s_mul_i32 s22, s22, 112"); I("s_lshl_b32 s23, s20, 5"); I("s_add_u32 s22, s22, s23")
    I("v_and_b32 v3, 15, v0"); I("v_add_u32 v3, s22, v3"); I("v_mul_u32_u24 v3, 1792, v3")
    I("s_lshr_b32 s22, s5, 3"); I("s_mul_i32 s22, s22, 896"); I("s_lshr_b32 s23, s6, 4"); I("s_lshl_b32 s23, s23, 7"); I("s_add_u32 s22, s22, s23")
    I("s_bfe_u32 s23, s6, 0x20001"); I("s_lshl_b32 s23, s23, 5"); I("s_add_u32 s22, s22, s23")
    I("v_lshrrev_b32 v4, 4, v0"); I("v_lshl_add_u32 v3, v4, 3, v3"); I("v_add_u32 v3, s22, v3")
    I(f"s_mov_b32 s24, {16*1792}")
    for h in range(16):
        I(f"s_waitcnt vmcnt({15-h})")
        for d_ in range(4):
            src = 8 + 4 * h + d_
            if h == 0:
                I(f"v_lshlrev_b32 v{72+2*d_}, 16, v{src}"); I(f"v_and_b32 v{73+2*d_}, 0xffff0000, v{src}")
            else:
                I(f"v_lshlrev_b32 v5, 16, v{src}"); I(f"v_and_b32 v6, 0xffff0000, v{src}")
                I(f"v_add_f32 v{72+2*d_}, v{72+2*d_}, v5"); I(f"v_add_f32 v{73+2*d_}, v{73+2*d_}, v6")
    for d_ in range(4): I(f"v_cvt_pk_bf16_f32 v{8+d_}, v{72+2*d_}, v{73+2*d_}")
    I("buffer_store_dwordx2 v[8:9], v3, s[12:15], 0 offen")
    I("s_cmp_eq_u32 s20, 3"); I("s_cbranch_scc1 L_rdone")
    I("buffer_store_dwordx2 v[10:11], v3, s[12:15], s24 offen")
    R.lab("L_rdone"); I("s_endpgm")
    if fuse: del E.L[E.L.index(".globl reduce_kernel"):]
    tail = ['.section .rodata,"a"'] + kd(NAME + "_kernel") + ([] if fuse else kd("reduce_kernel", vgpr=80, sgpr=32, accum=80))
    return "\n".join(head + E.L + tail) + "\n"

if __name__ == "__main__":
    kw = eval("dict(%s)" % (sys.argv[2] if len(sys.argv) > 2 else ""))
    open(sys.argv[1], "w").write(gen(**kw))
```

```python
import sys
from asmlib import *

NB = 64
PIECE = 1056
SLOT = 16 * PIECE
TSLOT = 0
def slot(i): return SLOT * (i + 1)
SPARE = slot(8)
FLG = SPARE + 8192
ALPHA = FLG + 256
RL = ALPHA + 1024
QSETS = [[slot(5), slot(6), slot(7)], [slot(2), slot(3), slot(4)], [TSLOT, slot(0), slot(1)]]
QBUF = [TSLOT, TSLOT + 8192, slot(0), slot(0) + 8192, slot(1), slot(1) + 8192, SPARE]
KRING = [2, 3, 5, 7]
VRING = [4, 6, 0, 1]
PART_HEAD = 114688
FOFF = 30 << 20

S_X, S_WQ, S_K, S_V, S_WO, S_PT = 8, 12, 16, 20, 24, 28
sWAVE, sW4, sROT, sWLDS, sKOFF, sVOFF, sCNT, sBLK, sC, sT = 32, 33, 34, 35, 36, 37, 38, 39, 40, 41
sA, sB2, sD, sE, sHH, sPOFF, sSTRIP, sXOFF, sXLDS = 42, 43, 44, 45, 46, 47, 48, 49, 52
sRET = 54
sROTO = 6
sDBG, sWS, sOUT, sPB, sHEAD = 56, 58, 50, 5, 4
sTS = 60

class Em:
    def __init__(self, L=None):
        self.L = [] if L is None else L; self.lg = []; self.vm = []; self.nbar = 0
    def fork(self):
        e = Em(self.L); e.lg = list(self.lg); e.vm = list(self.vm); e.nbar = self.nbar; return e
    def I(self, s): self.L.append("    " + s)
    def lab(self, s): self.L.append(s + ":")
    def lds(self, s, tag): self.I(s); self.lg.append(tag)
    def vmem(self, s, tag): self.I(s); self.vm.append(tag)
    def _need(self, q, tags):
        idx = [i for i, t in enumerate(q) if t in tags]
        return None if not idx else max(idx)
    def wl(self, *tags):
        i = self._need(self.lg, tags)
        if i is None: return
        n = min(len(self.lg) - i - 1, 15)
        self.I(f"s_waitcnt lgkmcnt({n})"); self.lg = self.lg[len(self.lg) - n:] if n else []
    def wv(self, *tags):
        i = self._need(self.vm, tags)
        if i is None: return
        n = min(len(self.vm) - i - 1, 63)
        self.I(f"s_waitcnt vmcnt({n})"); self.vm = self.vm[len(self.vm) - n:] if n else []
    def wst(self, tag):
        i = self._need(self.vm, (tag,))
        if i is None: return
        n = sum(1 for t in self.vm[i + 1:] if t[0] == "ST")
        self.I(f"s_waitcnt vmcnt({n})"); self.vm = self.vm[len(self.vm) - n:] if n else []
    def wl0(self):
        if self.lg: self.I("s_waitcnt lgkmcnt(0)")
        self.lg = []
    def wv0(self):
        if self.vm: self.I("s_waitcnt vmcnt(0)")
        self.vm = []
    def bar(self): self.I("s_barrier"); self.nbar += 1
    def items(self, its):
        for f in its:
            if f is None: continue
            if callable(f): f()
            else: self.I(f)

class Base:
    def __init__(self, e, reg, cur=0): self.e, self.reg, self.cur = e, reg, cur
    def set(self, b):
        d = b - self.cur
        if d: self.e.I(f"v_add_u32 v{self.reg}, {d & 0xffffffff}, v{self.reg}")
        self.cur = b

def vr(a, n): return f"v[{a}:{a+n-1}]"
def mfma(d, a, b, c=None):
    return f"v_mfma_f32_16x16x32_bf16 {vr(d,4)}, {vr(a,4)}, {vr(b,4)}, " + ("0" if c == 0 else vr(d, 4))
def spread(nslots, fillers, first=0, last=None):
    last = nslots - 1 if last is None else last
    out = [[] for _ in range(nslots)]
    n = last - first + 1
    for i, f in enumerate(fillers): out[first + (i * n) // len(fillers)].append(f)
    return out

DOC = """
;
"""
def layout(early):
    global QBUF, KRING, VRING
    if early:
        QBUF = [slot(5), slot(5) + 8192, slot(6), slot(6) + 8192, slot(7), slot(7) + 8192, SPARE]
        KRING = [2, 3, 0, 5]; VRING = [4, 1, 6, 7]
    else:
        QBUF = [TSLOT, TSLOT + 8192, slot(0), slot(0) + 8192, slot(1), slot(1) + 8192, SPARE]
        KRING = [2, 3, 5, 7]; VRING = [4, 6, 0, 1]

def gen(diag=False, kvnt=True, stnt=False, hot=False, nodma=False, prio="S", sfirst=8, slast=28, dmafirst=0, dmalast=3, k1only=False, pstamp=False, qpre=2, nosm=False, noO=False, noS=False, nobar=False, ipf=False, stfl='sc1', pad=0, lalign=0, s3k=True, s3first=0, s3last=15, nkf=16, npf=7, nost=False, nowo=False, noqf=False, bal=True, qprio=1, balz=4, vz0=2, s3f=4, k2w=4, dbgwg=None, qtrace=False, otrace=False, qwho=None, wosplit=False, fuse=True, slp=2, L1=2, dot=True, ftrace=False, tlbw=False, qbar=False, oprio=0, outfl='', xfirst=True, keep='', fdel=1, early=False, qlag=True, qlf=2):
    NT_ = " nt" if kvnt else ""
    layout(early)
    def ntf(kind, j):
        return "" if f"{kind}{j % 4}" in keep else NT_
    E = Em(); I = E.I
    def stamp(e, k):
        if diag:
            e.I(f"s_memtime s[{sTS+4*k}:{sTS+4*k+1}]"); e.I(f"s_memrealtime s[{sTS+4*k+2}:{sTS+4*k+3}]")
    head = [l for l in open("ref.s.txt").read().split("\n") if l.startswith(";") and "@launch" not in l and "Override" not in l and "grid=ceil" not in l]
    if fuse: head += ["; @launch grid=(256,1,1) block=(512,1,1) lds=163840"]
    else: head += [f"; @launch kernel={NAME}_kernel grid=(256,1,1) block=(512,1,1) lds=163840"]
    if not k1only and not fuse: head += [f"; @launch kernel=reduce_kernel grid=({1792//k2w},1,1) block=({64*k2w},1,1) lds=0"]
    head += DOC.strip("\n").split("\n")
    head += ['.amdgcn_target "amdgcn-amd-amdhsa--gfx950"', ".text"]
    E.L += kernel_head(NAME + "_kernel")
    I("s_cmp_ge_u32 s2, 256"); I("s_cbranch_scc1 L_done")
    stamp(E, 0)
    I("s_bfe_u32 s6, s2, 0x10002"); I("s_and_b32 s3, s2, 3"); I("s_lshl_b32 s3, s3, 1"); I("s_bfe_u32 s4, s2, 0x10004"); I("s_add_u32 s3, s3, s4")
    I(f"s_bfe_u32 s{sHH}, s2, 0x10003"); I("s_lshr_b32 s7, s2, 5")
    I("s_lshl_b32 s5, s6, 3"); I("s_add_u32 s5, s5, s7"); I(f"s_mul_i32 s{sA}, s6, 40")
    I(f"s_add_u32 s50, s0, s{sA}"); I("s_addc_u32 s51, s1, 0")
    I(f"s_load_dwordx2 s[{S_X}:{S_X+1}], s[50:51], 0")
    I(f"s_load_dwordx2 s[{S_WQ}:{S_WQ+1}], s[50:51], 24")
    I(f"s_load_dwordx2 s[{S_K}:{S_K+1}], s[50:51], 8")
    I(f"s_load_dwordx2 s[{S_V}:{S_V+1}], s[50:51], 16")
    I(f"s_load_dwordx2 s[{S_WO}:{S_WO+1}], s[50:51], 32")
    I(f"s_load_dwordx2 s[{S_PT}:{S_PT+1}], s[0:1], 96")
    I(f"s_load_dwordx4 s[{sDBG}:{sDBG+3}], s[0:1], 88")
    I("v_lshrrev_b32 v1, 6, v0"); I("v_and_b32 v0, 63, v0")
    I(f"v_readfirstlane_b32 s{sWAVE}, v1")
    I(f"s_lshl_b32 s4, s3, 1"); I(f"s_add_u32 s4, s4, s{sHH}")
    I(f"s_bfe_u32 s{sA}, s2, 0x20003"); I(f"s_lshl_b32 s{sA}, s{sA}, 1"); I(f"s_add_u32 s{sROT}, s7, s{sA}")
    I(f"s_cmp_ge_u32 s{sROT}, 7"); I(f"s_cselect_b32 s{sA}, 7, 0"); I(f"s_sub_u32 s{sROT}, s{sROT}, s{sA}")
    I(f"s_and_b32 s{sW4}, s{sWAVE}, 3")
    I(f"s_cmp_eq_u32 s7, 7"); I(f"s_cselect_b32 s{sROTO}, 0, s7")
    I(f"s_mul_i32 s{sWLDS}, s{sW4}, {4*PIECE}")
    I(f"s_mov_b32 s{sC}, 0x3db8aa3b"); I(f"s_mov_b32 s{sT}, 0x41000000")
    vXD, vWD, vXA0, vXA1, vQA, t0, t1 = 1, 2, 3, 4, 5, 6, 7
    I(f"v_lshrrev_b32 v{vXD}, 3, v0"); I(f"v_mul_u32_u24 v{vXD}, 896, v{vXD}")
    I(f"v_lshrrev_b32 v{t0}, 4, v0"); I(f"v_lshlrev_b32 v{t0}, 1, v{t0}"); I(f"v_and_b32 v{t1}, 7, v0"); I(f"v_xor_b32 v{t0}, v{t0}, v{t1}")
    I(f"v_lshl_add_u32 v{vXD}, v{t0}, 4, v{vXD}")
    I(f"v_lshrrev_b32 v{t0}, 5, v0"); I(f"v_lshlrev_b32 v{vWD}, 15, v{t0}"); I(f"v_and_b32 v{t0}, 31, v0")
    I(f"v_lshl_add_u32 v{vWD}, v{t0}, 4, v{vWD}")
    I(f"s_lshl_b32 s{sPOFF}, s{sROT}, 19"); I(f"s_lshl_b32 s{sE}, s{sWAVE}, 16")
    I(f"s_lshl_b32 s{sXOFF}, s{sROT}, 7"); I(f"s_mul_i32 s{sB2}, s{sWAVE}, {16*896}")
    I(f"s_lshl_b32 s{sXLDS}, s{sWAVE}, 11")
    I(f"s_lshr_b32 s{sD}, s{sWAVE}, 2"); I(f"s_mul_i32 s{sD}, s{sD}, {SLOT}"); I(f"s_add_u32 s53, s{sD}, s{sWLDS}")
    I("s_waitcnt lgkmcnt(0)")
    if pstamp: stamp(E, 1)
    def srd(r, off_sgpr, size):
        I(f"s_add_u32 s{r}, s{r}, s{off_sgpr}"); I(f"s_addc_u32 s{r+1}, s{r+1}, 0")
        if isinstance(size, int): I(f"s_mov_b32 s{r+2}, {size}")
        else: I(size)
        I(f"s_mov_b32 s{r+3}, 0x20000")
    I(f"s_mul_i32 s{sA}, s7, 100352"); srd(S_X, sA, 100352)
    I(f"s_lshl_b32 s{sA}, s4, 9"); srd(S_WQ, sA, f"s_sub_u32 s{S_WQ+2}, {448*8192}, s{sA}")
    def qfill4_ops(e, i):
        xs, wa, wb = QSETS[i % 3]
        ops = []
        for j in range(4):
            def f(j=j):
                e.I(f"s_add_u32 m0, s{sXLDS}, {xs + j*1024}")
                e.I(f"s_add_u32 s{sD}, s{sXOFF}, s{sB2}" if j == 0 else f"s_add_u32 s{sD}, s{sD}, {8*896}")
                e.vmem(f"buffer_load_dwordx4 v{vXD}, s[{S_X}:{S_X+3}], s{sD} offen lds", ("QF", i))
            ops.append(f)
        for j in range(8):
            def f(j=j):
                e.I(f"s_add_u32 m0, s{sWLDS}, {wa + (j//4)*SLOT + (j%4)*PIECE}")
                e.I(f"s_add_u32 s{sD}, s{sPOFF}, s{sE}" if j == 0 else f"s_add_u32 s{sD}, s{sD}, {8192 if j != 4 else 29*8192}")
                e.vmem(f"buffer_load_dwordx4 v{vWD}, s[{S_WQ}:{S_WQ+3}], s{sD} offen lds", ("QF", i))
                if j == 7:
                    e.I(f"s_add_u32 s{sPOFF}, s{sPOFF}, {1<<19}"); e.I(f"s_add_u32 s{sXOFF}, s{sXOFF}, 128")
                    e.I(f"s_cmp_eq_u32 s{sXOFF}, 896"); e.I(f"s_cselect_b32 s{sPOFF}, 0, s{sPOFF}"); e.I(f"s_cselect_b32 s{sXOFF}, 0, s{sXOFF}")
            ops.append(f)
        return ops
    def qfill_ops(e, i):
        if noqf and i >= 3: return []
        xs, wa, wb = QSETS[i % 3]
        assert wb == wa + SLOT
        ops = []
        for j in range(2):
            def f(j=j):
                e.I(f"s_add_u32 m0, s{sXLDS}, {xs + j*1024}")
                e.I(f"s_add_u32 s{sD}, s{sXOFF}, s{sB2}" if j == 0 else f"s_add_u32 s{sD}, s{sD}, {8*896}")
                e.vmem(f"buffer_load_dwordx4 v{vXD}, s[{S_X}:{S_X+3}], s{sD} offen lds", ("QF", i))
            ops.append(f)
        for j in range(4):
            def f(j=j):
                e.I(f"s_add_u32 m0, s53, {wa + j*PIECE}")
                e.I(f"s_add_u32 s{sD}, s{sPOFF}, s{sE}" if j == 0 else f"s_add_u32 s{sD}, s{sD}, 8192")
                e.vmem(f"buffer_load_dwordx4 v{vWD}, s[{S_WQ}:{S_WQ+3}], s{sD} offen lds", ("QF", i))
                if j == 3:
                    e.I(f"s_add_u32 s{sPOFF}, s{sPOFF}, {1<<19}"); e.I(f"s_add_u32 s{sXOFF}, s{sXOFF}, 128")
                    e.I(f"s_cmp_eq_u32 s{sXOFF}, 896"); e.I(f"s_cselect_b32 s{sPOFF}, 0, s{sPOFF}"); e.I(f"s_cselect_b32 s{sXOFF}, 0, s{sXOFF}")
            ops.append(f)
        if not xfirst: ops = ops[2:5] + ops[:2] + ops[5:]
        return ops
    if fuse:
        I(f"s_cmp_lg_u32 s{sWAVE}, 0"); I("s_cbranch_scc1 L_noclr")
        I(f"s_lshl_b32 s{sA}, s5, 5"); I(f"s_add_u32 s{sA}, s{sA}, s4"); I(f"s_lshl_b32 s{sA}, s{sA}, 2"); I(f"s_add_u32 s{sA}, s{sA}, {FOFF}")
        I(f"v_mov_b32 v12, s{sA}"); I("v_mov_b32 v13, 0")
        I("s_mov_b64 exec, 1")
        I(f"global_store_dword v12, v13, s[{sWS}:{sWS+1}] sc1")
        I("s_mov_b64 exec, -1")
        E.lab("L_noclr")
    for _ in range(pad): I("s_nop 0")
    if ipf:
        I("s_getpc_b64 s[56:57]")
        E.lab("L_pc")
        I(f"s_lshl_b32 s{sA}, s{sWAVE}, 13"); I(f"v_lshl_add_u32 v{t0}, v0, 7, s{sA}")
        I(f"s_min_u32 s{sA}, s{sA}, s{sA}")
        I(f"v_min_u32 v{t0}, L_code_end-L_pc-4, v{t0}")
        E.vmem(f"global_load_dword v15, v{t0}, s[56:57]", ("QF", -1))
    for i in range(qpre):
        E.items(qfill_ops(E, i))
        if qbar and i == 0: E.bar()
    if pstamp: stamp(E, 2)
    I(f"s_lshl_b32 s{sA}, s7, 3"); I(f"s_add_u32 s{sA}, s{sA}, s3"); I(f"s_lshl_b32 s{sA}, s{sA}, 20")
    srd(S_K, sA, 1 << 20); srd(S_V, sA, 1 << 20)
    I(f"s_mul_i32 s{sA}, s4, {256*896}"); srd(S_WO, sA, 256 * 896)
    I(f"s_lshl_b32 s{sA}, s5, 4"); I(f"s_add_u32 s{sA}, s{sA}, s4"); I(f"s_mul_i32 s{sA}, s{sA}, {PART_HEAD}"); srd(S_PT, sA, PART_HEAD)
    I(f"v_and_b32 v{t0}, 15, v0"); I(f"v_lshlrev_b32 v{vXA0}, 7, v{t0}")
    I(f"v_and_b32 v{t0}, 6, v0"); I(f"v_lshrrev_b32 v{t1}, 4, v0"); I(f"v_xor_b32 v{t0}, v{t0}, v{t1}")
    I(f"v_lshl_add_u32 v{vXA0}, v{t0}, 4, v{vXA0}"); I(f"v_xor_b32 v{vXA1}, 64, v{vXA0}")
    def tr_lane(e, dst, tmp, sh):
        e.I(f"v_lshrrev_b32 v{dst}, 2, v0"); e.I(f"v_mul_u32_u24 v{dst}, {PIECE}, v{dst}")
        e.I(f"v_and_b32 v{tmp}, 3, v0"); e.I(f"v_lshl_add_u32 v{dst}, v{tmp}, {sh}, v{dst}")
    tr_lane(E, vQA, t0, 4)
    I(f"s_lshl_b32 s{sA}, s{sWAVE}, 6"); I(f"v_add_u32 v{vQA}, s{sA}, v{vQA}")
    vDM = 8
    I(f"v_and_b32 v{vDM}, 31, v0"); I(f"v_lshlrev_b32 v{vDM}, 4, v{vDM}")
    I(f"v_lshrrev_b32 v{t0}, 5, v0"); I(f"v_lshl_add_u32 v{vDM}, v{t0}, 13, v{vDM}")
    I(f"s_lshl_b32 s{sKOFF}, s{sW4}, 11"); I(f"s_add_u32 s{sVOFF}, s{sKOFF}, {32768 if early else 16384}"); I(f"s_add_u32 s{sKOFF}, s{sKOFF}, {0 if hot else 32768}")
    I(f"v_lshlrev_b32 v{t0}, 2, v0"); I(f"v_add_u32 v{t0}, {FLG}, v{t0}"); I(f"v_mov_b32 v{t1}, 0")
    E.lds(f"ds_write_b32 v{t0}, v{t1}", ("F",))
    def kv_piece(e, kind, j, i):
        if nodma and j >= 4: return
        ring, srd_, off = (KRING, S_K, sKOFF) if kind == "K" else (VRING, S_V, sVOFF)
        e.I(f"s_add_u32 m0, s{sWLDS}, {slot(ring[j % 4]) + i*(PIECE-512)}")
        e.I("s_nop 0")
        e.vmem(f"buffer_load_dwordx4 v{vDM}, s[{srd_}:{srd_+3}], s{off} offen offset:{i*512}{ntf(kind, j)} lds", (kind, j))
        if i == 3 and not hot: e.I(f"s_add_u32 s{off}, s{off}, 16384")
    QA, QB_, QACC, QP = 16, 32, 96, 152
    def qproj(E, lag):
        I = E.I
        bx0, bx1, bq = Base(E, vXA0), Base(E, vXA1), Base(E, vQA)
        def fin(z):
            ops = [f"v_pk_mul_f32 {vr(QACC+8*z+2*n,2)}, {vr(QACC+8*z+2*n,2)}, s[{sC}:{sC+1}] op_sel_hi:[1,0]" for n in range(4)]
            ops += [f"v_cvt_pk_bf16_f32 v{QP+4*z+n}, v{QACC+8*z+2*n}, v{QACC+8*z+2*n+1}" for n in range(4)]
            return ops + ([] if early else [lambda: wr(z)])
        bw = Base(E, t0)
        def wr(z):
            if not 0 <= QBUF[z] - bw.cur < 57000: bw.set(QBUF[z])
            E.lds(f"ds_write_b128 v{t0}, {vr(QP+4*z,4)} offset:{QBUF[z] - bw.cur}", ("QW",))
        def pair(i, kk, z):
            E.wl(("A", i, kk), ("B", i, kk, z))
            for b in range(2):
                I(mfma(QACC + 8 * z + 4 * b, QA + 8 * kk + 4 * b, QB_ + 28 * kk + 4 * z, 0 if (i == 0 and kk == 0) else None))
        def last_half(i):
            I(f"v_lshlrev_b32 v{t0}, 4, v0"); I(f"s_lshl_b32 s{sA}, s{sWAVE}, 10"); I(f"v_add_u32 v{t0}, s{sA}, v{t0}")
            for z in range(7):
                pair(i, 1, z)
                if z >= 3: E.items(fin(z - 3))
            if early:
                E.bar()
                for z in range(4): wr(z)
                for z in range(4, 7): E.items(fin(z)); wr(z)
            else:
                E.items(fin(4)); E.items(fin(5)); E.items(fin(6))
        if qprio is not None and lag == qprio: I("s_setprio 1")
        for i in range(7):
            E.wv(("QF", i))
            if i == 0 or lag: E.wl0()
            E.bar()
            if i == 0 and not lag and not otrace: stamp(E, 1)
            if qtrace and not lag and i >= 1: stamp(E, 1 + i)
            xs, wa, wb = QSETS[i % 3]
            bx0.set(xs); bx1.set(xs); bq.set(wa)
            def rda(kk):
                for b in range(2):
                    for u in range(2):
                        E.lds(f"ds_read_b64_tr_b16 {vr(QA+8*kk+4*b+2*u,2)}, v{vQA} offset:{kk*SLOT + u*512 + b*8}", ("A", i, kk))
            def rdb(kk, z):
                E.lds(f"ds_read_b128 {vr(QB_+28*kk+4*z,4)}, v{vXA1 if kk else vXA0} offset:{z*2048}", ("B", i, kk, z))
            fl = []
            if qlag:
                assert qpre == 2
                if i == 0 and lag:
                    I(f"s_lshl_b32 s{sXLDS}, s{sW4}, 12"); I(f"s_mul_i32 s{sB2}, s{sW4}, {32*896}"); I(f"s_lshl_b32 s{sE}, s{sW4}, 16")
                if i + 2 < 7 and lag: fl = qfill4_ops(E, i + 2)
            else:
                if i >= 1 and i + 2 < 7: fl = qfill_ops(E, i + 2)
                if i == 0 and qpre < 3: fl = sum([qfill_ops(E, k) for k in range(qpre, 3)], [])
            if i == 5 or (i == 6 and early):
                I(f"s_lshl_b32 s{sE}, s{sWAVE}, 10"); I(f"s_mul_i32 s{sB2}, s{sWAVE}, {2*PIECE}")
                def pre(kind, j, i_):
                    ring, srd_ = (KRING, S_K) if kind == "K" else (VRING, S_V)
                    I(f"s_add_u32 m0, s{sB2}, {slot(ring[j]) + i_*(PIECE-512)}")
                    I(f"s_add_u32 s{sD}, s{sE}, {j*16384}")
                    E.vmem(f"buffer_load_dwordx4 v{vDM}, s[{srd_}:{srd_+3}], s{sD} offen offset:{i_*512}{ntf(kind, j)} lds", (kind, j))
                fl = [(lambda k=k, j=j, i_=i_: pre(k, j, i_)) for k, j in ((("K", 0), ("K", 1), ("V", 0)) if i == 5 else (("K", 2), ("V", 1))) for i_ in range(2)]
            fil = spread(14, fl, 0, 9 if i < 6 else 5) if fl else [[] for _ in range(14)]
            if qlag and lag and fl and i < 5: fil = spread(14, fl, qlf, 13)
            if not lag:
                rda(0)
                for z in range(5): rdb(0, z)
                order = [(kk, z) for kk in range(2) for z in range(7)]
                for n, (kk, z) in enumerate(order):
                    if i == 6 and kk == 1: break
                    pair(i, kk, z)
                    if n == 0: rda(1)
                    if n + 5 < 14: rdb(*order[n + 5])
                    E.items(fil[n])
                if i == 6:
                    for z in range(5, 7): rdb(1, z)
                    last_half(6)
            else:
                n = 0
                if i > 0:
                    for z in range(7):
                        pair(i - 1, 1, z)
                        if z == 0: rda(0)
                        if z >= 1: rdb(0, z - 1)
                        E.items(fil[n]); n += 1
                    rdb(0, 6)
                else:
                    rda(0)
                    for z in range(7): rdb(0, z)
                rda(1)
                for z in range(7):
                    pair(i, 0, z)
                    rdb(1, z)
                    E.items(fil[n]); n += 1
                for k in range(n, 14): E.items(fil[k])
                if i == 6: last_half(6)
        if qprio is not None and lag == qprio: I("s_setprio 0")
        I(f"s_mov_b32 s{sBLK}, 0")
    I(f"s_cmp_ge_u32 s{sWAVE}, 4"); I("s_cbranch_scc1 L_owave")
    O = E.fork()
    qproj(E, 0)

    kfree = [slot(KRING[(NB - 4 + i) % 4]) for i in range(4)]
    vs = [slot(VRING[(NB - 4 + i) % 4]) for i in range(4)]
    WOSLOT = kfree + [vs[0], TSLOT, vs[1], vs[2], vs[3]]
    WOSLOT += [WOSLOT[i] for i in range(5)]
    OBUF = [vs[2], vs[2] + 8192, vs[3], vs[3] + 8192, vs[1], vs[1] + 8192, SPARE]
    def set_flag(e, level):
        e.I(f"s_lshl_b32 s{sA}, s{sPB}, 5"); e.I(f"s_add_u32 s{sA}, s{sA}, s{sHEAD}"); e.I(f"s_lshl_b32 s{sA}, s{sA}, 2"); e.I(f"s_add_u32 s{sA}, s{sA}, {FOFF}")
        e.I(f"v_mov_b32 v10, s{sA}"); e.I(f"v_mov_b32 v11, {level}")
        e.I("s_mov_b64 exec, 1")
        e.I(f"global_store_dword v10, v11, s[{sWS}:{sWS+1}] sc1")
        e.I("s_mov_b64 exec, -1")
    def oproj(e, role, fills_at):
        I = e.I
        vTA, vST, vT, RLR, AF, PK, ACC, BF = 1, 2, 3, 4, 16, 32, 40, 72
        zs = [0, 1, 2, 3] if role == 0 else [4, 5, 6]
        nz = len(zs)
        I(f"v_lshlrev_b32 v{vT}, 4, v0")
        I(f"v_and_b32 v{vST}, 15, v0"); I(f"v_lshlrev_b32 v{vST}, 2, v{vST}"); I(f"v_add_u32 v{vST}, {RL}, v{vST}")
        for a, z in enumerate(zs): e.lds(f"ds_read_b32 v{RLR+a}, v{vST} offset:{z*64}", ("R",))
        tr_lane(e, vTA, vST, 3)
        I(f"s_lshl_b32 s{sA}, s{sW4}, 5"); I(f"v_add_u32 v{vTA}, s{sA}, v{vTA}")
        I(f"s_lshl_b32 s{sA}, s{sWAVE}, 11"); I(f"v_add_u32 v{vST}, s{sA}, v{vT}")
        if role: I(f"v_lshlrev_b32 v8, 3, v0"); I(f"v_add_u32 v8, s{sA}, v8")
        I(f"s_mov_b32 s{sSTRIP}, s{sROTO}")
        ba, bb = Base(e, vTA), Base(e, vT)
        seq = [(j, kp) for j in range(7) for kp in range(8)]
        def rd(n):
            j, kp = seq[n]
            ba.set(WOSLOT[2 * j + kp // 4])
            for u in range(2):
                e.lds(f"ds_read_b64_tr_b16 {vr(AF+4*(n%4)+2*u,2)}, v{vTA} offset:{(2*(kp%4)+u)*128}", ("A", n))
        def rdB(kp):
            for a, z in enumerate(zs):
                base = OBUF[z - (z - zs[0]) % 2] if False else OBUF[z]
                lo = min(OBUF[zz] for zz in zs)
                if base - bb.cur < 0 or base - bb.cur + kp * 1024 > 65535: bb.set(base)
                e.lds(f"ds_read_b128 {vr(BF+32*a+4*kp,4)}, v{vT} offset:{base - bb.cur + kp*1024}", ("B", kp, a))
        def fin(j):
            acc = ACC + 16 * (j % 2)
            ops = []
            for a in range(nz):
                ops += [f"v_mul_f32 v{acc+4*a+r}, v{RLR+a}, v{acc+4*a+r}" for r in range(4)]
                ops += [f"v_cvt_pk_bf16_f32 v{PK+2*a+n}, v{acc+4*a+2*n}, v{acc+4*a+2*n+1}" for n in range(2)]
            def st():
                if nost: return
                fl = " nt" if stnt else ""
                if stfl: fl = " " + stfl
                I(f"s_lshl_b32 s{sA}, s{sSTRIP}, 14")
                I(f"s_add_u32 s{sSTRIP}, s{sSTRIP}, 1")
                e.vmem(f"buffer_store_dwordx4 {vr(PK,4)}, v{vST}, s[{S_PT}:{S_PT+3}], s{sA} offen{fl}", ("ST", j))
                if nz == 4: e.vmem(f"buffer_store_dwordx4 {vr(PK+4,4)}, v{vST}, s[{S_PT}:{S_PT+3}], s{sA} offen offset:1024{fl}", ("ST", j))
                else: e.vmem(f"buffer_store_dwordx2 {vr(PK+4,2)}, v8, s[{S_PT}:{S_PT+3}], s{sA} offen offset:1024{fl}", ("ST", j))
                I(f"s_cmp_eq_u32 s{sSTRIP}, 7"); I(f"s_cselect_b32 s{sSTRIP}, 0, s{sSTRIP}")
            ops.append(st)
            return ops
        I(f"s_setprio {1 if oprio == role else 0}")
        rd(0); rdB(0); rd(1); rdB(1); rd(2); rd(3)
        for j in range(7):
            fl = fin(j - 1) if j else []
            fil = spread(8 * nz, fl, 2 * nz, 8 * nz - 1) if fl else [[] for _ in range(8 * nz)]
            fl = fills_at(e, ("post", j))
            if fl:
                f2 = spread(8 * nz, fl, 0, min(8 * nz - 1, len(fl) - 1))
                fil = [a + b for a, b in zip(f2, fil)]
            for kp in range(8):
                n = 8 * j + kp
                for a in range(nz):
                    e.wl(("A", n), ("B", kp, a))
                    I(mfma(ACC + 16 * (j % 2) + 4 * a, AF + 4 * (n % 4), BF + 32 * a + 4 * kp, 0 if kp == 0 else None))
                    if a == nz - 1:
                        if j == 0 and kp + 2 < 8: rdB(kp + 2)
                        if n + 4 < len(seq): rd(n + 4)
                    e.items(fil[kp * nz + a])
            if j < 6:
                fills_at(e, ("pre", j + 1))
                if fuse and j == L1 + fdel: e.wst(("ST", L1 - 1))
                e.bar()
                if fuse and j == L1 + fdel and role == 0:
                    I(f"s_cmp_lg_u32 s{sWAVE}, 3"); I("s_cbranch_scc1 L_nofl1")
                    set_flag(e, 1)
                    e.lab("L_nofl1")
                if otrace and role == 0: stamp0(e, 2 + j)
        I("s_nop 7")
        e.wl(("R",))
        e.items(fin(6))

    npoll = [0]
    def spin(e, load, test):
        k = npoll[0]; npoll[0] += 1
        e.I(f"s_mov_b32 s{sE}, 0x8000")
        e.lab(f"L_poll{k}")
        e.I(load); e.I("s_waitcnt vmcnt(0)")
        for t in test: e.I(t)
        e.I(f"s_cbranch_scc1 L_polled{k}")
        e.I(f"s_sleep {slp}"); e.I(f"s_sub_u32 s{sE}, s{sE}, 1"); e.I(f"s_cmp_lg_u32 s{sE}, 0"); e.I(f"s_cbranch_scc1 L_poll{k}")
        e.lab(f"L_polled{k}")
    def final_reduce(e):
        I = e.I
        LD, AC = 80, 72
        I(f"s_load_dwordx2 s[12:13], s[0:1], 80")
        I(f"s_add_u32 s7, s{sROTO}, s{sWAVE}"); I("s_cmp_ge_u32 s7, 7"); I("s_cselect_b32 s16, 7, 0"); I("s_sub_u32 s7, s7, s16")
        I(f"s_lshl_b32 s7, s7, 4"); I(f"s_add_u32 s7, s7, s{sHEAD}")
        I(f"s_mul_i32 s17, s{sPB}, {16*PART_HEAD}"); I("s_lshl_b32 s18, s7, 10"); I("s_add_u32 s17, s17, s18")
        I(f"s_add_u32 s8, s{sWS}, s17"); I(f"s_addc_u32 s9, s{sWS+1}, 0"); I(f"s_mov_b32 s10, {15*PART_HEAD + 1024}"); I("s_mov_b32 s11, 0x20000")
        I("s_and_b32 s25, s7, 9"); I("s_cmp_eq_u32 s25, 9"); I("s_cselect_b32 s25, 3, 4")
        I("v_lshlrev_b32 v12, s25, v0")
        I(f"s_lshl_b32 s{sA}, s{sPB}, 7"); I(f"s_add_u32 s{sA}, s{sA}, {FOFF}")
        I("v_and_b32 v13, 15, v0"); I(f"v_lshl_add_u32 v14, v13, 2, s{sA}")
        def loads():
            I("s_mov_b32 s19, 0")
            for h in range(16):
                I(f"buffer_load_dwordx4 {vr(LD+4*h,4)}, v12, s[8:11], s19 offen sc1")
                if h < 15: I(f"s_add_u32 s19, s19, {PART_HEAD}")
        def wait_flags(level):
            spin(e, f"global_load_dword v15, v14, s[{sWS}:{sWS+1}] sc1", [f"v_cmp_gt_u32 vcc, {level}, v15", "s_nop 4", "s_cmp_eq_u64 vcc, 0"])
        I(f"s_cmp_ge_u32 s{sWAVE}, {L1}"); I("s_cbranch_scc1 L_late")
        wait_flags(1)
        if ftrace: stamp0(e, 4)
        loads()
        I("s_branch L_z1")
        e.lab("L_late")
        I("s_waitcnt vmcnt(0)")
        e.lab("L_z1")
        e.bar()
        if ftrace: stamp0(e, 5)
        I(f"s_cmp_lg_u32 s{sWAVE}, 7"); I("s_cbranch_scc1 L_nopoll")
        set_flag(e, 2)
        wait_flags(2)
        e.lab("L_nopoll")
        I("s_bfe_u32 s20, s7, 0x10003"); I("s_lshl_b32 s20, s20, 1"); I("s_and_b32 s21, s7, 1"); I("s_add_u32 s20, s20, s21")
        I(f"s_and_b32 s22, s{sPB}, 7"); I("s_mul_i32 s22, s22, 112"); I("s_lshl_b32 s23, s20, 5"); I("s_add_u32 s22, s22, s23")
        I("v_add_u32 v3, s22, v13"); I("v_mul_u32_u24 v3, 1792, v3")
        I(f"s_lshr_b32 s22, s{sPB}, 3"); I("s_mul_i32 s22, s22, 896"); I("s_lshr_b32 s23, s7, 4"); I("s_lshl_b32 s23, s23, 7"); I("s_add_u32 s22, s22, s23")
        I("s_bfe_u32 s23, s7, 0x20001"); I("s_lshl_b32 s23, s23, 5"); I("s_add_u32 s22, s22, s23")
        I("v_lshrrev_b32 v4, 4, v0"); I("v_lshl_add_u32 v3, v4, 3, v3"); I("v_add_u32 v3, s22, v3")
        I(f"s_mov_b32 s24, {16*1792}"); I("s_mov_b32 s26, 0x3f80"); I("s_mov_b32 s27, 0x3f800000")
        I("s_waitcnt lgkmcnt(0)")
        I(f"s_mov_b32 s14, {8*112*896*2}"); I("s_mov_b32 s15, 0x20000")
        def summ(tag):
            for h in range(16):
                I(f"s_waitcnt vmcnt({15-h})")
                for d_ in range(4):
                    src = LD + 4 * h + d_
                    if h == 0:
                        I(f"v_lshlrev_b32 v{AC+2*d_}, 16, v{src}"); I(f"v_and_b32 v{AC+1+2*d_}, 0xffff0000, v{src}")
                    elif dot:
                        I(f"v_dot2_f32_bf16 v{AC+2*d_}, v{src}, s26, v{AC+2*d_}"); I(f"v_dot2_f32_bf16 v{AC+1+2*d_}, v{src}, s27, v{AC+1+2*d_}")
                    else:
                        I(f"v_lshlrev_b32 v5, 16, v{src}"); I(f"v_and_b32 v6, 0xffff0000, v{src}")
                        I(f"v_add_f32 v{AC+2*d_}, v{AC+2*d_}, v5"); I(f"v_add_f32 v{AC+1+2*d_}, v{AC+1+2*d_}, v6")
            I("s_nop 2")
            for d_ in range(4): I(f"v_cvt_pk_bf16_f32 v{16+d_}, v{AC+2*d_}, v{AC+1+2*d_}")
            I(f"buffer_store_dwordx2 v[16:17], v3, s[12:15], 0 offen {outfl}")
            I("s_cmp_eq_u32 s20, 3"); I(f"s_cbranch_scc1 L_rlast{tag}")
            I(f"buffer_store_dwordx2 v[18:19], v3, s[12:15], s24 offen {outfl}")
            e.lab(f"L_rlast{tag}")
        e.bar()
        if ftrace: stamp0(e, 6)
        I(f"s_cmp_eq_u32 s{sWAVE}, 7"); I("s_cbranch_scc1 L_done")
        I(f"s_cmp_lt_u32 s{sWAVE}, {L1}"); I("s_cbranch_scc1 L_sum")
        loads()
        e.lab("L_sum")
        summ("")
        if ftrace: stamp0(e, 7)
        if diag: I("s_waitcnt vmcnt(0)"); I("s_barrier")

    LOOP0, LOOPN = 5, 61
    rare_s = []
    stamp0 = stamp
    if qtrace: stamp = lambda e, k: (stamp0(e, 8) if k == 2 else None)
    if otrace: stamp = lambda e, k: (stamp0(e, 8) if k == 8 else stamp0(e, 1) if k == 6 else None)
    if ftrace: stamp = lambda e, k: (stamp0(e, {6: 2, 7: 3, 8: 8}[k]) if k in (6, 7, 8) else None)
    if pstamp:
        stamp0 = stamp
        stamp = lambda e, k: (stamp0(e, k) if k == 8 else None)
    def swave(S, NZ, tag):
        I = S.I
        vKA, vPW, vAW, vL, vT0, vT1, vT2 = 1, 2, 3, 6, 9, 11, 13
        Q0, SA, SB, PO, EX, NM, KF = 16, 80, 96, 112, 120, 136, 144
        NKF = nkf
        I(f"v_lshlrev_b32 v{vPW}, 4, v0")
        if NZ == 2:
            I(f"s_mul_i32 s{sA}, s{sW4}, {SLOT}"); I(f"s_add_u32 s{sA}, s{sA}, {QBUF[0]}"); I(f"v_add_u32 v{vT0}, s{sA}, v{vPW}")
        else:
            I(f"v_add_u32 v{vT0}, {QBUF[6]}, v{vPW}")
        I(f"v_and_b32 v{vKA}, 15, v0"); I(f"v_mul_u32_u24 v{vKA}, {PIECE}, v{vKA}")
        I(f"v_lshrrev_b32 v{vT1}, 4, v0"); I(f"v_lshl_add_u32 v{vKA}, v{vT1}, 4, v{vKA}")
        I(f"s_lshl_b32 s{sA}, s{sW4}, 11"); I(f"v_add_u32 v{vPW}, s{sA}, v{vPW}")
        I(f"v_and_b32 v{vAW}, 15, v0"); I(f"v_lshlrev_b32 v{vAW}, 2, v{vAW}")
        I(f"s_lshl_b32 s{sA}, s{sW4}, 7"); I(f"s_add_u32 s{sA}, s{sA}, {ALPHA}"); I(f"v_add_u32 v{vAW}, s{sA}, v{vAW}")
        for a in range(NZ):
            I(f"v_mov_b32 v{vL+a}, 0")
            for r in range(4): I(f"v_mov_b32 v{NM+4*a+r}, 0")
        I(f"s_mov_b32 s{sT}, 0x40004000")
        if NZ == 1: I(f"s_mov_b32 s{sKOFF}, {49152 if early else 32768}")
        if prio == "S": I("s_setprio 1")
        S.wl0(); S.wv(("K", 0), ("K", 1))
        S.bar()
        stamp(S, 2)
        bk = Base(S, vKA)
        def rdk(p, n):
            bk.set(slot(KRING[p % 4]))
            S.lds(f"ds_read_b128 {vr(KF+4*(n%NKF),4)}, v{vKA} offset:{(n%2)*512 + (n//2)*64}", ("K", p, n))
        nv = 8 * NZ
        def exp_cvt(sp):
            ops = []
            for k in range(nv + 3):
                if k < nv: ops.append(f"v_exp_f32 v{EX+k}, v{sp+k}")
                if k >= 3 and k % 2 == 1: ops.append(f"v_cvt_pk_bf16_f32 v{PO+(k-3)//2}, v{EX+k-3}, v{EX+k-2}")
            return ops
        def rare_body(kind):
            sub = []
            par = int(kind[1])
            first = kind[0] == "f"
            sp, cur = (SA, SB) if par == 0 else (SB, SA)
            sub.append(f"L_rare_s{tag}_{kind}:")
            for a in range(NZ):
                b = sp + 8 * a
                sub.append(f"v_max3_f32 v{vT0+a}, v{b}, v{b+1}, v{b+2}")
                sub.append(f"v_max3_f32 v{vT0+a}, v{vT0+a}, v{b+3}, v{b+4}")
                sub.append(f"v_max3_f32 v{vT0+a}, v{vT0+a}, v{b+5}, v{b+6}")
                sub.append(f"v_max_f32 v{vT0+a}, v{vT0+a}, v{b+7}")
            for sw in ("v_permlane16_swap_b32", "v_permlane32_swap_b32"):
                for a in range(NZ): sub.append(f"v_mov_b32 v{vT1+a}, v{vT0+a}")
                sub.append("s_nop 1")
                for a in range(NZ): sub.append(f"{sw} v{vT0+a}, v{vT1+a}")
                for a in range(NZ): sub.append(f"v_max_f32 v{vT0+a}, v{vT0+a}, v{vT1+a}")
            for a in range(NZ):
                sub.append(f"v_sub_f32 v{vT0+a}, 0xc0e00000, v{vT0+a}")
                if not first:
                    sub.append(f"v_min_f32 v{vT0+a}, 0, v{vT0+a}")
                    sub.append(f"v_exp_f32 v{vT1+a}, v{vT0+a}")
                for r in range(4): sub.append(f"v_add_f32 v{NM+4*a+r}, v{NM+4*a+r}, v{vT0+a}")
                for r in range(8): sub.append(f"v_add_f32 v{sp+8*a+r}, v{sp+8*a+r}, v{vT0+a}")
                if kind[0] != "n":
                    for r in range(8): sub.append(f"v_add_f32 v{cur+8*a+r}, v{cur+8*a+r}, v{vT0+a}")
                if not first:
                    sub.append(f"v_mul_f32 v{vL+a}, v{vL+a}, v{vT1+a}")
                    sub.append(f"ds_write_b32 v{vAW}, v{vT1+a} offset:{par*448 + a*64}")
            sub += exp_cvt(sp)
            if not first:
                sub.append(f"s_lshl_b32 s{sA}, s{sW4}, 3"); sub.append(f"s_add_u32 s{sA}, s{sA}, {FLG + par*128}")
                sub.append(f"v_mov_b32 v{vT0}, s{sA}"); sub.append(f"v_mov_b32 v{vT2}, s{sBLK}")
                for a in range(NZ): sub.append(f"ds_write_b32 v{vT0}, v{vT2} offset:{4*a}")
            sub.append("s_waitcnt lgkmcnt(0)")
            sub.append(f"s_setpc_b64 s[{sRET}:{sRET+1}]")
            return sub
        def softmax_ops(p):
            sp = SB if p % 2 == 0 else SA
            par = (p - 1) % 2
            ops = exp_cvt(sp)
            ops.append(f"v_or3_b32 v{vT0}, v{PO}, v{PO+1}, v{PO+2}")
            nhead = None
            if NZ == 2:
                ops.append(f"v_or3_b32 v{vT1}, v{PO+3}, v{PO+4}, v{PO+5}")
                ops.append(f"v_or3_b32 v{vT0}, v{vT0}, v{PO+6}, v{PO+7}")
                ops.append(f"v_or_b32 v{vT0}, v{vT0}, v{vT1}")
            else:
                ops.append(f"v_or_b32 v{vT0}, v{vT0}, v{PO+3}")
            ops.append(f"v_and_b32 v{vT0}, s{sT}, v{vT0}")
            kind = ("q" if p < NB else "n") + str(par)
            def check():
                I(f"s_add_u32 s{sBLK}, s{sBLK}, 1")
                if p == 1:
                    for l in rare_body("f0")[1:-2]: I(l)
                else:
                    I(f"s_cbranch_vccnz L_stub_s{tag}_{p}")
                    S.lab(f"L_back_s{tag}_{p}")
                    rare_s.append((tag, p, kind))
            if p == 1: ops = []
            else:
                ops.append(f"v_cmp_ne_u32 vcc, 0, v{vT0}")
                ops += [None] * 3
            ops.append(check)
            for a in range(NZ):
                ops.append(lambda a=a: S.lds(f"ds_write_b128 v{vPW}, {vr(PO+4*a,4)} offset:{par*7168 + a*1024}", ("P", a)))
            for k in range(nv): ops.append(f"v_add_f32 v{vL+(k%NZ)}, v{vL+(k%NZ)}, v{EX+8*(k%NZ)+k//NZ}")
            if nosm: return [o for o in ops if callable(o)][1:]
            return ops
        def k_piece(j, k):
            if nodma and j >= 4: return
            if k == 8: I(f"s_add_u32 s{sKOFF}, s{sKOFF}, 4096")
            I(f"s_mov_b32 m0, {slot(KRING[j % 4]) + k*PIECE - (k%8)*512}")
            I("s_nop 0")
            S.vmem(f"buffer_load_dwordx4 v{vDM}, s[{S_K}:{S_K+3}], s{sKOFF} offen offset:{(k%8)*512}{ntf('K', j)} lds", ("K", j))
            if k == 15: I(f"s_add_u32 s{sKOFF}, s{sKOFF}, {-4096 & 0xffffffff if hot else 12288}")
        loader = s3k and NZ == 1
        def s_phase(p):
            cur = SA if p % 2 == 0 else SB
            do_qk, do_sm = p < NB, p >= 1
            sm = softmax_ops(p) if do_sm else []
            if fuse and NZ == 2 and p == 1:
                assert not S.vm
                I(f"s_cmp_lg_u32 s{sWAVE}, 0"); I("s_cbranch_scc1 L_noclr2")
                I(f"s_lshr_b32 s{sD}, s2, 5"); I(f"s_lshl_b32 s{sD}, s{sD}, 5"); I(f"v_mov_b32 v14, s{sD}")
                I(f"s_and_b32 s{sA}, s2, 31"); I(f"s_lshl_b32 s{sA}, 1, s{sA}"); I(f"v_mov_b32 v15, s{sA}")
                I("s_mov_b64 exec, 1")
                I(f"global_atomic_or v14, v15, s[{sDBG}:{sDBG+1}] sc1")
                I("s_mov_b64 exec, -1")
                S.lab("L_noclr2")
            kf = []
            if loader:
                for j in (([] if p == 0 else [3, 4] if p == 1 else [p + 3]) if early else [2, 3] if p == 0 else [p + 3]):
                    if j < NB: kf += [(lambda j=j, k=k: k_piece(j, k)) for k in range(16)]
            if do_qk:
                if p == 0:
                    for a in range(NZ):
                        for ks in range(2): S.lds(f"ds_read_b128 {vr(Q0+32*a+4*ks,4)}, v{vT0} offset:{a*8192 + ks*1024}", ("Q", a, ks))
                if p in ((0, 3) if early else (0, 2)):
                    for n in range(NKF - 2): rdk(p, n)
                if p == 0:
                    for ks in range(2, 8):
                        for a in range(NZ): S.lds(f"ds_read_b128 {vr(Q0+32*a+4*ks,4)}, v{vT0} offset:{a*8192 + ks*1024}", ("Q", a, ks))
                ng = 16 * NZ
                f0, f1 = (sfirst, slast) if NZ == 2 else (s3f, 15)
                fil = spread(ng, sm, f0, f1) if sm else [[] for _ in range(ng)]
                if kf: fil = [a + b for a, b in zip(spread(ng, kf, s3first, s3last), fil)]
                for n in range(16):
                    ks, y = n // 2, n % 2
                    for a in range(NZ):
                        if y == 0: S.wl(("K", p, n), ("K", p, n + 1), ("Q", a, ks))
                        if not noS:
                            if ks == 0: I(f"v_mfma_f32_16x16x32_bf16 {vr(cur+8*a+4*y,4)}, {vr(KF+4*(n%NKF),4)}, {vr(Q0+32*a,4)}, {vr(NM+4*a,4)}")
                            else: I(mfma(cur + 8 * a + 4 * y, KF + 4 * (n % NKF), Q0 + 32 * a + 4 * ks))
                        if a == NZ - 1:
                            m = n + NKF - 2
                            if m < 16: rdk(p, m)
                            elif p + 1 < NB and p != (2 if early else 1): rdk(p + 1, m - 16)
                        S.items(fil[n * NZ + a])
                S.wl(("P", 0), ("P", 1))
                if p == 0: S.wv(("V", 0), *([("K", 2)] if early else []))
                if p == 1 and early: S.wv(("V", 1))
                if loader and p >= (2 if early else 1): S.wv(("K", p + 2), ("K", p + 1))
                if p + 1 >= NB: I("s_nop 7")
            else:
                S.items(sm)
                for sw in ("v_permlane16_swap_b32", "v_permlane32_swap_b32"):
                    for a in range(NZ): I(f"v_mov_b32 v{vT0+a}, v{vL+a}")
                    I("s_nop 1")
                    for a in range(NZ): I(f"{sw} v{vL+a}, v{vT0+a}")
                    for a in range(NZ): I(f"v_add_f32 v{vL+a}, v{vL+a}, v{vT0+a}")
                for a in range(NZ): I(f"v_rcp_f32 v{vL+a}, v{vL+a}")
                I("s_nop 0")
                for a in range(NZ): S.lds(f"ds_write_b32 v{vAW}, v{vL+a} offset:{RL-ALPHA + a*64}", ("P", 2))
                S.wl0()
            S.bar()
        for p in range(0, LOOP0): s_phase(p)
        stamp(S, 3)
        I(f"s_mov_b32 s{sCNT}, {(LOOPN-LOOP0)//4}")
        if lalign: S.L.append(f".p2align {lalign}")
        S.lab(f"L_sloop{tag}")
        st = (list(S.lg), bk.cur, S.nbar)
        stv = list(S.vm)
        for p in range(LOOP0, LOOP0 + 4): s_phase(p)
        assert [(t[0], t[1] - 4) for t in S.vm] == stv
        S.vm = [(t[0], t[1] + LOOPN - LOOP0 - 4) for t in S.vm]
        assert [(t[0], t[1] - 4, t[2]) for t in S.lg] == st[0] and bk.cur == st[1], (S.lg, st)
        I(f"s_sub_u32 s{sCNT}, s{sCNT}, 1"); I(f"s_cmp_lg_u32 s{sCNT}, 0"); I(f"s_cbranch_scc1 L_sloop{tag}")
        stamp(S, 4)
        S.lg = [(t[0], LOOPN, t[2]) for t in S.lg]
        S.nbar = st[2] + (LOOPN - LOOP0)
        for p in range(LOOPN, NB + 1): s_phase(p)
        stamp(S, 5)
        sub = []
        for kind in ("q0", "q1") + (("n1",) if NB % 2 == 0 else ("n0",)): sub += rare_body(kind)
        return sub
    I(f"s_cmp_eq_u32 s{sWAVE}, 3"); I("s_cbranch_scc1 L_swave3")
    S3 = E.fork()
    subs = swave(E, 2, "a")
    I("s_branch L_sjoin")
    S3.lab("L_swave3")
    subs += swave(S3, 1, "b")
    if fuse:
        S3.wv0()
        I(f"s_lshr_b32 s{sD}, s2, 5"); I(f"s_lshl_b32 s{sD}, s{sD}, 5"); I(f"v_mov_b32 v6, s{sD}")
        I(f"s_and_b32 s{sA}, s2, 4"); I(f"s_lshl_b32 s{sA}, 0x0f0f0f0f, s{sA}")
        spin(S3, f"global_load_dword v7, v6, s[{sDBG}:{sDBG+1}] sc1",
             [f"v_readfirstlane_b32 s{sD}, v7", "s_nop 4", f"s_and_b32 s{sD}, s{sD}, s{sA}", f"s_cmp_eq_u32 s{sD}, s{sA}"])
    assert S3.nbar == E.nbar
    E.lab("L_sjoin")
    S = E
    S.bar()
    stamp(S, 6)
    oproj(S, 0, lambda e, st: [])
    stamp(S, 7)
    nbarS = S.nbar
    if fuse:
        E.lab("L_final")
        final_reduce(S)
    if diag:
        I(f"s_cmp_lg_u32 s{sWAVE}, 0"); I("s_cbranch_scc1 L_done")
        I("s_waitcnt vmcnt(0)")
        stamp(S, 8)
        I("s_waitcnt lgkmcnt(0)")
        I("s_mov_b64 exec, 1")
        if dbgwg is not None:
            I(f"s_cmp_lg_u32 s2, {dbgwg}"); I("s_cbranch_scc1 L_done")
            I(f"v_mov_b32 v1, {128<<20}")
            for k in range(8):
                I(f"s_sub_u32 s{sA}, s{sTS+4*k+4}, s{sTS+4*k}"); I(f"v_mov_b32 v4, s{sA}")
                I(f"s_sub_u32 s{sA}, s{sTS+4*k+6}, s{sTS+4*k+2}"); I(f"v_mov_b32 v5, s{sA}")
                I(f"global_store_dword v1, v4, s[58:59] offset:{4*k}"); I(f"global_store_dword v1, v5, s[58:59] offset:{32+4*k}")
            I("s_endpgm")
        I(f"s_lshl_b32 s{sA}, s2, 7"); I(f"s_add_u32 s{sA}, s{sA}, {64<<20}"); I(f"v_mov_b32 v1, s{sA}")
        for k in range(9):
            I(f"v_mov_b32 v4, s{sTS+4*k}"); I(f"v_mov_b32 v5, s{sTS+4*k+2}")
            I(f"global_store_dwordx2 v1, v[4:5], s[58:59] offset:{8*k}")
            I("s_nop 1")
    I("s_endpgm")

    I = O.I
    O.lab("L_owave")
    qproj(O, 1)
    vVA, vPA, vWX, vFA, vF = 1, 2, 9, 4, 5
    VF, OA, OX, PF = 12, 68, 180, 228
    tr_lane(O, vVA, 6, 3)
    I(f"v_lshlrev_b32 v{vPA}, 4, v0")
    I(f"v_and_b32 v{vFA}, 7, v0"); I(f"v_lshlrev_b32 v{vFA}, 2, v{vFA}"); I(f"v_add_u32 v{vFA}, {FLG}, v{vFA}")
    I(f"v_lshrrev_b32 v{vWX}, 3, v0"); I(f"v_mul_u32_u24 v{vWX}, {16*896}, v{vWX}")
    I(f"v_and_b32 v6, 7, v0"); I(f"v_lshl_add_u32 v{vWX}, v6, 4, v{vWX}")
    I(f"s_mul_i32 s{sA}, s{sW4}, {4*896}"); I(f"v_add_u32 v{vWX}, s{sA}, v{vWX}")
    I(f"s_lshl_b32 s{sPOFF}, s{sROTO}, 7")
    def wo_piece(f, i, O=None):
        O = O or Ocur[0]
        if nowo and f >= 6: return
        O.I(f"s_add_u32 m0, s{sWLDS}, {WOSLOT[f] + i*PIECE}")
        O.I(f"s_add_u32 s{sD}, s{sPOFF}, {((f%2)*128 + i)*896}")
        O.vmem(f"buffer_load_dwordx4 v{vWX}, s[{S_WO}:{S_WO+3}], s{sD} offen lds", ("WO", f))
        if i == 3 and f % 2 == 1:
            O.I(f"s_add_u32 s{sPOFF}, s{sPOFF}, 128"); O.I(f"s_cmp_eq_u32 s{sPOFF}, 896"); O.I(f"s_cselect_b32 s{sPOFF}, 0, s{sPOFF}")
    Ocur = [O]
    O.wl0()
    if prio == "O": I("s_setprio 1")
    O.wv(("K", 0), ("K", 1))
    rare_o = []; osubs = []
    def owave(O, tag, chk=False):
        I = O.I
        big = bal and tag == "b"
        nsl = 7 if big else 4
        voff = [384 + 32 * sl for sl in range(4)] + [128 * e + 96 for e in range(3)] if big else [32 * sl for sl in range(4)]
        def units(z):
            if not bal: return [0, 1, 2, 3]
            if big: return [0, 1, 2, 3] + ([4, 5, 6] if z >= balz else [])
            return [0, 1, 2] + ([3] if z < balz else [])
        acc = lambda z, sl: OA + 16 * z + 4 * sl if sl < 4 else OX + 12 * (z - 3) + 4 * (sl - 4)
        if not big: I(f"s_lshl_b32 s{sA}, s{sW4}, 7"); I(f"v_add_u32 v{vVA}, s{sA}, v{vVA}")
        O.bar()
        bv = Base(O, vVA)
        def rdv1(j, k):
            sl, y = k // 2, k % 2
            bv.set(slot(VRING[j % 4]))
            O.lds(f"ds_read_b64_tr_b16 {vr(VF+28*(j%2)+4*sl+2*y,2)}, v{vVA} offset:{y*512 + voff[sl]}", ("V", j, sl))
        def rdv(j):
            for k in range(2 * nsl): rdv1(j, k)
        bo, b2 = Base(O, 6), Base(O, 7)
        def pack(z):
            us = units(z)
            ops = [f"v_cvt_pk_bf16_f32 v{acc(z,sl&~1 if sl < 4 else sl)+2*(sl&1 if sl < 4 else 0)+n}, v{acc(z,sl)+2*n}, v{acc(z,sl)+2*n+1}" for sl in us for n in range(2)]
            def wr():
                if not (0 <= OBUF[z] - bo.cur < 57000):
                    bo.set(OBUF[z])
                    if big: b2.set(OBUF[z])
                O.lds(f"ds_write_b128 v6, {vr(acc(z,0),4)} offset:{OBUF[z]-bo.cur}", ("W",))
                if 3 in us: O.lds(f"ds_write_b128 v6, {vr(acc(z,2),4)} offset:{OBUF[z]-bo.cur + 1024}", ("W",))
                else: O.lds(f"ds_write_b64 v6, {vr(acc(z,2),2)} offset:{OBUF[z]-bo.cur + 1024}", ("W",))
                for sl in us:
                    if sl >= 4: O.lds(f"ds_write_b64 v7, {vr(acc(z,sl),2)} offset:{OBUF[z]-b2.cur + (2*(sl-4)+1)*1024 + 8}", ("W",))
            return ops + [wr]
        def o_phase(p):
            j = p - 2
            pieces = []
            def kv(kind, jj): return [(lambda i=i: kv_piece(O, kind, jj, i)) for i in range(4)]
            if p == 0 and not s3k: pieces += kv("K", 2)
            if p + 1 < NB and not (early and p == 0): pieces += kv("V", p + 1)
            if p + 3 < NB:
                if not s3k: pieces += kv("K", p + 3)
            else:
                for f in {NB - 3: [0], NB - 2: [1], NB - 1: [2], NB: [3, 4], NB + 1: []}[p]:
                    pieces += [(lambda i=i, f=f: wo_piece(f, i, O)) for i in range(4)]
            if j < 0:
                O.items(pieces)
                if p == 0:
                    for r in range(OA, OA + 112 + (48 if big else 0)): I(f"v_mov_b32 v{r}, 0")
                if p == 1: rdv(0)
            else:
                par = j % 2
                def rdp(z): O.lds(f"ds_read_b128 {vr(PF+4*(z%npf),4)}, v{vPA} offset:{par*7168 + z*1024}", ("P", z))
                O.lds(f"ds_read_b32 v{vF}, v{vFA} offset:{par*128}", ("F",))
                for z in range(npf): rdp(z)
                I(f"s_add_u32 s{sBLK}, s{sBLK}, 1")
                fil = spread(8, pieces, dmafirst, dmalast) if pieces else [[] for _ in range(8)]
                O.items(fil[0])
                O.wl(("F",))
                I(f"v_cmp_eq_u32 vcc, s{sBLK}, v{vF}")
                I(f"s_cbranch_vccnz L_stub_o{tag}{p}")
                O.lab(f"L_back_o{tag}{p}")
                rare_o.append((tag, p, par))
                kv_ = 0
                if p == NB + 1:
                    I(f"s_lshl_b32 s{sA}, s{sW4}, 11"); I(f"v_add_u32 v6, s{sA}, v{vPA}"); I(f"v_mov_b32 v7, v{vPA}")
                for z in range(7):
                    if p == NB + 1 and z >= 2: O.items(pack(z - 2)) if z > 2 else None
                    for sl in units(z):
                        O.wl(("P", z), ("V", j, sl))
                        if not noO: I(mfma(acc(z, sl), VF + 28 * (j % 2) + 4 * sl, PF + 4 * (z % npf)))
                        if z >= vz0 and j + 1 < NB and kv_ < 2 * nsl: rdv1(j + 1, kv_); kv_ += 1
                    if p == NB + 1 and z == 2: O.items(pack(0))
                    if z + npf < 7: rdp(z + npf)
                    O.items(fil[z + 1])
            if p <= NB:
                if p == 0: O.wv(("V", 0), ("K", 2))
                else: O.wv(("K", p + 2), ("V", p), ("K", p + 1))
                if p == NB: O.wl0()
                O.bar()
        for p in range(0, LOOP0): o_phase(p)
        I(f"s_mov_b32 s{sCNT}, {(LOOPN-LOOP0)//4}")
        O.lab(f"L_oloop{tag}")
        st = (list(O.lg), list(O.vm), bv.cur, O.nbar)
        for p in range(LOOP0, LOOP0 + 4): o_phase(p)
        sh = lambda q, d: [(t[0], t[1] + d) + tuple(t[2:]) for t in q]
        assert sh(O.lg, -4) == st[0] and sh(O.vm, -4) == st[1] and bv.cur == st[2], (O.lg, O.vm, st)
        I(f"s_sub_u32 s{sCNT}, s{sCNT}, 1"); I(f"s_cmp_lg_u32 s{sCNT}, 0"); I(f"s_cbranch_scc1 L_oloop{tag}")
        d = LOOPN - LOOP0 - 4
        O.lg = sh(O.lg, d); O.vm = sh(O.vm, d); O.nbar = st[3] + (LOOPN - LOOP0)
        for p in range(LOOPN, NB + 2): o_phase(p)
        for z in range(5, 7): O.items(pack(z))
        O.wv(("WO", 0), ("WO", 1), ("WO", 2))
        O.wl0()
        for par in range(2):
            osubs.append(f"L_rare_o{tag}_{par}:")
            osubs.append("s_nop 7"); osubs.append(f"s_mov_b32 s{sA}, vcc_lo")
            osubs.extend([f"v_and_b32 v6, 15, v0", f"v_lshlrev_b32 v6, 2, v6", f"v_add_u32 v6, {ALPHA + par*448}, v6"])
            for z in range(7):
                osubs.extend([f"s_bitcmp1_b32 s{sA}, {z}", f"s_cbranch_scc0 L_rare_o{tag}_{par}_{z}", f"ds_read_b32 v{vF}, v6 offset:{z*64}", "s_waitcnt lgkmcnt(0)"])
                for sl in units(z):
                    osubs.extend([f"v_mul_f32 v{acc(z,sl)+r}, v{vF}, v{acc(z,sl)+r}" for r in range(4)])
                osubs.append(f"L_rare_o{tag}_{par}_{z}:")
            osubs.append("s_nop 1"); osubs.append(f"s_setpc_b64 s[{sRET}:{sRET+1}]")
    if bal:
        I(f"s_cmp_eq_u32 s{sWAVE}, 7"); I("s_cbranch_scc1 L_owave7")
        O7 = O.fork()
        owave(O, "a")
        I("s_branch L_ojoin")
        O7.lab("L_owave7")
        owave(O7, "b", chk=fuse)
        assert O7.nbar == O.nbar and O7.vm == O.vm and O7.lg == O.lg, (O7.vm, O.vm)
        O.lab("L_ojoin")
    else:
        owave(O, "a")
    O.bar()
    def fills_at(e, st):
        when, j = st
        if when == "pre":
            e.wv(*[("WO", f) for f in range(min(14, 2 * j + 3))])
            return []
        fl = ({0: [5], 1: [6, 7, 8], 2: [9, 10], 3: [11, 12], 4: [13]} if wosplit else {0: [5], 1: [6, 7, 8, 9, 10], 2: [11, 12], 3: [13]}).get(j, [])
        return [(lambda f=f, i=i: wo_piece(f, i)) for f in fl for i in range(4)]
    oproj(O, 1, fills_at)
    assert O.nbar == nbarS, (O.nbar, nbarS)
    if fuse: I("s_branch L_final")
    O.lab("L_done"); I("s_endpgm")
    for tag, site, kind in rare_s:
        O.lab(f"L_stub_s{tag}_{site}"); I(f"s_call_b64 s[{sRET}:{sRET+1}], L_rare_s{tag}_{kind}"); I(f"s_branch L_back_s{tag}_{site}")
    for l in subs: (O.lab(l[:-1]) if l.endswith(":") else I(l))
    for tag, site, par in rare_o:
        O.lab(f"L_stub_o{tag}{site}"); I(f"s_call_b64 s[{sRET}:{sRET+1}], L_rare_o{tag}_{par}"); I(f"s_branch L_back_o{tag}{site}")
    for l in osubs: (O.lab(l[:-1]) if l.endswith(":") else I(l))

    E.lab("L_code_end")
    R = Em(E.L); I = R.I
    R.L += kernel_head("reduce_kernel")
    I(f"s_cmp_ge_u32 s2, {1792//k2w}"); I("s_cbranch_scc1 L_rdone")
    I("s_load_dwordx2 s[8:9], s[0:1], 96"); I("s_load_dwordx2 s[12:13], s[0:1], 80")
    if dbgwg is not None:
        I("s_cmp_lg_u32 s2, 0"); I("s_cbranch_scc1 L_rnodbg")
        I("s_load_dwordx4 s[24:27], s[0:1], 88"); I("s_waitcnt lgkmcnt(0)")
        I("v_and_b32 v2, 15, v0"); I("v_lshlrev_b32 v2, 2, v2"); I(f"v_add_u32 v3, {128<<20}, v2")
        I("global_load_dword v4, v3, s[26:27]"); I("s_waitcnt vmcnt(0)"); I("global_store_dword v2, v4, s[24:25]"); I("s_waitcnt vmcnt(0)")
        R.lab("L_rnodbg")
    I("v_lshrrev_b32 v1, 6, v0"); I("v_and_b32 v0, 63, v0"); I("v_readfirstlane_b32 s3, v1")
    I(f"s_mul_i32 s4, s2, {k2w}"); I("s_add_u32 s4, s4, s3")
    I(f"s_mov_b32 s5, {(2**32 + 111)//112}"); I("s_mul_hi_u32 s5, s4, s5")
    I("s_mul_i32 s6, s5, 112"); I("s_sub_u32 s6, s4, s6")
    I(f"s_mul_i32 s17, s5, {16*PART_HEAD}"); I("s_lshl_b32 s18, s6, 10"); I("s_add_u32 s17, s17, s18")
    I("s_and_b32 s25, s6, 9"); I("s_cmp_eq_u32 s25, 9"); I("s_cselect_b32 s25, 3, 4")
    I("v_lshlrev_b32 v2, s25, v0")
    I("s_waitcnt lgkmcnt(0)")
    I("s_add_u32 s8, s8, s17"); I("s_addc_u32 s9, s9, 0"); I(f"s_mov_b32 s10, {15*PART_HEAD + 1024}"); I("s_mov_b32 s11, 0x20000")
    I(f"s_mov_b32 s14, {8*112*896*2}"); I("s_mov_b32 s15, 0x20000")
    I("s_mov_b32 s19, 0")
    for h in range(16):
        I(f"buffer_load_dwordx4 {vr(8+4*h,4)}, v2, s[8:11], s19 offen")
        if h < 15: I(f"s_add_u32 s19, s19, {PART_HEAD}")
    I("s_bfe_u32 s20, s6, 0x10003"); I("s_lshl_b32 s20, s20, 1"); I("s_and_b32 s21, s6, 1"); I("s_add_u32 s20, s20, s21")
    I("s_and_b32 s22, s5, 7"); I("s_mul_i32 s22, s22, 112"); I("s_lshl_b32 s23, s20, 5"); I("s_add_u32 s22, s22, s23")
    I("v_and_b32 v3, 15, v0"); I("v_add_u32 v3, s22, v3"); I("v_mul_u32_u24 v3, 1792, v3")
    I("s_lshr_b32 s22, s5, 3"); I("s_mul_i32 s22, s22, 896"); I("s_lshr_b32 s23, s6, 4"); I("s_lshl_b32 s23, s23, 7"); I("s_add_u32 s22, s22, s23")
    I("s_bfe_u32 s23, s6, 0x20001"); I("s_lshl_b32 s23, s23, 5"); I("s_add_u32 s22, s22, s23")
    I("v_lshrrev_b32 v4, 4, v0"); I("v_lshl_add_u32 v3, v4, 3, v3"); I("v_add_u32 v3, s22, v3")
    I(f"s_mov_b32 s24, {16*1792}")
    for h in range(16):
        I(f"s_waitcnt vmcnt({15-h})")
        for d_ in range(4):
            src = 8 + 4 * h + d_
            if h == 0:
                I(f"v_lshlrev_b32 v{72+2*d_}, 16, v{src}"); I(f"v_and_b32 v{73+2*d_}, 0xffff0000, v{src}")
            else:
                I(f"v_lshlrev_b32 v5, 16, v{src}"); I(f"v_and_b32 v6, 0xffff0000, v{src}")
                I(f"v_add_f32 v{72+2*d_}, v{72+2*d_}, v5"); I(f"v_add_f32 v{73+2*d_}, v{73+2*d_}, v6")
    for d_ in range(4): I(f"v_cvt_pk_bf16_f32 v{8+d_}, v{72+2*d_}, v{73+2*d_}")
    I("buffer_store_dwordx2 v[8:9], v3, s[12:15], 0 offen")
    I("s_cmp_eq_u32 s20, 3"); I("s_cbranch_scc1 L_rdone")
    I("buffer_store_dwordx2 v[10:11], v3, s[12:15], s24 offen")
    R.lab("L_rdone"); I("s_endpgm")
    if fuse: del E.L[E.L.index(".globl reduce_kernel"):]
    tail = ['.section .rodata,"a"'] + kd(NAME + "_kernel") + ([] if fuse else kd("reduce_kernel", vgpr=80, sgpr=32, accum=80))
    return "\n".join(head + E.L + tail) + "\n"

if __name__ == "__main__":
    kw = eval("dict(%s)" % (sys.argv[2] if len(sys.argv) > 2 else ""))
    open(sys.argv[1], "w").write(gen(**kw))
```

```python
import sys
from asmlib import *

NB = 64
PIECE = 1056
SLOT = 16 * PIECE
TSLOT = 0
def slot(i): return SLOT * (i + 1)
SPARE = slot(8)
FLG = SPARE + 8192
ALPHA = FLG + 256
RL = ALPHA + 1024
QSETS = [[slot(5), slot(6), slot(7)], [slot(2), slot(3), slot(4)], [TSLOT, slot(0), slot(1)]]
QBUF = [TSLOT, TSLOT + 8192, slot(0), slot(0) + 8192, slot(1), slot(1) + 8192, SPARE]
KRING = [2, 3, 5, 7]
VRING = [4, 6, 0, 1]
PART_HEAD = 114688
FOFF = 30 << 20

S_X, S_WQ, S_K, S_V, S_WO, S_PT = 8, 12, 16, 20, 24, 28
sWAVE, sW4, sROT, sWLDS, sKOFF, sVOFF, sCNT, sBLK, sC, sT = 32, 33, 34, 35, 36, 37, 38, 39, 40, 41
sA, sB2, sD, sE, sHH, sPOFF, sSTRIP, sXOFF, sXLDS = 42, 43, 44, 45, 46, 47, 48, 49, 52
sRET = 54
sROTO = 6
sDBG, sWS, sOUT, sPB, sHEAD = 56, 58, 50, 5, 4
sTS = 60

class Em:
    def __init__(self, L=None):
        self.L = [] if L is None else L; self.lg = []; self.vm = []; self.nbar = 0
    def fork(self):
        e = Em(self.L); e.lg = list(self.lg); e.vm = list(self.vm); e.nbar = self.nbar; return e
    def I(self, s): self.L.append("    " + s)
    def lab(self, s): self.L.append(s + ":")
    def lds(self, s, tag): self.I(s); self.lg.append(tag)
    def vmem(self, s, tag): self.I(s); self.vm.append(tag)
    def _need(self, q, tags):
        idx = [i for i, t in enumerate(q) if t in tags]
        return None if not idx else max(idx)
    def wl(self, *tags):
        i = self._need(self.lg, tags)
        if i is None: return
        n = min(len(self.lg) - i - 1, 15)
        self.I(f"s_waitcnt lgkmcnt({n})"); self.lg = self.lg[len(self.lg) - n:] if n else []
    def wv(self, *tags):
        i = self._need(self.vm, tags)
        if i is None: return
        n = min(len(self.vm) - i - 1, 63)
        self.I(f"s_waitcnt vmcnt({n})"); self.vm = self.vm[len(self.vm) - n:] if n else []
    def wst(self, tag):
        i = self._need(self.vm, (tag,))
        if i is None: return
        n = sum(1 for t in self.vm[i + 1:] if t[0] == "ST")
        self.I(f"s_waitcnt vmcnt({n})"); self.vm = self.vm[len(self.vm) - n:] if n else []
    def wl0(self):
        if self.lg: self.I("s_waitcnt lgkmcnt(0)")
        self.lg = []
    def wv0(self):
        if self.vm: self.I("s_waitcnt vmcnt(0)")
        self.vm = []
    def bar(self): self.I("s_barrier"); self.nbar += 1
    def items(self, its):
        for f in its:
            if f is None: continue
            if callable(f): f()
            else: self.I(f)

class Base:
    def __init__(self, e, reg, cur=0): self.e, self.reg, self.cur = e, reg, cur
    def set(self, b):
        d = b - self.cur
        if d: self.e.I(f"v_add_u32 v{self.reg}, {d & 0xffffffff}, v{self.reg}")
        self.cur = b

def vr(a, n): return f"v[{a}:{a+n-1}]"
def mfma(d, a, b, c=None):
    return f"v_mfma_f32_16x16x32_bf16 {vr(d,4)}, {vr(a,4)}, {vr(b,4)}, " + ("0" if c == 0 else vr(d, 4))
def spread(nslots, fillers, first=0, last=None):
    last = nslots - 1 if last is None else last
    out = [[] for _ in range(nslots)]
    n = last - first + 1
    for i, f in enumerate(fillers): out[first + (i * n) // len(fillers)].append(f)
    return out

DOC = """
;
"""
def layout(early):
    global QBUF, KRING, VRING
    if early:
        QBUF = [slot(5), slot(5) + 8192, slot(6), slot(6) + 8192, slot(7), slot(7) + 8192, SPARE]
        KRING = [2, 3, 0, 5]; VRING = [4, 1, 6, 7]
    else:
        QBUF = [TSLOT, TSLOT + 8192, slot(0), slot(0) + 8192, slot(1), slot(1) + 8192, SPARE]
        KRING = [2, 3, 5, 7]; VRING = [4, 6, 0, 1]

def gen(diag=False, kvnt=True, stnt=False, hot=False, nodma=False, prio="S", sfirst=8, slast=28, dmafirst=0, dmalast=3, k1only=False, pstamp=False, qpre=2, nosm=False, noO=False, noS=False, nobar=False, ipf=False, stfl='sc1', pad=0, lalign=0, s3k=True, s3first=0, s3last=15, nkf=16, npf=7, nost=False, nowo=False, noqf=False, bal=True, qprio=1, balz=4, vz0=2, s3f=4, k2w=4, dbgwg=None, qtrace=False, otrace=False, qwho=None, wosplit=False, fuse=True, slp=2, L1=2, dot=True, ftrace=False, tlbw=False, qbar=False, oprio=0, outfl='', xfirst=True, keep='', fdel=1, early=False, qlag=True, qlf=2, fin0=1, fin1=3, wide=True):
    NT_ = " nt" if kvnt else ""
    layout(early)
    def ntf(kind, j):
        return "" if f"{kind}{j % 4}" in keep else NT_
    E = Em(); I = E.I
    def stamp(e, k):
        if diag:
            e.I(f"s_memtime s[{sTS+4*k}:{sTS+4*k+1}]"); e.I(f"s_memrealtime s[{sTS+4*k+2}:{sTS+4*k+3}]")
    head = [l for l in open("ref.s.txt").read().split("\n") if l.startswith(";") and "@launch" not in l and "Override" not in l and "grid=ceil" not in l]
    if fuse: head += ["; @launch grid=(256,1,1) block=(512,1,1) lds=163840"]
    else: head += [f"; @launch kernel={NAME}_kernel grid=(256,1,1) block=(512,1,1) lds=163840"]
    if not k1only and not fuse: head += [f"; @launch kernel=reduce_kernel grid=({1792//k2w},1,1) block=({64*k2w},1,1) lds=0"]
    head += DOC.strip("\n").split("\n")
    head += ['.amdgcn_target "amdgcn-amd-amdhsa--gfx950"', ".text"]
    E.L += kernel_head(NAME + "_kernel")
    I("s_cmp_ge_u32 s2, 256"); I("s_cbranch_scc1 L_done")
    stamp(E, 0)
    I("s_bfe_u32 s6, s2, 0x10002"); I("s_and_b32 s3, s2, 3"); I("s_lshl_b32 s3, s3, 1"); I("s_bfe_u32 s4, s2, 0x10004"); I("s_add_u32 s3, s3, s4")
    I(f"s_bfe_u32 s{sHH}, s2, 0x10003"); I("s_lshr_b32 s7, s2, 5")
    I("s_lshl_b32 s5, s6, 3"); I("s_add_u32 s5, s5, s7"); I(f"s_mul_i32 s{sA}, s6, 40")
    I(f"s_add_u32 s50, s0, s{sA}"); I("s_addc_u32 s51, s1, 0")
    I(f"s_load_dwordx2 s[{S_X}:{S_X+1}], s[50:51], 0")
    I(f"s_load_dwordx2 s[{S_WQ}:{S_WQ+1}], s[50:51], 24")
    I(f"s_load_dwordx2 s[{S_K}:{S_K+1}], s[50:51], 8")
    I(f"s_load_dwordx2 s[{S_V}:{S_V+1}], s[50:51], 16")
    I(f"s_load_dwordx2 s[{S_WO}:{S_WO+1}], s[50:51], 32")
    I(f"s_load_dwordx2 s[{S_PT}:{S_PT+1}], s[0:1], 96")
    I(f"s_load_dwordx4 s[{sDBG}:{sDBG+3}], s[0:1], 88")
    I("v_lshrrev_b32 v1, 6, v0"); I("v_and_b32 v0, 63, v0")
    I(f"v_readfirstlane_b32 s{sWAVE}, v1")
    I(f"s_lshl_b32 s4, s3, 1"); I(f"s_add_u32 s4, s4, s{sHH}")
    I(f"s_bfe_u32 s{sA}, s2, 0x20003"); I(f"s_lshl_b32 s{sA}, s{sA}, 1"); I(f"s_add_u32 s{sROT}, s7, s{sA}")
    I(f"s_cmp_ge_u32 s{sROT}, 7"); I(f"s_cselect_b32 s{sA}, 7, 0"); I(f"s_sub_u32 s{sROT}, s{sROT}, s{sA}")
    I(f"s_and_b32 s{sW4}, s{sWAVE}, 3")
    I(f"s_cmp_eq_u32 s7, 7"); I(f"s_cselect_b32 s{sROTO}, 0, s7")
    I(f"s_mul_i32 s{sWLDS}, s{sW4}, {4*PIECE}")
    I(f"s_mov_b32 s{sC}, 0x3db8aa3b"); I(f"s_mov_b32 s{sT}, 0x41000000")
    vXD, vWD, vXA0, vXA1, vQA, t0, t1 = 1, 2, 3, 4, 5, 6, 7
    I(f"v_lshrrev_b32 v{vXD}, 3, v0"); I(f"v_mul_u32_u24 v{vXD}, 896, v{vXD}")
    I(f"v_lshrrev_b32 v{t0}, 4, v0"); I(f"v_lshlrev_b32 v{t0}, 1, v{t0}"); I(f"v_and_b32 v{t1}, 7, v0"); I(f"v_xor_b32 v{t0}, v{t0}, v{t1}")
    I(f"v_lshl_add_u32 v{vXD}, v{t0}, 4, v{vXD}")
    I(f"v_lshrrev_b32 v{t0}, 5, v0"); I(f"v_lshlrev_b32 v{vWD}, 15, v{t0}"); I(f"v_and_b32 v{t0}, 31, v0")
    I(f"v_lshl_add_u32 v{vWD}, v{t0}, 4, v{vWD}")
    I(f"s_lshl_b32 s{sPOFF}, s{sROT}, 19"); I(f"s_lshl_b32 s{sE}, s{sWAVE}, 16")
    I(f"s_lshl_b32 s{sXOFF}, s{sROT}, 7"); I(f"s_mul_i32 s{sB2}, s{sWAVE}, {16*896}")
    I(f"s_lshl_b32 s{sXLDS}, s{sWAVE}, 11")
    I(f"s_lshr_b32 s{sD}, s{sWAVE}, 2"); I(f"s_mul_i32 s{sD}, s{sD}, {SLOT}"); I(f"s_add_u32 s53, s{sD}, s{sWLDS}")
    I("s_waitcnt lgkmcnt(0)")
    if pstamp: stamp(E, 1)
    def srd(r, off_sgpr, size):
        I(f"s_add_u32 s{r}, s{r}, s{off_sgpr}"); I(f"s_addc_u32 s{r+1}, s{r+1}, 0")
        if isinstance(size, int): I(f"s_mov_b32 s{r+2}, {size}")
        else: I(size)
        I(f"s_mov_b32 s{r+3}, 0x20000")
    I(f"s_mul_i32 s{sA}, s7, 100352"); srd(S_X, sA, 100352)
    I(f"s_lshl_b32 s{sA}, s4, 9"); srd(S_WQ, sA, f"s_sub_u32 s{S_WQ+2}, {448*8192}, s{sA}")
    def qfill4_ops(e, i):
        xs, wa, wb = QSETS[i % 3]
        ops = []
        for j in range(4):
            def f(j=j):
                e.I(f"s_add_u32 m0, s{sXLDS}, {xs + j*1024}")
                e.I(f"s_add_u32 s{sD}, s{sXOFF}, s{sB2}" if j == 0 else f"s_add_u32 s{sD}, s{sD}, {8*896}")
                e.vmem(f"buffer_load_dwordx4 v{vXD}, s[{S_X}:{S_X+3}], s{sD} offen lds", ("QF", i))
            ops.append(f)
        for j in range(8):
            def f(j=j):
                e.I(f"s_add_u32 m0, s{sWLDS}, {wa + (j//4)*SLOT + (j%4)*PIECE}")
                e.I(f"s_add_u32 s{sD}, s{sPOFF}, s{sE}" if j == 0 else f"s_add_u32 s{sD}, s{sD}, {8192 if j != 4 else 29*8192}")
                e.vmem(f"buffer_load_dwordx4 v{vWD}, s[{S_WQ}:{S_WQ+3}], s{sD} offen lds", ("QF", i))
                if j == 7:
                    e.I(f"s_add_u32 s{sPOFF}, s{sPOFF}, {1<<19}"); e.I(f"s_add_u32 s{sXOFF}, s{sXOFF}, 128")
                    e.I(f"s_cmp_eq_u32 s{sXOFF}, 896"); e.I(f"s_cselect_b32 s{sPOFF}, 0, s{sPOFF}"); e.I(f"s_cselect_b32 s{sXOFF}, 0, s{sXOFF}")
            ops.append(f)
        return ops
    def qfill_ops(e, i):
        if noqf and i >= 3: return []
        xs, wa, wb = QSETS[i % 3]
        assert wb == wa + SLOT
        ops = []
        for j in range(2):
            def f(j=j):
                e.I(f"s_add_u32 m0, s{sXLDS}, {xs + j*1024}")
                e.I(f"s_add_u32 s{sD}, s{sXOFF}, s{sB2}" if j == 0 else f"s_add_u32 s{sD}, s{sD}, {8*896}")
                e.vmem(f"buffer_load_dwordx4 v{vXD}, s[{S_X}:{S_X+3}], s{sD} offen lds", ("QF", i))
            ops.append(f)
        for j in range(4):
            def f(j=j):
                e.I(f"s_add_u32 m0, s53, {wa + j*PIECE}")
                e.I(f"s_add_u32 s{sD}, s{sPOFF}, s{sE}" if j == 0 else f"s_add_u32 s{sD}, s{sD}, 8192")
                e.vmem(f"buffer_load_dwordx4 v{vWD}, s[{S_WQ}:{S_WQ+3}], s{sD} offen lds", ("QF", i))
                if j == 3:
                    e.I(f"s_add_u32 s{sPOFF}, s{sPOFF}, {1<<19}"); e.I(f"s_add_u32 s{sXOFF}, s{sXOFF}, 128")
                    e.I(f"s_cmp_eq_u32 s{sXOFF}, 896"); e.I(f"s_cselect_b32 s{sPOFF}, 0, s{sPOFF}"); e.I(f"s_cselect_b32 s{sXOFF}, 0, s{sXOFF}")
            ops.append(f)
        if not xfirst: ops = ops[2:5] + ops[:2] + ops[5:]
        return ops
    if fuse:
        I(f"s_cmp_lg_u32 s{sWAVE}, 0"); I("s_cbranch_scc1 L_noclr")
        I(f"s_lshl_b32 s{sA}, s5, 5"); I(f"s_add_u32 s{sA}, s{sA}, s4"); I(f"s_lshl_b32 s{sA}, s{sA}, 2"); I(f"s_add_u32 s{sA}, s{sA}, {FOFF}")
        I(f"v_mov_b32 v12, s{sA}"); I("v_mov_b32 v13, 0")
        I("s_mov_b64 exec, 1")
        I(f"global_store_dword v12, v13, s[{sWS}:{sWS+1}] sc1")
        I("s_mov_b64 exec, -1")
        E.lab("L_noclr")
    for _ in range(pad): I("s_nop 0")
    if ipf:
        I("s_getpc_b64 s[56:57]")
        E.lab("L_pc")
        I(f"s_lshl_b32 s{sA}, s{sWAVE}, 13"); I(f"v_lshl_add_u32 v{t0}, v0, 7, s{sA}")
        I(f"s_min_u32 s{sA}, s{sA}, s{sA}")
        I(f"v_min_u32 v{t0}, L_code_end-L_pc-4, v{t0}")
        E.vmem(f"global_load_dword v15, v{t0}, s[56:57]", ("QF", -1))
    for i in range(qpre):
        E.items(qfill_ops(E, i))
        if qbar and i == 0: E.bar()
    if pstamp: stamp(E, 2)
    I(f"s_lshl_b32 s{sA}, s7, 3"); I(f"s_add_u32 s{sA}, s{sA}, s3"); I(f"s_lshl_b32 s{sA}, s{sA}, 20")
    srd(S_K, sA, 1 << 20); srd(S_V, sA, 1 << 20)
    I(f"s_mul_i32 s{sA}, s4, {256*896}"); srd(S_WO, sA, 256 * 896)
    I(f"s_lshl_b32 s{sA}, s5, 4"); I(f"s_add_u32 s{sA}, s{sA}, s4"); I(f"s_mul_i32 s{sA}, s{sA}, {PART_HEAD}"); srd(S_PT, sA, PART_HEAD)
    I(f"v_and_b32 v{t0}, 15, v0"); I(f"v_lshlrev_b32 v{vXA0}, 7, v{t0}")
    I(f"v_and_b32 v{t0}, 6, v0"); I(f"v_lshrrev_b32 v{t1}, 4, v0"); I(f"v_xor_b32 v{t0}, v{t0}, v{t1}")
    I(f"v_lshl_add_u32 v{vXA0}, v{t0}, 4, v{vXA0}"); I(f"v_xor_b32 v{vXA1}, 64, v{vXA0}")
    def tr_lane(e, dst, tmp, sh):
        e.I(f"v_lshrrev_b32 v{dst}, 2, v0"); e.I(f"v_mul_u32_u24 v{dst}, {PIECE}, v{dst}")
        e.I(f"v_and_b32 v{tmp}, 3, v0"); e.I(f"v_lshl_add_u32 v{dst}, v{tmp}, {sh}, v{dst}")
    tr_lane(E, vQA, t0, 4)
    I(f"s_lshl_b32 s{sA}, s{sWAVE}, 6"); I(f"v_add_u32 v{vQA}, s{sA}, v{vQA}")
    vDM = 8
    I(f"v_and_b32 v{vDM}, 31, v0"); I(f"v_lshlrev_b32 v{vDM}, 4, v{vDM}")
    I(f"v_lshrrev_b32 v{t0}, 5, v0"); I(f"v_lshl_add_u32 v{vDM}, v{t0}, 13, v{vDM}")
    I(f"s_lshl_b32 s{sKOFF}, s{sW4}, 11"); I(f"s_add_u32 s{sVOFF}, s{sKOFF}, {32768 if early else 16384}"); I(f"s_add_u32 s{sKOFF}, s{sKOFF}, {0 if hot else 32768}")
    I(f"v_lshlrev_b32 v{t0}, 2, v0"); I(f"v_add_u32 v{t0}, {FLG}, v{t0}"); I(f"v_mov_b32 v{t1}, 0")
    E.lds(f"ds_write_b32 v{t0}, v{t1}", ("F",))
    def kv_piece(e, kind, j, i):
        if nodma and j >= 4: return
        ring, srd_, off = (KRING, S_K, sKOFF) if kind == "K" else (VRING, S_V, sVOFF)
        e.I(f"s_add_u32 m0, s{sWLDS}, {slot(ring[j % 4]) + i*(PIECE-512)}")
        e.I("s_nop 0")
        e.vmem(f"buffer_load_dwordx4 v{vDM}, s[{srd_}:{srd_+3}], s{off} offen offset:{i*512}{ntf(kind, j)} lds", (kind, j))
        if i == 3 and not hot: e.I(f"s_add_u32 s{off}, s{off}, 16384")
    QA, QB_, QACC, QP = 16, 32, 96, 152
    def qproj(E, lag):
        I = E.I
        bx0, bx1, bq = Base(E, vXA0), Base(E, vXA1), Base(E, vQA)
        def fin(z):
            ops = [f"v_pk_mul_f32 {vr(QACC+8*z+2*n,2)}, {vr(QACC+8*z+2*n,2)}, s[{sC}:{sC+1}] op_sel_hi:[1,0]" for n in range(4)]
            ops += [f"v_cvt_pk_bf16_f32 v{QP+4*z+n}, v{QACC+8*z+2*n}, v{QACC+8*z+2*n+1}" for n in range(4)]
            return ops + ([] if early else [lambda: wr(z)])
        bw = Base(E, t0)
        def wr(z):
            if not 0 <= QBUF[z] - bw.cur < 57000: bw.set(QBUF[z])
            E.lds(f"ds_write_b128 v{t0}, {vr(QP+4*z,4)} offset:{QBUF[z] - bw.cur}", ("QW",))
        def pair(i, kk, z):
            E.wl(("A", i, kk), ("B", i, kk, z))
            for b in range(2):
                I(mfma(QACC + 8 * z + 4 * b, QA + 8 * kk + 4 * b, QB_ + 28 * kk + 4 * z, 0 if (i == 0 and kk == 0) else None))
        def last_half(i):
            I(f"v_lshlrev_b32 v{t0}, 4, v0"); I(f"s_lshl_b32 s{sA}, s{sWAVE}, 10"); I(f"v_add_u32 v{t0}, s{sA}, v{t0}")
            for z in range(7):
                pair(i, 1, z)
                if z >= 3: E.items(fin(z - 3))
            if early:
                E.bar()
                for z in range(4): wr(z)
                for z in range(4, 7): E.items(fin(z)); wr(z)
            else:
                E.items(fin(4)); E.items(fin(5)); E.items(fin(6))
        if qprio is not None and lag == qprio: I("s_setprio 1")
        for i in range(7):
            E.wv(("QF", i))
            if i == 0 or lag: E.wl0()
            E.bar()
            if i == 0 and not lag and not otrace: stamp(E, 1)
            if qtrace and not lag and i >= 1: stamp(E, 1 + i)
            xs, wa, wb = QSETS[i % 3]
            bx0.set(xs); bx1.set(xs); bq.set(wa)
            def rda(kk):
                for b in range(2):
                    for u in range(2):
                        E.lds(f"ds_read_b64_tr_b16 {vr(QA+8*kk+4*b+2*u,2)}, v{vQA} offset:{kk*SLOT + u*512 + b*8}", ("A", i, kk))
            def rdb(kk, z):
                E.lds(f"ds_read_b128 {vr(QB_+28*kk+4*z,4)}, v{vXA1 if kk else vXA0} offset:{z*2048}", ("B", i, kk, z))
            fl = []
            if qlag:
                assert qpre == 2
                if i == 0 and lag:
                    I(f"s_lshl_b32 s{sXLDS}, s{sW4}, 12"); I(f"s_mul_i32 s{sB2}, s{sW4}, {32*896}"); I(f"s_lshl_b32 s{sE}, s{sW4}, 16")
                if i + 2 < 7 and lag: fl = qfill4_ops(E, i + 2)
            else:
                if i >= 1 and i + 2 < 7: fl = qfill_ops(E, i + 2)
                if i == 0 and qpre < 3: fl = sum([qfill_ops(E, k) for k in range(qpre, 3)], [])
            if i == 5 or (i == 6 and early):
                I(f"s_lshl_b32 s{sE}, s{sWAVE}, 10"); I(f"s_mul_i32 s{sB2}, s{sWAVE}, {2*PIECE}")
                def pre(kind, j, i_):
                    ring, srd_ = (KRING, S_K) if kind == "K" else (VRING, S_V)
                    I(f"s_add_u32 m0, s{sB2}, {slot(ring[j]) + i_*(PIECE-512)}")
                    I(f"s_add_u32 s{sD}, s{sE}, {j*16384}")
                    E.vmem(f"buffer_load_dwordx4 v{vDM}, s[{srd_}:{srd_+3}], s{sD} offen offset:{i_*512}{ntf(kind, j)} lds", (kind, j))
                fl = [(lambda k=k, j=j, i_=i_: pre(k, j, i_)) for k, j in ((("K", 0), ("K", 1), ("V", 0)) if i == 5 else (("K", 2), ("V", 1))) for i_ in range(2)]
            fil = spread(14, fl, 0, 9 if i < 6 else 5) if fl else [[] for _ in range(14)]
            if qlag and lag and fl and i < 5: fil = spread(14, fl, qlf, 13)
            if not lag:
                rda(0)
                for z in range(5): rdb(0, z)
                order = [(kk, z) for kk in range(2) for z in range(7)]
                for n, (kk, z) in enumerate(order):
                    if i == 6 and kk == 1: break
                    pair(i, kk, z)
                    if n == 0: rda(1)
                    if n + 5 < 14: rdb(*order[n + 5])
                    E.items(fil[n])
                if i == 6:
                    for z in range(5, 7): rdb(1, z)
                    last_half(6)
            else:
                n = 0
                if i > 0:
                    for z in range(7):
                        pair(i - 1, 1, z)
                        if z == 0: rda(0)
                        if z >= 1: rdb(0, z - 1)
                        E.items(fil[n]); n += 1
                    rdb(0, 6)
                else:
                    rda(0)
                    for z in range(7): rdb(0, z)
                rda(1)
                for z in range(7):
                    pair(i, 0, z)
                    rdb(1, z)
                    E.items(fil[n]); n += 1
                for k in range(n, 14): E.items(fil[k])
                if i == 6: last_half(6)
        if qprio is not None and lag == qprio: I("s_setprio 0")
        I(f"s_mov_b32 s{sBLK}, 0")
    I(f"s_cmp_ge_u32 s{sWAVE}, 4"); I("s_cbranch_scc1 L_owave")
    O = E.fork()
    qproj(E, 0)

    kfree = [slot(KRING[(NB - 4 + i) % 4]) for i in range(4)]
    vs = [slot(VRING[(NB - 4 + i) % 4]) for i in range(4)]
    WOSLOT = kfree + [vs[0], TSLOT, vs[1], vs[2], vs[3]]
    WOSLOT += [WOSLOT[i] for i in range(5)]
    OBUF = [vs[2], vs[2] + 8192, vs[3], vs[3] + 8192, vs[1], vs[1] + 8192, SPARE]
    def set_flag(e, level):
        e.I(f"s_lshl_b32 s{sA}, s{sPB}, 5"); e.I(f"s_add_u32 s{sA}, s{sA}, s{sHEAD}"); e.I(f"s_lshl_b32 s{sA}, s{sA}, 2"); e.I(f"s_add_u32 s{sA}, s{sA}, {FOFF}")
        e.I(f"v_mov_b32 v10, s{sA}"); e.I(f"v_mov_b32 v11, {level}")
        e.I("s_mov_b64 exec, 1")
        e.I(f"global_store_dword v10, v11, s[{sWS}:{sWS+1}] sc1")
        e.I("s_mov_b64 exec, -1")
    def oproj(e, role, fills_at):
        I = e.I
        vTA, vST, vT, RLR, AF, PK, ACC, BF = 1, 2, 3, 4, 12, 28, 40, 72
        zs = [0, 1, 2, 3] if role == 0 else [4, 5, 6]
        nz = len(zs)
        I(f"v_lshlrev_b32 v{vT}, 4, v0")
        I(f"v_and_b32 v{vST}, 15, v0"); I(f"v_lshlrev_b32 v{vST}, 2, v{vST}"); I(f"v_add_u32 v{vST}, {RL}, v{vST}")
        for a, z in enumerate(zs): e.lds(f"ds_read_b32 v{RLR+a}, v{vST} offset:{z*64}", ("R",))
        tr_lane(e, vTA, vST, 3)
        I(f"s_lshl_b32 s{sA}, s{sW4}, 5"); I(f"v_add_u32 v{vTA}, s{sA}, v{vTA}")
        I(f"s_lshl_b32 s{sA}, s{sWAVE}, 11"); I(f"v_add_u32 v{vST}, s{sA}, v{vT}")
        if role: I(f"v_lshlrev_b32 v8, 3, v0"); I(f"v_add_u32 v8, s{sA}, v8")
        I(f"s_mov_b32 s{sSTRIP}, s{sROTO}")
        ba, bb = Base(e, vTA), Base(e, vT)
        seq = [(j, kp) for j in range(7) for kp in range(8)]
        def rd(n):
            j, kp = seq[n]
            ba.set(WOSLOT[2 * j + kp // 4])
            for u in range(2):
                e.lds(f"ds_read_b64_tr_b16 {vr(AF+4*(n%4)+2*u,2)}, v{vTA} offset:{(2*(kp%4)+u)*128}", ("A", n))
        def rdB(kp):
            for a, z in enumerate(zs):
                base = OBUF[z - (z - zs[0]) % 2] if False else OBUF[z]
                lo = min(OBUF[zz] for zz in zs)
                if base - bb.cur < 0 or base - bb.cur + kp * 1024 > 65535: bb.set(base)
                e.lds(f"ds_read_b128 {vr(BF+32*a+4*kp,4)}, v{vT} offset:{base - bb.cur + kp*1024}", ("B", kp, a))
        def fin(j):
            acc = ACC + 16 * (j % 2)
            ops = []
            for a in range(nz):
                ops += [f"v_mul_f32 v{acc+4*a+r}, v{RLR+a}, v{acc+4*a+r}" for r in range(4)]
                ops += [f"v_cvt_pk_bf16_f32 v{PK+2*a+n}, v{acc+4*a+2*n}, v{acc+4*a+2*n+1}" for n in range(2)]
            if wide and nz == 3:
                ops += [f"v_mov_b32 v{PK+8}, v{PK+4}", f"v_mov_b32 v{PK+9}, v{PK+5}", "s_nop 0",
                        f"v_permlane32_swap_b32 v{PK+8}, v{PK+6}", f"v_permlane32_swap_b32 v{PK+9}, v{PK+7}"]
            def st():
                if nost: return
                fl = " nt" if stnt else ""
                if stfl: fl = " " + stfl
                I(f"s_lshl_b32 s{sA}, s{sSTRIP}, 14")
                I(f"s_add_u32 s{sSTRIP}, s{sSTRIP}, 1")
                e.vmem(f"buffer_store_dwordx4 {vr(PK,4)}, v{vST}, s[{S_PT}:{S_PT+3}], s{sA} offen{fl}", ("ST", j))
                if nz == 4: e.vmem(f"buffer_store_dwordx4 {vr(PK+4,4)}, v{vST}, s[{S_PT}:{S_PT+3}], s{sA} offen offset:1024{fl}", ("ST", j))
                elif wide:
                    I("s_mov_b32 exec_hi, 0")
                    e.vmem(f"buffer_store_dwordx4 {vr(PK+4,4)}, v{vST}, s[{S_PT}:{S_PT+3}], s{sA} offen offset:1024{fl}", ("ST", j))
                    I("s_mov_b32 exec_hi, -1")
                else: e.vmem(f"buffer_store_dwordx2 {vr(PK+4,2)}, v8, s[{S_PT}:{S_PT+3}], s{sA} offen offset:1024{fl}", ("ST", j))
                I(f"s_cmp_eq_u32 s{sSTRIP}, 7"); I(f"s_cselect_b32 s{sSTRIP}, 0, s{sSTRIP}")
            ops.append(st)
            return ops
        I(f"s_setprio {1 if oprio == role else 0}")
        rd(0); rdB(0); rd(1); rdB(1); rd(2); rd(3)
        for j in range(7):
            fl = fin(j - 1) if j else []
            fil = spread(8 * nz, fl, fin0 * nz, fin1 * nz - 1) if fl else [[] for _ in range(8 * nz)]
            fl = fills_at(e, ("post", j))
            if fl:
                f2 = spread(8 * nz, fl, 0, min(8 * nz - 1, len(fl) - 1))
                fil = [a + b for a, b in zip(f2, fil)]
            for kp in range(8):
                n = 8 * j + kp
                for a in range(nz):
                    e.wl(("A", n), ("B", kp, a))
                    I(mfma(ACC + 16 * (j % 2) + 4 * a, AF + 4 * (n % 4), BF + 32 * a + 4 * kp, 0 if kp == 0 else None))
                    if a == nz - 1:
                        if j == 0 and kp + 2 < 8: rdB(kp + 2)
                        if n + 4 < len(seq): rd(n + 4)
                    e.items(fil[kp * nz + a])
            if j < 6:
                fills_at(e, ("pre", j + 1))
                if fuse and j == L1 + fdel: e.wst(("ST", L1 - 1))
                e.bar()
                if fuse and j == L1 + fdel and role == 0:
                    I(f"s_cmp_lg_u32 s{sWAVE}, 3"); I("s_cbranch_scc1 L_nofl1")
                    set_flag(e, 1)
                    e.lab("L_nofl1")
                if otrace and role == 0: stamp0(e, 2 + j)
        I("s_nop 7")
        e.wl(("R",))
        e.items(fin(6))

    npoll = [0]
    def spin(e, load, test):
        k = npoll[0]; npoll[0] += 1
        e.I(f"s_mov_b32 s{sE}, 0x8000")
        e.lab(f"L_poll{k}")
        e.I(load); e.I("s_waitcnt vmcnt(0)")
        for t in test: e.I(t)
        e.I(f"s_cbranch_scc1 L_polled{k}")
        e.I(f"s_sleep {slp}"); e.I(f"s_sub_u32 s{sE}, s{sE}, 1"); e.I(f"s_cmp_lg_u32 s{sE}, 0"); e.I(f"s_cbranch_scc1 L_poll{k}")
        e.lab(f"L_polled{k}")
    def final_reduce(e):
        I = e.I
        LD, AC = 80, 72
        I(f"s_load_dwordx2 s[12:13], s[0:1], 80")
        I(f"s_add_u32 s7, s{sROTO}, s{sWAVE}"); I("s_cmp_ge_u32 s7, 7"); I("s_cselect_b32 s16, 7, 0"); I("s_sub_u32 s7, s7, s16")
        I(f"s_lshl_b32 s7, s7, 4"); I(f"s_add_u32 s7, s7, s{sHEAD}")
        I(f"s_mul_i32 s17, s{sPB}, {16*PART_HEAD}"); I("s_lshl_b32 s18, s7, 10"); I("s_add_u32 s17, s17, s18")
        I(f"s_add_u32 s8, s{sWS}, s17"); I(f"s_addc_u32 s9, s{sWS+1}, 0"); I(f"s_mov_b32 s10, {15*PART_HEAD + 1024}"); I("s_mov_b32 s11, 0x20000")
        if wide: I("v_lshlrev_b32 v12, 4, v0")
        else:
            I("s_and_b32 s25, s7, 9"); I("s_cmp_eq_u32 s25, 9"); I("s_cselect_b32 s25, 3, 4")
            I("v_lshlrev_b32 v12, s25, v0")
        I(f"s_lshl_b32 s{sA}, s{sPB}, 7"); I(f"s_add_u32 s{sA}, s{sA}, {FOFF}")
        I("v_and_b32 v13, 15, v0"); I(f"v_lshl_add_u32 v14, v13, 2, s{sA}")
        def loads():
            I("s_mov_b32 s19, 0")
            if wide: I("s_and_b32 s25, s7, 9"); I("s_cmp_eq_u32 s25, 9"); I("s_cselect_b32 exec_hi, 0, -1")
            for h in range(16):
                I(f"buffer_load_dwordx4 {vr(LD+4*h,4)}, v12, s[8:11], s19 offen sc1")
                if h < 15: I(f"s_add_u32 s19, s19, {PART_HEAD}")
        def wait_flags(level):
            spin(e, f"global_load_dword v15, v14, s[{sWS}:{sWS+1}] sc1", [f"v_cmp_gt_u32 vcc, {level}, v15", "s_nop 4", "s_cmp_eq_u64 vcc, 0"])
        I(f"s_cmp_ge_u32 s{sWAVE}, {L1}"); I("s_cbranch_scc1 L_late")
        wait_flags(1)
        if ftrace: stamp0(e, 4)
        loads()
        I("s_branch L_z1")
        e.lab("L_late")
        I("s_waitcnt vmcnt(0)")
        e.lab("L_z1")
        e.bar()
        if ftrace: stamp0(e, 5)
        I(f"s_cmp_lg_u32 s{sWAVE}, 7"); I("s_cbranch_scc1 L_nopoll")
        set_flag(e, 2)
        wait_flags(2)
        e.lab("L_nopoll")
        I("s_bfe_u32 s20, s7, 0x10003"); I("s_lshl_b32 s20, s20, 1"); I("s_and_b32 s21, s7, 1"); I("s_add_u32 s20, s20, s21")
        I(f"s_and_b32 s22, s{sPB}, 7"); I("s_mul_i32 s22, s22, 112"); I("s_lshl_b32 s23, s20, 5"); I("s_add_u32 s22, s22, s23")
        I("v_add_u32 v3, s22, v13"); I("v_mul_u32_u24 v3, 1792, v3")
        I(f"s_lshr_b32 s22, s{sPB}, 3"); I("s_mul_i32 s22, s22, 896"); I("s_lshr_b32 s23, s7, 4"); I("s_lshl_b32 s23, s23, 7"); I("s_add_u32 s22, s22, s23")
        I("s_bfe_u32 s23, s7, 0x20001"); I("s_lshl_b32 s23, s23, 5"); I("s_add_u32 s22, s22, s23")
        I("v_lshrrev_b32 v4, 4, v0"); I("v_lshl_add_u32 v3, v4, 3, v3"); I("v_add_u32 v3, s22, v3")
        I(f"s_mov_b32 s24, {16*1792}")
        if wide: I("s_cmp_eq_u32 s20, 3"); I("s_cselect_b32 s24, 16, s24")
        I("s_mov_b32 s26, 0x3f80"); I("s_mov_b32 s27, 0x3f800000")
        I("s_waitcnt lgkmcnt(0)")
        I(f"s_mov_b32 s14, {8*112*896*2}"); I("s_mov_b32 s15, 0x20000")
        def summ(tag):
            for h in range(16):
                I(f"s_waitcnt vmcnt({15-h})")
                for d_ in range(4):
                    src = LD + 4 * h + d_
                    if h == 0:
                        I(f"v_lshlrev_b32 v{AC+2*d_}, 16, v{src}"); I(f"v_and_b32 v{AC+1+2*d_}, 0xffff0000, v{src}")
                    elif dot:
                        I(f"v_dot2_f32_bf16 v{AC+2*d_}, v{src}, s26, v{AC+2*d_}"); I(f"v_dot2_f32_bf16 v{AC+1+2*d_}, v{src}, s27, v{AC+1+2*d_}")
                    else:
                        I(f"v_lshlrev_b32 v5, 16, v{src}"); I(f"v_and_b32 v6, 0xffff0000, v{src}")
                        I(f"v_add_f32 v{AC+2*d_}, v{AC+2*d_}, v5"); I(f"v_add_f32 v{AC+1+2*d_}, v{AC+1+2*d_}, v6")
            I("s_nop 2")
            for d_ in range(4): I(f"v_cvt_pk_bf16_f32 v{16+d_}, v{AC+2*d_}, v{AC+1+2*d_}")
            I(f"buffer_store_dwordx2 v[16:17], v3, s[12:15], 0 offen {outfl}")
            if not wide: I("s_cmp_eq_u32 s20, 3"); I(f"s_cbranch_scc1 L_rlast{tag}")
            I(f"buffer_store_dwordx2 v[18:19], v3, s[12:15], s24 offen {outfl}")
            e.lab(f"L_rlast{tag}")
        e.bar()
        if ftrace: stamp0(e, 6)
        I(f"s_cmp_eq_u32 s{sWAVE}, 7"); I("s_cbranch_scc1 L_done")
        I(f"s_cmp_lt_u32 s{sWAVE}, {L1}"); I("s_cbranch_scc1 L_sum")
        loads()
        e.lab("L_sum")
        summ("")
        if ftrace: stamp0(e, 7)
        if diag: I("s_waitcnt vmcnt(0)"); I("s_barrier")

    LOOP0, LOOPN = 5, 61
    rare_s = []
    stamp0 = stamp
    if qtrace: stamp = lambda e, k: (stamp0(e, 8) if k == 2 else None)
    if otrace: stamp = lambda e, k: (stamp0(e, 8) if k == 8 else stamp0(e, 1) if k == 6 else None)
    if ftrace: stamp = lambda e, k: (stamp0(e, {6: 2, 7: 3, 8: 8}[k]) if k in (6, 7, 8) else None)
    if pstamp:
        stamp0 = stamp
        stamp = lambda e, k: (stamp0(e, k) if k == 8 else None)
    def swave(S, NZ, tag):
        I = S.I
        vKA, vPW, vAW, vL, vT0, vT1, vT2 = 1, 2, 3, 6, 9, 11, 13
        Q0, SA, SB, PO, EX, NM, KF = 16, 80, 96, 112, 120, 136, 144
        NKF = nkf
        I(f"v_lshlrev_b32 v{vPW}, 4, v0")
        if NZ == 2:
            I(f"s_mul_i32 s{sA}, s{sW4}, {SLOT}"); I(f"s_add_u32 s{sA}, s{sA}, {QBUF[0]}"); I(f"v_add_u32 v{vT0}, s{sA}, v{vPW}")
        else:
            I(f"v_add_u32 v{vT0}, {QBUF[6]}, v{vPW}")
        I(f"v_and_b32 v{vKA}, 15, v0"); I(f"v_mul_u32_u24 v{vKA}, {PIECE}, v{vKA}")
        I(f"v_lshrrev_b32 v{vT1}, 4, v0"); I(f"v_lshl_add_u32 v{vKA}, v{vT1}, 4, v{vKA}")
        I(f"s_lshl_b32 s{sA}, s{sW4}, 11"); I(f"v_add_u32 v{vPW}, s{sA}, v{vPW}")
        I(f"v_and_b32 v{vAW}, 15, v0"); I(f"v_lshlrev_b32 v{vAW}, 2, v{vAW}")
        I(f"s_lshl_b32 s{sA}, s{sW4}, 7"); I(f"s_add_u32 s{sA}, s{sA}, {ALPHA}"); I(f"v_add_u32 v{vAW}, s{sA}, v{vAW}")
        for a in range(NZ):
            I(f"v_mov_b32 v{vL+a}, 0")
            for r in range(4): I(f"v_mov_b32 v{NM+4*a+r}, 0")
        I(f"s_mov_b32 s{sT}, 0x40004000")
        if NZ == 1: I(f"s_mov_b32 s{sKOFF}, {49152 if early else 32768}")
        if prio == "S": I("s_setprio 1")
        S.wl0(); S.wv(("K", 0), ("K", 1))
        S.bar()
        stamp(S, 2)
        bk = Base(S, vKA)
        def rdk(p, n):
            bk.set(slot(KRING[p % 4]))
            S.lds(f"ds_read_b128 {vr(KF+4*(n%NKF),4)}, v{vKA} offset:{(n%2)*512 + (n//2)*64}", ("K", p, n))
        nv = 8 * NZ
        def exp_cvt(sp):
            ops = []
            for k in range(nv + 3):
                if k < nv: ops.append(f"v_exp_f32 v{EX+k}, v{sp+k}")
                if k >= 3 and k % 2 == 1: ops.append(f"v_cvt_pk_bf16_f32 v{PO+(k-3)//2}, v{EX+k-3}, v{EX+k-2}")
            return ops
        def rare_body(kind):
            sub = []
            par = int(kind[1])
            first = kind[0] == "f"
            sp, cur = (SA, SB) if par == 0 else (SB, SA)
            sub.append(f"L_rare_s{tag}_{kind}:")
            for a in range(NZ):
                b = sp + 8 * a
                sub.append(f"v_max3_f32 v{vT0+a}, v{b}, v{b+1}, v{b+2}")
                sub.append(f"v_max3_f32 v{vT0+a}, v{vT0+a}, v{b+3}, v{b+4}")
                sub.append(f"v_max3_f32 v{vT0+a}, v{vT0+a}, v{b+5}, v{b+6}")
                sub.append(f"v_max_f32 v{vT0+a}, v{vT0+a}, v{b+7}")
            for sw in ("v_permlane16_swap_b32", "v_permlane32_swap_b32"):
                for a in range(NZ): sub.append(f"v_mov_b32 v{vT1+a}, v{vT0+a}")
                sub.append("s_nop 1")
                for a in range(NZ): sub.append(f"{sw} v{vT0+a}, v{vT1+a}")
                for a in range(NZ): sub.append(f"v_max_f32 v{vT0+a}, v{vT0+a}, v{vT1+a}")
            for a in range(NZ):
                sub.append(f"v_sub_f32 v{vT0+a}, 0xc0e00000, v{vT0+a}")
                if not first:
                    sub.append(f"v_min_f32 v{vT0+a}, 0, v{vT0+a}")
                    sub.append(f"v_exp_f32 v{vT1+a}, v{vT0+a}")
                for r in range(4): sub.append(f"v_add_f32 v{NM+4*a+r}, v{NM+4*a+r}, v{vT0+a}")
                for r in range(8): sub.append(f"v_add_f32 v{sp+8*a+r}, v{sp+8*a+r}, v{vT0+a}")
                if kind[0] != "n":
                    for r in range(8): sub.append(f"v_add_f32 v{cur+8*a+r}, v{cur+8*a+r}, v{vT0+a}")
                if not first:
                    sub.append(f"v_mul_f32 v{vL+a}, v{vL+a}, v{vT1+a}")
                    sub.append(f"ds_write_b32 v{vAW}, v{vT1+a} offset:{par*448 + a*64}")
            sub += exp_cvt(sp)
            if not first:
                sub.append(f"s_lshl_b32 s{sA}, s{sW4}, 3"); sub.append(f"s_add_u32 s{sA}, s{sA}, {FLG + par*128}")
                sub.append(f"v_mov_b32 v{vT0}, s{sA}"); sub.append(f"v_mov_b32 v{vT2}, s{sBLK}")
                for a in range(NZ): sub.append(f"ds_write_b32 v{vT0}, v{vT2} offset:{4*a}")
            sub.append("s_waitcnt lgkmcnt(0)")
            sub.append(f"s_setpc_b64 s[{sRET}:{sRET+1}]")
            return sub
        def softmax_ops(p):
            sp = SB if p % 2 == 0 else SA
            par = (p - 1) % 2
            ops = exp_cvt(sp)
            ops.append(f"v_or3_b32 v{vT0}, v{PO}, v{PO+1}, v{PO+2}")
            nhead = None
            if NZ == 2:
                ops.append(f"v_or3_b32 v{vT1}, v{PO+3}, v{PO+4}, v{PO+5}")
                ops.append(f"v_or3_b32 v{vT0}, v{vT0}, v{PO+6}, v{PO+7}")
                ops.append(f"v_or_b32 v{vT0}, v{vT0}, v{vT1}")
            else:
                ops.append(f"v_or_b32 v{vT0}, v{vT0}, v{PO+3}")
            ops.append(f"v_and_b32 v{vT0}, s{sT}, v{vT0}")
            kind = ("q" if p < NB else "n") + str(par)
            def check():
                I(f"s_add_u32 s{sBLK}, s{sBLK}, 1")
                if p == 1:
                    for l in rare_body("f0")[1:-2]: I(l)
                else:
                    I(f"s_cbranch_vccnz L_stub_s{tag}_{p}")
                    S.lab(f"L_back_s{tag}_{p}")
                    rare_s.append((tag, p, kind))
            if p == 1: ops = []
            else:
                ops.append(f"v_cmp_ne_u32 vcc, 0, v{vT0}")
                ops += [None] * 3
            ops.append(check)
            for a in range(NZ):
                ops.append(lambda a=a: S.lds(f"ds_write_b128 v{vPW}, {vr(PO+4*a,4)} offset:{par*7168 + a*1024}", ("P", a)))
            for k in range(nv): ops.append(f"v_add_f32 v{vL+(k%NZ)}, v{vL+(k%NZ)}, v{EX+8*(k%NZ)+k//NZ}")
            if nosm: return [o for o in ops if callable(o)][1:]
            return ops
        def k_piece(j, k):
            if nodma and j >= 4: return
            if k == 8: I(f"s_add_u32 s{sKOFF}, s{sKOFF}, 4096")
            I(f"s_mov_b32 m0, {slot(KRING[j % 4]) + k*PIECE - (k%8)*512}")
            I("s_nop 0")
            S.vmem(f"buffer_load_dwordx4 v{vDM}, s[{S_K}:{S_K+3}], s{sKOFF} offen offset:{(k%8)*512}{ntf('K', j)} lds", ("K", j))
            if k == 15: I(f"s_add_u32 s{sKOFF}, s{sKOFF}, {-4096 & 0xffffffff if hot else 12288}")
        loader = s3k and NZ == 1
        def s_phase(p):
            cur = SA if p % 2 == 0 else SB
            do_qk, do_sm = p < NB, p >= 1
            sm = softmax_ops(p) if do_sm else []
            if fuse and NZ == 2 and p == 1:
                assert not S.vm
                I(f"s_cmp_lg_u32 s{sWAVE}, 0"); I("s_cbranch_scc1 L_noclr2")
                I(f"s_lshr_b32 s{sD}, s2, 5"); I(f"s_lshl_b32 s{sD}, s{sD}, 5"); I(f"v_mov_b32 v14, s{sD}")
                I(f"s_and_b32 s{sA}, s2, 31"); I(f"s_lshl_b32 s{sA}, 1, s{sA}"); I(f"v_mov_b32 v15, s{sA}")
                I("s_mov_b64 exec, 1")
                I(f"global_atomic_or v14, v15, s[{sDBG}:{sDBG+1}] sc1")
                I("s_mov_b64 exec, -1")
                S.lab("L_noclr2")
            kf = []
            if loader:
                for j in (([] if p == 0 else [3, 4] if p == 1 else [p + 3]) if early else [2, 3] if p == 0 else [p + 3]):
                    if j < NB: kf += [(lambda j=j, k=k: k_piece(j, k)) for k in range(16)]
            if do_qk:
                if p == 0:
                    for a in range(NZ):
                        for ks in range(2): S.lds(f"ds_read_b128 {vr(Q0+32*a+4*ks,4)}, v{vT0} offset:{a*8192 + ks*1024}", ("Q", a, ks))
                if p in ((0, 3) if early else (0, 2)):
                    for n in range(NKF - 2): rdk(p, n)
                if p == 0:
                    for ks in range(2, 8):
                        for a in range(NZ): S.lds(f"ds_read_b128 {vr(Q0+32*a+4*ks,4)}, v{vT0} offset:{a*8192 + ks*1024}", ("Q", a, ks))
                ng = 16 * NZ
                f0, f1 = (sfirst, slast) if NZ == 2 else (s3f, 15)
                fil = spread(ng, sm, f0, f1) if sm else [[] for _ in range(ng)]
                if kf: fil = [a + b for a, b in zip(spread(ng, kf, s3first, s3last), fil)]
                for n in range(16):
                    ks, y = n // 2, n % 2
                    for a in range(NZ):
                        if y == 0: S.wl(("K", p, n), ("K", p, n + 1), ("Q", a, ks))
                        if not noS:
                            if ks == 0: I(f"v_mfma_f32_16x16x32_bf16 {vr(cur+8*a+4*y,4)}, {vr(KF+4*(n%NKF),4)}, {vr(Q0+32*a,4)}, {vr(NM+4*a,4)}")
                            else: I(mfma(cur + 8 * a + 4 * y, KF + 4 * (n % NKF), Q0 + 32 * a + 4 * ks))
                        if a == NZ - 1:
                            m = n + NKF - 2
                            if m < 16: rdk(p, m)
                            elif p + 1 < NB and p != (2 if early else 1): rdk(p + 1, m - 16)
                        S.items(fil[n * NZ + a])
                S.wl(("P", 0), ("P", 1))
                if p == 0: S.wv(("V", 0), *([("K", 2)] if early else []))
                if p == 1 and early: S.wv(("V", 1))
                if loader and p >= (2 if early else 1): S.wv(("K", p + 2), ("K", p + 1))
                if p + 1 >= NB: I("s_nop 7")
            else:
                S.items(sm)
                for sw in ("v_permlane16_swap_b32", "v_permlane32_swap_b32"):
                    for a in range(NZ): I(f"v_mov_b32 v{vT0+a}, v{vL+a}")
                    I("s_nop 1")
                    for a in range(NZ): I(f"{sw} v{vL+a}, v{vT0+a}")
                    for a in range(NZ): I(f"v_add_f32 v{vL+a}, v{vL+a}, v{vT0+a}")
                for a in range(NZ): I(f"v_rcp_f32 v{vL+a}, v{vL+a}")
                I("s_nop 0")
                for a in range(NZ): S.lds(f"ds_write_b32 v{vAW}, v{vL+a} offset:{RL-ALPHA + a*64}", ("P", 2))
                S.wl0()
            S.bar()
        for p in range(0, LOOP0): s_phase(p)
        stamp(S, 3)
        I(f"s_mov_b32 s{sCNT}, {(LOOPN-LOOP0)//4}")
        if lalign: S.L.append(f".p2align {lalign}")
        S.lab(f"L_sloop{tag}")
        st = (list(S.lg), bk.cur, S.nbar)
        stv = list(S.vm)
        for p in range(LOOP0, LOOP0 + 4): s_phase(p)
        assert [(t[0], t[1] - 4) for t in S.vm] == stv
        S.vm = [(t[0], t[1] + LOOPN - LOOP0 - 4) for t in S.vm]
        assert [(t[0], t[1] - 4, t[2]) for t in S.lg] == st[0] and bk.cur == st[1], (S.lg, st)
        I(f"s_sub_u32 s{sCNT}, s{sCNT}, 1"); I(f"s_cmp_lg_u32 s{sCNT}, 0"); I(f"s_cbranch_scc1 L_sloop{tag}")
        stamp(S, 4)
        S.lg = [(t[0], LOOPN, t[2]) for t in S.lg]
        S.nbar = st[2] + (LOOPN - LOOP0)
        for p in range(LOOPN, NB + 1): s_phase(p)
        stamp(S, 5)
        sub = []
        for kind in ("q0", "q1") + (("n1",) if NB % 2 == 0 else ("n0",)): sub += rare_body(kind)
        return sub
    I(f"s_cmp_eq_u32 s{sWAVE}, 3"); I("s_cbranch_scc1 L_swave3")
    S3 = E.fork()
    subs = swave(E, 2, "a")
    I("s_branch L_sjoin")
    S3.lab("L_swave3")
    subs += swave(S3, 1, "b")
    if fuse:
        S3.wv0()
        I(f"s_lshr_b32 s{sD}, s2, 5"); I(f"s_lshl_b32 s{sD}, s{sD}, 5"); I(f"v_mov_b32 v6, s{sD}")
        I(f"s_and_b32 s{sA}, s2, 4"); I(f"s_lshl_b32 s{sA}, 0x0f0f0f0f, s{sA}")
        spin(S3, f"global_load_dword v7, v6, s[{sDBG}:{sDBG+1}] sc1",
             [f"v_readfirstlane_b32 s{sD}, v7", "s_nop 4", f"s_and_b32 s{sD}, s{sD}, s{sA}", f"s_cmp_eq_u32 s{sD}, s{sA}"])
    assert S3.nbar == E.nbar
    E.lab("L_sjoin")
    S = E
    S.bar()
    stamp(S, 6)
    oproj(S, 0, lambda e, st: [])
    stamp(S, 7)
    nbarS = S.nbar
    if fuse:
        E.lab("L_final")
        final_reduce(S)
    if diag:
        I(f"s_cmp_lg_u32 s{sWAVE}, 0"); I("s_cbranch_scc1 L_done")
        I("s_waitcnt vmcnt(0)")
        stamp(S, 8)
        I("s_waitcnt lgkmcnt(0)")
        I("s_mov_b64 exec, 1")
        if dbgwg is not None:
            I(f"s_cmp_lg_u32 s2, {dbgwg}"); I("s_cbranch_scc1 L_done")
            I(f"v_mov_b32 v1, {128<<20}")
            for k in range(8):
                I(f"s_sub_u32 s{sA}, s{sTS+4*k+4}, s{sTS+4*k}"); I(f"v_mov_b32 v4, s{sA}")
                I(f"s_sub_u32 s{sA}, s{sTS+4*k+6}, s{sTS+4*k+2}"); I(f"v_mov_b32 v5, s{sA}")
                I(f"global_store_dword v1, v4, s[58:59] offset:{4*k}"); I(f"global_store_dword v1, v5, s[58:59] offset:{32+4*k}")
            I("s_endpgm")
        I(f"s_lshl_b32 s{sA}, s2, 7"); I(f"s_add_u32 s{sA}, s{sA}, {64<<20}"); I(f"v_mov_b32 v1, s{sA}")
        for k in range(9):
            I(f"v_mov_b32 v4, s{sTS+4*k}"); I(f"v_mov_b32 v5, s{sTS+4*k+2}")
            I(f"global_store_dwordx2 v1, v[4:5], s[58:59] offset:{8*k}")
            I("s_nop 1")
    I("s_endpgm")

    I = O.I
    O.lab("L_owave")
    qproj(O, 1)
    vVA, vPA, vWX, vFA, vF = 1, 2, 9, 4, 5
    VF, OA, OX, PF = 12, 68, 180, 228
    tr_lane(O, vVA, 6, 3)
    I(f"v_lshlrev_b32 v{vPA}, 4, v0")
    I(f"v_and_b32 v{vFA}, 7, v0"); I(f"v_lshlrev_b32 v{vFA}, 2, v{vFA}"); I(f"v_add_u32 v{vFA}, {FLG}, v{vFA}")
    I(f"v_lshrrev_b32 v{vWX}, 3, v0"); I(f"v_mul_u32_u24 v{vWX}, {16*896}, v{vWX}")
    I(f"v_and_b32 v6, 7, v0"); I(f"v_lshl_add_u32 v{vWX}, v6, 4, v{vWX}")
    I(f"s_mul_i32 s{sA}, s{sW4}, {4*896}"); I(f"v_add_u32 v{vWX}, s{sA}, v{vWX}")
    I(f"s_lshl_b32 s{sPOFF}, s{sROTO}, 7")
    def wo_piece(f, i, O=None):
        O = O or Ocur[0]
        if nowo and f >= 6: return
        O.I(f"s_add_u32 m0, s{sWLDS}, {WOSLOT[f] + i*PIECE}")
        O.I(f"s_add_u32 s{sD}, s{sPOFF}, {((f%2)*128 + i)*896}")
        O.vmem(f"buffer_load_dwordx4 v{vWX}, s[{S_WO}:{S_WO+3}], s{sD} offen lds", ("WO", f))
        if i == 3 and f % 2 == 1:
            O.I(f"s_add_u32 s{sPOFF}, s{sPOFF}, 128"); O.I(f"s_cmp_eq_u32 s{sPOFF}, 896"); O.I(f"s_cselect_b32 s{sPOFF}, 0, s{sPOFF}")
    Ocur = [O]
    O.wl0()
    if prio == "O": I("s_setprio 1")
    O.wv(("K", 0), ("K", 1))
    rare_o = []; osubs = []
    def owave(O, tag, chk=False):
        I = O.I
        big = bal and tag == "b"
        nsl = 7 if big else 4
        voff = [384 + 32 * sl for sl in range(4)] + [128 * e + 96 for e in range(3)] if big else [32 * sl for sl in range(4)]
        def units(z):
            if not bal: return [0, 1, 2, 3]
            if big: return [0, 1, 2, 3] + ([4, 5, 6] if z >= balz else [])
            return [0, 1, 2] + ([3] if z < balz else [])
        acc = lambda z, sl: OA + 16 * z + 4 * sl if sl < 4 else OX + 12 * (z - 3) + 4 * (sl - 4)
        if not big: I(f"s_lshl_b32 s{sA}, s{sW4}, 7"); I(f"v_add_u32 v{vVA}, s{sA}, v{vVA}")
        O.bar()
        bv = Base(O, vVA)
        def rdv1(j, k):
            sl, y = k // 2, k % 2
            bv.set(slot(VRING[j % 4]))
            O.lds(f"ds_read_b64_tr_b16 {vr(VF+28*(j%2)+4*sl+2*y,2)}, v{vVA} offset:{y*512 + voff[sl]}", ("V", j, sl))
        def rdv(j):
            for k in range(2 * nsl): rdv1(j, k)
        bo, b2 = Base(O, 6), Base(O, 7)
        def pack(z):
            us = units(z)
            ops = [f"v_cvt_pk_bf16_f32 v{acc(z,sl&~1 if sl < 4 else sl)+2*(sl&1 if sl < 4 else 0)+n}, v{acc(z,sl)+2*n}, v{acc(z,sl)+2*n+1}" for sl in us for n in range(2)]
            def wr():
                if not (0 <= OBUF[z] - bo.cur < 57000):
                    bo.set(OBUF[z])
                    if big: b2.set(OBUF[z])
                O.lds(f"ds_write_b128 v6, {vr(acc(z,0),4)} offset:{OBUF[z]-bo.cur}", ("W",))
                if 3 in us: O.lds(f"ds_write_b128 v6, {vr(acc(z,2),4)} offset:{OBUF[z]-bo.cur + 1024}", ("W",))
                else: O.lds(f"ds_write_b64 v6, {vr(acc(z,2),2)} offset:{OBUF[z]-bo.cur + 1024}", ("W",))
                for sl in us:
                    if sl >= 4: O.lds(f"ds_write_b64 v7, {vr(acc(z,sl),2)} offset:{OBUF[z]-b2.cur + (2*(sl-4)+1)*1024 + 8}", ("W",))
            return ops + [wr]
        def o_phase(p):
            j = p - 2
            pieces = []
            def kv(kind, jj): return [(lambda i=i: kv_piece(O, kind, jj, i)) for i in range(4)]
            if p == 0 and not s3k: pieces += kv("K", 2)
            if p + 1 < NB and not (early and p == 0): pieces += kv("V", p + 1)
            if p + 3 < NB:
                if not s3k: pieces += kv("K", p + 3)
            else:
                for f in {NB - 3: [0], NB - 2: [1], NB - 1: [2], NB: [3, 4], NB + 1: []}[p]:
                    pieces += [(lambda i=i, f=f: wo_piece(f, i, O)) for i in range(4)]
            if j < 0:
                O.items(pieces)
                if p == 0:
                    for r in range(OA, OA + 112 + (48 if big else 0)): I(f"v_mov_b32 v{r}, 0")
                if p == 1: rdv(0)
            else:
                par = j % 2
                def rdp(z): O.lds(f"ds_read_b128 {vr(PF+4*(z%npf),4)}, v{vPA} offset:{par*7168 + z*1024}", ("P", z))
                O.lds(f"ds_read_b32 v{vF}, v{vFA} offset:{par*128}", ("F",))
                for z in range(npf): rdp(z)
                I(f"s_add_u32 s{sBLK}, s{sBLK}, 1")
                fil = spread(8, pieces, dmafirst, dmalast) if pieces else [[] for _ in range(8)]
                O.items(fil[0])
                O.wl(("F",))
                I(f"v_cmp_eq_u32 vcc, s{sBLK}, v{vF}")
                I(f"s_cbranch_vccnz L_stub_o{tag}{p}")
                O.lab(f"L_back_o{tag}{p}")
                rare_o.append((tag, p, par))
                kv_ = 0
                if p == NB + 1:
                    I(f"s_lshl_b32 s{sA}, s{sW4}, 11"); I(f"v_add_u32 v6, s{sA}, v{vPA}"); I(f"v_mov_b32 v7, v{vPA}")
                for z in range(7):
                    if p == NB + 1 and z >= 2: O.items(pack(z - 2)) if z > 2 else None
                    for sl in units(z):
                        O.wl(("P", z), ("V", j, sl))
                        if not noO: I(mfma(acc(z, sl), VF + 28 * (j % 2) + 4 * sl, PF + 4 * (z % npf)))
                        if z >= vz0 and j + 1 < NB and kv_ < 2 * nsl: rdv1(j + 1, kv_); kv_ += 1
                    if p == NB + 1 and z == 2: O.items(pack(0))
                    if z + npf < 7: rdp(z + npf)
                    O.items(fil[z + 1])
            if p <= NB:
                if p == 0: O.wv(("V", 0), ("K", 2))
                else: O.wv(("K", p + 2), ("V", p), ("K", p + 1))
                if p == NB: O.wl0()
                O.bar()
        for p in range(0, LOOP0): o_phase(p)
        I(f"s_mov_b32 s{sCNT}, {(LOOPN-LOOP0)//4}")
        O.lab(f"L_oloop{tag}")
        st = (list(O.lg), list(O.vm), bv.cur, O.nbar)
        for p in range(LOOP0, LOOP0 + 4): o_phase(p)
        sh = lambda q, d: [(t[0], t[1] + d) + tuple(t[2:]) for t in q]
        assert sh(O.lg, -4) == st[0] and sh(O.vm, -4) == st[1] and bv.cur == st[2], (O.lg, O.vm, st)
        I(f"s_sub_u32 s{sCNT}, s{sCNT}, 1"); I(f"s_cmp_lg_u32 s{sCNT}, 0"); I(f"s_cbranch_scc1 L_oloop{tag}")
        d = LOOPN - LOOP0 - 4
        O.lg = sh(O.lg, d); O.vm = sh(O.vm, d); O.nbar = st[3] + (LOOPN - LOOP0)
        for p in range(LOOPN, NB + 2): o_phase(p)
        for z in range(5, 7): O.items(pack(z))
        O.wv(("WO", 0), ("WO", 1), ("WO", 2))
        O.wl0()
        for par in range(2):
            osubs.append(f"L_rare_o{tag}_{par}:")
            osubs.append("s_nop 7"); osubs.append(f"s_mov_b32 s{sA}, vcc_lo")
            osubs.extend([f"v_and_b32 v6, 15, v0", f"v_lshlrev_b32 v6, 2, v6", f"v_add_u32 v6, {ALPHA + par*448}, v6"])
            for z in range(7):
                osubs.extend([f"s_bitcmp1_b32 s{sA}, {z}", f"s_cbranch_scc0 L_rare_o{tag}_{par}_{z}", f"ds_read_b32 v{vF}, v6 offset:{z*64}", "s_waitcnt lgkmcnt(0)"])
                for sl in units(z):
                    osubs.extend([f"v_mul_f32 v{acc(z,sl)+r}, v{vF}, v{acc(z,sl)+r}" for r in range(4)])
                osubs.append(f"L_rare_o{tag}_{par}_{z}:")
            osubs.append("s_nop 1"); osubs.append(f"s_setpc_b64 s[{sRET}:{sRET+1}]")
    if bal:
        I(f"s_cmp_eq_u32 s{sWAVE}, 7"); I("s_cbranch_scc1 L_owave7")
        O7 = O.fork()
        owave(O, "a")
        I("s_branch L_ojoin")
        O7.lab("L_owave7")
        owave(O7, "b", chk=fuse)
        assert O7.nbar == O.nbar and O7.vm == O.vm and O7.lg == O.lg, (O7.vm, O.vm)
        O.lab("L_ojoin")
    else:
        owave(O, "a")
    O.bar()
    def fills_at(e, st):
        when, j = st
        if when == "pre":
            e.wv(*[("WO", f) for f in range(min(14, 2 * j + 3))])
            return []
        fl = ({0: [5], 1: [6, 7, 8], 2: [9, 10], 3: [11, 12], 4: [13]} if wosplit else {0: [5], 1: [6, 7, 8, 9, 10], 2: [11, 12], 3: [13]}).get(j, [])
        return [(lambda f=f, i=i: wo_piece(f, i)) for f in fl for i in range(4)]
    oproj(O, 1, fills_at)
    assert O.nbar == nbarS, (O.nbar, nbarS)
    if fuse: I("s_branch L_final")
    O.lab("L_done"); I("s_endpgm")
    for tag, site, kind in rare_s:
        O.lab(f"L_stub_s{tag}_{site}"); I(f"s_call_b64 s[{sRET}:{sRET+1}], L_rare_s{tag}_{kind}"); I(f"s_branch L_back_s{tag}_{site}")
    for l in subs: (O.lab(l[:-1]) if l.endswith(":") else I(l))
    for tag, site, par in rare_o:
        O.lab(f"L_stub_o{tag}{site}"); I(f"s_call_b64 s[{sRET}:{sRET+1}], L_rare_o{tag}_{par}"); I(f"s_branch L_back_o{tag}{site}")
    for l in osubs: (O.lab(l[:-1]) if l.endswith(":") else I(l))

    E.lab("L_code_end")
    R = Em(E.L); I = R.I
    R.L += kernel_head("reduce_kernel")
    I(f"s_cmp_ge_u32 s2, {1792//k2w}"); I("s_cbranch_scc1 L_rdone")
    I("s_load_dwordx2 s[8:9], s[0:1], 96"); I("s_load_dwordx2 s[12:13], s[0:1], 80")
    if dbgwg is not None:
        I("s_cmp_lg_u32 s2, 0"); I("s_cbranch_scc1 L_rnodbg")
        I("s_load_dwordx4 s[24:27], s[0:1], 88"); I("s_waitcnt lgkmcnt(0)")
        I("v_and_b32 v2, 15, v0"); I("v_lshlrev_b32 v2, 2, v2"); I(f"v_add_u32 v3, {128<<20}, v2")
        I("global_load_dword v4, v3, s[26:27]"); I("s_waitcnt vmcnt(0)"); I("global_store_dword v2, v4, s[24:25]"); I("s_waitcnt vmcnt(0)")
        R.lab("L_rnodbg")
    I("v_lshrrev_b32 v1, 6, v0"); I("v_and_b32 v0, 63, v0"); I("v_readfirstlane_b32 s3, v1")
    I(f"s_mul_i32 s4, s2, {k2w}"); I("s_add_u32 s4, s4, s3")
    I(f"s_mov_b32 s5, {(2**32 + 111)//112}"); I("s_mul_hi_u32 s5, s4, s5")
    I("s_mul_i32 s6, s5, 112"); I("s_sub_u32 s6, s4, s6")
    I(f"s_mul_i32 s17, s5, {16*PART_HEAD}"); I("s_lshl_b32 s18, s6, 10"); I("s_add_u32 s17, s17, s18")
    I("s_and_b32 s25, s6, 9"); I("s_cmp_eq_u32 s25, 9"); I("s_cselect_b32 s25, 3, 4")
    I("v_lshlrev_b32 v2, s25, v0")
    I("s_waitcnt lgkmcnt(0)")
    I("s_add_u32 s8, s8, s17"); I("s_addc_u32 s9, s9, 0"); I(f"s_mov_b32 s10, {15*PART_HEAD + 1024}"); I("s_mov_b32 s11, 0x20000")
    I(f"s_mov_b32 s14, {8*112*896*2}"); I("s_mov_b32 s15, 0x20000")
    I("s_mov_b32 s19, 0")
    for h in range(16):
        I(f"buffer_load_dwordx4 {vr(8+4*h,4)}, v2, s[8:11], s19 offen")
        if h < 15: I(f"s_add_u32 s19, s19, {PART_HEAD}")
    I("s_bfe_u32 s20, s6, 0x10003"); I("s_lshl_b32 s20, s20, 1"); I("s_and_b32 s21, s6, 1"); I("s_add_u32 s20, s20, s21")
    I("s_and_b32 s22, s5, 7"); I("s_mul_i32 s22, s22, 112"); I("s_lshl_b32 s23, s20, 5"); I("s_add_u32 s22, s22, s23")
    I("v_and_b32 v3, 15, v0"); I("v_add_u32 v3, s22, v3"); I("v_mul_u32_u24 v3, 1792, v3")
    I("s_lshr_b32 s22, s5, 3"); I("s_mul_i32 s22, s22, 896"); I("s_lshr_b32 s23, s6, 4"); I("s_lshl_b32 s23, s23, 7"); I("s_add_u32 s22, s22, s23")
    I("s_bfe_u32 s23, s6, 0x20001"); I("s_lshl_b32 s23, s23, 5"); I("s_add_u32 s22, s22, s23")
    I("v_lshrrev_b32 v4, 4, v0"); I("v_lshl_add_u32 v3, v4, 3, v3"); I("v_add_u32 v3, s22, v3")
    I(f"s_mov_b32 s24, {16*1792}")
    for h in range(16):
        I(f"s_waitcnt vmcnt({15-h})")
        for d_ in range(4):
            src = 8 + 4 * h + d_
            if h == 0:
                I(f"v_lshlrev_b32 v{72+2*d_}, 16, v{src}"); I(f"v_and_b32 v{73+2*d_}, 0xffff0000, v{src}")
            else:
                I(f"v_lshlrev_b32 v5, 16, v{src}"); I(f"v_and_b32 v6, 0xffff0000, v{src}")
                I(f"v_add_f32 v{72+2*d_}, v{72+2*d_}, v5"); I(f"v_add_f32 v{73+2*d_}, v{73+2*d_}, v6")
    for d_ in range(4): I(f"v_cvt_pk_bf16_f32 v{8+d_}, v{72+2*d_}, v{73+2*d_}")
    I("buffer_store_dwordx2 v[8:9], v3, s[12:15], 0 offen")
    I("s_cmp_eq_u32 s20, 3"); I("s_cbranch_scc1 L_rdone")
    I("buffer_store_dwordx2 v[10:11], v3, s[12:15], s24 offen")
    R.lab("L_rdone"); I("s_endpgm")
    if fuse: del E.L[E.L.index(".globl reduce_kernel"):]
    tail = ['.section .rodata,"a"'] + kd(NAME + "_kernel") + ([] if fuse else kd("reduce_kernel", vgpr=80, sgpr=32, accum=80))
    return "\n".join(head + E.L + tail) + "\n"

if __name__ == "__main__":
    kw = eval("dict(%s)" % (sys.argv[2] if len(sys.argv) > 2 else ""))
    open(sys.argv[1], "w").write(gen(**kw))
```
